```python
import torch

def _softmax(x, axis=-1):
    return torch.softmax(x, dim=axis)
def _gelu(x):
    return torch.nn.functional.gelu(x, approximate="tanh")
def _silu(x):
    return torch.nn.functional.silu(x)
def _sigmoid(x):
    return torch.sigmoid(x)
def _layernorm(x, axis=-1, eps=1e-5):
    m = x.mean(dim=axis, keepdim=True)
    v = x.var(dim=axis, keepdim=True, unbiased=False)
    return (x - m) / torch.sqrt(v + eps)
def _scatter_add(tgt, idx, src, axis=0):
    return tgt.clone().index_add_(axis, idx, src)
def _segment_sum(src, seg, n):
    out = torch.zeros((n,) + src.shape[1:], dtype=src.dtype)
    return out.index_add_(0, seg, src)
def _pad(x, pw):
    flat = tuple(v for pair in reversed(pw) for v in pair)
    return torch.nn.functional.pad(x, flat)

kernel_name = 'parallel_sum__grouped_kv_mqa__dense_activation_silu__prompt'

def setup_inputs():

    _w = (lambda a: (lambda t: t.to(torch.bfloat16) if t.is_floating_point() else t)(torch.as_tensor(a)))
    def _A_setup():
        B, S, D, H = 1, 2048, 576, 32
        Dh = D // H
        return {
            "x": _w((lambda *s: torch.randn(*s, dtype=torch.bfloat16) * 0.05)(B, S, D)),
            "wq": _w((lambda *s: torch.randn(*s, dtype=torch.bfloat16) * 0.05)(D, H * Dh)),
            "wk": _w((lambda *s: torch.randn(*s, dtype=torch.bfloat16) * 0.05)(D, Dh)),
            "wv": _w((lambda *s: torch.randn(*s, dtype=torch.bfloat16) * 0.05)(D, Dh)),
            "wo": _w((lambda *s: torch.randn(*s, dtype=torch.bfloat16) * 0.05)(H * Dh, D)),
        }
    _A_in = _A_setup()

    def _B_setup():
        B, S, D, F = 1, 2048, 576, 4608
        return {
            "x": _w((lambda *s: torch.randn(*s, dtype=torch.bfloat16) * 0.05)(B, S, D)),
            "w1": _w((lambda *s: torch.randn(*s, dtype=torch.bfloat16) * 1.6)(D, F) * (D ** -0.5)),
            "w2": _w((lambda *s: torch.randn(*s, dtype=torch.bfloat16) * 0.2)(F, D) * (F ** -0.5)),
        }
    _B_in = _B_setup()

    return {
        "A_x": _A_in["x"],
        "A_wq": _A_in["wq"],
        "A_wk": _A_in["wk"],
        "A_wv": _A_in["wv"],
        "A_wo": _A_in["wo"],
        "B_x": _B_in["x"],
        "B_w1": _B_in["w1"],
        "B_w2": _B_in["w2"],
    }

def reference(A_x, A_wq, A_wk, A_wv, A_wo, B_x, B_w1, B_w2):
    def _A_ref(x, wq, wk, wv, wo):
        B, S, D = x.shape
        H = 32
        Dh = D // H
        q = (lambda x, *d: x.permute(*d))((x @ wq).reshape(B, S, H, Dh), 0, 2, 1, 3)
        k = x @ wk
        v = x @ wv
        scores = torch.einsum("bhqd,bkd->bhqk", q, k) * (Dh ** -0.5)
        p = _softmax(scores, axis=-1)
        o = torch.einsum("bhqk,bkd->bhqd", p, v)
        return (lambda x, *d: x.permute(*d))(o, 0, 2, 1, 3).reshape(B, S, H * Dh) @ wo

    def _B_ref(x, w1, w2):
        h = torch.einsum("bsd,df->bsf", x, w1)
        h = _silu(h)
        out = torch.einsum("bsf,fd->bsd", h, w2)
        return out

    x = A_x
    xn = _layernorm(x, axis=-1)
    return x + _A_ref(xn, A_wq, A_wk, A_wv, A_wo) + _B_ref(xn, B_w1, B_w2)
```

```python
import re


class E:
    def __init__(self):
        self.lines = []
        self.vmq = []
        self.lgq = []
        self.uid = 0

    def __call__(self, s):
        for ln in s.split("\n"):
            ln = ln.strip()
            if ln:
                self.lines.append(ln)

    def label(self, name):
        self.lines.append(name + ":")

    def new(self, prefix):
        self.uid += 1
        return f"{prefix}_{self.uid}"

    def vm(self, s, tag=None):
        self(s)
        self.vmq.append(tag)

    def lg(self, s, tag=None):
        self(s)
        self.lgq.append(tag)

    @staticmethod
    def _need(q, tags):
        idx = [i for i, t in enumerate(q) if t in tags]
        if not idx:
            return None
        return len(q) - 1 - max(idx)

    def wait(self, vm=(), lg=()):
        vm = {vm} if isinstance(vm, (str, tuple)) and not isinstance(vm, list) and vm != () else set(vm)
        lg = {lg} if isinstance(lg, (str, tuple)) and not isinstance(lg, list) and lg != () else set(lg)
        parts = []
        n = self._need(self.vmq, vm)
        if n is not None:
            n = min(n, 63)
            parts.append(f"vmcnt({n})")
            self.vmq = self.vmq[len(self.vmq) - n:] if n else []
        n = self._need(self.lgq, lg)
        if n is not None:
            n = min(n, 15)
            parts.append(f"lgkmcnt({n})")
            self.lgq = self.lgq[len(self.lgq) - n:] if n else []
        if parts:
            self("s_waitcnt " + " ".join(parts))

    def wait_all(self, vm=False, lg=False):
        parts = []
        if vm:
            parts.append("vmcnt(0)")
            self.vmq = []
        if lg:
            parts.append("lgkmcnt(0)")
            self.lgq = []
        self("s_waitcnt " + " ".join(parts))

    def nop(self, n):
        while n > 0:
            k = min(n, 16)
            self(f"s_nop {k-1}")
            n -= k

    def text(self):
        out = []
        for ln in self.lines:
            out.append(ln if ln.endswith(":") or ln.startswith(".") else "    " + ln)
        return "\n".join(out)


_R = re.compile(r"^-?\|?(?:abs\()?([vsa])(?:(\d+)|\[(\d+):(\d+)\])\)?\|?$")


def regs(tok):
    tok = tok.strip()
    if tok in ("vcc",):
        return {("s", "vcc")}
    if tok in ("vcc_lo", "vcc_hi"):
        return {("s", "vcc")}
    if tok in ("exec", "exec_lo", "exec_hi"):
        return {("s", "exec")}
    if tok == "m0":
        return {("s", "m0")}
    m = _R.match(tok)
    if not m:
        return set()
    k = m.group(1)
    if m.group(2) is not None:
        return {(k, int(m.group(2)))}
    return {(k, i) for i in range(int(m.group(3)), int(m.group(4)) + 1)}


TRANS = ("v_exp_f32", "v_rcp_f32", "v_rsq_f32", "v_log_f32", "v_sqrt_f32")


class I:
    def __init__(self, ln):
        self.ln = ln
        ln = ln.split(";")[0].strip()
        parts = ln.split(None, 1)
        self.op = parts[0]
        rest = parts[1] if len(parts) > 1 else ""
        ops = [o.strip() for o in rest.split(",")] if rest else []
        if ops:
            ops[-1] = ops[-1].split()[0] if ops[-1].split() else ops[-1]
        self.ops = ops
        op = self.op
        self.mfma = op.startswith("v_mfma") or op.startswith("v_smfmac")
        self.valu = op.startswith("v_") and not self.mfma
        self.trans = any(op.startswith(t) for t in TRANS)
        self.vmem = op.startswith("buffer_") or op.startswith("global_")
        self.ds = op.startswith("ds_")
        self.salu = op.startswith("s_")
        self.dpp = "_dpp" in op or "row_" in ln or "quad_perm" in ln
        self.perml = op.startswith("v_permlane")
        self.rdlane = op.startswith("v_readfirstlane") or op.startswith("v_readlane")
        self.lds_dma = self.vmem and re.search(r"\blds\b", ln) is not None
        R = [regs(o) for o in ops]
        self.w = set()
        self.r = set()
        self.a = self.b = self.c = set()
        self.passes = 0
        self.states = 1
        if op == "s_nop":
            self.states = int(ops[0], 0) + 1
        elif self.mfma:
            self.passes = 8 if "32x32" in op else 4
            self.w = R[0]
            self.a, self.b = R[1], R[2]
            if op.startswith("v_smfmac"):
                self.c = R[0]
                self.r = R[0] | R[1] | R[2] | R[3]
                self.b = R[2] | R[3]
            else:
                self.c = R[3]
                self.r = R[1] | R[2] | R[3]
        elif self.valu:
            self.w = set(R[0])
            srcs = R[1:]
            if op.startswith("v_cmp"):
                pass
            if "_co_" in op:
                self.w |= R[1]
                srcs = R[2:]
            for s in srcs:
                self.r |= s
            if self.perml:
                self.w |= R[1]
                self.r |= R[0]
            if op.startswith(("v_fmac", "v_dot2c")) or self.dpp:
                self.r |= R[0]
            if op.startswith("v_cndmask") and len(ops) == 3:
                self.r |= {("s", "vcc")}
        elif self.vmem:
            if "load" in op and not self.lds_dma:
                self.w = R[0]
                for s in R[1:]:
                    self.r |= s
            else:
                for s in R:
                    self.r |= s
                if "atomic" in op and "sc0" in ln:
                    self.w = R[0]
            self.wide_store = ("store_dwordx4" in op or "store_dwordx3" in op)
            self.data = R[0] if ("store" in op and op.startswith("buffer_")) else set()
            if self.lds_dma:
                self.r |= {("s", "m0")}
        elif self.ds:
            if "read" in op or "rtn" in op:
                self.w = R[0]
                for s in R[1:]:
                    self.r |= s
            else:
                for s in R:
                    self.r |= s
        elif self.salu:
            if op.startswith(("s_cmp", "s_cbranch", "s_branch", "s_waitcnt", "s_barrier", "s_setprio", "s_sleep", "s_endpgm", "s_bitcmp")):
                for s in R:
                    self.r |= s
            else:
                self.w = set(R[0]) if R else set()
                for s in R[1:]:
                    self.r |= s


def check_hazards(lines, trans_counts_two=True, window=24):
    ins = []
    labels = {}
    for ln in lines:
        if ln.endswith(":"):
            labels[ln[:-1]] = len(ins)
        elif ln.startswith(".") or ln.startswith(";"):
            continue
        else:
            ins.append(I(ln))
    probs = []

    def succ(i):
        x = ins[i]
        if x.op == "s_endpgm":
            return []
        if x.op == "s_branch":
            return [labels[x.ops[0]]]
        if x.op.startswith("s_cbranch"):
            return [i + 1, labels[x.ops[0]]]
        return [i + 1]

    def vg(s):
        return {r for r in s if r[0] in "va"}

    def sg(s):
        return {r for r in s if r[0] == "s"}

    def need(p, c):
        n = 0
        if p.valu:
            if c.mfma and vg(p.w) & c.r:
                n = max(n, 2)
            if p.trans and c.valu and not c.trans and vg(p.w) & c.r:
                n = max(n, 1)
            if (c.perml or c.dpp) and vg(p.w) & c.r:
                n = max(n, 2)
            if c.rdlane and vg(p.w) & c.r:
                n = max(n, 1)
            if c.vmem and sg(p.w) & c.r:
                n = max(n, 5)
            if c.valu and sg(p.w) & c.r:
                n = max(n, 2)
            if c.salu and sg(p.w) & c.r:
                n = max(n, 1)
        if p.mfma:
            big = 12 if p.passes == 8 else 8
            if (c.valu or c.vmem or c.ds) and (p.w & (c.r | c.w)):
                n = max(n, big)
            if c.mfma:
                if p.w & (c.a | c.b):
                    n = max(n, big)
                if p.w & c.c and not (p.w == c.c and p.passes == c.passes):
                    n = max(n, 10 if p.passes == 8 else 6)
                if p.w & c.w and not (p.w & c.c) and p.w != c.w:
                    n = max(n, 10 if p.passes == 8 else 6)
            if c.valu and p.c & c.w:
                n = max(n, 7 if p.passes == 8 else 3)
        if p.salu and ("s", "m0") in p.w and c.lds_dma:
            n = max(n, 1)
        if p.vmem and getattr(p, "wide_store", False) and p.data & c.w and c.valu:
            n = max(n, 2)
        return n

    for i, p in enumerate(ins):
        if not (p.valu or p.mfma or p.vmem or (p.salu and ("s", "m0") in p.w)):
            continue
        stack = [(s, 0) for s in succ(i)]
        seen = set()
        while stack:
            k, d = stack.pop()
            if k >= len(ins) or d >= 13 or (k, d) in seen:
                continue
            seen.add((k, d))
            c = ins[k]
            n = need(p, c)
            if n > d:
                probs.append(f"need {n} have {d}: [{i}] {p.ln}  ->  [{k}] {c.ln}")
            st = c.states
            if trans_counts_two and p.mfma and (c.trans or c.mfma):
                st = 2
            for s in succ(k):
                stack.append((s, d + st))
    return probs
```

```python
import sys, math, struct
from emit import E, check_hazards

NAME = "parallel_sum__grouped_kv_mqa__dense_activation_silu__prompt"

DEF = dict(NSL=2, STAMP=0, PRIO_F=1, PRIO_A=0, WARM2_EARLY=1, CODEPF=0, SPIN=1 << 16, FORCE_FB=0)

KM, KX, VT = 0, 65536, 73728
PART = 0x100000
OM, OX, FLAGS, STAMPS = 0x1400000, 0x1600000, 0x1700000, 0x1710000
WS_BYTES = 0x1800000
CH = 1040
RING, RSZ = 72 * CH, 15360
ATT = RING + 4 * RSZ
QE, KVW = ATT, ATT + 9216 + 64
QRSZ = 6144
OXA, OSL = 92160, 2560
MX = 153600
QX, SYNC = 162560, 163584
LDS_BYTES = 163840
C_A, C_KV, C_B, C_XN, C_H, C_G2, C_P, C_WO, C_R, C_O, C_G1, C_M = range(12)
SX, SW1, SW2, SWQ, SKV, SWO, SWS, SDBG, SOUT = (f"s[{b}:{b+3}]" for b in range(28, 64, 4))
sRB, sJ, sW, sA = "s64", "s65", "s66", "s67"
sRING, sK, sCNT, sNL2E, sSPIN, sPASS = "s68", "s69", "s70", "s71", "s72", "s73"
sKT = ("s74", "s75", "s76")
T0, T1, T2, T3, T4 = "s77", "s78", "s79", "s80", "s81"
sVM = "s[82:83]"
sIDX = "s84"
vL = "v250"
OOB = 0x40000000


def f2u(x):
    return struct.unpack("<I", struct.pack("<f", x))[0]


def vr(b, n=1):
    return f"v{b}" if n == 1 else f"v[{b}:{b+n-1}]"


class G:
    def __init__(self, **kw):
        self.p = dict(DEF)
        self.p.update(kw)
        self.e = E()
        self.nstamp = 0

    def stamp(self, i):
        if not self.p["STAMP"]:
            return
        e = self.e
        e("s_waitcnt lgkmcnt(0)")
        e.lgq = []
        e("s_memrealtime s[86:87]")
        e("s_waitcnt lgkmcnt(0)")
        e(f"s_mov_b32 s{88+i}, s86")

    def srd(self, srd, lo, nbytes):
        b = int(srd[2:srd.index(":")])
        self.e(f"s_mov_b32 s{b}, s{lo}\ns_mov_b32 s{b+1}, s{lo+1}\ns_mov_b32 s{b+2}, {nbytes}\ns_mov_b32 s{b+3}, 0x20000")

    def arrive(self, word, va, vb, rtn=None, val="1"):
        e = self.e
        e(f"v_mov_b32 {va}, {SYNC}\nv_mov_b32 {vb}, {val}\ns_mov_b64 exec, 1")
        if rtn is None:
            e.lg(f"ds_add_u32 {va}, {vb} offset:{4*word}")
            e("s_mov_b64 exec, -1")
        else:
            e(f"ds_add_rtn_u32 {vb}, {va}, {vb} offset:{4*word}")
            e.wait_all(lg=True)
            e(f"v_readfirstlane_b32 {rtn}, {vb}\ns_mov_b64 exec, -1\ns_nop 0")

    def lds_wait(self, word, target, va, vb, mask=None, out=None):
        e = self.e
        L, D = e.new("LW"), e.new("LWD")
        out = out or T0
        e(f"v_mov_b32 {va}, {SYNC}\ns_mov_b32 {sSPIN}, 0")
        e.label(L)
        e(f"ds_read_b32 {vb}, {va} offset:{4*word}")
        e.wait_all(lg=True)
        e(f"v_readfirstlane_b32 {out}, {vb}\ns_add_u32 {sSPIN}, {sSPIN}, 1")
        if mask is not None:
            e(f"s_and_b32 {T1}, {out}, {mask}\ns_cmp_ge_u32 {T1}, {target}")
        else:
            e(f"s_cmp_ge_u32 {out}, {target}")
        e(f"s_cbranch_scc1 {D}\ns_sleep 1\ns_cmp_lt_u32 {sSPIN}, {self.p['SPIN']}\ns_cbranch_scc1 {L}")
        e.label(D)

    def flag_wait(self, kind, va, vb):
        e = self.e
        L, D = e.new("FW"), e.new("FWD")
        e(f"v_and_b32 {va}, 7, {vL}\nv_lshlrev_b32 {va}, 2, {va}")
        e(f"s_lshl_b32 {T0}, {sRB}, 8\ns_add_u32 {T0}, {T0}, {FLAGS + 128*kind}\ns_mov_b32 {sSPIN}, 0")
        e.label(L)
        e(f"buffer_load_dword {vb}, {va}, {SWS}, {T0} offen sc1")
        e.wait_all(vm=True)
        e(f"v_cmp_ne_u32 vcc, 1, {vb}\ns_add_u32 {sSPIN}, {sSPIN}, 1\ns_nop 3")
        e(f"s_cbranch_vccz {D}\ns_sleep 2\ns_cmp_lt_u32 {sSPIN}, {self.p['SPIN']}\ns_cbranch_scc1 {L}")
        e.label(D)

    def flag_set(self, kind, val, va, vb):
        e = self.e
        e(f"s_lshl_b32 {T0}, {sRB}, 8\ns_lshl_b32 {T1}, {sJ}, 2\ns_add_u32 {T0}, {T0}, {T1}")
        e(f"s_add_u32 {T0}, {T0}, {FLAGS + 128*kind}\nv_mov_b32 {va}, 0\nv_mov_b32 {vb}, {val}\ns_mov_b64 exec, 1")
        e.vm(f"buffer_store_dword {vb}, {va}, {SWS}, {T0} offen sc1")
        e("s_mov_b64 exec, -1")

    def prologue(self):
        e, p = self.e, self.p
        nsl = p["NSL"]
        e("s_cmp_ge_u32 s2, 256\ns_cbranch_scc1 L_END")
        e("s_load_dwordx16 s[4:19], s[0:1], 0\ns_load_dwordx4 s[20:23], s[0:1], 64\ns_load_dwordx2 s[24:25], s[0:1], 80")
        if p["STAMP"]:
            e("s_memrealtime s[88:89]")
        e(f"v_and_b32 {vL}, 63, v0\nv_lshrrev_b32 v1, 6, v0")
        lg = nsl.bit_length() - 1
        e(f"s_and_b32 {T0}, s2, 7\ns_lshr_b32 {sIDX}, s2, 3")
        e(f"s_and_b32 {sJ}, {T0}, {8//nsl - 1}\ns_lshl_b32 {sJ}, {sJ}, {lg}\ns_and_b32 {T1}, {sIDX}, {nsl-1}\ns_add_u32 {sJ}, {sJ}, {T1}")
        e(f"s_lshr_b32 {sRB}, {T0}, {3-lg}\ns_lshl_b32 {sRB}, {sRB}, {5-lg}\ns_lshr_b32 {T1}, {sIDX}, {lg}\ns_add_u32 {sRB}, {sRB}, {T1}")
        e(f"v_readfirstlane_b32 {sW}, v1")
        e(f"v_lshrrev_b32 v120, 3, v0\nv_and_b32 v121, 7, v0\ns_lshl_b32 {T0}, {sRB}, 6")
        e(f"v_add_u32 v122, {T0}, v120\nv_mul_u32_u24 v122, 1152, v122\nv_lshl_add_u32 v122, v121, 4, v122")
        e(f"v_mul_u32_u24 v123, {CH}, v121\nv_lshl_add_u32 v123, v120, 4, v123\nv_add_u32 v124, {8*CH}, v123")
        e(f"s_and_b32 {sA}, {sW}, 3\nv_mov_b32 v216, 0\nv_mov_b32 v217, 0\nv_mov_b32 v222, 0")
        e("s_waitcnt lgkmcnt(0)")
        self.srd(SX, 4, 2359296)
        for u in range(9):
            e.vm(f"buffer_load_dwordx4 v[{4*u}:{4*u+3}], v122, {SX}, 0 offen offset:{128*u}", ("x", u))
        self.srd(SW1, 16, 5308416)
        self.srd(SW2, 18, 5308416)
        self.srd(SWQ, 6, 663552)
        self.srd(SWO, 12, 663552)
        self.srd(SWS, 24, WS_BYTES)
        self.srd(SDBG, 22, 256)
        self.srd(SOUT, 20, 2359296)
        e(f"s_cmp_ge_u32 {sJ}, 3\ns_cselect_b32 s44, s10, s8\ns_cselect_b32 s45, s11, s9\ns_mov_b32 s46, 20736\ns_mov_b32 s47, 0x20000")
        e(f"s_mov_b32 {sNL2E}, {f2u(-math.log2(math.e)):#x}\ns_mov_b32 {sPASS}, 0")
        e(f"s_cmp_ge_u32 {sW}, 4\ns_cbranch_scc1 L_PRO_A")
        q0 = list(e.vmq)
        self.pro_ffn()
        e("s_branch L_PRO_J")
        nf = len(e.vmq)
        e.vmq = list(q0)
        e.label("L_PRO_A")
        self.pro_att()
        assert len(e.vmq) == nf, (len(e.vmq), nf)
        e.vmq = q0 + [None] * (nf - len(q0))
        e.label("L_PRO_J")
        self.layernorm()

    def warm(self, srd, stride, sbase, i, dst):
        e, nsl = self.e, self.p["NSL"]
        rows = 18 * nsl
        e(f"s_and_b32 {T1}, {sRB}, {32//nsl - 1}\ns_mul_i32 {T1}, {T1}, {rows*stride}\ns_add_u32 {T1}, {T1}, {sbase}")
        e(f"v_add_u32 v130, {i}, {vL}\nv_mul_u32_u24 v131, 7282, v130\nv_lshrrev_b32 v131, 16, v131")
        e(f"v_mul_u32_u24 v132, 9, v131\nv_sub_u32 v132, v130, v132\nv_mul_u32_u24 v131, {stride}, v131")
        e(f"v_lshl_add_u32 v131, v132, 7, v131\nv_cmp_gt_u32 vcc, {rows*9}, v130\nv_mov_b32 v132, {OOB}\ns_nop 0\nv_cndmask_b32 v131, v132, v131, vcc")
        e.vm(f"buffer_load_dword {dst}, v131, {srd}, {T1} offen")

    def pro_ffn(self):
        e = self.e
        e(f"s_mul_i32 {T2}, {sW}, 5\ns_lshl_b32 {T3}, {sW}, 2\ns_cmp_eq_u32 {sW}, 3\ns_cselect_b32 {T2}, 14, {T2}\ns_cselect_b32 {T3}, 13, {T3}")
        e(f"s_mul_i32 {sRING}, {sW}, {RSZ}\ns_add_u32 {sRING}, {sRING}, {RING}")
        e(f"v_lshrrev_b32 v125, 2, {vL}\nv_and_b32 v126, 3, {vL}")
        e(f"s_mul_i32 {T0}, {sJ}, 1152\ns_lshl_b32 {T1}, {T2}, 6\ns_add_u32 {T0}, {T0}, {T1}")
        e(f"v_mul_u32_u24 v216, 9216, v125\nv_lshl_add_u32 v216, v126, 4, v216\nv_add_u32 v216, {T0}, v216")
        e(f"s_cmp_ge_u32 {sW}, 2\ns_cbranch_scc1 L_PF_L")
        q0 = list(e.vmq)
        for T in (5, 4):
            if T == 4:
                e.label("L_PF_L")
                e.vmq = list(q0)
            for s in range(3):
                e(f"s_mov_b32 {sK}, {s*147456}")
                for pc in range(T):
                    e(f"s_add_u32 m0, {sRING}, {s*5120 + 960*pc}\ns_nop 0")
                    e.vm(f"buffer_load_dwordx4 v216, {SW1}, {sK} offen offset:{64*pc} lds")
            if T == 5:
                e("s_branch L_PF_J")
            else:
                e(f"s_mul_i32 {T0}, {sJ}, 1152\ns_and_b32 {T4}, {sW}, 1\ns_mul_i32 {T4}, {T4}, 192")
                for i in range(3):
                    self.warm(SW1, 9216, T0, T4, f"v{251+i}")
                    e(f"s_add_u32 {T4}, {T4}, 64")
        e.label("L_PF_J")
        e(f"s_mul_i32 {T0}, {sJ}, 663552\ns_lshl_b32 {T1}, {T3}, 6\ns_add_u32 {T0}, {T0}, {T1}")
        e(f"v_mul_u32_u24 v217, 1152, v125\nv_lshl_add_u32 v217, v126, 4, v217\nv_add_u32 v217, {T0}, v217")
        e(f"v_lshrrev_b32 v127, 5, {vL}\nv_bfe_u32 v128, {vL}, 2, 2\nv_bfe_u32 v129, {vL}, 4, 1")
        e(f"v_lshlrev_b32 v129, 5, v129\nv_lshl_add_u32 v129, v126, 3, v129\nv_lshl_add_u32 v129, v128, 6, v129\nv_add_u32 v129, {sRING}, v129")
        e("v_lshl_add_u32 v218, v127, 9, v129\nv_lshl_add_u32 v219, v127, 8, v129")
        e(f"v_and_b32 v128, 31, {vL}\nv_lshlrev_b32 v128, 4, v128\nv_mul_u32_u24 v220, {CH}, v127\nv_add_u32 v220, v220, v128")
        e(f"s_mul_i32 {T0}, {T2}, {4*CH}\nv_add_u32 v221, {T0}, v220")
        e(f"s_lshl_b32 {T0}, {T3}, 15\ns_lshl_b32 {T1}, {sJ}, 10\ns_add_u32 {T0}, {T0}, {T1}\ns_mul_i32 {T1}, {sRB}, 589824\ns_add_u32 {T0}, {T0}, {T1}\ns_add_u32 {T0}, {T0}, {PART}")
        e(f"v_lshl_add_u32 v222, v127, 13, v128\nv_add_u32 v222, {T0}, v222")

    def pro_att(self):
        e, p = self.e, self.p
        e(f"v_lshrrev_b32 v125, 2, {vL}\nv_and_b32 v126, 3, {vL}\nv_mul_u32_u24 v125, 1152, v125\nv_mul_u32_u24 v126, 36, v126")
        e(f"s_mul_i32 {T0}, {sJ}, 144\ns_add_u32 {T0}, {T0}, 32\nv_add3_u32 v125, v125, v126, {T0}")
        e(f"s_mul_i32 {T2}, {sA}, {9*18432}\ns_mul_i32 {T3}, {sA}, {9*256}\ns_add_u32 {T3}, {T3}, {QE}")
        for i in range(9):
            e(f"s_add_u32 m0, {T3}, {256*i}\ns_add_u32 {T0}, {T2}, {18432*i}")
            e.vm(f"buffer_load_dword v125, {SWQ}, {T0} offen lds", "ext")
        e(f"s_cmp_ge_u32 {sJ}, 3\ns_cselect_b32 {T0}, 3, 0\ns_sub_u32 {T0}, {sJ}, {T0}\ns_cmp_ge_u32 {T0}, 3\ns_cselect_b32 {T0}, 0, {T0}")
        e(f"s_lshl_b32 {T1}, {T0}, 4\ns_min_u32 {T1}, {T1}, 20\nv_mul_u32_u24 v126, 36, {vL}\nv_add_u32 v126, {T1}, v126")
        e(f"s_mul_i32 {T2}, {sA}, 2304\ns_lshl_b32 {T3}, {sA}, 10\ns_add_u32 {T3}, {T3}, {KVW}")
        for i in range(2):
            e(f"s_add_u32 m0, {T3}, {4096*i}\ns_add_u32 {T0}, {T2}, {9216*i}")
            e.vm(f"buffer_load_dwordx4 v126, {SKV}, {T0} offen lds", "ext")
        e(f"s_mov_b32 m0, {KVW + 8192}\ns_mov_b32 {T0}, {8*2304}")
        e.vm(f"buffer_load_dwordx4 v126, {SKV}, {T0} offen lds", "ext")
        e(f"s_cmp_ge_u32 {sA}, 2\ns_cbranch_scc1 L_PA_2")
        q0 = list(e.vmq)
        e(f"s_mul_i32 {T0}, {sJ}, 663552\ns_mul_i32 {T4}, {sA}, 192")
        if not p["WARM2_EARLY"]:
            e(f"s_mov_b32 {T0}, {OOB}")
        for i in range(3):
            self.warm(SW2, 1152, T0, T4, f"v{251+i}")
            e(f"s_add_u32 {T4}, {T4}, 64")
        e("s_branch L_PA_J")
        e.label("L_PA_2")
        e.vmq = list(q0)
        rows = 18 * p["NSL"]
        e(f"s_and_b32 {T1}, {sRB}, {32//p['NSL'] - 1}\ns_mul_i32 {T1}, {T1}, {rows*1152}\ns_mul_i32 {T0}, {sJ}, 144\ns_add_u32 {T1}, {T1}, {T0}")
        e(f"v_lshrrev_b32 v127, 1, {vL}\nv_and_b32 v128, 1, {vL}\nv_mul_u32_u24 v127, 1152, v127\nv_mul_u32_u24 v128, 156, v128\nv_add_u32 v127, v127, v128")
        e(f"s_and_b32 {T0}, {sA}, 1\ns_mul_i32 {T0}, {T0}, {32*1152}\ns_add_u32 {T1}, {T1}, {T0}")
        if not p["WARM2_EARLY"]:
            e(f"s_mov_b32 {T1}, {OOB}")
        e.vm(f"buffer_load_dword v251, v127, {SWO}, {T1} offen")
        e(f"s_mov_b32 {T1}, {OOB}")
        e.vm(f"buffer_load_dword v252, v127, {SWO}, {T1} offen")
        e.vm(f"buffer_load_dword v253, v127, {SWO}, {T1} offen")
        e.label("L_PA_J")
        e(f"v_lshlrev_b32 v127, 2, {vL}\nv_add_u32 v127, {SYNC}, v127\nv_mov_b32 v128, 0")
        e("ds_write_b32 v127, v128")

    def layernorm(self):
        e = self.e
        e("v_mov_b32 v112, 0\nv_mov_b32 v113, 0\nv_mov_b32 v114, 0\nv_mov_b32 v115, 0\ns_mov_b32 s85, 0x3f803f80\ns_mov_b32 s86, 0xffff0000")
        for u in range(9):
            e.wait(vm=("x", u))
            if u == 0:
                self.stamp(1)
                e("s_mov_b32 s86, 0xffff0000")
            for k in range(4):
                r = 4 * u + k
                e(f"v_dot2_f32_bf16 v{112+(k&1)}, v{r}, s85, v{112+(k&1)}")
                e(f"v_lshlrev_b32 v{40+2*r}, 16, v{r}")
                e(f"v_dot2_f32_bf16 v{114+(k&1)}, v{r}, v{r}, v{114+(k&1)}")
                e(f"v_and_b32 v{41+2*r}, s86, v{r}")
        e("s_nop 2\nv_add_f32 v112, v112, v113\nv_add_f32 v114, v114, v115\ns_nop 1")
        for m in ("quad_perm:[1,0,3,2]", "quad_perm:[2,3,0,1]", "row_half_mirror"):
            e(f"v_add_f32_dpp v112, v112, v112 {m} row_mask:0xf bank_mask:0xf")
            e(f"v_add_f32_dpp v114, v114, v114 {m} row_mask:0xf bank_mask:0xf\ns_nop 1")
        inv = f"{f2u(1.0/576):#x}"
        e(f"v_mul_f32 v112, {inv}, v112\nv_mul_f32 v114, {inv}, v114\nv_fma_f32 v114, -v112, v112, v114\nv_max_f32 v114, 0, v114")
        e(f"v_add_f32 v114, {f2u(1e-5):#x}, v114\nv_rsq_f32 v114, v114\ns_nop 0\nv_mul_f32 v112, v112, v114")
        for u in range(9):
            for k in range(8):
                r = 40 + 8 * u + k
                e(f"v_fma_f32 v{r}, v{r}, v114, -v112")
            for k in range(4):
                e(f"v_cvt_pk_bf16_f32 v{4*u+k}, v{40+8*u+2*k}, v{41+8*u+2*k}")
            if u < 8:
                e(f"ds_write_b128 v123, v[{4*u}:{4*u+3}] offset:{8*CH*u}")
            else:
                e(f"ds_write_b128 v124, v[{4*u}:{4*u+3}] offset:{8*CH*7}")
        e(f"s_cmp_ge_u32 {sW}, 4\ns_cbranch_scc1 L_ATT")
        e("s_waitcnt lgkmcnt(0)\ns_barrier")

    def gemm(self, T, which, Tn):
        e = self.e
        vT = "v218" if which == 1 else "v219"
        sec = 256 if which == 1 else 512
        vD, SW, kstride = ("v216", SW1, 147456) if which == 1 else ("v217", SW2, 18432)

        def areg(buf, pc):
            return 160 + 20 * buf + 4 * pc

        def breg(buf, rt):
            return 200 + 8 * buf + 4 * rt

        def boff(s):
            m = (s - 4) // 6 if s >= 4 else -1
            i = s - 6 * m
            return 2080 * (i if i in (4, 5) else i - 6)

        def reads(s, pc):
            if pc < 2:
                e.lg(f"ds_read_b128 {vr(breg(s&1,pc),4)}, v220 offset:{boff(s)+512*pc}", ("B", s, pc))
            o = (s % 3) * 5120 + 1024 * pc
            e.lg(f"ds_read_b64_tr_b16 {vr(areg(s&1,pc),2)}, {vT} offset:{o}", ("A", s, pc))
            e.lg(f"ds_read_b64_tr_b16 {vr(areg(s&1,pc)+2,2)}, {vT} offset:{o+sec}", ("A", s, pc))

        def dma_list(s):
            sn = s + 3
            if sn < 36:
                return [(vD, SW, pc, ("d", sn, pc)) for pc in range(T)]
            if which == 1:
                return [("v217", SW2, pc, ("d2", sn - 36, pc)) for pc in range(Tn)]
            return []

        def step(s, first=False):
            dl = dma_list(s)
            if which == 1 and s >= 33:
                e(f"s_mov_b32 {sK}, {(s - 33)*18432}")
            for gi in range(2 * T):
                pc, rt = gi >> 1, gi & 1
                mine = []
                if rt == 0:
                    mine = [d for d in dl if d[2] == pc or (pc == T - 1 and d[2] > pc)]
                e.wait(lg=[("A", s, pc), ("B", s, 0)] if gi == 0 else ([("B", s, 1)] if gi == 1 else [("A", s, pc)]))
                if mine:
                    e(f"s_add_u32 m0, {sRING}, {(s % 3)*5120 + 960*mine[0][2]}")
                acc = vr(16 * gi, 16)
                e(f"v_mfma_f32_32x32x16_bf16 {acc}, {vr(areg(s&1,pc),4)}, {vr(breg(s&1,rt),4)}, {'0' if first else acc}")
                for n, d in enumerate(mine):
                    if n:
                        e(f"s_add_u32 m0, {sRING}, {(s % 3)*5120 + 960*d[2]}\ns_nop 0")
                    e.vm(f"buffer_load_dwordx4 {d[0]}, {d[1]}, {sK} offen offset:{64*d[2]} lds", d[3])
                if rt == 1 and s + 1 < 36:
                    if pc == 0 and s % 6 == 5:
                        e(f"v_add_u32 v220, {6*2080}, v220")
                    e.wait(vm=("d", s + 1, pc))
                    reads(s + 1, pc)
            if s <= 32:
                e(f"s_add_u32 {sK}, {sK}, {kstride}")

        e.vmq = [("d", s, pc) for s in range(3) for pc in range(T)]
        e(f"s_mov_b32 {sK}, {3*kstride}")
        e.wait(vm=("d", 0, T - 1))
        e.lgq = []
        for pc in range(T):
            reads(0, pc)
        main = e.lines
        texts = []
        for s in range(36):
            e.lines = []
            step(s, first=(s == 0))
            texts.append(e.lines)
        e.lines = main
        for s in range(1, 27):
            assert texts[s] == texts[s + 6], (s, texts[s], texts[s + 6])
        tag = f"G{which}T{T}"
        e.lines += texts[0]
        e(f"s_mov_b32 {sCNT}, 0\ns_branch L_{tag}_1")
        e(".p2align 3")
        e.label(f"L_{tag}_3")
        for s in (3, 4, 5, 6):
            e.lines += texts[s]
        e.label(f"L_{tag}_1")
        e.lines += texts[7] + texts[8]
        e(f"s_add_u32 {sCNT}, {sCNT}, 1\ns_cmp_lt_u32 {sCNT}, 6\ns_cbranch_scc1 L_{tag}_3")
        for s in (33, 34, 35):
            e.lines += texts[s]

    def silu(self, T):
        e = self.e
        for g in range(4 * T):
            b = 8 * g
            t = 160 + 8 * (g & 1)
            for k in range(8):
                e(f"v_mul_f32 v{t+k}, {sNL2E}, v{b+k}")
            for k in range(8):
                e(f"v_exp_f32 v{t+k}, v{t+k}")
            for k in range(8):
                e(f"v_add_f32 v{t+k}, 1.0, v{t+k}")
            for k in range(8):
                e(f"v_rcp_f32 v{t+k}, v{t+k}")
            for k in range(8):
                e(f"v_mul_f32 v{t+k}, v{b+k}, v{t+k}")
            for k in range(4):
                e(f"v_cvt_pk_bf16_f32 v{b+k}, v{t+2*k}, v{t+2*k+1}")

    def ffn_path(self, T1_, T2_):
        e, p = self.e, self.p
        self.gemm(T1_, 1, T2_)
        pend = list(e.vmq)
        self.arrive(C_XN, "v252", "v253")
        self.stamp(3)
        e.nop(2)
        self.silu(T1_)
        self.stamp(4)
        self.lds_wait(C_XN, 8, "v252", "v253")
        for u in range(2 * T1_):
            pc, rt = u >> 1, u & 1
            for hf in range(2):
                e.lg(f"ds_write_b128 v221, {vr(16*u+8*hf,4)} offset:{(4*pc+2*hf)*CH + 512*rt}")
        e.wait_all(lg=True)
        self.arrive(C_H, "v252", "v253")
        e(f"v_add_u32 v220, {-5*6*2080 & 0xffffffff:#x}, v220")
        self.lds_wait(C_H, 4, "v252", "v253")
        self.stamp(5)
        self.gemm(T2_, 2, 0)
        self.arrive(C_G2, "v252", "v253")
        self.stamp(6)
        e.nop(2)
        for u in range(2 * T2_):
            pc, rt = u >> 1, u & 1
            b = 16 * u
            for k in range(8):
                e(f"v_cvt_pk_bf16_f32 v{b+k}, v{b+2*k}, v{b+2*k+1}")
            e(f"s_mov_b32 {T0}, {(4*pc)*8192}\ns_mov_b32 {T1}, {(4*pc+2)*8192}")
            e(f"v_permlane32_swap_b32 v{b}, v{b+2}\nv_permlane32_swap_b32 v{b+1}, v{b+3}")
            e(f"v_permlane32_swap_b32 v{b+4}, v{b+6}\nv_permlane32_swap_b32 v{b+5}, v{b+7}")
            e.vm(f"buffer_store_dwordx4 {vr(b,4)}, v222, {SWS}, {T0} offen offset:{512*rt} sc1", "pst")
            e.vm(f"buffer_store_dwordx4 {vr(b+4,4)}, v222, {SWS}, {T1} offen offset:{512*rt} sc1", "pst")

    def ffn(self):
        e, p = self.e, self.p
        self.stamp(2)
        if p["PRIO_F"]:
            e(f"s_setprio {p['PRIO_F']}")
        e(f"s_cmp_ge_u32 {sW}, 2\ns_cbranch_scc1 L_FFN_L")
        self.ffn_path(5, 4)
        e("s_branch L_FFN_J")
        e.label("L_FFN_L")
        self.ffn_path(4, 5)
        e.label("L_FFN_J")
        e("s_setprio 0")
        self.stamp(7)
        self.ffn_tail()

    def ffn_tail(self):
        e, p = self.e, self.p
        e.vmq = ["pst"]
        for i in range(5):
            e(f"v_add_u32 v160, {64*i}, {vL}\nv_mul_u32_u24 v161, 6554, v160\nv_lshrrev_b32 v161, 16, v161")
            e(f"v_mul_u32_u24 v162, 10, v161\nv_sub_u32 v162, v160, v162\nv_mul_u32_u24 v161, 1152, v161\nv_lshl_add_u32 v{163+i}, v162, 4, v161")
        e(f"s_mul_i32 {T2}, {sW}, 5\ns_cmp_eq_u32 {sW}, 3\ns_cselect_b32 {T2}, 14, {T2}")
        e(f"s_mul_i32 {T3}, {T2}, 5120\ns_mul_i32 {T2}, {T2}, 36864\ns_mul_i32 {T4}, {sJ}, 144\ns_add_u32 {T2}, {T2}, {T4}")
        self.lds_wait(C_G2, 4, "v252", "v253")
        for gi in range(5):
            if gi == 4:
                e(f"s_cmp_ge_u32 {sW}, 2\ns_cbranch_scc1 L_WO_D")
            for i in range(5):
                e(f"s_add_u32 m0, {T3}, {gi*5120 + i*1024}\ns_add_u32 {T0}, {T2}, {gi*36864}")
                e.vm(f"buffer_load_dwordx4 v{163+i}, {SWO}, {T0} offen lds", "wo" if gi < 4 else None)
        e.label("L_WO_D")
        e("s_waitcnt vmcnt(20)")
        self.arrive(C_P, "v252", "v253", rtn=T2)
        self.lds_wait(C_G1, 1, "v252", "v253")
        e(f"s_cmp_lg_u32 {T2}, 3\ns_cbranch_scc1 L_NOPF")
        self.flag_set(0, 1, "v252", "v253")
        e.label("L_NOPF")
        e(f"v_and_b32 v160, 15, {vL}\nv_lshrrev_b32 v161, 4, {vL}\ns_lshl_b32 {T0}, {sW}, 4\nv_add_u32 v162, {T0}, v160")
        e(f"v_and_b32 v163, 1, v161\nv_lshrrev_b32 v164, 1, v161")
        e(f"s_mul_i32 {T0}, {sRB}, 589824\ns_mul_i32 {T1}, {sJ}, 73728\ns_add_u32 {T0}, {T0}, {T1}\ns_add_u32 {T0}, {T0}, {PART}")
        e(f"v_lshl_add_u32 v165, v162, 4, {T0}\nv_lshl_add_u32 v240, v163, 13, v165\nv_lshl_add_u32 v240, v164, 10, v240\nv_lshl_add_u32 v241, v161, 10, v165")
        e(f"s_lshl_b32 {T0}, {sRB}, 6\nv_add_u32 v165, {T0}, v162\nv_mul_u32_u24 v165, 1152, v165\ns_mul_i32 {T0}, {sJ}, 144\nv_add_u32 v165, {T0}, v165")
        e(f"v_lshl_add_u32 v242, v161, 4, v165\nv_mov_b32 v166, {OOB}\nv_cmp_gt_u32 vcc, 2, v161\ns_nop 1\nv_cndmask_b32 v242, v166, v242, vcc")
        e(f"v_cmp_eq_u32 vcc, 0, v161\ns_nop 1\nv_cndmask_b32 v243, v166, v165, vcc")
        e(f"v_lshl_add_u32 v244, v163, 5, v165\nv_lshl_add_u32 v244, v164, 4, v244")
        e(f"v_lshl_add_u32 v245, v161, 3, v165\nv_cmp_gt_u32 vcc, 2, v161\ns_nop 1\nv_cndmask_b32 v245, v166, v245, vcc")
        for a in range(5):
            e.vm(f"buffer_load_dwordx4 {vr(92+4*a,4)}, {'v242' if a < 4 else 'v243'}, {SX}, 0 offen offset:{32*a}", ("xr", a))
        e("v_lshlrev_b32 v166, 3, v163\nv_sub_u32 v166, v160, v166\nv_mov_b32 v167, 0x3f80\nv_mov_b32 v168, 0x3f800000")
        for base, src in ((232, "v166"), (236, "v160")):
            for r in range(4):
                e(f"v_cmp_eq_u32 vcc, {2*r}, {src}\nv_cmp_eq_u32 s[86:87], {2*r+1}, {src}\ns_nop 0\nv_cndmask_b32 v{base+r}, 0, v167, vcc")
                e(f"v_cndmask_b32 v{base+r}, v{base+r}, v168, s[86:87]")
        e(f"s_lshl_b32 {T0}, {sRB}, 16\ns_add_u32 {T0}, {T0}, {OM}\nv_lshl_add_u32 v246, v162, 4, {T0}\nv_lshl_add_u32 v246, v161, 10, v246")
        e(f"s_lshl_b32 {T0}, {sRB}, 13\ns_add_u32 {T0}, {T0}, {OX}\nv_lshl_add_u32 v247, v162, 4, {T0}\nv_lshl_add_u32 v247, v161, 10, v247")
        e(f"v_bfe_u32 v166, {vL}, 2, 2\nv_and_b32 v167, 3, {vL}\nv_mul_u32_u24 v168, 18, v164\nv_lshl_add_u32 v168, v163, 2, v168\nv_add_u32 v168, v168, v166")
        e("v_mul_u32_u24 v168, 160, v168\nv_lshl_add_u32 v248, v167, 3, v168\nv_add_u32 v249, 46080, v248")
        e("v_mul_u32_u24 v168, 72, v161\nv_lshrrev_b32 v169, 1, v166\nv_mul_u32_u24 v169, 18, v169\nv_and_b32 v166, 1, v166\nv_add3_u32 v168, v168, v169, v166")
        e("v_add_u32 v168, 16, v168\nv_mul_u32_u24 v168, 160, v168\nv_lshl_add_u32 v251, v167, 3, v168")
        e.wait_all(vm=True)
        self.arrive(C_WO, "v252", "v253")
        for a in range(5):
            e(f"v_mfma_f32_16x16x32_bf16 {vr(4*a,4)}, {vr(232 if a < 4 else 236,4)}, {vr(92+4*a,4)}, 0")
        self.flag_wait(0, "v252", "v253")
        self.stamp(8)
        n = 0
        for a in range(4):
            for sp in range(4):
                e(f"s_mov_b32 {T0}, {a*16384 + (sp >> 1)*4096}")
                e.vm(f"buffer_load_dwordx4 {vr(20+4*n,4)}, v240, {SWS}, {T0} offen offset:{(sp & 1)*2048} sc1", ("pl", n))
                n += 1
        for q in range(2):
            e(f"s_mov_b32 {T0}, {65536 + q*4096}")
            e.vm(f"buffer_load_dwordx4 {vr(20+4*n,4)}, v241, {SWS}, {T0} offen sc1", ("pl", n))
            n += 1
        self.lds_wait(C_WO, 4, "v252", "v253")

        def aop(i):
            kk, t = divmod(i, 5)
            r = 92 + 4 * (i % 35)
            if kk < 16:
                va, o, sec = ("v248" if kk < 8 else "v249"), (kk & 7) * 5760 + 32 * t, 1280
            else:
                va, o, sec = "v251", (kk - 16) * 46080 + 32 * t, 5760
            e.lg(f"ds_read_b64_tr_b16 {vr(r,2)}, {va} offset:{o}", ("a", i))
            e.lg(f"ds_read_b64_tr_b16 {vr(r+2,2)}, {va} offset:{o+sec}", ("a", i))
        for i in range(35):
            aop(i)
        for n in range(18):
            a = n // 4 if n < 16 else 4
            e.wait(vm=("pl", n))
            e(f"v_mfma_f32_16x16x32_bf16 {vr(4*a,4)}, {vr(232 if a < 4 else 236,4)}, {vr(20+4*n,4)}, {vr(4*a,4)}")
        e.wait_all(lg=True)
        self.stamp(9)
        self.flag_wait(1, "v252", "v253")
        self.stamp(10)
        for kk in range(18):
            e(f"s_mov_b32 {T0}, {(kk if kk < 16 else kk - 16)*4096}")
            e.vm(f"buffer_load_dwordx4 {vr(20+4*kk,4)}, {'v246' if kk < 16 else 'v247'}, {SWS}, {T0} offen sc1", ("o", kk))
        for i in range(90):
            kk, t = divmod(i, 5)
            e.wait(vm=("o", kk), lg=("a", i))
            e(f"v_mfma_f32_16x16x32_bf16 {vr(4*t,4)}, {vr(92+4*(i % 35),4)}, {vr(20+4*kk,4)}, {vr(4*t,4)}")
            if i >= 1 and i - 1 + 35 < 90:
                aop(i - 1 + 35)
        e.nop(8)
        for t in range(5):
            e(f"v_cvt_pk_bf16_f32 v{20+2*t}, v{4*t}, v{4*t+1}\nv_cvt_pk_bf16_f32 v{21+2*t}, v{4*t+2}, v{4*t+3}")
        e("v_permlane16_swap_b32 v20, v22\nv_permlane16_swap_b32 v21, v23\nv_permlane16_swap_b32 v24, v26\nv_permlane16_swap_b32 v25, v27")
        e(f"buffer_store_dwordx4 v[20:23], v244, {SOUT}, 0 offen")
        e(f"buffer_store_dwordx4 v[24:27], v244, {SOUT}, 0 offen offset:64")
        e(f"buffer_store_dwordx2 v[28:29], v245, {SOUT}, 0 offen offset:128")
        self.stamp(11)
        e("s_branch L_FIN")

    def att_proj(self):
        e, p = self.e, self.p
        c = f"{f2u(math.log2(math.e) / math.sqrt(18.0)):#x}"
        e("s_waitcnt vmcnt(3) lgkmcnt(0)\ns_barrier")
        e.vmq, e.lgq = [None] * 3, []
        self.stamp(2)
        if p["PRIO_A"]:
            e(f"s_setprio {p['PRIO_A']}")
        e(f"v_and_b32 v200, 15, {vL}\nv_lshrrev_b32 v201, 4, {vL}\nv_bfe_u32 v202, {vL}, 2, 2\nv_and_b32 v203, 3, {vL}")
        e(f"v_lshl_add_u32 v204, v201, 3, v202\nv_lshlrev_b32 v204, 4, v204\nv_lshl_add_u32 v204, v203, 3, v204")
        e(f"v_mov_b32 v205, {QE}\nv_mov_b32 v206, {KVW-16}\nv_cmp_gt_u32 vcc, 2, v203\ns_nop 1\nv_cndmask_b32 v205, v206, v205, vcc\nv_add_u32 v204, v204, v205")
        e(f"v_mul_u32_u24 v205, {CH}, v201\nv_lshl_add_u32 v205, v200, 4, v205\nv_add_u32 v206, {9*4*CH}, v205")
        e(f"s_lshl_b32 {T0}, {sA}, 8\nv_add_u32 v207, {T0}, v205\nv_add_u32 v208, {T0}, v206")

        def ext_reads(kk):
            r = 8 * kk
            e.lg(f"ds_read_b64_tr_b16 {vr(r,2)}, v204 offset:{512*kk}", ("e", kk))
            e.lg(f"ds_read_b64_tr_b16 {vr(r+2,2)}, v204 offset:{512*kk+64}", ("e", kk))
            e.lg(f"ds_read_b128 {vr(r+4,4)}, {'v207' if kk < 9 else 'v208'} offset:{4*CH*(kk % 9)}", ("e", kk))
        for kk in range(5):
            ext_reads(kk)
        for kk in range(18):
            e.wait(lg=("e", kk))
            r = 8 * kk
            e(f"v_mfma_f32_16x16x32_bf16 v[144:147], {vr(r,4)}, {vr(r+4,4)}, {'0' if kk == 0 else 'v[144:147]'}")
            e(f"v_mfma_f32_16x16x32_bf16 v[148:151], {vr(r+4,4)}, {vr(r,4)}, {'0' if kk == 0 else 'v[148:151]'}")
            if kk + 5 < 18:
                ext_reads(kk + 5)
        self.arrive(C_A, "v246", "v247")
        e(f"s_cmp_ge_u32 {sA}, 2\ns_cbranch_scc1 L_NOCLR")
        e(f"s_lshl_b32 {T0}, {sRB}, 8\ns_lshl_b32 {T1}, {sJ}, 2\ns_add_u32 {T0}, {T0}, {T1}\ns_lshl_b32 {T1}, {sA}, 7\ns_add_u32 {T0}, {T0}, {T1}")
        e(f"s_add_u32 {T0}, {T0}, {FLAGS}\nv_mov_b32 v246, 0\ns_mov_b64 exec, 1")
        e(f"buffer_store_dword v246, v246, {SWS}, {T0} offen sc1\ns_mov_b64 exec, -1")
        e.label("L_NOCLR")
        e(f"s_lshr_b32 {T2}, {sA}, 1\ns_lshl_b32 {T3}, {sRB}, 1\ns_add_u32 {T2}, {T2}, {T3}\ns_and_b32 {T3}, {sA}, 1")
        e(f"s_lshl_b32 {T4}, {T3}, 4\nv_add_u32 v209, {T4}, v200\nv_mov_b32 v210, {OOB}")
        e("v_cvt_pk_bf16_f32 v152, v144, v145\nv_cvt_pk_bf16_f32 v153, v146, v147\nv_cvt_pk_bf16_f32 v154, v148, v149\nv_cvt_pk_bf16_f32 v155, v150, v151")
        e(f"s_cmp_ge_u32 {sJ}, 6\ns_cbranch_scc1 L_KV_D\ns_cmp_ge_u32 {sJ}, 3\ns_cbranch_scc1 L_KV_V\ns_cmp_eq_u32 {sJ}, 2\ns_cbranch_scc1 L_KV_X")
        e(f"s_lshl_b32 {T0}, {T2}, 10\ns_lshl_b32 {T1}, {sJ}, 9\ns_add_u32 {T0}, {T0}, {T1}\ns_add_u32 {T0}, {T0}, {KM}")
        e("v_lshlrev_b32 v211, 4, v209\nv_and_b32 v212, 1, v201\nv_lshl_add_u32 v211, v212, 3, v211\nv_cmp_le_u32 vcc, 2, v201\ns_nop 1\nv_cndmask_b32 v211, v210, v211, vcc")
        e(f"buffer_store_dwordx2 v[152:153], v211, {SWS}, {T0} offen sc1\ns_branch L_KV_D")
        e.label("L_KV_X")
        e(f"s_lshl_b32 {T0}, {T2}, 7\ns_add_u32 {T0}, {T0}, {KX}")
        e("v_lshlrev_b32 v211, 2, v209\nv_cmp_eq_u32 vcc, 3, v201\ns_nop 1\nv_cndmask_b32 v211, v210, v211, vcc")
        e(f"buffer_store_dword v153, v211, {SWS}, {T0} offen sc1\ns_branch L_KV_D")
        e.label("L_KV_V")
        e(f"s_sub_u32 {T0}, {sJ}, 3\ns_lshl_b32 {T0}, {T0}, 3\ns_min_u32 {T0}, {T0}, 10\ns_cmp_eq_u32 {sJ}, 5\ns_cselect_b32 {T1}, 14, 8")
        e(f"v_add_u32 v211, {T0}, v200\nv_lshrrev_b32 v212, 1, v201\nv_mul_u32_u24 v212, 18, v212\nv_add_u32 v211, v211, v212\nv_lshlrev_b32 v211, 4, v211")
        e(f"v_and_b32 v212, 1, v201\nv_lshl_add_u32 v211, v212, 3, v211\nv_cmp_le_u32 vcc, {T1}, v200\ns_nop 1\nv_cndmask_b32 v211, v210, v211, vcc")
        e(f"s_mul_i32 {T0}, {T2}, 1152\ns_mul_i32 {T1}, {T3}, 576\ns_add_u32 {T0}, {T0}, {T1}\ns_add_u32 {T0}, {T0}, {VT-128}")
        e(f"buffer_store_dwordx2 v[154:155], v211, {SWS}, {T0} offen sc1")
        e.label("L_KV_D")
        e.vmq += ["kv"]
        e(f"v_mul_f32 v144, {c}, v144\nv_mul_f32 v145, {c}, v145\nv_mul_f32 v146, {c}, v146\nv_mul_f32 v147, {c}, v147")
        e(f"s_lshr_b32 {T0}, {sA}, 1\ns_lshl_b32 {T0}, {T0}, 7\ns_add_u32 {T0}, {T0}, {QX}\nv_lshl_add_u32 v211, v209, 2, {T0}\nv_lshl_add_u32 v211, v201, 9, v211")
        e("v_cvt_pk_bf16_f32 v144, v144, v145\nv_cvt_pk_bf16_f32 v145, v146, v147\ns_mov_b32 exec_hi, 0")
        e.lg("ds_write_b32 v211, v144")
        e.lg("ds_write_b32 v211, v145 offset:256")
        e("s_mov_b64 exec, -1")
        e(f"v_lshrrev_b32 v211, 1, {vL}\nv_bfe_u32 v212, v211, 2, 2\nv_lshrrev_b32 v213, 4, v211\nv_and_b32 v211, 3, v211")
        e(f"v_lshl_add_u32 v211, v212, 3, v211\nv_lshl_add_u32 v211, v213, 2, v211\nv_mul_u32_u24 v211, 1152, v211\nv_and_b32 v212, 1, {vL}\nv_lshl_add_u32 v211, v212, 4, v211")
        e(f"s_mul_i32 {T0}, {sJ}, 144\ns_mul_i32 {T1}, {sA}, 36\ns_add_u32 {T0}, {T0}, {T1}\nv_add_u32 v211, {T0}, v211")
        e(f"s_mul_i32 {sRING}, {sA}, {QRSZ}\ns_add_u32 {sRING}, {sRING}, {ATT}\nv_lshl_add_u32 v212, {vL}, 3, {sRING}")
        self.lds_wait(C_A, 4, "v246", "v247")

        def qdma(kk):
            e(f"s_add_u32 m0, {sRING}, {1024*(kk % 6)}\ns_mov_b32 {T0}, {36864*kk}")
            e.vm(f"buffer_load_dwordx4 v211, {SWQ}, {T0} offen lds", ("q", kk))

        def qreads(kk):
            r = 20 * (kk % 3)
            e.wait(vm=("q", kk))
            e.lg(f"ds_read_b64_tr_b16 {vr(r,2)}, v212 offset:{1024*(kk % 6)}", ("qr", kk))
            e.lg(f"ds_read_b64_tr_b16 {vr(r+2,2)}, v212 offset:{1024*(kk % 6)+512}", ("qr", kk))
            for s in range(4):
                e.lg(f"ds_read_b128 {vr(r+4+4*s,4)}, {'v205' if kk < 9 else 'v206'} offset:{4*CH*(kk % 9)+256*s}", ("qr", kk))
        for kk in range(6):
            qdma(kk)
        e.wait(vm="kv")
        self.arrive(C_KV, "v246", "v247", rtn=T2)
        e(f"s_cmp_lg_u32 {T2}, 3\ns_cbranch_scc1 L_NOG1\nv_mov_b32 v246, 0\nv_mov_b32 v247, 1\ns_mov_b64 exec, 1")
        e(f"buffer_atomic_add v247, v246, {SDBG}, 0 offen sc1\ns_mov_b64 exec, -1")
        e.label("L_NOG1")
        e.vmq.append(None)
        self.stamp(3)
        e.vmq.pop()
        qreads(0)
        qreads(1)
        for kk in range(18):
            e.wait(lg=("qr", kk))
            r = 20 * (kk % 3)
            for s in range(4):
                d = vr(64 + 4 * s, 4)
                e(f"v_mfma_f32_16x16x32_bf16 {d}, {vr(r,4)}, {vr(r+4+4*s,4)}, {'0' if kk == 0 else d}")
                if s == 0 and kk + 6 < 18:
                    qdma(kk + 6)
            if kk + 2 < 18:
                qreads(kk + 2)
        self.arrive(C_XN, "v246", "v247")
        e(f"v_lshrrev_b32 v213, 1, v201\nv_lshlrev_b32 v213, 9, v213\nv_lshl_add_u32 v213, v200, 4, v213\nv_and_b32 v214, 1, v201\nv_lshl_add_u32 v213, v214, 3, v213\nv_add_u32 v213, {sRING}, v213")
        e.nop(2)
        for s in range(4):
            for k in range(4):
                e(f"v_mul_f32 v{64+4*s+k}, {c}, v{64+4*s+k}")
            e(f"v_cvt_pk_bf16_f32 v{64+4*s}, v{64+4*s}, v{65+4*s}\nv_cvt_pk_bf16_f32 v{65+4*s}, v{66+4*s}, v{67+4*s}")
            e.lg(f"ds_write_b64 v213, {vr(64+4*s,2)} offset:{(s >> 1)*1024 + (s & 1)*256}")
        e.wait_all(lg=True)
        self.arrive(C_B, "v246", "v247")
        self.stamp(4)
        for r in range(192, 210):
            e(f"v_mov_b32 v{r}, 0")
        for b in (218, 222):
            e(f"v_mov_b32 v{b+1}, 0x3f803f80\nv_mov_b32 v{b+2}, 0\nv_mov_b32 v{b+3}, 0")
        e(f"v_and_b32 v246, 31, {vL}\nv_mov_b32 v247, 0x3f803f80\nv_cmp_eq_u32 vcc, 18, v246\ns_mov_b32 s82, 0x3ffff\ns_mov_b32 s83, 0x3ffff")
        for r in range(226, 242):
            e(f"v_cndmask_b32 v{r}, 0, v247, vcc")
        e("v_mov_b32 v242, 0xdddddddd")
        e(f"s_lshl_b32 {T0}, {sA}, 14\ns_add_u32 {T0}, {T0}, {KM}\nv_lshl_add_u32 v243, {vL}, 4, {T0}")
        e(f"s_lshl_b32 {T0}, {sA}, 11\ns_add_u32 {T0}, {T0}, {KX}\nv_lshl_add_u32 v244, v246, 2, {T0}")
        e(f"s_mul_i32 {T0}, {sA}, 18432\ns_add_u32 {T0}, {T0}, {VT}\nv_lshrrev_b32 v245, 5, {vL}\nv_mul_u32_u24 v245, 18, v245\nv_add_u32 v245, v245, v246\nv_lshl_add_u32 v245, v245, 4, {T0}")
        self.lds_wait(C_B, 4, "v247", "v248")
        for i2 in range(4):
            e(f"s_add_u32 {T0}, {sA}, {1+i2}\ns_and_b32 {T0}, {T0}, 3\ns_mul_i32 {T1}, {T0}, {QRSZ}\ns_add_u32 {T1}, {T1}, {ATT}\ns_lshl_b32 {T0}, {T0}, 8\ns_add_u32 {T0}, {T0}, {QX}")
            e(f"v_lshl_add_u32 v247, {vL}, 4, {T1}\nv_lshl_add_u32 v248, v246, 2, {T0}")
            for rt in range(2):
                e.lg(f"ds_read_b128 {vr(160+4*(2*i2+rt),4)}, v247 offset:{1024*rt}")
            e("s_mov_b32 exec_hi, 0")
            for rt in range(2):
                e.lg(f"ds_read_b32 v{192+2*(2*i2+rt)}, v248 offset:{128*rt}")
            e("s_mov_b64 exec, -1")
            e.wait_all(lg=True)
        e(f"s_cmp_lg_u32 {sA}, 0\ns_cbranch_scc1 L_G1_O")
        e(f"v_mov_b32 v247, 0\ns_mov_b32 {sSPIN}, 0")
        e.label("L_G1_P")
        e(f"buffer_load_dword v248, v247, {SDBG}, 0 offen sc1")
        e.wait_all(vm=True)
        e(f"v_readfirstlane_b32 {T0}, v248\ns_add_u32 {sSPIN}, {sSPIN}, 1\ns_cmp_ge_u32 {T0}, 256\ns_cbranch_scc1 L_G1_Q\ns_sleep 4\ns_cmp_lt_u32 {sSPIN}, {p['SPIN']}\ns_cbranch_scc1 L_G1_P")
        e.label("L_G1_Q")
        self.arrive(C_G1, "v247", "v248")
        e.label("L_G1_O")
        self.lds_wait(C_G1, 1, "v247", "v248")
        self.stamp(5)

    def kvload(self, buf, what):
        e = self.e
        if what == "k":
            e.vm(f"buffer_load_dwordx4 {vr(210+4*buf,4)}, v243, {SWS}, {sKT[0]} offen sc1", ("k", buf))
            e.vm(f"buffer_load_dword v{218+4*buf}, v244, {SWS}, {sKT[1]} offen sc1", ("k", buf))
            e(f"s_add_u32 {sKT[0]}, {sKT[0]}, 1024\ns_add_u32 {sKT[1]}, {sKT[1]}, 128")
        else:
            e(f"s_mov_b64 exec, {sVM}")
            e.vm(f"buffer_load_dwordx4 {vr(226+8*buf,4)}, v245, {SWS}, {sKT[2]} offen sc1", ("v", buf))
            e.vm(f"buffer_load_dwordx4 {vr(230+8*buf,4)}, v245, {SWS}, {sKT[2]} offen offset:576 sc1", ("v", buf))
            e(f"s_mov_b64 exec, -1\ns_add_u32 {sKT[2]}, {sKT[2]}, 1152")

    def qk(self, i, buf, which, S=None):
        S = vr(128 + 16 * (i & 1), 16) if S is None else S
        if which == 0:
            self.e(f"v_mfma_f32_32x32x16_bf16 {S}, {vr(210+4*buf,4)}, {vr(160+4*i,4)}, 0")
        else:
            self.e(f"v_mfma_f32_32x32x16_bf16 {S}, {vr(218+4*buf,4)}, {vr(192+2*i,4)}, {S}")

    def pv(self, i, buf, s):
        self.e(f"v_smfmac_f32_32x32x32_bf16 {vr(16*i,16)}, {vr(226+8*buf+4*s,4)}, {vr(128+16*(i & 1)+8*s,8)}, v242")

    def att_tile(self, buf, first=False, last=False):
        e = self.e

        def send(i):
            for hf in range(2):
                e.lg(f"ds_write_b128 v{246+(i >> 1)}, {vr(16*i+4*hf,4)} offset:{(i & 1)*OSL + 1024*hf}")
        for i in range(8):
            S = 128 + 16 * (i & 1)

            def ex(a, b):
                for k in range(a, b):
                    e(f"v_exp_f32 v{S+k}, v{S+k}")
            ex(0, 2)
            if i > 0:
                self.pv(i - 1, buf, 1)
            elif not first:
                self.pv(7, buf ^ 1, 1)
            if i == 0 and not last:
                self.kvload(buf ^ 1, "k")
            if i == 1 and not last:
                self.kvload(buf ^ 1, "v")
            ex(2, 5)
            nxt = (i + 1, buf) if i < 7 else (0, buf ^ 1)
            do_qk = not (last and i == 7)
            if i == 7 and do_qk:
                e.wait(vm=[("k", buf ^ 1), ("v", buf ^ 1)])
            if do_qk:
                self.qk(nxt[0], nxt[1], 0)
            ex(5, 8)
            if do_qk:
                self.qk(nxt[0], nxt[1], 1)
            ex(8, 12)
            self.pv(i, buf, 0)
            ex(12, 14)
            if last and 1 <= i <= 6:
                send(i - 1)
            ex(14, 16)

    def attention(self):
        e, p = self.e, self.p
        e.label("L_ATT")
        self.att_proj()
        e.label("L_PASS")
        e(f"s_mov_b32 {sKT[0]}, 0\ns_mov_b32 {sKT[1]}, 0\ns_mov_b32 {sKT[2]}, 0")
        e.vmq = []
        self.kvload(0, "k")
        self.kvload(0, "v")
        for r in range(128):
            e(f"v_mov_b32 v{r}, 0")
        e.wait_all(vm=True)
        self.qk(0, 0, 0)
        self.qk(0, 0, 1)
        e.nop(12)
        self.att_tile(0, first=True)
        e(f"s_mov_b32 {sCNT}, 0")
        e(".p2align 3")
        e.label("L_AT_LOOP")
        self.att_tile(1)
        self.att_tile(0)
        e(f"s_add_u32 {sCNT}, {sCNT}, 1\ns_cmp_lt_u32 {sCNT}, 7\ns_cbranch_scc1 L_AT_LOOP")
        self.stamp(6)
        self.lds_wait(C_G2, 4, "v246", "v247")
        for i2 in range(3):
            e(f"s_add_u32 {T0}, {sA}, {1+i2}\ns_and_b32 {T0}, {T0}, 3\ns_mul_i32 {T0}, {T0}, {6*OSL}\ns_add_u32 {T0}, {T0}, {OXA + 2*i2*OSL}")
            e(f"v_lshl_add_u32 v{246+i2}, {vL}, 4, {T0}")
        self.att_tile(1, last=True)
        e.nop(2)
        self.pv(7, 1, 1)
        e("s_mov_b32 exec_hi, 0")
        for i in range(6):
            e.lg(f"ds_write_b128 v{246+(i >> 1)}, {vr(16*i+8,4)} offset:{(i & 1)*OSL + 2048}")
        e("s_mov_b64 exec, -1")
        e("v_add_f32 v128, v10, v26\nv_add_f32 v129, v42, v58\nv_add_f32 v130, v74, v90\nv_min3_f32 v131, v10, v26, v42\nv_min3_f32 v132, v58, v74, v90")
        e("v_add_f32 v128, v128, v129\nv_add_f32 v130, v130, v106\nv_min3_f32 v131, v131, v132, v106\nv_add_f32 v128, v128, v130")
        e("v_add_f32 v128, v128, v122\nv_min_f32 v131, v131, v122")
        e(f"v_cmp_nge_f32 vcc, {f2u(2.0**40):#x}, v128\nv_mov_b32 v129, {f2u(2.0**-64):#x}\ns_mov_b32 {T2}, vcc_lo\nv_cmp_nge_f32 vcc, v131, v129\ns_nop 1\ns_or_b32 {T2}, {T2}, vcc_lo")
        if p["FORCE_FB"]:
            e(f"s_mov_b32 {T2}, 1")
        e(f"s_cmp_lg_u32 {T2}, 0\ns_cselect_b32 {T2}, 0x10001, 1")
        e.wait_all(lg=True)
        self.arrive(C_R, "v128", "v129", val=T2)
        e(f"s_mul_i32 {T0}, {sA}, {6*OSL}\ns_add_u32 {T0}, {T0}, {OXA}\nv_lshl_add_u32 v246, {vL}, 4, {T0}")
        e(f"s_lshl_b32 {T3}, {sPASS}, 2\ns_add_u32 {T3}, {T3}, 4")
        self.lds_wait(C_R, T3, "v128", "v129", mask="0xffff", out=T2)
        self.stamp(7)
        e(f"s_cmp_lg_u32 {sPASS}, 0\ns_cbranch_scc1 L_SAFE\ns_cmp_ge_u32 {T2}, 0x10000\ns_cbranch_scc1 L_FALLBACK")
        e.label("L_SAFE")
        for tt in range(2):
            for i in range(3):
                for q in range(3):
                    e.lg(f"ds_read_b128 {vr(12*(3*tt+i)+4*q,4)}, v246 offset:{(2*i+tt)*OSL + 1024*q}", ("r", tt, i))
        e(f"v_and_b32 v247, 31, {vL}\nv_lshrrev_b32 v248, 5, {vL}\ns_lshl_b32 {T0}, {sJ}, 2\ns_add_u32 {T0}, {T0}, {sA}\ns_lshl_b32 {T0}, {T0}, 11")
        e(f"s_lshl_b32 {T1}, {sRB}, 16\ns_add_u32 {T0}, {T0}, {T1}\ns_add_u32 {T0}, {T0}, {OM}\nv_lshl_add_u32 v249, v247, 4, {T0}\nv_lshl_add_u32 v249, v248, 10, v249")
        e(f"s_lshl_b32 {T0}, {sRB}, 13\ns_lshl_b32 {T1}, {sJ}, 10\ns_add_u32 {T0}, {T0}, {T1}\ns_lshl_b32 {T1}, {sA}, 2\ns_add_u32 {T0}, {T0}, {T1}\ns_add_u32 {T0}, {T0}, {OX}")
        e(f"v_lshl_add_u32 v247, v247, 4, {T0}")
        for tt in range(2):
            O = 96 + 16 * tt
            for i in range(3):
                e.wait(lg=("r", tt, i))
                for k in (10, 0, 1, 2, 3, 4, 5, 6, 7, 8, 9):
                    e(f"v_add_f32 v{O+k}, v{O+k}, v{12*(3*tt+i)+k}")
            e(f"v_mov_b32 v128, v{O+10}\nv_mov_b32 v129, v{O+10}\ns_nop 1\nv_permlane32_swap_b32 v128, v129\ns_nop 1\nv_rcp_f32 v128, v128\ns_nop 0")
            for k in range(10):
                e(f"v_mul_f32 v{O+k}, v{O+k}, v128")
            for k in range(5):
                e(f"v_cvt_pk_bf16_f32 v{132+8*tt+k}, v{O+2*k}, v{O+2*k+1}")
            e.vm(f"buffer_store_dwordx4 {vr(132+8*tt,4)}, v249, {SWS}, 0 offen offset:{512*tt} sc1")
            e("s_mov_b32 exec_hi, 0")
            e.vm(f"buffer_store_dword v{136+8*tt}, v247, {SWS}, 0 offen offset:{512*tt} sc1")
            e("s_mov_b64 exec, -1")
        self.stamp(8)
        e.wait_all(vm=True)
        self.arrive(C_O, "v128", "v129", rtn=T2)
        e(f"s_cmp_lg_u32 {T2}, 3\ns_cbranch_scc1 L_NOOF")
        self.flag_set(1, 1, "v128", "v129")
        e.label("L_NOOF")
        self.stamp(9)
        e("s_branch L_FIN")
        self.fallback()

    def fallback(self):
        e = self.e
        e.label("L_FALLBACK")
        e(f"s_mov_b32 {sPASS}, 1\ns_mov_b32 {sKT[0]}, 0\ns_mov_b32 {sKT[1]}, 0\ns_mov_b32 {sCNT}, 0")
        for i in range(8):
            e(f"v_mov_b32 v{i}, 0xff800000")
        e.label("L_FB_LOOP")
        self.kvload(0, "k")
        e.wait_all(vm=True)
        for i in range(8):
            self.qk(i, 0, 0, S="v[128:143]")
            self.qk(i, 0, 1, S="v[128:143]")
            e.nop(12)
            for k in range(8):
                e(f"v_max3_f32 v{i}, v{i}, v{128+2*k}, v{129+2*k}")
        e(f"s_add_u32 {sCNT}, {sCNT}, 1\ns_cmp_lt_u32 {sCNT}, 16\ns_cbranch_scc1 L_FB_LOOP")
        e(f"v_and_b32 v247, 31, {vL}")
        for i in range(8):
            e(f"v_mov_b32 v8, v{i}\ns_nop 1\nv_permlane32_swap_b32 v{i}, v8\ns_nop 1\nv_max_f32 v{i}, v{i}, v8")
            e(f"s_lshl_b32 {T0}, {sA}, 1\ns_add_u32 {T0}, {T0}, {2+i}\ns_and_b32 {T0}, {T0}, 7\ns_lshl_b32 {T0}, {T0}, 7\ns_add_u32 {T0}, {T0}, {MX}")
            e(f"v_lshl_add_u32 v{16+i}, v247, 2, {T0}\ns_lshl_b32 {T1}, {sA}, 10\nv_add_u32 v9, {T1}, v{16+i}")
            e(f"ds_write_b32 v9, v{i}")
        e.wait_all(lg=True)
        self.arrive(C_M, "v128", "v129")
        self.lds_wait(C_M, 4, "v128", "v129")
        e("s_mov_b32 exec_hi, 0")
        for i in range(8):
            for a in range(4):
                e(f"ds_read_b32 v{8+a}, v{16+i} offset:{1024*a}")
            e.wait_all(lg=True)
            e("v_max3_f32 v8, v8, v9, v10\nv_max_f32 v8, v8, v11\nv_cvt_pk_bf16_f32 v9, v8, v8\nv_and_b32 v9, 0xffff0000, v9\nv_sub_f32 v10, v8, v9")
            e(f"v_cvt_pk_bf16_f32 v{193+2*i}, -v9, -v10")
        e("s_mov_b64 exec, -1\ns_branch L_PASS")

    def build(self):
        e, p = self.e, self.p
        self.prologue()
        self.ffn()
        self.attention()
        e.label("L_FIN")
        if p["STAMP"]:
            e("s_waitcnt vmcnt(0)")
            self.stamp(12)
            e(f"s_lshl_b32 {T0}, s2, 3\ns_add_u32 {T0}, {T0}, {sW}\ns_lshl_b32 {T0}, {T0}, 6\ns_add_u32 {T0}, {T0}, {STAMPS}\nv_mov_b32 v0, 0")
            for i in range(14):
                e(f"v_mov_b32 v1, s{88+i}\nbuffer_store_dword v1, v0, {SWS}, {T0} offen offset:{4*i}")
        e.label("L_END")
        e("s_endpgm")
        probs = check_hazards(e.lines)
        head = open("cdna_kernels/" + NAME + ".s.ref").read().split("\n")
        hdr = [l for l in head if l.startswith(";") and "@launch" not in l and "Override" not in l and "grid=ceil" not in l]
        txt = "\n".join(hdr) + f"""
; One persistent workgroup per CU: 64 rows x (576 FFN columns, 4 heads, 72 output columns).
; Waves 0-3: GEMM1 -> SiLU -> GEMM2 -> partial sums -> output projection; waves 4-7: Q/K/V projection, attention.
; @launch grid=(256,1,1) block=(512,1,1) lds={LDS_BYTES}
.amdgcn_target "amdgcn-amd-amdhsa--gfx950"
.text
.globl {NAME}_kernel
.p2align 8
.type {NAME}_kernel,@function
{NAME}_kernel:
{e.text()}
.section .rodata,"a"
.p2align 6
.amdhsa_kernel {NAME}_kernel
  .amdhsa_next_free_vgpr 256
  .amdhsa_next_free_sgpr 102
  .amdhsa_accum_offset 256
  .amdhsa_group_segment_fixed_size 0
  .amdhsa_kernarg_size 88
  .amdhsa_user_sgpr_count 2
  .amdhsa_user_sgpr_kernarg_segment_ptr 1
  .amdhsa_system_sgpr_workgroup_id_x 1
.end_amdhsa_kernel
"""
        return txt, probs


if __name__ == "__main__":
    out = sys.argv[1]
    kw = {}
    for a in sys.argv[2:]:
        k, v = a.split("=")
        kw[k] = int(v, 0)
    txt, probs = G(**kw).build()
    for x in probs[:40]:
        print("HAZARD", x)
    open(out, "w").write(txt)
    print("wrote", out, len(txt), "bytes;", len(probs), "hazards")
```

```python
import sys, math, struct
from emit import E, check_hazards

NAME = "parallel_sum__grouped_kv_mqa__dense_activation_silu__prompt"

DEF = dict(NSL=2, STAMP=0, PRIO_F=1, PRIO_A=0, ROT=1, KROT=1, SPIN=1 << 16, FORCE_FB=0)

KM, KX, VT = 0, 65536, 73728
PART = 0x100000
OM, OX, FLAGS, STAMPS = 0x1400000, 0x1600000, 0x1700000, 0x1710000
WS_BYTES = 0x1820000
CH = 1040
RING, RSZ = 72 * CH, 15360
ATT = RING + 4 * RSZ
QE, KVW = ATT, ATT + 9216 + 64
QRSZ = 6144
OXA, OSL = 92160, 2560
MX = 153600
QX, SYNC = 162560, 163584
LDS_BYTES = 163840
C_A, C_KV, C_B, C_XN, C_H, C_G2, C_P, C_WO, C_R, C_O, C_G1, C_M, C_E = range(13)
SX, SW1, SW2, SWQ, SKV, SWO, SWS, SDBG, SOUT = (f"s[{b}:{b+3}]" for b in range(28, 64, 4))
sRB, sJ, sW, sA = "s64", "s65", "s66", "s67"
sRING, sK, sCNT, sNL2E, sSPIN, sPASS = "s68", "s69", "s70", "s71", "s72", "s73"
sKT = ("s74", "s75", "s76")
T0, T1, T2, T3, T4 = "s77", "s78", "s79", "s80", "s81"
sVM = "s[82:83]"
sIDX = "s84"
sROT, sBO, sTI = "s92", "s93", "s94"
vL = "v250"
OOB = 0x40000000


def f2u(x):
    return struct.unpack("<I", struct.pack("<f", x))[0]


def vr(b, n=1):
    return f"v{b}" if n == 1 else f"v[{b}:{b+n-1}]"


class G:
    def __init__(self, **kw):
        self.p = dict(DEF)
        self.p.update(kw)
        self.e = E()
        self.nstamp = 0

    def stamp(self, i):
        if not self.p["STAMP"]:
            return
        e = self.e
        e("s_waitcnt lgkmcnt(0)")
        e.lgq = []
        e("s_memrealtime s[88:89]\ns_memtime s[90:91]")
        e("s_waitcnt lgkmcnt(0)")
        e(f"v_writelane_b32 v255, s88, {i}\nv_writelane_b32 v254, s90, {i}")

    def srd(self, srd, lo, nbytes):
        b = int(srd[2:srd.index(":")])
        self.e(f"s_mov_b32 s{b}, s{lo}\ns_mov_b32 s{b+1}, s{lo+1}\ns_mov_b32 s{b+2}, {nbytes}\ns_mov_b32 s{b+3}, 0x20000")

    def arrive(self, word, va, vb, rtn=None, val="1"):
        e = self.e
        e(f"v_mov_b32 {va}, {SYNC}\nv_mov_b32 {vb}, {val}\ns_mov_b64 exec, 1")
        if rtn is None:
            e.lg(f"ds_add_u32 {va}, {vb} offset:{4*word}")
            e("s_mov_b64 exec, -1")
        else:
            e(f"ds_add_rtn_u32 {vb}, {va}, {vb} offset:{4*word}")
            e.wait_all(lg=True)
            e(f"v_readfirstlane_b32 {rtn}, {vb}\ns_mov_b64 exec, -1\ns_nop 0")

    def lds_wait(self, word, target, va, vb, mask=None, out=None):
        e = self.e
        L, D = e.new("LW"), e.new("LWD")
        out = out or T0
        e(f"v_mov_b32 {va}, {SYNC}\ns_mov_b32 {sSPIN}, 0")
        e.label(L)
        e(f"ds_read_b32 {vb}, {va} offset:{4*word}")
        e.wait_all(lg=True)
        e(f"v_readfirstlane_b32 {out}, {vb}\ns_add_u32 {sSPIN}, {sSPIN}, 1")
        if mask is not None:
            e(f"s_and_b32 {T1}, {out}, {mask}\ns_cmp_ge_u32 {T1}, {target}")
        else:
            e(f"s_cmp_ge_u32 {out}, {target}")
        e(f"s_cbranch_scc1 {D}\ns_sleep 1\ns_cmp_lt_u32 {sSPIN}, {self.p['SPIN']}\ns_cbranch_scc1 {L}")
        e.label(D)

    def flag_wait(self, kind, va, vb):
        e = self.e
        L, D = e.new("FW"), e.new("FWD")
        e(f"v_and_b32 {va}, 7, {vL}\nv_lshlrev_b32 {va}, 2, {va}")
        e(f"s_lshl_b32 {T0}, {sRB}, 8\ns_add_u32 {T0}, {T0}, {FLAGS + 128*kind}\ns_mov_b32 {sSPIN}, 0")
        e.label(L)
        e(f"buffer_load_dword {vb}, {va}, {SWS}, {T0} offen sc1")
        e.wait_all(vm=True)
        e(f"v_cmp_ne_u32 vcc, 1, {vb}\ns_add_u32 {sSPIN}, {sSPIN}, 1\ns_nop 3")
        e(f"s_cbranch_vccz {D}\ns_sleep 2\ns_cmp_lt_u32 {sSPIN}, {self.p['SPIN']}\ns_cbranch_scc1 {L}")
        e.label(D)

    def flag_set(self, kind, val, va, vb):
        e = self.e
        e(f"s_lshl_b32 {T0}, {sRB}, 8\ns_lshl_b32 {T1}, {sJ}, 2\ns_add_u32 {T0}, {T0}, {T1}")
        e(f"s_add_u32 {T0}, {T0}, {FLAGS + 128*kind}\nv_mov_b32 {va}, 0\nv_mov_b32 {vb}, {val}\ns_mov_b64 exec, 1")
        e.vm(f"buffer_store_dword {vb}, {va}, {SWS}, {T0} offen sc1")
        e("s_mov_b64 exec, -1")

    def prologue(self):
        e, p = self.e, self.p
        nsl = p["NSL"]
        e("s_cmp_ge_u32 s2, 256\ns_cbranch_scc1 L_END")
        e("s_load_dwordx16 s[4:19], s[0:1], 0\ns_load_dwordx4 s[20:23], s[0:1], 64\ns_load_dwordx2 s[24:25], s[0:1], 80")
        if p["STAMP"]:
            e("s_memrealtime s[88:89]\ns_memtime s[90:91]\nv_mov_b32 v255, 0\nv_mov_b32 v254, 0")
        e(f"v_and_b32 {vL}, 63, v0\nv_lshrrev_b32 v1, 6, v0")
        lg = nsl.bit_length() - 1
        e(f"s_and_b32 {T0}, s2, 7\ns_lshr_b32 {sIDX}, s2, 3")
        e(f"s_and_b32 {sJ}, {T0}, {8//nsl - 1}\ns_lshl_b32 {sJ}, {sJ}, {lg}\ns_and_b32 {T1}, {sIDX}, {nsl-1}\ns_add_u32 {sJ}, {sJ}, {T1}")
        e(f"s_lshr_b32 {sRB}, {T0}, {3-lg}\ns_lshl_b32 {sRB}, {sRB}, {5-lg}\ns_lshr_b32 {T1}, {sIDX}, {lg}\ns_add_u32 {sRB}, {sRB}, {T1}")
        e(f"v_readfirstlane_b32 {sW}, v1")
        e(f"v_lshrrev_b32 v120, 3, v0\nv_and_b32 v121, 7, v0\ns_lshl_b32 {T0}, {sRB}, 6")
        e(f"v_add_u32 v122, {T0}, v120\nv_mul_u32_u24 v122, 1152, v122\nv_lshl_add_u32 v122, v121, 4, v122")
        e(f"v_mul_u32_u24 v123, {CH}, v121\nv_lshl_add_u32 v123, v120, 4, v123\nv_add_u32 v124, {8*CH}, v123")
        e(f"s_and_b32 {sA}, {sW}, 3\nv_mov_b32 v216, 0\nv_mov_b32 v217, 0\nv_mov_b32 v222, 0")
        e("s_waitcnt lgkmcnt(0)")
        if p["STAMP"]:
            e("v_writelane_b32 v255, s88, 0\nv_writelane_b32 v254, s90, 0")
        self.srd(SX, 4, 2359296)
        for u in range(9):
            e.vm(f"buffer_load_dwordx4 v[{4*u}:{4*u+3}], v122, {SX}, 0 offen offset:{128*u}", ("x", u))
        self.srd(SW1, 16, 5308416)
        self.srd(SW2, 18, 5308416)
        self.srd(SWQ, 6, 663552)
        self.srd(SWO, 12, 663552)
        self.srd(SWS, 24, WS_BYTES)
        self.srd(SDBG, 22, 256)
        self.srd(SOUT, 20, 2359296)
        e(f"s_cmp_ge_u32 {sJ}, 3\ns_cselect_b32 s44, s10, s8\ns_cselect_b32 s45, s11, s9\ns_mov_b32 s46, 20736\ns_mov_b32 s47, 0x20000")
        e(f"s_mov_b32 {sNL2E}, {f2u(-math.log2(math.e)):#x}\ns_mov_b32 {sPASS}, 0")
        e(f"s_cmp_ge_u32 {sW}, 4\ns_cbranch_scc1 L_PRO_A")
        q0 = list(e.vmq)
        self.pro_ffn()
        self.ln_stats()
        e("s_branch L_PRO_J")
        e.vmq = list(q0)
        e.label("L_PRO_A")
        self.ln_stats()
        self.pro_att()
        e.label("L_PRO_J")
        self.layernorm()

    def wrap_inc(self, reg, inc, mod):
        self.e(f"s_add_u32 {reg}, {reg}, {inc}\ns_cmp_eq_u32 {reg}, {mod}\ns_cselect_b32 {reg}, 0, {reg}")

    def pro_ffn(self):
        e = self.e
        e(f"s_mul_i32 {T2}, {sW}, 5\ns_lshl_b32 {T3}, {sW}, 2\ns_cmp_eq_u32 {sW}, 3\ns_cselect_b32 {T2}, 14, {T2}\ns_cselect_b32 {T3}, 13, {T3}")
        e(f"s_mul_i32 {sRING}, {sW}, {RSZ}\ns_add_u32 {sRING}, {sRING}, {RING}")
        e(f"v_lshrrev_b32 v125, 2, {vL}\nv_and_b32 v126, 3, {vL}")
        e(f"s_mul_i32 {T0}, {sJ}, 1152\ns_lshl_b32 {T1}, {T2}, 6\ns_add_u32 {T0}, {T0}, {T1}")
        e(f"v_mul_u32_u24 v216, 9216, v125\nv_lshl_add_u32 v216, v126, 4, v216\nv_add_u32 v216, {T0}, v216")
        nsl = self.p["NSL"]
        e(f"s_and_b32 {sROT}, {sRB}, {32//nsl - 1}\ns_mul_i32 {sROT}, {sROT}, {36*nsl*self.p['ROT']}\ns_lshr_b32 {sROT}, {sROT}, 5\ns_mul_i32 {sK}, {sROT}, 147456")
        e(f"s_cmp_ge_u32 {sW}, 2\ns_cbranch_scc1 L_PF_L")
        q0 = list(e.vmq)
        for T in (5, 4):
            if T == 4:
                e.label("L_PF_L")
                e.vmq = list(q0)
            for s in range(3):
                for pc in range(T):
                    e(f"s_add_u32 m0, {sRING}, {s*5120 + 960*pc}\ns_nop 0")
                    e.vm(f"buffer_load_dwordx4 v216, {SW1}, {sK} offen offset:{64*pc} lds")
                self.wrap_inc(sK, 147456, 36 * 147456)
            if T == 5:
                e("s_branch L_PF_J")
            else:
                e(f"s_mov_b32 {T0}, {OOB}")
                for i in range(3):
                    e.vm(f"buffer_load_dword v{251+i}, v216, {SW1}, {T0} offen")
        e.label("L_PF_J")
        e(f"s_mul_i32 {T0}, {sJ}, 663552\ns_lshl_b32 {T1}, {T3}, 6\ns_add_u32 {T0}, {T0}, {T1}")
        e(f"v_mul_u32_u24 v217, 1152, v125\nv_lshl_add_u32 v217, v126, 4, v217\nv_add_u32 v217, {T0}, v217")
        e(f"v_lshrrev_b32 v127, 5, {vL}\nv_bfe_u32 v128, {vL}, 2, 2\nv_bfe_u32 v129, {vL}, 4, 1")
        e(f"v_lshlrev_b32 v129, 5, v129\nv_lshl_add_u32 v129, v126, 3, v129\nv_lshl_add_u32 v129, v128, 6, v129\nv_add_u32 v129, {sRING}, v129")
        e("v_lshl_add_u32 v218, v127, 9, v129\nv_lshl_add_u32 v219, v127, 8, v129")
        e(f"v_and_b32 v128, 31, {vL}\nv_lshlrev_b32 v128, 4, v128\nv_mul_u32_u24 v223, {CH}, v127\nv_add_u32 v223, v223, v128")
        e(f"s_mul_i32 {T0}, {T2}, {4*CH}\nv_add_u32 v221, {T0}, v223")
        e(f"s_lshl_b32 {T0}, {T3}, 15\ns_lshl_b32 {T1}, {sJ}, 10\ns_add_u32 {T0}, {T0}, {T1}\ns_mul_i32 {T1}, {sRB}, 589824\ns_add_u32 {T0}, {T0}, {T1}\ns_add_u32 {T0}, {T0}, {PART}")
        e(f"v_lshl_add_u32 v222, v127, 13, v128\nv_add_u32 v222, {T0}, v222")

    def pro_att(self):
        e, p = self.e, self.p
        e(f"v_lshrrev_b32 v125, 2, {vL}\nv_and_b32 v126, 3, {vL}\nv_mul_u32_u24 v125, 1152, v125\nv_mul_u32_u24 v126, 36, v126")
        e(f"s_mul_i32 {T0}, {sJ}, 144\ns_add_u32 {T0}, {T0}, 32\nv_add3_u32 v125, v125, v126, {T0}")
        e(f"s_mul_i32 {T2}, {sA}, {9*18432}\ns_mul_i32 {T3}, {sA}, {9*256}\ns_add_u32 {T3}, {T3}, {QE}")
        for i in range(9):
            e(f"s_add_u32 m0, {T3}, {256*i}\ns_add_u32 {T0}, {T2}, {18432*i}")
            e.vm(f"buffer_load_dword v125, {SWQ}, {T0} offen lds", "ext")
        e(f"s_cmp_ge_u32 {sJ}, 3\ns_cselect_b32 {T0}, 3, 0\ns_sub_u32 {T0}, {sJ}, {T0}\ns_cmp_ge_u32 {T0}, 3\ns_cselect_b32 {T0}, 0, {T0}")
        e(f"s_lshl_b32 {T1}, {T0}, 4\ns_min_u32 {T1}, {T1}, 20\nv_mul_u32_u24 v126, 36, {vL}\nv_add_u32 v126, {T1}, v126")
        e(f"s_mul_i32 {T2}, {sA}, 2304\ns_lshl_b32 {T3}, {sA}, 10\ns_add_u32 {T3}, {T3}, {KVW}")
        for i in range(2):
            e(f"s_add_u32 m0, {T3}, {4096*i}\ns_add_u32 {T0}, {T2}, {9216*i}")
            e.vm(f"buffer_load_dwordx4 v126, {SKV}, {T0} offen lds", "ext")
        e(f"s_mov_b32 m0, {KVW + 8192}\ns_mov_b32 {T0}, {8*2304}")
        e.vm(f"buffer_load_dwordx4 v126, {SKV}, {T0} offen lds", "ext")
        e(f"v_lshlrev_b32 v127, 2, {vL}\nv_add_u32 v127, {SYNC}, v127\nv_mov_b32 v128, 0")
        e("ds_write_b32 v127, v128")

    def ln_stats(self):
        e = self.e
        e("v_mov_b32 v112, 0\nv_mov_b32 v113, 0\nv_mov_b32 v114, 0\nv_mov_b32 v115, 0\ns_mov_b32 s85, 0x3f803f80\ns_mov_b32 s86, 0xffff0000")
        for u in range(9):
            e.wait(vm=("x", u))
            if u == 0:
                self.stamp(1)
            for k in range(4):
                r = 4 * u + k
                e(f"v_dot2_f32_bf16 v{112+(k&1)}, v{r}, s85, v{112+(k&1)}")
                e(f"v_lshlrev_b32 v{40+2*r}, 16, v{r}")
                e(f"v_dot2_f32_bf16 v{114+(k&1)}, v{r}, v{r}, v{114+(k&1)}")
                e(f"v_and_b32 v{41+2*r}, s86, v{r}")

    def layernorm(self):
        e = self.e
        e("s_nop 2\nv_add_f32 v112, v112, v113\nv_add_f32 v114, v114, v115\ns_nop 1")
        for m in ("quad_perm:[1,0,3,2]", "quad_perm:[2,3,0,1]", "row_half_mirror"):
            e(f"v_add_f32_dpp v112, v112, v112 {m} row_mask:0xf bank_mask:0xf")
            e(f"v_add_f32_dpp v114, v114, v114 {m} row_mask:0xf bank_mask:0xf\ns_nop 1")
        inv = f"{f2u(1.0/576):#x}"
        e(f"v_mul_f32 v112, {inv}, v112\nv_mul_f32 v114, {inv}, v114\nv_fma_f32 v114, -v112, v112, v114\nv_max_f32 v114, 0, v114")
        e(f"v_add_f32 v114, {f2u(1e-5):#x}, v114\nv_rsq_f32 v114, v114\ns_nop 0\nv_mul_f32 v112, v112, v114")
        for u in range(9):
            for k in range(8):
                r = 40 + 8 * u + k
                e(f"v_fma_f32 v{r}, v{r}, v114, -v112")
            for k in range(4):
                e(f"v_cvt_pk_bf16_f32 v{4*u+k}, v{40+8*u+2*k}, v{41+8*u+2*k}")
            if u < 8:
                e(f"ds_write_b128 v123, v[{4*u}:{4*u+3}] offset:{8*CH*u}")
            else:
                e(f"ds_write_b128 v124, v[{4*u}:{4*u+3}] offset:{8*CH*7}")
        e(f"s_cmp_ge_u32 {sW}, 4\ns_cbranch_scc1 L_ATT")
        e("s_waitcnt lgkmcnt(0)\ns_barrier")

    def gemm(self, T, which, Tn):
        e = self.e
        vT = "v218" if which == 1 else "v219"
        sec = 256 if which == 1 else 512
        vD, SW, kstride = ("v216", SW1, 147456) if which == 1 else ("v217", SW2, 18432)

        def areg(buf, pc):
            return 160 + 20 * buf + 4 * pc

        def breg(buf, rt):
            return 200 + 8 * buf + 4 * rt

        def reads(s, pc):
            if pc < 2:
                e.lg(f"ds_read_b128 {vr(breg(s&1,pc),4)}, v220 offset:{512*pc}", ("B", s, pc))
            o = (s % 3) * 5120 + 1024 * pc
            e.lg(f"ds_read_b64_tr_b16 {vr(areg(s&1,pc),2)}, {vT} offset:{o}", ("A", s, pc))
            e.lg(f"ds_read_b64_tr_b16 {vr(areg(s&1,pc)+2,2)}, {vT} offset:{o+sec}", ("A", s, pc))

        def dma_list(s):
            sn = s + 3
            if sn < 36:
                return [(vD, SW, pc, ("d", sn, pc)) for pc in range(T)]
            if which == 1:
                return [("v217", SW2, pc, ("d2", sn - 36, pc)) for pc in range(Tn)]
            return []

        def step(s, first=False):
            dl = dma_list(s)
            if which == 1 and s == 33:
                e(f"s_mul_i32 {sK}, {sROT}, 18432")
            for gi in range(2 * T):
                pc, rt = gi >> 1, gi & 1
                mine = []
                if rt == 0:
                    mine = [d for d in dl if d[2] == pc or (pc == T - 1 and d[2] > pc)]
                e.wait(lg=[("A", s, pc), ("B", s, 0)] if gi == 0 else ([("B", s, 1)] if gi == 1 else [("A", s, pc)]))
                if mine:
                    e(f"s_add_u32 m0, {sRING}, {(s % 3)*5120 + 960*mine[0][2]}")
                acc = vr(16 * gi, 16)
                e(f"v_mfma_f32_32x32x16_bf16 {acc}, {vr(areg(s&1,pc),4)}, {vr(breg(s&1,rt),4)}, {'0' if first else acc}")
                for n, d in enumerate(mine):
                    if n:
                        e(f"s_add_u32 m0, {sRING}, {(s % 3)*5120 + 960*d[2]}\ns_nop 0")
                    e.vm(f"buffer_load_dwordx4 {d[0]}, {d[1]}, {sK} offen offset:{64*d[2]} lds", d[3])
                if rt == 1 and s + 1 < 36:
                    if pc == 0:
                        e(f"v_add_u32 v220, {sBO}, v223")
                    e.wait(vm=("d", s + 1, pc))
                    reads(s + 1, pc)
                if gi == 2 * T - 3 and s + 2 < 36:
                    self.wrap_inc(sBO, 2080, 36 * 2080)
            if s <= 32:
                self.wrap_inc(sK, kstride, 36 * kstride)
            elif which == 1:
                self.wrap_inc(sK, 18432, 36 * 18432)

        e.vmq = [("d", s, pc) for s in range(3) for pc in range(T)]
        e(f"s_mul_i32 {sBO}, {sROT}, 2080\nv_add_u32 v220, {sBO}, v223")
        self.wrap_inc(sBO, 2080, 36 * 2080)
        e.wait(vm=("d", 0, T - 1))
        e.lgq = []
        for pc in range(T):
            reads(0, pc)
        main = e.lines
        texts = []
        for s in range(36):
            e.lines = []
            step(s, first=(s == 0))
            texts.append(e.lines)
        e.lines = main
        for s in range(1, 27):
            assert texts[s] == texts[s + 6], (s, texts[s], texts[s + 6])
        tag = f"G{which}T{T}"
        e.lines += texts[0]
        e(f"s_mov_b32 {sCNT}, 0\ns_branch L_{tag}_1")
        e(".p2align 3")
        e.label(f"L_{tag}_3")
        if self.p["STAMP"] > 1:
            e(f"s_memrealtime s[88:89]\ns_memtime s[90:91]\ns_add_u32 m0, {sCNT}, {8*which+8}\ns_waitcnt lgkmcnt(0)\nv_writelane_b32 v255, s88, m0\nv_writelane_b32 v254, s90, m0")
        for s in (3, 4, 5, 6):
            e.lines += texts[s]
        e.label(f"L_{tag}_1")
        e.lines += texts[7] + texts[8]
        e(f"s_add_u32 {sCNT}, {sCNT}, 1\ns_cmp_lt_u32 {sCNT}, 6\ns_cbranch_scc1 L_{tag}_3")
        for s in (33, 34, 35):
            e.lines += texts[s]

    def silu(self, T):
        e = self.e
        for g in range(4 * T):
            b = 8 * g
            t = 160 + 8 * (g & 1)
            for k in range(8):
                e(f"v_mul_f32 v{t+k}, {sNL2E}, v{b+k}")
            for k in range(8):
                e(f"v_exp_f32 v{t+k}, v{t+k}")
            for k in range(8):
                e(f"v_add_f32 v{t+k}, 1.0, v{t+k}")
            for k in range(8):
                e(f"v_rcp_f32 v{t+k}, v{t+k}")
            for k in range(8):
                e(f"v_mul_f32 v{t+k}, v{b+k}, v{t+k}")
            for k in range(4):
                e(f"v_cvt_pk_bf16_f32 v{b+k}, v{t+2*k}, v{t+2*k+1}")

    def ffn_path(self, T1_, T2_):
        e, p = self.e, self.p
        self.gemm(T1_, 1, T2_)
        pend = list(e.vmq)
        self.arrive(C_XN, "v252", "v253")
        self.stamp(3)
        e.nop(2)
        self.silu(T1_)
        self.stamp(4)
        self.lds_wait(C_XN, 8, "v252", "v253")
        for u in range(2 * T1_):
            pc, rt = u >> 1, u & 1
            for hf in range(2):
                e.lg(f"ds_write_b128 v221, {vr(16*u+8*hf,4)} offset:{(4*pc+2*hf)*CH + 512*rt}")
        e.wait_all(lg=True)
        self.arrive(C_H, "v252", "v253")
        self.lds_wait(C_H, 4, "v252", "v253")
        self.stamp(5)
        self.gemm(T2_, 2, 0)
        self.arrive(C_G2, "v252", "v253")
        self.stamp(6)
        e.nop(2)
        for u in range(2 * T2_):
            pc, rt = u >> 1, u & 1
            b = 16 * u
            for k in range(8):
                e(f"v_cvt_pk_bf16_f32 v{b+k}, v{b+2*k}, v{b+2*k+1}")
            e(f"s_mov_b32 {T0}, {(4*pc)*8192}\ns_mov_b32 {T1}, {(4*pc+2)*8192}")
            e(f"v_permlane32_swap_b32 v{b}, v{b+2}\nv_permlane32_swap_b32 v{b+1}, v{b+3}")
            e(f"v_permlane32_swap_b32 v{b+4}, v{b+6}\nv_permlane32_swap_b32 v{b+5}, v{b+7}")
            e.vm(f"buffer_store_dwordx4 {vr(b,4)}, v222, {SWS}, {T0} offen offset:{512*rt} sc1", "pst")
            e.vm(f"buffer_store_dwordx4 {vr(b+4,4)}, v222, {SWS}, {T1} offen offset:{512*rt} sc1", "pst")

    def ffn(self):
        e, p = self.e, self.p
        self.stamp(2)
        if p["PRIO_F"]:
            e(f"s_setprio {p['PRIO_F']}")
        e(f"s_cmp_ge_u32 {sW}, 2\ns_cbranch_scc1 L_FFN_L")
        self.ffn_path(5, 4)
        e("s_branch L_FFN_J")
        e.label("L_FFN_L")
        self.ffn_path(4, 5)
        e.label("L_FFN_J")
        e("s_setprio 0")
        self.stamp(7)
        self.ffn_tail()

    def ffn_tail(self):
        e, p = self.e, self.p
        e.vmq = ["pst"]
        for i in range(5):
            e(f"v_add_u32 v160, {64*i}, {vL}\nv_mul_u32_u24 v161, 6554, v160\nv_lshrrev_b32 v161, 16, v161")
            e(f"v_mul_u32_u24 v162, 10, v161\nv_sub_u32 v162, v160, v162\nv_mul_u32_u24 v161, 1152, v161\nv_lshl_add_u32 v{163+i}, v162, 4, v161")
        e(f"s_mul_i32 {T2}, {sW}, 5\ns_cmp_eq_u32 {sW}, 3\ns_cselect_b32 {T2}, 14, {T2}")
        e(f"s_mul_i32 {T3}, {T2}, 5120\ns_mul_i32 {T2}, {T2}, 36864\ns_mul_i32 {T4}, {sJ}, 144\ns_add_u32 {T2}, {T2}, {T4}")
        self.lds_wait(C_G2, 4, "v252", "v253")
        for gi in range(5):
            if gi == 4:
                e(f"s_cmp_ge_u32 {sW}, 2\ns_cbranch_scc1 L_WO_D")
            for i in range(5):
                e(f"s_add_u32 m0, {T3}, {gi*5120 + i*1024}\ns_add_u32 {T0}, {T2}, {gi*36864}")
                e.vm(f"buffer_load_dwordx4 v{163+i}, {SWO}, {T0} offen lds", "wo" if gi < 4 else None)
        e.label("L_WO_D")
        e("s_waitcnt vmcnt(20)")
        self.arrive(C_P, "v252", "v253", rtn=T2)
        self.lds_wait(C_G1, 1, "v252", "v253")
        e(f"s_cmp_lg_u32 {T2}, 3\ns_cbranch_scc1 L_NOPF")
        self.flag_set(0, 1, "v252", "v253")
        e.label("L_NOPF")
        e(f"v_and_b32 v160, 15, {vL}\nv_lshrrev_b32 v161, 4, {vL}\ns_lshl_b32 {T0}, {sW}, 4\nv_add_u32 v162, {T0}, v160")
        e(f"v_and_b32 v163, 1, v161\nv_lshrrev_b32 v164, 1, v161")
        e(f"s_mul_i32 {T0}, {sRB}, 589824\ns_mul_i32 {T1}, {sJ}, 73728\ns_add_u32 {T0}, {T0}, {T1}\ns_add_u32 {T0}, {T0}, {PART}")
        e(f"v_lshl_add_u32 v165, v162, 4, {T0}\nv_lshl_add_u32 v240, v163, 13, v165\nv_lshl_add_u32 v240, v164, 10, v240\nv_lshl_add_u32 v241, v161, 10, v165")
        e(f"s_lshl_b32 {T0}, {sRB}, 6\nv_add_u32 v165, {T0}, v162\nv_mul_u32_u24 v165, 1152, v165\ns_mul_i32 {T0}, {sJ}, 144\nv_add_u32 v165, {T0}, v165")
        e(f"v_lshl_add_u32 v242, v161, 4, v165\nv_mov_b32 v166, {OOB}\nv_cmp_gt_u32 vcc, 2, v161\ns_nop 1\nv_cndmask_b32 v242, v166, v242, vcc")
        e(f"v_cmp_eq_u32 vcc, 0, v161\ns_nop 1\nv_cndmask_b32 v243, v166, v165, vcc")
        e(f"v_lshl_add_u32 v244, v163, 5, v165\nv_lshl_add_u32 v244, v164, 4, v244")
        e(f"v_lshl_add_u32 v245, v161, 3, v165\nv_cmp_gt_u32 vcc, 2, v161\ns_nop 1\nv_cndmask_b32 v245, v166, v245, vcc")
        for a in range(5):
            e.vm(f"buffer_load_dwordx4 {vr(92+4*a,4)}, {'v242' if a < 4 else 'v243'}, {SX}, 0 offen offset:{32*a}", ("xr", a))
        e("v_lshlrev_b32 v166, 3, v163\nv_sub_u32 v166, v160, v166\nv_mov_b32 v167, 0x3f80\nv_mov_b32 v168, 0x3f800000")
        for base, src in ((232, "v166"), (236, "v160")):
            for r in range(4):
                e(f"v_cmp_eq_u32 vcc, {2*r}, {src}\nv_cmp_eq_u32 s[86:87], {2*r+1}, {src}\ns_nop 0\nv_cndmask_b32 v{base+r}, 0, v167, vcc")
                e(f"v_cndmask_b32 v{base+r}, v{base+r}, v168, s[86:87]")
        e(f"s_lshl_b32 {T0}, {sRB}, 16\ns_add_u32 {T0}, {T0}, {OM}\nv_lshl_add_u32 v246, v162, 4, {T0}\nv_lshl_add_u32 v246, v161, 10, v246")
        e(f"s_lshl_b32 {T0}, {sRB}, 13\ns_add_u32 {T0}, {T0}, {OX}\nv_lshl_add_u32 v247, v162, 4, {T0}\nv_lshl_add_u32 v247, v161, 10, v247")
        e(f"v_bfe_u32 v166, {vL}, 2, 2\nv_and_b32 v167, 3, {vL}\nv_mul_u32_u24 v168, 18, v164\nv_lshl_add_u32 v168, v163, 2, v168\nv_add_u32 v168, v168, v166")
        e("v_mul_u32_u24 v168, 160, v168\nv_lshl_add_u32 v248, v167, 3, v168\nv_add_u32 v249, 46080, v248")
        e("v_mul_u32_u24 v168, 72, v161\nv_lshrrev_b32 v169, 1, v166\nv_mul_u32_u24 v169, 18, v169\nv_and_b32 v166, 1, v166\nv_add3_u32 v168, v168, v169, v166")
        e("v_add_u32 v168, 16, v168\nv_mul_u32_u24 v168, 160, v168\nv_lshl_add_u32 v251, v167, 3, v168")
        e.wait_all(vm=True)
        self.arrive(C_WO, "v252", "v253")
        for a in range(5):
            e(f"v_mfma_f32_16x16x32_bf16 {vr(4*a,4)}, {vr(232 if a < 4 else 236,4)}, {vr(92+4*a,4)}, 0")
        self.flag_wait(0, "v252", "v253")
        self.stamp(8)
        n = 0
        for a in range(4):
            for sp in range(4):
                e(f"s_mov_b32 {T0}, {a*16384 + (sp >> 1)*4096}")
                e.vm(f"buffer_load_dwordx4 {vr(20+4*n,4)}, v240, {SWS}, {T0} offen offset:{(sp & 1)*2048} sc1", ("pl", n))
                n += 1
        for q in range(2):
            e(f"s_mov_b32 {T0}, {65536 + q*4096}")
            e.vm(f"buffer_load_dwordx4 {vr(20+4*n,4)}, v241, {SWS}, {T0} offen sc1", ("pl", n))
            n += 1
        self.lds_wait(C_WO, 4, "v252", "v253")

        def aop(i):
            kk, t = divmod(i, 5)
            r = 92 + 4 * (i % 35)
            if kk < 16:
                va, o, sec = ("v248" if kk < 8 else "v249"), (kk & 7) * 5760 + 32 * t, 1280
            else:
                va, o, sec = "v251", (kk - 16) * 46080 + 32 * t, 5760
            e.lg(f"ds_read_b64_tr_b16 {vr(r,2)}, {va} offset:{o}", ("a", i))
            e.lg(f"ds_read_b64_tr_b16 {vr(r+2,2)}, {va} offset:{o+sec}", ("a", i))
        for i in range(35):
            aop(i)
        for n in range(18):
            a = n // 4 if n < 16 else 4
            e.wait(vm=("pl", n))
            e(f"v_mfma_f32_16x16x32_bf16 {vr(4*a,4)}, {vr(232 if a < 4 else 236,4)}, {vr(20+4*n,4)}, {vr(4*a,4)}")
        e.wait_all(lg=True)
        self.stamp(9)
        self.flag_wait(1, "v252", "v253")
        self.stamp(10)
        for kk in range(18):
            e(f"s_mov_b32 {T0}, {(kk if kk < 16 else kk - 16)*4096}")
            e.vm(f"buffer_load_dwordx4 {vr(20+4*kk,4)}, {'v246' if kk < 16 else 'v247'}, {SWS}, {T0} offen sc1", ("o", kk))
        for i in range(90):
            kk, t = divmod(i, 5)
            e.wait(vm=("o", kk), lg=("a", i))
            e(f"v_mfma_f32_16x16x32_bf16 {vr(4*t,4)}, {vr(92+4*(i % 35),4)}, {vr(20+4*kk,4)}, {vr(4*t,4)}")
            if i >= 1 and i - 1 + 35 < 90:
                aop(i - 1 + 35)
        e.nop(8)
        for t in range(5):
            e(f"v_cvt_pk_bf16_f32 v{20+2*t}, v{4*t}, v{4*t+1}\nv_cvt_pk_bf16_f32 v{21+2*t}, v{4*t+2}, v{4*t+3}")
        e("v_permlane16_swap_b32 v20, v22\nv_permlane16_swap_b32 v21, v23\nv_permlane16_swap_b32 v24, v26\nv_permlane16_swap_b32 v25, v27")
        e(f"buffer_store_dwordx4 v[20:23], v244, {SOUT}, 0 offen")
        e(f"buffer_store_dwordx4 v[24:27], v244, {SOUT}, 0 offen offset:64")
        e(f"buffer_store_dwordx2 v[28:29], v245, {SOUT}, 0 offen offset:128")
        self.stamp(11)
        e("s_branch L_FIN")

    def att_proj(self):
        e, p = self.e, self.p
        c = f"{f2u(math.log2(math.e) / math.sqrt(18.0)):#x}"
        e("s_waitcnt lgkmcnt(0)\ns_barrier")
        e.vmq, e.lgq = [], []
        self.stamp(2)
        if p["PRIO_A"]:
            e(f"s_setprio {p['PRIO_A']}")
        e(f"v_and_b32 v200, 15, {vL}\nv_lshrrev_b32 v201, 4, {vL}\nv_bfe_u32 v202, {vL}, 2, 2\nv_and_b32 v203, 3, {vL}")
        e(f"v_lshl_add_u32 v204, v201, 3, v202\nv_lshlrev_b32 v204, 4, v204\nv_lshl_add_u32 v204, v203, 3, v204")
        e(f"v_mov_b32 v205, {QE}\nv_mov_b32 v206, {KVW-16}\nv_cmp_gt_u32 vcc, 2, v203\ns_nop 1\nv_cndmask_b32 v205, v206, v205, vcc\nv_add_u32 v204, v204, v205")
        e(f"v_mul_u32_u24 v205, {CH}, v201\nv_lshl_add_u32 v205, v200, 4, v205\nv_add_u32 v206, {9*4*CH}, v205")
        e(f"s_lshl_b32 {T0}, {sA}, 8\nv_add_u32 v207, {T0}, v205\nv_add_u32 v208, {T0}, v206")
        e.wait_all(vm=True)
        self.arrive(C_E, "v246", "v247")
        self.lds_wait(C_E, 4, "v246", "v247")
        self.stamp(10)

        def ext_reads(kk):
            r = 8 * kk
            e.lg(f"ds_read_b64_tr_b16 {vr(r,2)}, v204 offset:{512*kk}", ("e", kk))
            e.lg(f"ds_read_b64_tr_b16 {vr(r+2,2)}, v204 offset:{512*kk+64}", ("e", kk))
            e.lg(f"ds_read_b128 {vr(r+4,4)}, {'v207' if kk < 9 else 'v208'} offset:{4*CH*(kk % 9)}", ("e", kk))
        for kk in range(5):
            ext_reads(kk)
        for kk in range(18):
            e.wait(lg=("e", kk))
            r = 8 * kk
            e(f"v_mfma_f32_16x16x32_bf16 v[144:147], {vr(r,4)}, {vr(r+4,4)}, {'0' if kk == 0 else 'v[144:147]'}")
            e(f"v_mfma_f32_16x16x32_bf16 v[148:151], {vr(r+4,4)}, {vr(r,4)}, {'0' if kk == 0 else 'v[148:151]'}")
            if kk + 5 < 18:
                ext_reads(kk + 5)
        self.arrive(C_A, "v246", "v247")
        e(f"s_cmp_ge_u32 {sA}, 2\ns_cbranch_scc1 L_NOCLR")
        e(f"s_lshl_b32 {T0}, {sRB}, 8\ns_lshl_b32 {T1}, {sJ}, 2\ns_add_u32 {T0}, {T0}, {T1}\ns_lshl_b32 {T1}, {sA}, 7\ns_add_u32 {T0}, {T0}, {T1}")
        e(f"s_add_u32 {T0}, {T0}, {FLAGS}\nv_mov_b32 v246, 0\ns_mov_b64 exec, 1")
        e(f"buffer_store_dword v246, v246, {SWS}, {T0} offen sc1\ns_mov_b64 exec, -1")
        e.label("L_NOCLR")
        e(f"s_lshr_b32 {T2}, {sA}, 1\ns_lshl_b32 {T3}, {sRB}, 1\ns_add_u32 {T2}, {T2}, {T3}\ns_and_b32 {T3}, {sA}, 1")
        e(f"s_lshl_b32 {T4}, {T3}, 4\nv_add_u32 v209, {T4}, v200\nv_mov_b32 v210, {OOB}")
        e("v_cvt_pk_bf16_f32 v152, v144, v145\nv_cvt_pk_bf16_f32 v153, v146, v147\nv_cvt_pk_bf16_f32 v154, v148, v149\nv_cvt_pk_bf16_f32 v155, v150, v151")
        e(f"s_cmp_ge_u32 {sJ}, 6\ns_cbranch_scc1 L_KV_D\ns_cmp_ge_u32 {sJ}, 3\ns_cbranch_scc1 L_KV_V\ns_cmp_eq_u32 {sJ}, 2\ns_cbranch_scc1 L_KV_X")
        e(f"s_lshl_b32 {T0}, {T2}, 10\ns_lshl_b32 {T1}, {sJ}, 9\ns_add_u32 {T0}, {T0}, {T1}\ns_add_u32 {T0}, {T0}, {KM}")
        e("v_lshlrev_b32 v211, 4, v209\nv_and_b32 v212, 1, v201\nv_lshl_add_u32 v211, v212, 3, v211\nv_cmp_le_u32 vcc, 2, v201\ns_nop 1\nv_cndmask_b32 v211, v210, v211, vcc")
        e(f"buffer_store_dwordx2 v[152:153], v211, {SWS}, {T0} offen sc1\ns_branch L_KV_D")
        e.label("L_KV_X")
        e(f"s_lshl_b32 {T0}, {T2}, 7\ns_add_u32 {T0}, {T0}, {KX}")
        e("v_lshlrev_b32 v211, 2, v209\nv_cmp_eq_u32 vcc, 3, v201\ns_nop 1\nv_cndmask_b32 v211, v210, v211, vcc")
        e(f"buffer_store_dword v153, v211, {SWS}, {T0} offen sc1\ns_branch L_KV_D")
        e.label("L_KV_V")
        e(f"s_sub_u32 {T0}, {sJ}, 3\ns_lshl_b32 {T0}, {T0}, 3\ns_min_u32 {T0}, {T0}, 10\ns_cmp_eq_u32 {sJ}, 5\ns_cselect_b32 {T1}, 14, 8")
        e(f"v_add_u32 v211, {T0}, v200\nv_lshrrev_b32 v212, 1, v201\nv_mul_u32_u24 v212, 18, v212\nv_add_u32 v211, v211, v212\nv_lshlrev_b32 v211, 4, v211")
        e(f"v_and_b32 v212, 1, v201\nv_lshl_add_u32 v211, v212, 3, v211\nv_cmp_le_u32 vcc, {T1}, v200\ns_nop 1\nv_cndmask_b32 v211, v210, v211, vcc")
        e(f"s_mul_i32 {T0}, {T2}, 1152\ns_mul_i32 {T1}, {T3}, 576\ns_add_u32 {T0}, {T0}, {T1}\ns_add_u32 {T0}, {T0}, {VT-128}")
        e(f"buffer_store_dwordx2 v[154:155], v211, {SWS}, {T0} offen sc1")
        e.label("L_KV_D")
        e.vmq += ["kv"]
        e(f"v_mul_f32 v144, {c}, v144\nv_mul_f32 v145, {c}, v145\nv_mul_f32 v146, {c}, v146\nv_mul_f32 v147, {c}, v147")
        e(f"s_lshr_b32 {T0}, {sA}, 1\ns_lshl_b32 {T0}, {T0}, 7\ns_add_u32 {T0}, {T0}, {QX}\nv_lshl_add_u32 v211, v209, 2, {T0}\nv_lshl_add_u32 v211, v201, 9, v211")
        e("v_cvt_pk_bf16_f32 v144, v144, v145\nv_cvt_pk_bf16_f32 v145, v146, v147\ns_mov_b32 exec_hi, 0")
        e.lg("ds_write_b32 v211, v144")
        e.lg("ds_write_b32 v211, v145 offset:256")
        e("s_mov_b64 exec, -1")
        e(f"v_lshrrev_b32 v211, 1, {vL}\nv_bfe_u32 v212, v211, 2, 2\nv_lshrrev_b32 v213, 4, v211\nv_and_b32 v211, 3, v211")
        e(f"v_lshl_add_u32 v211, v212, 3, v211\nv_lshl_add_u32 v211, v213, 2, v211\nv_mul_u32_u24 v211, 1152, v211\nv_and_b32 v212, 1, {vL}\nv_lshl_add_u32 v211, v212, 4, v211")
        e(f"s_mul_i32 {T0}, {sJ}, 144\ns_mul_i32 {T1}, {sA}, 36\ns_add_u32 {T0}, {T0}, {T1}\nv_add_u32 v211, {T0}, v211")
        e(f"s_mul_i32 {sRING}, {sA}, {QRSZ}\ns_add_u32 {sRING}, {sRING}, {ATT}\nv_lshl_add_u32 v212, {vL}, 3, {sRING}")
        self.lds_wait(C_A, 4, "v246", "v247")

        def qdma(kk):
            e(f"s_add_u32 m0, {sRING}, {1024*(kk % 6)}\ns_mov_b32 {T0}, {36864*kk}")
            e.vm(f"buffer_load_dwordx4 v211, {SWQ}, {T0} offen lds", ("q", kk))

        def qreads(kk):
            r = 20 * (kk % 3)
            e.wait(vm=("q", kk))
            e.lg(f"ds_read_b64_tr_b16 {vr(r,2)}, v212 offset:{1024*(kk % 6)}", ("qr", kk))
            e.lg(f"ds_read_b64_tr_b16 {vr(r+2,2)}, v212 offset:{1024*(kk % 6)+512}", ("qr", kk))
            for s in range(4):
                e.lg(f"ds_read_b128 {vr(r+4+4*s,4)}, {'v205' if kk < 9 else 'v206'} offset:{4*CH*(kk % 9)+256*s}", ("qr", kk))
        for kk in range(6):
            qdma(kk)
        e.wait(vm="kv")
        self.arrive(C_KV, "v246", "v247", rtn=T2)
        e(f"s_cmp_lg_u32 {T2}, 3\ns_cbranch_scc1 L_NOG1\nv_mov_b32 v246, 0\nv_mov_b32 v247, 1\ns_mov_b64 exec, 1")
        e(f"buffer_atomic_add v247, v246, {SDBG}, 0 offen sc1\ns_mov_b64 exec, -1")
        e.label("L_NOG1")
        e.vmq.append(None)
        self.stamp(3)
        e.vmq.pop()
        qreads(0)
        qreads(1)
        for kk in range(18):
            e.wait(lg=("qr", kk))
            r = 20 * (kk % 3)
            for s in range(4):
                d = vr(64 + 4 * s, 4)
                e(f"v_mfma_f32_16x16x32_bf16 {d}, {vr(r,4)}, {vr(r+4+4*s,4)}, {'0' if kk == 0 else d}")
                if s == 0 and kk + 6 < 18:
                    qdma(kk + 6)
            if kk + 2 < 18:
                qreads(kk + 2)
        self.arrive(C_XN, "v246", "v247")
        e(f"v_lshrrev_b32 v213, 1, v201\nv_lshlrev_b32 v213, 9, v213\nv_lshl_add_u32 v213, v200, 4, v213\nv_and_b32 v214, 1, v201\nv_lshl_add_u32 v213, v214, 3, v213\nv_add_u32 v213, {sRING}, v213")
        e.nop(2)
        for s in range(4):
            for k in range(4):
                e(f"v_mul_f32 v{64+4*s+k}, {c}, v{64+4*s+k}")
            e(f"v_cvt_pk_bf16_f32 v{64+4*s}, v{64+4*s}, v{65+4*s}\nv_cvt_pk_bf16_f32 v{65+4*s}, v{66+4*s}, v{67+4*s}")
            e.lg(f"ds_write_b64 v213, {vr(64+4*s,2)} offset:{(s >> 1)*1024 + (s & 1)*256}")
        e.wait_all(lg=True)
        self.arrive(C_B, "v246", "v247")
        self.stamp(4)
        for r in range(192, 210):
            e(f"v_mov_b32 v{r}, 0")
        for b in (218, 222):
            e(f"v_mov_b32 v{b+1}, 0x3f803f80\nv_mov_b32 v{b+2}, 0\nv_mov_b32 v{b+3}, 0")
        e(f"v_and_b32 v246, 31, {vL}\nv_mov_b32 v247, 0x3f803f80\nv_cmp_eq_u32 vcc, 18, v246\ns_mov_b32 s82, 0x3ffff\ns_mov_b32 s83, 0x3ffff")
        for r in range(226, 242):
            e(f"v_cndmask_b32 v{r}, 0, v247, vcc")
        e("v_mov_b32 v242, 0xdddddddd")
        e(f"s_lshl_b32 {T0}, {sA}, 14\ns_add_u32 {T0}, {T0}, {KM}\nv_lshl_add_u32 v243, {vL}, 4, {T0}")
        e(f"s_lshl_b32 {T0}, {sA}, 11\ns_add_u32 {T0}, {T0}, {KX}\nv_lshl_add_u32 v244, v246, 2, {T0}")
        e(f"s_mul_i32 {T0}, {sA}, 18432\ns_add_u32 {T0}, {T0}, {VT}\nv_lshrrev_b32 v245, 5, {vL}\nv_mul_u32_u24 v245, 18, v245\nv_add_u32 v245, v245, v246\nv_lshl_add_u32 v245, v245, 4, {T0}")
        self.lds_wait(C_B, 4, "v247", "v248")
        for i2 in range(4):
            e(f"s_add_u32 {T0}, {sA}, {1+i2}\ns_and_b32 {T0}, {T0}, 3\ns_mul_i32 {T1}, {T0}, {QRSZ}\ns_add_u32 {T1}, {T1}, {ATT}\ns_lshl_b32 {T0}, {T0}, 8\ns_add_u32 {T0}, {T0}, {QX}")
            e(f"v_lshl_add_u32 v247, {vL}, 4, {T1}\nv_lshl_add_u32 v248, v246, 2, {T0}")
            for rt in range(2):
                e.lg(f"ds_read_b128 {vr(160+4*(2*i2+rt),4)}, v247 offset:{1024*rt}")
            e("s_mov_b32 exec_hi, 0")
            for rt in range(2):
                e.lg(f"ds_read_b32 v{192+2*(2*i2+rt)}, v248 offset:{128*rt}")
            e("s_mov_b64 exec, -1")
            e.wait_all(lg=True)
        e(f"s_cmp_lg_u32 {sA}, 0\ns_cbranch_scc1 L_G1_O")
        e(f"v_mov_b32 v247, 0\ns_mov_b32 {sSPIN}, 0")
        e.label("L_G1_P")
        e(f"buffer_load_dword v248, v247, {SDBG}, 0 offen sc1")
        e.wait_all(vm=True)
        e(f"v_readfirstlane_b32 {T0}, v248\ns_add_u32 {sSPIN}, {sSPIN}, 1\ns_cmp_ge_u32 {T0}, 256\ns_cbranch_scc1 L_G1_Q\ns_sleep 4\ns_cmp_lt_u32 {sSPIN}, {p['SPIN']}\ns_cbranch_scc1 L_G1_P")
        e.label("L_G1_Q")
        self.arrive(C_G1, "v247", "v248")
        e.label("L_G1_O")
        self.lds_wait(C_G1, 1, "v247", "v248")
        self.stamp(5)

    def kvload(self, buf, what):
        e = self.e
        if what == "k":
            e.vm(f"buffer_load_dwordx4 {vr(210+4*buf,4)}, v243, {SWS}, {sKT[0]} offen sc1", ("k", buf))
            e.vm(f"buffer_load_dword v{218+4*buf}, v244, {SWS}, {sKT[1]} offen sc1", ("k", buf))
            e(f"s_mul_i32 {sKT[2]}, {sTI}, 1152\ns_add_u32 {sTI}, {sTI}, 1\ns_and_b32 {sTI}, {sTI}, 15\ns_lshl_b32 {sKT[0]}, {sTI}, 10\ns_lshl_b32 {sKT[1]}, {sTI}, 7")
        else:
            e(f"s_mov_b64 exec, {sVM}")
            e.vm(f"buffer_load_dwordx4 {vr(226+8*buf,4)}, v245, {SWS}, {sKT[2]} offen sc1", ("v", buf))
            e.vm(f"buffer_load_dwordx4 {vr(230+8*buf,4)}, v245, {SWS}, {sKT[2]} offen offset:576 sc1", ("v", buf))
            e("s_mov_b64 exec, -1")

    def qk(self, i, buf, which, S=None):
        S = vr(128 + 16 * (i & 1), 16) if S is None else S
        if which == 0:
            self.e(f"v_mfma_f32_32x32x16_bf16 {S}, {vr(210+4*buf,4)}, {vr(160+4*i,4)}, 0")
        else:
            self.e(f"v_mfma_f32_32x32x16_bf16 {S}, {vr(218+4*buf,4)}, {vr(192+2*i,4)}, {S}")

    def pv(self, i, buf, s):
        self.e(f"v_smfmac_f32_32x32x32_bf16 {vr(16*i,16)}, {vr(226+8*buf+4*s,4)}, {vr(128+16*(i & 1)+8*s,8)}, v242")

    def att_tile(self, buf, first=False, last=False):
        e = self.e

        def send(i):
            for hf in range(2):
                e.lg(f"ds_write_b128 v{246+(i >> 1)}, {vr(16*i+4*hf,4)} offset:{(i & 1)*OSL + 1024*hf}")
        for i in range(8):
            S = 128 + 16 * (i & 1)

            def ex(a, b):
                for k in range(a, b):
                    e(f"v_exp_f32 v{S+k}, v{S+k}")
            ex(0, 2)
            if i > 0:
                self.pv(i - 1, buf, 1)
            elif not first:
                self.pv(7, buf ^ 1, 1)
            if i == 0 and not last:
                self.kvload(buf ^ 1, "k")
            if i == 1 and not last:
                self.kvload(buf ^ 1, "v")
            ex(2, 5)
            nxt = (i + 1, buf) if i < 7 else (0, buf ^ 1)
            do_qk = not (last and i == 7)
            if i == 7 and do_qk:
                e.wait(vm=[("k", buf ^ 1), ("v", buf ^ 1)])
            if do_qk:
                self.qk(nxt[0], nxt[1], 0)
            ex(5, 8)
            if do_qk:
                self.qk(nxt[0], nxt[1], 1)
            ex(8, 12)
            self.pv(i, buf, 0)
            ex(12, 14)
            if last and 1 <= i <= 6:
                send(i - 1)
            ex(14, 16)

    def attention(self):
        e, p = self.e, self.p
        e.label("L_ATT")
        self.att_proj()
        e.label("L_PASS")
        e(f"s_and_b32 {sTI}, {sRB}, {15*p['KROT']}\ns_lshl_b32 {sKT[0]}, {sTI}, 10\ns_lshl_b32 {sKT[1]}, {sTI}, 7")
        e.vmq = []
        self.kvload(0, "k")
        self.kvload(0, "v")
        for r in range(128):
            e(f"v_mov_b32 v{r}, 0")
        e.wait_all(vm=True)
        self.qk(0, 0, 0)
        self.qk(0, 0, 1)
        e.nop(12)
        self.att_tile(0, first=True)
        e(f"s_mov_b32 {sCNT}, 0")
        e(".p2align 3")
        e.label("L_AT_LOOP")
        if p["STAMP"]:
            e(f"s_add_u32 m0, {sCNT}, 16")
            self.stamp("m0")
        self.att_tile(1)
        self.att_tile(0)
        e(f"s_add_u32 {sCNT}, {sCNT}, 1\ns_cmp_lt_u32 {sCNT}, 7\ns_cbranch_scc1 L_AT_LOOP")
        self.stamp(6)
        self.lds_wait(C_G2, 4, "v246", "v247")
        for i2 in range(3):
            e(f"s_add_u32 {T0}, {sA}, {1+i2}\ns_and_b32 {T0}, {T0}, 3\ns_mul_i32 {T0}, {T0}, {6*OSL}\ns_add_u32 {T0}, {T0}, {OXA + 2*i2*OSL}")
            e(f"v_lshl_add_u32 v{246+i2}, {vL}, 4, {T0}")
        self.att_tile(1, last=True)
        e.nop(2)
        self.pv(7, 1, 1)
        e("s_mov_b32 exec_hi, 0")
        for i in range(6):
            e.lg(f"ds_write_b128 v{246+(i >> 1)}, {vr(16*i+8,4)} offset:{(i & 1)*OSL + 2048}")
        e("s_mov_b64 exec, -1")
        e("v_add_f32 v128, v10, v26\nv_add_f32 v129, v42, v58\nv_add_f32 v130, v74, v90\nv_min3_f32 v131, v10, v26, v42\nv_min3_f32 v132, v58, v74, v90")
        e("v_add_f32 v128, v128, v129\nv_add_f32 v130, v130, v106\nv_min3_f32 v131, v131, v132, v106\nv_add_f32 v128, v128, v130")
        e("v_add_f32 v128, v128, v122\nv_min_f32 v131, v131, v122")
        e(f"v_cmp_nge_f32 vcc, {f2u(2.0**40):#x}, v128\nv_mov_b32 v129, {f2u(2.0**-64):#x}\ns_mov_b32 {T2}, vcc_lo\nv_cmp_nge_f32 vcc, v131, v129\ns_nop 1\ns_or_b32 {T2}, {T2}, vcc_lo")
        if p["FORCE_FB"]:
            e(f"s_mov_b32 {T2}, 1")
        e(f"s_cmp_lg_u32 {T2}, 0\ns_cselect_b32 {T2}, 0x10001, 1")
        e.wait_all(lg=True)
        self.arrive(C_R, "v128", "v129", val=T2)
        e(f"s_mul_i32 {T0}, {sA}, {6*OSL}\ns_add_u32 {T0}, {T0}, {OXA}\nv_lshl_add_u32 v246, {vL}, 4, {T0}")
        e(f"s_lshl_b32 {T3}, {sPASS}, 2\ns_add_u32 {T3}, {T3}, 4")
        self.lds_wait(C_R, T3, "v128", "v129", mask="0xffff", out=T2)
        self.stamp(7)
        e(f"s_cmp_lg_u32 {sPASS}, 0\ns_cbranch_scc1 L_SAFE\ns_cmp_ge_u32 {T2}, 0x10000\ns_cbranch_scc1 L_FALLBACK")
        e.label("L_SAFE")
        for tt in range(2):
            for i in range(3):
                for q in range(3):
                    e.lg(f"ds_read_b128 {vr(12*(3*tt+i)+4*q,4)}, v246 offset:{(2*i+tt)*OSL + 1024*q}", ("r", tt, i))
        e(f"v_and_b32 v247, 31, {vL}\nv_lshrrev_b32 v248, 5, {vL}\ns_lshl_b32 {T0}, {sJ}, 2\ns_add_u32 {T0}, {T0}, {sA}\ns_lshl_b32 {T0}, {T0}, 11")
        e(f"s_lshl_b32 {T1}, {sRB}, 16\ns_add_u32 {T0}, {T0}, {T1}\ns_add_u32 {T0}, {T0}, {OM}\nv_lshl_add_u32 v249, v247, 4, {T0}\nv_lshl_add_u32 v249, v248, 10, v249")
        e(f"s_lshl_b32 {T0}, {sRB}, 13\ns_lshl_b32 {T1}, {sJ}, 10\ns_add_u32 {T0}, {T0}, {T1}\ns_lshl_b32 {T1}, {sA}, 2\ns_add_u32 {T0}, {T0}, {T1}\ns_add_u32 {T0}, {T0}, {OX}")
        e(f"v_lshl_add_u32 v247, v247, 4, {T0}")
        for tt in range(2):
            O = 96 + 16 * tt
            for i in range(3):
                e.wait(lg=("r", tt, i))
                for k in (10, 0, 1, 2, 3, 4, 5, 6, 7, 8, 9):
                    e(f"v_add_f32 v{O+k}, v{O+k}, v{12*(3*tt+i)+k}")
            e(f"v_mov_b32 v128, v{O+10}\nv_mov_b32 v129, v{O+10}\ns_nop 1\nv_permlane32_swap_b32 v128, v129\ns_nop 1\nv_rcp_f32 v128, v128\ns_nop 0")
            for k in range(10):
                e(f"v_mul_f32 v{O+k}, v{O+k}, v128")
            for k in range(5):
                e(f"v_cvt_pk_bf16_f32 v{132+8*tt+k}, v{O+2*k}, v{O+2*k+1}")
            e.vm(f"buffer_store_dwordx4 {vr(132+8*tt,4)}, v249, {SWS}, 0 offen offset:{512*tt} sc1")
            e("s_mov_b32 exec_hi, 0")
            e.vm(f"buffer_store_dword v{136+8*tt}, v247, {SWS}, 0 offen offset:{512*tt} sc1")
            e("s_mov_b64 exec, -1")
        self.stamp(8)
        e.wait_all(vm=True)
        self.arrive(C_O, "v128", "v129", rtn=T2)
        e(f"s_cmp_lg_u32 {T2}, 3\ns_cbranch_scc1 L_NOOF")
        self.flag_set(1, 1, "v128", "v129")
        e.label("L_NOOF")
        self.stamp(9)
        e("s_branch L_FIN")
        self.fallback()

    def fallback(self):
        e = self.e
        e.label("L_FALLBACK")
        e(f"s_mov_b32 {sPASS}, 1\ns_mov_b32 {sTI}, 0\ns_mov_b32 {sKT[0]}, 0\ns_mov_b32 {sKT[1]}, 0\ns_mov_b32 {sCNT}, 0")
        for i in range(8):
            e(f"v_mov_b32 v{i}, 0xff800000")
        e.label("L_FB_LOOP")
        self.kvload(0, "k")
        e.wait_all(vm=True)
        for i in range(8):
            self.qk(i, 0, 0, S="v[128:143]")
            self.qk(i, 0, 1, S="v[128:143]")
            e.nop(12)
            for k in range(8):
                e(f"v_max3_f32 v{i}, v{i}, v{128+2*k}, v{129+2*k}")
        e(f"s_add_u32 {sCNT}, {sCNT}, 1\ns_cmp_lt_u32 {sCNT}, 16\ns_cbranch_scc1 L_FB_LOOP")
        e(f"v_and_b32 v247, 31, {vL}")
        for i in range(8):
            e(f"v_mov_b32 v8, v{i}\ns_nop 1\nv_permlane32_swap_b32 v{i}, v8\ns_nop 1\nv_max_f32 v{i}, v{i}, v8")
            e(f"s_lshl_b32 {T0}, {sA}, 1\ns_add_u32 {T0}, {T0}, {2+i}\ns_and_b32 {T0}, {T0}, 7\ns_lshl_b32 {T0}, {T0}, 7\ns_add_u32 {T0}, {T0}, {MX}")
            e(f"v_lshl_add_u32 v{16+i}, v247, 2, {T0}\ns_lshl_b32 {T1}, {sA}, 10\nv_add_u32 v9, {T1}, v{16+i}")
            e(f"ds_write_b32 v9, v{i}")
        e.wait_all(lg=True)
        self.arrive(C_M, "v128", "v129")
        self.lds_wait(C_M, 4, "v128", "v129")
        e("s_mov_b32 exec_hi, 0")
        for i in range(8):
            for a in range(4):
                e(f"ds_read_b32 v{8+a}, v{16+i} offset:{1024*a}")
            e.wait_all(lg=True)
            e("v_max3_f32 v8, v8, v9, v10\nv_max_f32 v8, v8, v11\nv_cvt_pk_bf16_f32 v9, v8, v8\nv_and_b32 v9, 0xffff0000, v9\nv_sub_f32 v10, v8, v9")
            e(f"v_cvt_pk_bf16_f32 v{193+2*i}, -v9, -v10")
        e("s_mov_b64 exec, -1\ns_branch L_PASS")

    def build(self):
        e, p = self.e, self.p
        self.prologue()
        self.ffn()
        self.attention()
        e.label("L_FIN")
        if p["STAMP"]:
            e("s_waitcnt vmcnt(0)")
            self.stamp(12)
            e(f"s_lshl_b32 {T0}, s2, 3\ns_add_u32 {T0}, {T0}, {sW}\ns_lshl_b32 {T0}, {T0}, 8\ns_add_u32 {T0}, {T0}, {STAMPS}\nv_lshlrev_b32 v0, 2, {vL}")
            e(f"buffer_store_dword v255, v0, {SWS}, {T0} offen\ns_add_u32 {T0}, {T0}, 0x80000\nbuffer_store_dword v254, v0, {SWS}, {T0} offen")
            e(f"s_cmp_lg_u32 s2, 100\ns_cbranch_scc1 L_END\ns_cmp_lg_u32 {sW}, 0\ns_cbranch_scc1 L_END")
            e(f"v_readlane_b32 {T0}, v255, 0\ns_nop 1\nv_subrev_u32 v1, {T0}, v255\ns_mov_b64 exec, 0x1ffe\nbuffer_store_dword v1, v0, {SDBG}, 0 offen")
        e.label("L_END")
        e("s_endpgm")
        probs = check_hazards(e.lines)
        head = open("cdna_kernels/" + NAME + ".s.ref").read().split("\n")
        hdr = [l for l in head if l.startswith(";") and "@launch" not in l and "Override" not in l and "grid=ceil" not in l]
        txt = "\n".join(hdr) + f"""
; One persistent workgroup per CU: 64 rows x (576 FFN columns, 4 heads, 72 output columns).
; Waves 0-3: GEMM1 -> SiLU -> GEMM2 -> partial sums -> output projection; waves 4-7: Q/K/V projection, attention.
; @launch grid=(256,1,1) block=(512,1,1) lds={LDS_BYTES}
.amdgcn_target "amdgcn-amd-amdhsa--gfx950"
.text
.globl {NAME}_kernel
.p2align 8
.type {NAME}_kernel,@function
{NAME}_kernel:
{e.text()}
.section .rodata,"a"
.p2align 6
.amdhsa_kernel {NAME}_kernel
  .amdhsa_next_free_vgpr 256
  .amdhsa_next_free_sgpr 102
  .amdhsa_accum_offset 256
  .amdhsa_group_segment_fixed_size 0
  .amdhsa_kernarg_size 88
  .amdhsa_user_sgpr_count 2
  .amdhsa_user_sgpr_kernarg_segment_ptr 1
  .amdhsa_system_sgpr_workgroup_id_x 1
.end_amdhsa_kernel
"""
        return txt, probs


if __name__ == "__main__":
    out = sys.argv[1]
    kw = {}
    for a in sys.argv[2:]:
        k, v = a.split("=")
        kw[k] = int(v, 0)
    txt, probs = G(**kw).build()
    for x in probs[:40]:
        print("HAZARD", x)
    open(out, "w").write(txt)
    print("wrote", out, len(txt), "bytes;", len(probs), "hazards")
```

```python
import sys, math, struct
from emit import E, check_hazards

NAME = "parallel_sum__grouped_kv_mqa__dense_activation_silu__prompt"

DEF = dict(NSL=2, STAMP=0, PRIO_F=1, PRIO_A=0, ROT=1, KROT=1, CODEPF=0, PRIO_P=2, WARMQ=0, TLBW=0, X_NOATOM=0, OUTF=0, X_NOKV=0, PACE=4, DEFER=1, G1SLEEP=16, SPIN=1 << 16, FORCE_FB=0)

KM, KX, VT = 0, 65536, 73728
ARENA, ASZ = 0x40000, 0xb0000
PART, OM, OX, FLAGS = 0, 589824, 655360, 663552
STAMPS = 0x1710000
WS_BYTES = 0x1820000
CH = 1040
RING, RSZ = 72 * CH, 15360
ATT = RING + 4 * RSZ
QE, KVW = ATT, ATT + 9216 + 64
QRSZ = 6144
OXA, OSL = 92160, 2560
MX = 153600
QX, SYNC = 162560, 163584
LDS_BYTES = 163840
C_A, C_KV, C_B, C_XN, C_H, C_G2, C_P, C_WO, C_R, C_O, C_G1, C_M, C_E, C_Q, C_L = range(15)
SX, SW1, SW2, SWQ, SKV, SWO, SWS, SDBG, SOUT = (f"s[{b}:{b+3}]" for b in range(28, 64, 4))
sRB, sJ, sW, sA = "s64", "s65", "s66", "s67"
sRING, sK, sCNT, sNL2E, sSPIN, sPASS = "s68", "s69", "s70", "s71", "s72", "s73"
sKT = ("s74", "s75", "s76")
T0, T1, T2, T3, T4 = "s77", "s78", "s79", "s80", "s81"
sVM = "s[82:83]"
sIDX = "s84"
sROT, sBO, sTI, sAR = "s92", "s93", "s94", "s95"
S5, sK5, sK5S, sK5M = "s[96:99]", "s100", "s26", "s27"
vL = "v250"
OOB = 0x40000000


def f2u(x):
    return struct.unpack("<I", struct.pack("<f", x))[0]


def vr(b, n=1):
    return f"v{b}" if n == 1 else f"v[{b}:{b+n-1}]"


class G:
    def __init__(self, **kw):
        self.p = dict(DEF)
        self.p.update(kw)
        self.e = E()
        self.nstamp = 0

    def stamp(self, i):
        if not self.p["STAMP"]:
            return
        e = self.e
        e("s_waitcnt lgkmcnt(0)")
        e.lgq = []
        e("s_memrealtime s[88:89]\ns_memtime s[90:91]")
        e("s_waitcnt lgkmcnt(0)")
        e(f"v_writelane_b32 v255, s88, {i}\nv_writelane_b32 v254, s90, {i}")

    def srd(self, srd, lo, nbytes):
        b = int(srd[2:srd.index(":")])
        self.e(f"s_mov_b32 s{b}, s{lo}\ns_mov_b32 s{b+1}, s{lo+1}\ns_mov_b32 s{b+2}, {nbytes}\ns_mov_b32 s{b+3}, 0x20000")

    def arrive(self, word, va, vb, rtn=None, val="1"):
        e = self.e
        e(f"v_mov_b32 {va}, {SYNC}\nv_mov_b32 {vb}, {val}\ns_mov_b64 exec, 1")
        if rtn is None:
            e.lg(f"ds_add_u32 {va}, {vb} offset:{4*word}")
            e("s_mov_b64 exec, -1")
        else:
            e(f"ds_add_rtn_u32 {vb}, {va}, {vb} offset:{4*word}")
            e.wait_all(lg=True)
            e(f"v_readfirstlane_b32 {rtn}, {vb}\ns_mov_b64 exec, -1\ns_nop 0")

    def lds_wait(self, word, target, va, vb, mask=None, out=None, sleep=1):
        e = self.e
        L, D = e.new("LW"), e.new("LWD")
        out = out or T0
        e(f"v_mov_b32 {va}, {SYNC}\ns_mov_b32 {sSPIN}, 0")
        e.label(L)
        e(f"ds_read_b32 {vb}, {va} offset:{4*word}")
        e.wait_all(lg=True)
        e(f"v_readfirstlane_b32 {out}, {vb}\ns_add_u32 {sSPIN}, {sSPIN}, 1")
        if mask is not None:
            e(f"s_and_b32 {T1}, {out}, {mask}\ns_cmp_ge_u32 {T1}, {target}")
        else:
            e(f"s_cmp_ge_u32 {out}, {target}")
        e(f"s_cbranch_scc1 {D}\ns_sleep {sleep}\ns_cmp_lt_u32 {sSPIN}, {self.p['SPIN']}\ns_cbranch_scc1 {L}")
        e.label(D)

    def flag_wait(self, kind, va, vb):
        e = self.e
        L, D = e.new("FW"), e.new("FWD")
        e(f"v_and_b32 {va}, 7, {vL}\nv_lshlrev_b32 {va}, 2, {va}")
        e(f"s_add_u32 {T0}, {sAR}, {FLAGS + 128*kind}\ns_mov_b32 {sSPIN}, 0")
        e.label(L)
        e(f"buffer_load_dword {vb}, {va}, {SWS}, {T0} offen sc1")
        e.wait_all(vm=True)
        e(f"v_cmp_ne_u32 vcc, 1, {vb}\ns_add_u32 {sSPIN}, {sSPIN}, 1\ns_nop 3")
        e(f"s_cbranch_vccz {D}\ns_sleep 2\ns_cmp_lt_u32 {sSPIN}, {self.p['SPIN']}\ns_cbranch_scc1 {L}")
        e.label(D)

    def flag_set(self, kind, val, va, vb):
        e = self.e
        e(f"s_lshl_b32 {T1}, {sJ}, 2\ns_add_u32 {T0}, {sAR}, {T1}")
        e(f"s_add_u32 {T0}, {T0}, {FLAGS + 128*kind}\nv_mov_b32 {va}, 0\nv_mov_b32 {vb}, {val}\ns_mov_b64 exec, 1")
        e.vm(f"buffer_store_dword {vb}, {va}, {SWS}, {T0} offen sc1")
        e("s_mov_b64 exec, -1")

    def prologue(self):
        e, p = self.e, self.p
        nsl = p["NSL"]
        e("s_cmp_ge_u32 s2, 256\ns_cbranch_scc1 L_END")
        e("s_load_dwordx16 s[4:19], s[0:1], 0\ns_load_dwordx4 s[20:23], s[0:1], 64\ns_load_dwordx2 s[24:25], s[0:1], 80")
        if p["STAMP"]:
            e("s_memrealtime s[88:89]\ns_memtime s[90:91]\nv_mov_b32 v255, 0\nv_mov_b32 v254, 0")
        e(f"v_and_b32 {vL}, 63, v0\nv_lshrrev_b32 v1, 6, v0")
        lg = nsl.bit_length() - 1
        e(f"s_and_b32 {T0}, s2, 7\ns_lshr_b32 {sIDX}, s2, 3")
        e(f"s_and_b32 {sJ}, {T0}, {8//nsl - 1}\ns_lshl_b32 {sJ}, {sJ}, {lg}\ns_and_b32 {T1}, {sIDX}, {nsl-1}\ns_add_u32 {sJ}, {sJ}, {T1}")
        e(f"s_lshr_b32 {sRB}, {T0}, {3-lg}\ns_lshl_b32 {sRB}, {sRB}, {5-lg}\ns_lshr_b32 {T1}, {sIDX}, {lg}\ns_add_u32 {sRB}, {sRB}, {T1}")
        e(f"v_readfirstlane_b32 {sW}, v1\ns_mul_i32 {sAR}, {sRB}, {ASZ}\ns_add_u32 {sAR}, {sAR}, {ARENA}")
        e(f"v_lshrrev_b32 v120, 3, v0\nv_and_b32 v121, 7, v0\ns_lshl_b32 {T0}, {sRB}, 6")
        e(f"v_add_u32 v122, {T0}, v120\nv_mul_u32_u24 v122, 1152, v122\nv_lshl_add_u32 v122, v121, 4, v122")
        e(f"v_mul_u32_u24 v123, {CH}, v121\nv_lshl_add_u32 v123, v120, 4, v123\nv_add_u32 v124, {8*CH}, v123")
        e(f"s_and_b32 {sA}, {sW}, 3\nv_mov_b32 v216, 0\nv_mov_b32 v217, 0\nv_mov_b32 v222, 0\nv_mov_b32 v224, 0")
        e("s_waitcnt lgkmcnt(0)")
        if p["STAMP"]:
            e("v_writelane_b32 v255, s88, 0\nv_writelane_b32 v254, s90, 0")
        self.srd(SX, 4, 2359296)
        for u in range(9):
            e.vm(f"buffer_load_dwordx4 v[{4*u}:{4*u+3}], v122, {SX}, 0 offen offset:{128*u}", ("x", u))
        self.srd(SW1, 16, 5308416)
        self.srd(SW2, 18, 5308416)
        self.srd(SWQ, 6, 663552)
        self.srd(SWO, 12, 663552)
        self.srd(SWS, 24, WS_BYTES)
        self.srd(SDBG, 22, 256)
        self.srd(SOUT, 20, 2359296)
        e(f"s_cmp_ge_u32 {sJ}, 3\ns_cselect_b32 s44, s10, s8\ns_cselect_b32 s45, s11, s9\ns_mov_b32 s46, 20736\ns_mov_b32 s47, 0x20000")
        self.srd(S5, 16, 5308416)
        e(f"s_mov_b32 {sNL2E}, {f2u(-math.log2(math.e)):#x}\ns_mov_b32 {sPASS}, 0")
        e(f"s_cmp_ge_u32 {sW}, 4\ns_cbranch_scc1 L_PRO_A")
        q0 = list(e.vmq)
        self.pro_ffn()
        self.ln_stats()
        e("s_branch L_PRO_J")
        e.vmq = list(q0)
        e.label("L_PRO_A")
        if p["CODEPF"]:
            e(f"s_getpc_b64 s[86:87]")
            e.label("L_PC")
            e(f"s_and_b32 {T0}, {sIDX}, 3\ns_lshl_b32 {T0}, {T0}, 2\ns_add_u32 {T0}, {T0}, {sA}\ns_lshl_b32 {T0}, {T0}, 12")
            e(f"v_lshl_add_u32 v126, {vL}, 6, {T0}\nv_min_u32 v126, L_END-L_PC, v126\nv_mov_b32 v127, s87")
            e("v_add_co_u32 v126, vcc, s86, v126\ns_nop 1\nv_addc_co_u32 v127, vcc, 0, v127, vcc")
            e.vm("global_load_dword v251, v[126:127], off")
        if p["TLBW"]:
            e(f"s_mov_b64 exec, 7\ns_cmp_eq_u32 {sA}, 1\ns_cbranch_scc1 L_TLB1\ns_cmp_eq_u32 {sA}, 2\ns_cbranch_scc1 L_TLB2\ns_cmp_eq_u32 {sA}, 3\ns_cbranch_scc1 L_TLB3")
            e(f"v_mul_u32_u24 v126, {ASZ - 64}, {vL}\nv_cmp_eq_u32 vcc, 2, {vL}\nv_add_u32 v126, {sAR}, v126\ns_nop 0\nv_cndmask_b32 v126, v126, 0, vcc")
            e(f"buffer_load_dword v249, v126, {SWS}, 0 offen\ns_branch L_TLBD")
            e.label("L_TLB1")
            e(f"s_mul_i32 {T1}, {sJ}, 663552\nv_mul_u32_u24 v126, 331000, {vL}\nbuffer_load_dword v249, v126, {SW2}, {T1} offen\ns_branch L_TLBD")
            e.label("L_TLB2")
            e(f"s_mul_i32 {T0}, {sRB}, 73728\nv_mul_u32_u24 v126, 36000, {vL}\nbuffer_load_dword v249, v126, {SOUT}, {T0} offen\ns_branch L_TLBD")
            e.label("L_TLB3")
            e(f"v_mov_b32 v126, 0")
            e.vm(f"buffer_load_dword v249, v126, {SDBG}, 0 offen offset:128")
            e.label("L_TLBD")
            e("s_mov_b64 exec, -1")
        if p["WARMQ"]:
            rows = 18 * nsl
            e(f"s_lshl_b32 {T0}, {sA}, 6\nv_add_u32 v126, {T0}, {vL}\nv_lshrrev_b32 v127, 2, v126\nv_and_b32 v128, 3, v126\nv_mul_u32_u24 v127, 1152, v127")
            e(f"v_cmp_gt_u32 vcc, {4*rows}, v126\nv_mul_u32_u24 v128, 52, v128\nv_add_u32 v127, v127, v128\nv_mov_b32 v128, {OOB}\nv_cndmask_b32 v127, v128, v127, vcc")
            e(f"s_and_b32 {T1}, {sRB}, {32//nsl - 1}\ns_mul_i32 {T1}, {T1}, {rows*1152}\ns_mul_i32 {T0}, {sJ}, 144\ns_add_u32 {T1}, {T1}, {T0}")
            e.vm(f"buffer_load_dword v252, v127, {SWQ}, {T1} offen")
            e.vm(f"buffer_load_dword v253, v127, {SWO}, {T1} offen")
        self.ln_stats()
        self.pro_att()
        e.label("L_PRO_J")
        self.layernorm()

    def wrap_inc(self, reg, inc, mod):
        self.e(f"s_add_u32 {reg}, {reg}, {inc}\ns_cmp_eq_u32 {reg}, {mod}\ns_cselect_b32 {reg}, 0, {reg}")

    def pro_ffn(self):
        e = self.e
        e(f"s_mul_i32 {T2}, {sW}, 5\ns_lshl_b32 {T3}, {sW}, 2\ns_cmp_eq_u32 {sW}, 3\ns_cselect_b32 {T2}, 14, {T2}\ns_cselect_b32 {T3}, 13, {T3}")
        e(f"s_mul_i32 {sRING}, {sW}, {RSZ}\ns_add_u32 {sRING}, {sRING}, {RING}")
        e(f"v_lshrrev_b32 v125, 2, {vL}\nv_and_b32 v126, 3, {vL}")
        e(f"s_mul_i32 {T0}, {sJ}, 1152\ns_lshl_b32 {T1}, {T2}, 6\ns_add_u32 {T0}, {T0}, {T1}")
        e(f"v_mul_u32_u24 v216, 9216, v125\nv_lshl_add_u32 v216, v126, 4, v216\nv_add_u32 v216, {T0}, v216")
        nsl = self.p["NSL"]
        e(f"s_and_b32 {sROT}, {sRB}, {32//nsl - 1}\ns_mul_i32 {sROT}, {sROT}, {36*nsl*self.p['ROT']}\ns_lshr_b32 {sROT}, {sROT}, 5\ns_mul_i32 {sK}, {sROT}, 147456")
        e(f"s_mul_i32 {T0}, {sJ}, 144\ns_lshl_b32 {T1}, {sW}, 6\ns_add_u32 {T0}, {T0}, {T1}\ns_sub_u32 {T0}, {T0}, 128")
        e(f"v_mul_u32_u24 v224, 1152, v125\nv_lshl_add_u32 v224, v126, 4, v224\nv_add_u32 v224, {T0}, v224\nv_add_u32 v127, 256, v216")
        e(f"s_cmp_ge_u32 {sW}, 2\ns_cselect_b64 vcc, -1, 0\ns_cselect_b32 s96, s6, s16\ns_cselect_b32 s97, s7, s17\ns_cselect_b32 s98, 663552, s34\ns_mov_b32 s99, 0x20000")
        e(f"s_mov_b32 {sK5S}, 147456\ns_cselect_b32 {sK5S}, 18432, {sK5S}\nv_cndmask_b32 v224, v127, v224, vcc\ns_mul_i32 {sK5M}, {sK5S}, 36\ns_mul_i32 {sK5}, {sROT}, {sK5S}")
        for s in range(3):
            for pc in range(4):
                e(f"s_add_u32 m0, {sRING}, {s*5120 + 960*pc}\ns_nop 0")
                e.vm(f"buffer_load_dwordx4 v216, {SW1}, {sK} offen offset:{64*pc} lds")
            e(f"s_add_u32 m0, {sRING}, {s*5120 + 4096}")
            self.wrap_inc(sK, 147456, 36 * 147456)
            e.vm(f"buffer_load_dwordx4 v224, {S5}, {sK5} offen lds")
            self.wrap_inc(sK5, sK5S, sK5M)
        e(f"s_mul_i32 {T0}, {sJ}, 663552\ns_lshl_b32 {T1}, {T3}, 6\ns_add_u32 {T0}, {T0}, {T1}")
        e(f"v_mul_u32_u24 v217, 1152, v125\nv_lshl_add_u32 v217, v126, 4, v217\nv_add_u32 v217, {T0}, v217")
        e(f"v_lshrrev_b32 v127, 5, {vL}\nv_bfe_u32 v128, {vL}, 2, 2\nv_bfe_u32 v129, {vL}, 4, 1")
        e(f"v_lshlrev_b32 v129, 5, v129\nv_lshl_add_u32 v129, v126, 3, v129\nv_lshl_add_u32 v129, v128, 6, v129\nv_add_u32 v129, {sRING}, v129")
        e("v_lshl_add_u32 v218, v127, 9, v129\nv_lshl_add_u32 v219, v127, 8, v129")
        e(f"v_and_b32 v128, 31, {vL}\nv_lshlrev_b32 v128, 4, v128\nv_mul_u32_u24 v223, {CH}, v127\nv_add_u32 v223, v223, v128")
        e(f"s_mul_i32 {T0}, {T2}, {4*CH}\nv_add_u32 v221, {T0}, v223")
        e(f"s_lshl_b32 {T0}, {T3}, 15\ns_lshl_b32 {T1}, {sJ}, 10\ns_add_u32 {T0}, {T0}, {T1}\ns_add_u32 {T0}, {T0}, {sAR}")
        e(f"v_lshl_add_u32 v222, v127, 13, v128\nv_add_u32 v222, {T0}, v222")

    def pro_att(self):
        e, p = self.e, self.p
        e(f"v_mul_u32_u24 v125, 1152, {vL}\ns_mul_i32 {T0}, {sJ}, 144\ns_add_u32 {T0}, {T0}, 128\nv_add_u32 v125, {T0}, v125")
        e(f"s_mul_i32 {T2}, {sA}, 73728\ns_lshl_b32 {T3}, {sA}, 10\ns_add_u32 {T3}, {T3}, {QE}")
        for i in range(2):
            e(f"s_add_u32 m0, {T3}, {4096*i}\ns_add_u32 {T0}, {T2}, {4*73728*i}")
            e.vm(f"buffer_load_dwordx4 v125, {SWQ}, {T0} offen lds", "ext")
        e(f"s_cmp_ge_u32 {sJ}, 3\ns_cselect_b32 {T0}, 3, 0\ns_sub_u32 {T0}, {sJ}, {T0}\ns_cmp_ge_u32 {T0}, 3\ns_cselect_b32 {T0}, 0, {T0}")
        e(f"s_lshl_b32 {T1}, {T0}, 4\ns_min_u32 {T1}, {T1}, 20\nv_mul_u32_u24 v126, 36, {vL}\nv_add_u32 v126, {T1}, v126")
        e(f"s_mul_i32 {T2}, {sA}, 2304\ns_lshl_b32 {T3}, {sA}, 10\ns_add_u32 {T3}, {T3}, {KVW}")
        for i in range(2):
            e(f"s_add_u32 m0, {T3}, {4096*i}\ns_add_u32 {T0}, {T2}, {9216*i}")
            e.vm(f"buffer_load_dwordx4 v126, {SKV}, {T0} offen lds", "ext")
        e(f"s_cmp_lg_u32 {sA}, 0\ns_cbranch_scc1 L_PA_1\ns_mov_b32 m0, {KVW + 8192}\ns_mov_b32 {T0}, {8*2304}")
        e(f"buffer_load_dwordx4 v126, {SKV}, {T0} offen lds")
        e.label("L_PA_1")
        e(f"s_cmp_lg_u32 {sA}, 1\ns_cbranch_scc1 L_PA_2\ns_mov_b32 m0, {QE + 8192}\ns_mov_b32 {T0}, {8*73728}")
        e(f"buffer_load_dwordx4 v125, {SWQ}, {T0} offen lds")
        e.label("L_PA_2")
        e(f"v_lshlrev_b32 v127, 2, {vL}\nv_add_u32 v127, {SYNC}, v127\nv_mov_b32 v128, 0")
        e("ds_write_b32 v127, v128")

    def ln_stats(self):
        e = self.e
        e("v_mov_b32 v112, 0\nv_mov_b32 v113, 0\nv_mov_b32 v114, 0\nv_mov_b32 v115, 0\ns_mov_b32 s85, 0x3f803f80\ns_mov_b32 s86, 0xffff0000")
        for u in range(9):
            e.wait(vm=("x", u))
            if u == 0:
                self.stamp(1)
            for k in range(4):
                r = 4 * u + k
                e(f"v_dot2_f32_bf16 v{112+(k&1)}, v{r}, s85, v{112+(k&1)}")
                e(f"v_lshlrev_b32 v{40+2*r}, 16, v{r}")
                e(f"v_dot2_f32_bf16 v{114+(k&1)}, v{r}, v{r}, v{114+(k&1)}")
                e(f"v_and_b32 v{41+2*r}, s86, v{r}")

    def layernorm(self):
        e = self.e
        e("s_nop 2\nv_add_f32 v112, v112, v113\nv_add_f32 v114, v114, v115\ns_nop 1")
        for m in ("quad_perm:[1,0,3,2]", "quad_perm:[2,3,0,1]", "row_half_mirror"):
            e(f"v_add_f32_dpp v112, v112, v112 {m} row_mask:0xf bank_mask:0xf")
            e(f"v_add_f32_dpp v114, v114, v114 {m} row_mask:0xf bank_mask:0xf\ns_nop 1")
        inv = f"{f2u(1.0/576):#x}"
        e(f"v_mul_f32 v112, {inv}, v112\nv_mul_f32 v114, {inv}, v114\nv_fma_f32 v114, -v112, v112, v114\nv_max_f32 v114, 0, v114")
        e(f"v_add_f32 v114, {f2u(1e-5):#x}, v114\nv_rsq_f32 v114, v114\ns_nop 0\nv_mul_f32 v114, {sNL2E}, v114\nv_mul_f32 v112, v112, v114")
        for u in range(9):
            for k in range(8):
                r = 40 + 8 * u + k
                e(f"v_fma_f32 v{r}, v{r}, v114, -v112")
            for k in range(4):
                e(f"v_cvt_pk_bf16_f32 v{4*u+k}, v{40+8*u+2*k}, v{41+8*u+2*k}")
            if u < 8:
                e(f"ds_write_b128 v123, v[{4*u}:{4*u+3}] offset:{8*CH*u}")
            else:
                e(f"ds_write_b128 v124, v[{4*u}:{4*u+3}] offset:{8*CH*7}")
        e(f"s_cmp_ge_u32 {sW}, 4\ns_cbranch_scc1 L_ATT")
        e("s_waitcnt lgkmcnt(0)\ns_barrier")

    def gemm(self, T, which, Tn):
        e = self.e
        vT = "v218" if which == 1 else "v219"
        sec = 256 if which == 1 else 512
        vD, SW, kstride = ("v216", SW1, 147456) if which == 1 else ("v217", SW2, 18432)

        def areg(buf, pc):
            return 160 + 20 * buf + 4 * pc

        def breg(buf, rt):
            return 200 + 8 * buf + 4 * rt

        def reads(s, pc):
            if pc < 2:
                e.lg(f"ds_read_b128 {vr(breg(s&1,pc),4)}, v220 offset:{512*pc}", ("B", s, pc))
            o = (s % 3) * 5120 + 1024 * pc
            e.lg(f"ds_read_b64_tr_b16 {vr(areg(s&1,pc),2)}, {vT} offset:{o}", ("A", s, pc))
            e.lg(f"ds_read_b64_tr_b16 {vr(areg(s&1,pc)+2,2)}, {vT} offset:{o+sec}", ("A", s, pc))

        def dma_list(s):
            sn = s + 3
            if sn < 36:
                return [(vD, SW, pc, ("d", sn, pc)) if (which == 2 or pc < 4) else ("v224", S5, pc, ("d", sn, pc)) for pc in range(T)]
            if which == 1:
                return [("v217", SW2, pc, ("d2", sn - 36, pc)) for pc in range(Tn)]
            return []

        def step(s, first=False):
            dl = dma_list(s)
            if which == 1 and s == 33:
                e(f"s_mul_i32 {sK}, {sROT}, 18432")
            for gi in range(2 * T):
                pc, rt = gi >> 1, gi & 1
                mine = []
                if rt == 0:
                    mine = [d for d in dl if d[2] == pc or (pc == T - 1 and d[2] > pc)]
                e.wait(lg=[("A", s, pc), ("B", s, 0)] if gi == 0 else ([("B", s, 1)] if gi == 1 else [("A", s, pc)]))
                five = bool(mine) and mine[0][1] == S5
                if mine:
                    e(f"s_add_u32 m0, {sRING}, {(s % 3)*5120 + (1024 if five else 960)*mine[0][2]}")
                acc = vr(16 * gi, 16)
                e(f"v_mfma_f32_32x32x16_bf16 {acc}, {vr(areg(s&1,pc),4)}, {vr(breg(s&1,rt),4)}, {'0' if first else acc}")
                for n, d in enumerate(mine):
                    if n:
                        e(f"s_add_u32 m0, {sRING}, {(s % 3)*5120 + 960*d[2]}\ns_nop 0")
                    if five:
                        e.vm(f"buffer_load_dwordx4 {d[0]}, {d[1]}, {sK5} offen lds", d[3])
                    else:
                        e.vm(f"buffer_load_dwordx4 {d[0]}, {d[1]}, {sK} offen offset:{64*d[2]} lds", d[3])
                if rt == 1 and s + 1 < 36:
                    if pc == 0:
                        e(f"v_add_u32 v220, {sBO}, v223")
                    e.wait(vm=("d", s + 1, pc))
                    reads(s + 1, pc)
                if gi == 2 * T - 3 and s + 2 < 36:
                    self.wrap_inc(sBO, 2080, 36 * 2080)
                if gi == 0 and which == 1 and 1 <= s <= 32:
                    self.wrap_inc(sK5, sK5S, sK5M)
            if s <= 32:
                self.wrap_inc(sK, kstride, 36 * kstride)
            elif which == 1:
                self.wrap_inc(sK, 18432, 36 * 18432)

        e.vmq = [("d", s, pc) for s in range(3) for pc in range(T)]
        e(f"s_mul_i32 {sBO}, {sROT}, 2080\nv_add_u32 v220, {sBO}, v223")
        self.wrap_inc(sBO, 2080, 36 * 2080)
        e.wait(vm=("d", 0, T - 1))
        e.lgq = []
        for pc in range(T):
            reads(0, pc)
        main = e.lines
        texts = []
        for s in range(36):
            e.lines = []
            step(s, first=(s == 0))
            texts.append(e.lines)
        e.lines = main
        for s in range(1, 27):
            assert texts[s] == texts[s + 6], (s, texts[s], texts[s + 6])
        tag = f"G{which}T{T}"
        e.lines += texts[0]
        e(f"s_mov_b32 {sCNT}, 0\ns_branch L_{tag}_1")
        e(".p2align 3")
        e.label(f"L_{tag}_3")
        if self.p["STAMP"] > 1:
            e(f"s_memrealtime s[88:89]\ns_memtime s[90:91]\ns_add_u32 m0, {sCNT}, {8*which+8}\ns_waitcnt lgkmcnt(0)\nv_writelane_b32 v255, s88, m0\nv_writelane_b32 v254, s90, m0")
        for s in (3, 4, 5, 6):
            e.lines += texts[s]
        e.label(f"L_{tag}_1")
        e.lines += texts[7] + texts[8]
        e(f"s_add_u32 {sCNT}, {sCNT}, 1\ns_cmp_lt_u32 {sCNT}, 6\ns_cbranch_scc1 L_{tag}_3")
        for s in (33, 34, 35):
            e.lines += texts[s]

    def silu(self, T):
        e = self.e
        for g in range(4 * T):
            b = 8 * g
            t = 160 + 8 * (g & 1)
            for k in range(8):
                e(f"v_exp_f32 v{t+k}, v{b+k}")
            for k in range(8):
                e(f"v_add_f32 v{t+k}, 1.0, v{t+k}")
            for k in range(8):
                e(f"v_rcp_f32 v{t+k}, v{t+k}")
            for k in range(8):
                e(f"v_mul_f32 v{t+k}, v{b+k}, v{t+k}")
            for k in range(4):
                e(f"v_cvt_pk_bf16_f32 v{b+k}, v{t+2*k}, v{t+2*k+1}")

    def q_out(self):
        e = self.e
        c = f"{f2u(1.0 / (math.log2(math.e) * math.sqrt(18.0))):#x}"
        e(f"s_lshl_b32 {T2}, {sW}, 5\ns_sub_u32 {T2}, {T2}, 64\nv_lshrrev_b32 v170, 5, {vL}\nv_lshl_add_u32 v170, v170, 2, {T2}")
        e(f"v_and_b32 v171, 31, {vL}\nv_lshlrev_b32 v171, 4, v171\nv_add_u32 v171, {ATT}, v171\ns_mov_b32 {T3}, {c}")
        for pp in range(8):
            self.qaddr(f"v{160+pp}", "v170", 8 * (pp >> 1) + 2 * (pp & 1), "v171", "v172", "v173")
        for r in range(128, 160):
            e(f"v_mul_f32 v{r}, {T3}, v{r}")
        for k in range(16):
            e(f"v_cvt_pk_bf16_f32 v{128+k}, v{128+2*k}, v{129+2*k}")
        self.lds_wait(C_A, 4, "v252", "v253")
        for rt in range(2):
            for pp in range(8):
                e.lg(f"ds_write_b32 v{160+pp}, v{128+8*rt+pp} offset:{1536*rt}")
        e.wait_all(lg=True)
        self.arrive(C_B, "v252", "v253")

    def qaddr(self, dst, vc, cadd, vbase, t0, t1):
        e = self.e
        e(f"v_add_u32 {t0}, {cadd}, {vc}\nv_mul_u32_u24 {t1}, 3641, {t0}\nv_lshrrev_b32 {t1}, 16, {t1}")
        e(f"v_mul_u32_u24 {dst}, 18, {t1}\nv_sub_u32 {t0}, {t0}, {dst}\nv_mul_u32_u24 {dst}, 3072, {t1}\nv_lshrrev_b32 {t1}, 3, {t0}\nv_lshl_add_u32 {dst}, {t1}, 9, {dst}")
        e(f"v_and_b32 {t0}, 7, {t0}\nv_lshl_add_u32 {dst}, {t0}, 1, {dst}\nv_add_u32 {dst}, {vbase}, {dst}")

    def ffn_path(self, T1_, T2_):
        e, p = self.e, self.p
        if T1_ == 4:
            self.q_out()
        self.silu(T1_)
        self.stamp(4)
        self.lds_wait(C_XN, 8, "v252", "v253")
        for u in range(2 * T1_):
            pc, rt = u >> 1, u & 1
            for hf in range(2):
                e.lg(f"ds_write_b128 v221, {vr(16*u+8*hf,4)} offset:{(4*pc+2*hf)*CH + 512*rt}")
        e.wait_all(lg=True)
        self.arrive(C_H, "v252", "v253")
        self.lds_wait(C_H, 4, "v252", "v253")
        self.stamp(5)
        self.gemm(T2_, 2, 0)
        self.arrive(C_G2, "v252", "v253")
        self.stamp(6)
        e.nop(2)
        for u in range(2 * T2_):
            pc, rt = u >> 1, u & 1
            b = 16 * u
            for k in range(8):
                e(f"v_cvt_pk_bf16_f32 v{b+k}, v{b+2*k}, v{b+2*k+1}")
            e(f"s_mov_b32 {T0}, {(4*pc)*8192}\ns_mov_b32 {T1}, {(4*pc+2)*8192}")
            e(f"v_permlane32_swap_b32 v{b}, v{b+2}\nv_permlane32_swap_b32 v{b+1}, v{b+3}")
            e(f"v_permlane32_swap_b32 v{b+4}, v{b+6}\nv_permlane32_swap_b32 v{b+5}, v{b+7}")
            e.vm(f"buffer_store_dwordx4 {vr(b,4)}, v222, {SWS}, {T0} offen offset:{512*rt} sc1", "pst")
            e.vm(f"buffer_store_dwordx4 {vr(b+4,4)}, v222, {SWS}, {T1} offen offset:{512*rt} sc1", "pst")
            if p["PACE"]:
                e(f"s_waitcnt vmcnt({p['PACE']})")

    def ffn(self):
        e, p = self.e, self.p
        self.stamp(2)
        if p["PRIO_F"]:
            e(f"s_setprio {p['PRIO_F']}")
        self.gemm(5, 1, 5)
        self.arrive(C_XN, "v252", "v253")
        self.stamp(3)
        e.nop(4)
        e(f"s_cmp_ge_u32 {sW}, 2\ns_cbranch_scc1 L_FFN_L")
        self.ffn_path(5, 4)
        e("s_branch L_FFN_J")
        e.label("L_FFN_L")
        self.ffn_path(4, 5)
        e.label("L_FFN_J")
        e("s_setprio 0")
        self.stamp(7)
        self.ffn_tail()

    def ffn_tail(self):
        e, p = self.e, self.p
        e.vmq = ["pst"]
        for i in range(5):
            e(f"v_add_u32 v160, {64*i}, {vL}\nv_mul_u32_u24 v161, 6554, v160\nv_lshrrev_b32 v161, 16, v161")
            e(f"v_mul_u32_u24 v162, 10, v161\nv_sub_u32 v162, v160, v162\nv_mul_u32_u24 v161, 1152, v161\nv_lshl_add_u32 v{163+i}, v162, 4, v161")
        e(f"s_mul_i32 {T2}, {sW}, 5\ns_cmp_eq_u32 {sW}, 3\ns_cselect_b32 {T2}, 14, {T2}")
        e(f"s_mul_i32 {T3}, {T2}, 5120\ns_mul_i32 {T2}, {T2}, 36864\ns_mul_i32 {T4}, {sJ}, 144\ns_add_u32 {T2}, {T2}, {T4}")
        e("s_waitcnt vmcnt(0)")
        self.arrive(C_P, "v252", "v253", rtn=T4)
        self.lds_wait(C_G1, 1, "v252", "v253")
        e(f"s_cmp_lg_u32 {T4}, 3\ns_cbranch_scc1 L_NOPF")
        self.flag_set(0, 1, "v252", "v253")
        e.label("L_NOPF")
        self.lds_wait(C_G2, 4, "v252", "v253")
        for gi in range(5):
            if gi == 4:
                e(f"s_cmp_ge_u32 {sW}, 2\ns_cbranch_scc1 L_WO_D")
            for i in range(5):
                e(f"s_add_u32 m0, {T3}, {gi*5120 + i*1024}\ns_add_u32 {T0}, {T2}, {gi*36864}")
                e.vm(f"buffer_load_dwordx4 v{163+i}, {SWO}, {T0} offen lds", "wo" if gi < 4 else None)
            if p["PACE"]:
                e("s_waitcnt vmcnt(2)")
        e.label("L_WO_D")
        e(f"v_and_b32 v160, 15, {vL}\nv_lshrrev_b32 v161, 4, {vL}\ns_lshl_b32 {T0}, {sW}, 4\nv_add_u32 v162, {T0}, v160")
        e(f"v_and_b32 v163, 1, v161\nv_lshrrev_b32 v164, 1, v161")
        e(f"s_mul_i32 {T1}, {sJ}, 73728\ns_add_u32 {T0}, {sAR}, {T1}")
        e(f"v_lshl_add_u32 v165, v162, 4, {T0}\nv_lshl_add_u32 v240, v163, 13, v165\nv_lshl_add_u32 v240, v164, 10, v240\nv_lshl_add_u32 v241, v161, 10, v165")
        e(f"s_lshl_b32 {T0}, {sRB}, 6\nv_add_u32 v165, {T0}, v162\nv_mul_u32_u24 v165, 1152, v165\ns_mul_i32 {T0}, {sJ}, 144\nv_add_u32 v165, {T0}, v165")
        e(f"v_lshl_add_u32 v242, v161, 4, v165\nv_mov_b32 v166, {OOB}\nv_cmp_gt_u32 vcc, 2, v161\ns_nop 1\nv_cndmask_b32 v242, v166, v242, vcc")
        e(f"v_cmp_eq_u32 vcc, 0, v161\ns_nop 1\nv_cndmask_b32 v243, v166, v165, vcc")
        e(f"v_lshl_add_u32 v244, v163, 5, v165\nv_lshl_add_u32 v244, v164, 4, v244")
        e(f"v_lshl_add_u32 v245, v161, 3, v165\nv_cmp_gt_u32 vcc, 2, v161\ns_nop 1\nv_cndmask_b32 v245, v166, v245, vcc")
        for a in range(5):
            e.vm(f"buffer_load_dwordx4 {vr(92+4*a,4)}, {'v242' if a < 4 else 'v243'}, {SX}, 0 offen offset:{32*a}", ("xr", a))
        e("v_lshlrev_b32 v166, 3, v163\nv_sub_u32 v166, v160, v166\nv_mov_b32 v167, 0x3f80\nv_mov_b32 v168, 0x3f800000")
        for base, src in ((232, "v166"), (236, "v160")):
            for r in range(4):
                e(f"v_cmp_eq_u32 vcc, {2*r}, {src}\nv_cmp_eq_u32 s[86:87], {2*r+1}, {src}\ns_nop 0\nv_cndmask_b32 v{base+r}, 0, v167, vcc")
                e(f"v_cndmask_b32 v{base+r}, v{base+r}, v168, s[86:87]")
        e(f"s_add_u32 {T0}, {sAR}, {OM}\nv_lshl_add_u32 v246, v162, 4, {T0}\nv_lshl_add_u32 v246, v161, 10, v246")
        e(f"s_add_u32 {T0}, {sAR}, {OX}\nv_lshl_add_u32 v247, v162, 4, {T0}\nv_lshl_add_u32 v247, v161, 10, v247")
        e(f"v_bfe_u32 v166, {vL}, 2, 2\nv_and_b32 v167, 3, {vL}\nv_mul_u32_u24 v168, 18, v164\nv_lshl_add_u32 v168, v163, 2, v168\nv_add_u32 v168, v168, v166")
        e("v_mul_u32_u24 v168, 160, v168\nv_lshl_add_u32 v248, v167, 3, v168\nv_add_u32 v249, 46080, v248")
        e("v_mul_u32_u24 v168, 72, v161\nv_lshrrev_b32 v169, 1, v166\nv_mul_u32_u24 v169, 18, v169\nv_and_b32 v166, 1, v166\nv_add3_u32 v168, v168, v169, v166")
        e("v_add_u32 v168, 16, v168\nv_mul_u32_u24 v168, 160, v168\nv_lshl_add_u32 v251, v167, 3, v168")
        e.wait_all(vm=True)
        self.arrive(C_WO, "v252", "v253")
        if p["DEFER"]:
            self.lds_wait(C_L, 4, "v252", "v253", sleep=8)
        self.flag_wait(0, "v252", "v253")
        self.stamp(8)
        n = 0
        for a in range(4):
            for sp in range(4):
                e(f"s_mov_b32 {T0}, {a*16384 + (sp >> 1)*4096}")
                e.vm(f"buffer_load_dwordx4 {vr(20+4*n,4)}, v240, {SWS}, {T0} offen offset:{(sp & 1)*2048} sc1", ("pl", n))
                n += 1
        for q in range(2):
            e(f"s_mov_b32 {T0}, {65536 + q*4096}")
            e.vm(f"buffer_load_dwordx4 {vr(20+4*n,4)}, v241, {SWS}, {T0} offen sc1", ("pl", n))
            n += 1
        for n in range(18):
            a = n // 4 if n < 16 else 4
            e.wait(vm=("pl", n))
            e(f"v_mfma_f32_16x16x32_bf16 {vr(4*a,4)}, {vr(232 if a < 4 else 236,4)}, {vr(20+4*n,4)}, {'0' if n % 4 == 0 else vr(4*a,4)}")
        self.lds_wait(C_WO, 4, "v252", "v253")
        e(f"s_mov_b32 {T0}, {f2u(-math.log(2.0)):#x}")
        for r in range(20):
            e(f"v_mul_f32 v{r}, {T0}, v{r}")
        for a in range(5):
            e(f"v_mfma_f32_16x16x32_bf16 {vr(4*a,4)}, {vr(232 if a < 4 else 236,4)}, {vr(92+4*a,4)}, {vr(4*a,4)}")

        def aop(i):
            kk, t = divmod(i, 5)
            r = 92 + 4 * (i % 35)
            if kk < 16:
                va, o, sec = ("v248" if kk < 8 else "v249"), (kk & 7) * 5760 + 32 * t, 1280
            else:
                va, o, sec = "v251", (kk - 16) * 46080 + 32 * t, 5760
            e.lg(f"ds_read_b64_tr_b16 {vr(r,2)}, {va} offset:{o}", ("a", i))
            e.lg(f"ds_read_b64_tr_b16 {vr(r+2,2)}, {va} offset:{o+sec}", ("a", i))
        e.nop(8)
        for i in range(35):
            aop(i)
        e.wait_all(lg=True)
        self.stamp(9)
        self.flag_wait(1, "v252", "v253")
        self.stamp(10)
        for kk in range(18):
            e(f"s_mov_b32 {T0}, {(kk if kk < 16 else kk - 16)*4096}")
            e.vm(f"buffer_load_dwordx4 {vr(20+4*kk,4)}, {'v246' if kk < 16 else 'v247'}, {SWS}, {T0} offen sc1", ("o", kk))
        for i in range(90):
            kk, t = divmod(i, 5)
            e.wait(vm=("o", kk), lg=("a", i))
            e(f"v_mfma_f32_16x16x32_bf16 {vr(4*t,4)}, {vr(92+4*(i % 35),4)}, {vr(20+4*kk,4)}, {vr(4*t,4)}")
            if i >= 1 and i - 1 + 35 < 90:
                aop(i - 1 + 35)
        e.nop(8)
        for t in range(5):
            e(f"v_cvt_pk_bf16_f32 v{20+2*t}, v{4*t}, v{4*t+1}\nv_cvt_pk_bf16_f32 v{21+2*t}, v{4*t+2}, v{4*t+3}")
        e("v_permlane16_swap_b32 v20, v22\nv_permlane16_swap_b32 v21, v23\nv_permlane16_swap_b32 v24, v26\nv_permlane16_swap_b32 v25, v27")
        fl = ("", " sc1", " nt", " sc0 sc1")[p["OUTF"]]
        e(f"buffer_store_dwordx4 v[20:23], v244, {SOUT}, 0 offen{fl}")
        e(f"buffer_store_dwordx4 v[24:27], v244, {SOUT}, 0 offen offset:64{fl}")
        e(f"buffer_store_dwordx2 v[28:29], v245, {SOUT}, 0 offen offset:128{fl}")
        self.stamp(11)
        e("s_branch L_FIN")

    def att_proj(self):
        e, p = self.e, self.p
        c = f"{f2u(1.0 / (math.log2(math.e) * math.sqrt(18.0))):#x}"
        e("s_waitcnt lgkmcnt(0)\ns_barrier")
        e.vmq, e.lgq = [], []
        self.stamp(2)
        e(f"s_setprio {p['PRIO_P']}")
        e(f"v_and_b32 v200, 15, {vL}\nv_lshrrev_b32 v201, 4, {vL}\nv_bfe_u32 v202, {vL}, 2, 2\nv_and_b32 v203, 3, {vL}")
        e(f"v_lshl_add_u32 v204, v201, 3, v202\nv_lshlrev_b32 v204, 4, v204\nv_lshl_add_u32 v204, v203, 3, v204")
        e(f"v_mov_b32 v205, {QE}\nv_mov_b32 v206, {KVW-16}\nv_cmp_gt_u32 vcc, 2, v203\ns_nop 1\nv_cndmask_b32 v205, v206, v205, vcc\nv_add_u32 v204, v204, v205")
        e(f"v_mul_u32_u24 v205, {CH}, v201\nv_lshl_add_u32 v205, v200, 4, v205\nv_add_u32 v206, {9*4*CH}, v205")
        e(f"s_lshl_b32 {T0}, {sA}, 8\nv_add_u32 v207, {T0}, v205\nv_add_u32 v208, {T0}, v206")
        e.wait_all(vm=True)
        self.arrive(C_E, "v246", "v247")
        self.lds_wait(C_E, 4, "v246", "v247")
        self.stamp(10)

        def ext_reads(kk):
            r = 8 * kk
            e.lg(f"ds_read_b64_tr_b16 {vr(r,2)}, v204 offset:{512*kk}", ("e", kk))
            e.lg(f"ds_read_b64_tr_b16 {vr(r+2,2)}, v204 offset:{512*kk+64}", ("e", kk))
            e.lg(f"ds_read_b128 {vr(r+4,4)}, {'v207' if kk < 9 else 'v208'} offset:{4*CH*(kk % 9)}", ("e", kk))
        for kk in range(5):
            ext_reads(kk)
        for kk in range(18):
            e.wait(lg=("e", kk))
            r = 8 * kk
            e(f"v_mfma_f32_16x16x32_bf16 v[144:147], {vr(r,4)}, {vr(r+4,4)}, {'0' if kk == 0 else 'v[144:147]'}")
            e(f"v_mfma_f32_16x16x32_bf16 v[148:151], {vr(r+4,4)}, {vr(r,4)}, {'0' if kk == 0 else 'v[148:151]'}")
            if kk + 5 < 18:
                ext_reads(kk + 5)
        self.arrive(C_A, "v246", "v247")
        self.arrive(C_XN, "v246", "v247")
        e(f"s_cmp_ge_u32 {sA}, 2\ns_cbranch_scc1 L_NOCLR")
        e(f"s_lshl_b32 {T1}, {sJ}, 2\ns_add_u32 {T0}, {sAR}, {T1}\ns_lshl_b32 {T1}, {sA}, 7\ns_add_u32 {T0}, {T0}, {T1}")
        e(f"s_add_u32 {T0}, {T0}, {FLAGS}\nv_mov_b32 v246, 0\ns_mov_b64 exec, 1")
        e(f"buffer_store_dword v246, v246, {SWS}, {T0} offen sc1\ns_mov_b64 exec, -1")
        e.label("L_NOCLR")
        e(f"s_lshr_b32 {T2}, {sA}, 1\ns_lshl_b32 {T3}, {sRB}, 1\ns_add_u32 {T2}, {T2}, {T3}\ns_and_b32 {T3}, {sA}, 1")
        e(f"s_lshl_b32 {T4}, {T3}, 4\nv_add_u32 v209, {T4}, v200\nv_mov_b32 v210, {OOB}")
        e("v_cvt_pk_bf16_f32 v152, v144, v145\nv_cvt_pk_bf16_f32 v153, v146, v147\nv_cvt_pk_bf16_f32 v154, v148, v149\nv_cvt_pk_bf16_f32 v155, v150, v151")
        e(f"s_cmp_ge_u32 {sJ}, {0 if p['X_NOKV'] else 6}\ns_cbranch_scc1 L_KV_D\ns_cmp_ge_u32 {sJ}, 3\ns_cbranch_scc1 L_KV_V\ns_cmp_eq_u32 {sJ}, 2\ns_cbranch_scc1 L_KV_X")
        e(f"s_lshl_b32 {T0}, {T2}, 10\ns_lshl_b32 {T1}, {sJ}, 9\ns_add_u32 {T0}, {T0}, {T1}\ns_add_u32 {T0}, {T0}, {KM}")
        e("v_lshlrev_b32 v211, 4, v209\nv_and_b32 v212, 1, v201\nv_lshl_add_u32 v211, v212, 3, v211\nv_cmp_le_u32 vcc, 2, v201\ns_nop 1\nv_cndmask_b32 v211, v210, v211, vcc")
        e(f"buffer_store_dwordx2 v[152:153], v211, {SWS}, {T0} offen sc1\ns_branch L_KV_D")
        e.label("L_KV_X")
        e(f"s_lshl_b32 {T0}, {T2}, 7\ns_add_u32 {T0}, {T0}, {KX}")
        e("v_lshlrev_b32 v211, 2, v209\nv_cmp_eq_u32 vcc, 3, v201\ns_nop 1\nv_cndmask_b32 v211, v210, v211, vcc")
        e(f"buffer_store_dword v153, v211, {SWS}, {T0} offen sc1\ns_branch L_KV_D")
        e.label("L_KV_V")
        e(f"s_sub_u32 {T0}, {sJ}, 3\ns_lshl_b32 {T0}, {T0}, 3\ns_min_u32 {T0}, {T0}, 10\ns_cmp_eq_u32 {sJ}, 5\ns_cselect_b32 {T1}, 14, 8")
        e(f"v_add_u32 v211, {T0}, v200\nv_lshrrev_b32 v212, 1, v201\nv_mul_u32_u24 v212, 18, v212\nv_add_u32 v211, v211, v212\nv_lshlrev_b32 v211, 4, v211")
        e(f"v_and_b32 v212, 1, v201\nv_lshl_add_u32 v211, v212, 3, v211\nv_cmp_le_u32 vcc, {T1}, v200\ns_nop 1\nv_cndmask_b32 v211, v210, v211, vcc")
        e(f"s_mul_i32 {T0}, {T2}, 1152\ns_mul_i32 {T1}, {T3}, 576\ns_add_u32 {T0}, {T0}, {T1}\ns_add_u32 {T0}, {T0}, {VT-128}")
        e(f"buffer_store_dwordx2 v[154:155], v211, {SWS}, {T0} offen sc1")
        e.label("L_KV_D")
        e.vmq += ["kv"]
        e(f"v_mul_f32 v144, {c}, v144\nv_mul_f32 v145, {c}, v145\nv_mul_f32 v146, {c}, v146\nv_mul_f32 v147, {c}, v147")
        e("v_cvt_pk_bf16_f32 v144, v144, v145\nv_cvt_pk_bf16_f32 v145, v146, v147")
        e(f"s_lshr_b32 {T3}, {sA}, 1\ns_mul_i32 {T3}, {T3}, 1536\ns_and_b32 {T4}, {sA}, 1\ns_lshl_b32 {T4}, {T4}, 8\ns_add_u32 {T3}, {T3}, {T4}\ns_add_u32 {T3}, {T3}, {ATT}")
        e(f"v_lshl_add_u32 v214, v200, 4, {T3}\nv_lshlrev_b32 v215, 2, v201")
        self.qaddr("v82", "v215", 64, "v214", "v212", "v213")
        self.qaddr("v83", "v215", 66, "v214", "v212", "v213")
        self.lds_wait(C_A, 4, "v246", "v247")
        e("s_mov_b32 exec_hi, 0")
        e.lg("ds_write_b32 v82, v144")
        e.lg("ds_write_b32 v83, v145")
        e("s_mov_b64 exec, -1")
        e.wait_all(vm=True)
        self.arrive(C_KV, "v246", "v247", rtn=T2)
        e(f"s_cmp_lg_u32 {T2}, 3\ns_cbranch_scc1 L_NOG1\nv_mov_b32 v246, 0\nv_mov_b32 v247, 1\ns_mov_b64 exec, 1")
        if not p["X_NOATOM"]:
            e(f"buffer_atomic_add v247, v246, {SDBG}, 0 offen sc1")
        e("s_mov_b64 exec, -1")
        e.label("L_NOG1")
        self.stamp(3)
        e.wait_all(lg=True)
        self.arrive(C_B, "v246", "v247")
        self.stamp(4)
        for r in range(192, 210):
            e(f"v_mov_b32 v{r}, 0")
        for b in (218, 222):
            e(f"v_mov_b32 v{b+1}, 0x3f803f80\nv_mov_b32 v{b+2}, 0\nv_mov_b32 v{b+3}, 0")
        e(f"v_and_b32 v246, 31, {vL}\nv_mov_b32 v247, 0x3f803f80\nv_cmp_eq_u32 vcc, 18, v246\ns_mov_b32 s82, 0x3ffff\ns_mov_b32 s83, 0x3ffff")
        for r in range(226, 242):
            e(f"v_cndmask_b32 v{r}, 0, v247, vcc")
        e("v_mov_b32 v242, 0xdddddddd")
        e(f"s_lshl_b32 {T0}, {sA}, 14\ns_add_u32 {T0}, {T0}, {KM}\nv_lshl_add_u32 v243, {vL}, 4, {T0}")
        e(f"s_lshl_b32 {T0}, {sA}, 11\ns_add_u32 {T0}, {T0}, {KX}\nv_lshl_add_u32 v244, v246, 2, {T0}")
        e(f"s_mul_i32 {T0}, {sA}, 18432\ns_add_u32 {T0}, {T0}, {VT}\nv_lshrrev_b32 v245, 5, {vL}\nv_mul_u32_u24 v245, 18, v245\nv_add_u32 v245, v245, v246\nv_lshl_add_u32 v245, v245, 4, {T0}")
        e(f"s_setprio {p['PRIO_A']}")
        self.lds_wait(C_B, 6, "v247", "v248", sleep=4)
        for i2 in range(4):
            e(f"s_add_u32 {T0}, {sA}, {1+i2}\ns_and_b32 {T0}, {T0}, 3\ns_mul_i32 {T0}, {T0}, 3072\ns_add_u32 {T0}, {T0}, {ATT}")
            e(f"v_lshl_add_u32 v{128+i2}, {vL}, 4, {T0}")
            for rt in range(2):
                e.lg(f"ds_read_b128 {vr(160+4*(2*i2+rt),4)}, v{128+i2} offset:{1536*rt}")
        e("s_mov_b32 exec_hi, 0")
        for i2 in range(4):
            for rt in range(2):
                e.lg(f"ds_read_b32 v{192+2*(2*i2+rt)}, v{128+i2} offset:{1536*rt+1024}")
        e("s_mov_b64 exec, -1")
        e.wait_all(lg=True)
        e(f"s_cmp_lg_u32 {sA}, 0\ns_cbranch_scc1 L_G1_O")
        e(f"v_mov_b32 v247, 0\ns_mov_b32 {sSPIN}, 0")
        e.label("L_G1_P")
        e(f"buffer_load_dword v248, v247, {SDBG}, 0 offen sc1")
        e.wait_all(vm=True)
        e(f"v_readfirstlane_b32 {T0}, v248\ns_add_u32 {sSPIN}, {sSPIN}, 1\ns_cmp_ge_u32 {T0}, {0 if p['X_NOATOM'] else 256}\ns_cbranch_scc1 L_G1_Q\ns_sleep {p['G1SLEEP']}\ns_cmp_lt_u32 {sSPIN}, {p['SPIN']}\ns_cbranch_scc1 L_G1_P")
        e.label("L_G1_Q")
        self.arrive(C_G1, "v247", "v248")
        e.label("L_G1_O")
        self.lds_wait(C_G1, 1, "v247", "v248")
        e(f"s_setprio {p['PRIO_A']}")
        self.stamp(5)

    def kvload(self, buf, what):
        e = self.e
        if what == "k":
            e.vm(f"buffer_load_dwordx4 {vr(210+4*buf,4)}, v243, {SWS}, {sKT[0]} offen sc1", ("k", buf))
            e.vm(f"buffer_load_dword v{218+4*buf}, v244, {SWS}, {sKT[1]} offen sc1", ("k", buf))
            e(f"s_mul_i32 {sKT[2]}, {sTI}, 1152\ns_add_u32 {sTI}, {sTI}, 1\ns_and_b32 {sTI}, {sTI}, 15\ns_lshl_b32 {sKT[0]}, {sTI}, 10\ns_lshl_b32 {sKT[1]}, {sTI}, 7")
        else:
            e(f"s_mov_b64 exec, {sVM}")
            e.vm(f"buffer_load_dwordx4 {vr(226+8*buf,4)}, v245, {SWS}, {sKT[2]} offen sc1", ("v", buf))
            e.vm(f"buffer_load_dwordx4 {vr(230+8*buf,4)}, v245, {SWS}, {sKT[2]} offen offset:576 sc1", ("v", buf))
            e("s_mov_b64 exec, -1")

    def qk(self, i, buf, which, S=None):
        S = vr(128 + 16 * (i & 1), 16) if S is None else S
        if which == 0:
            self.e(f"v_mfma_f32_32x32x16_bf16 {S}, {vr(210+4*buf,4)}, {vr(160+4*i,4)}, 0")
        else:
            self.e(f"v_mfma_f32_32x32x16_bf16 {S}, {vr(218+4*buf,4)}, {vr(192+2*i,4)}, {S}")

    def pv(self, i, buf, s):
        self.e(f"v_smfmac_f32_32x32x32_bf16 {vr(16*i,16)}, {vr(226+8*buf+4*s,4)}, {vr(128+16*(i & 1)+8*s,8)}, v242")

    def att_tile(self, buf, first=False, last=False, sig=False):
        e = self.e

        def send(i):
            for hf in range(2):
                e.lg(f"ds_write_b128 v{246+(i >> 1)}, {vr(16*i+4*hf,4)} offset:{(i & 1)*OSL + 1024*hf}")
        for i in range(8):
            S = 128 + 16 * (i & 1)

            def ex(a, b):
                for k in range(a, b):
                    e(f"v_exp_f32 v{S+k}, v{S+k}")
            ex(0, 2)
            if i > 0:
                self.pv(i - 1, buf, 1)
            elif not first:
                self.pv(7, buf ^ 1, 1)
            if i == 0 and not last:
                self.kvload(buf ^ 1, "v")
                if sig:
                    e(f"s_cmp_lg_u32 {sCNT}, 6\ns_cbranch_scc1 L_NOSIG")
                    self.arrive(C_L, "v246", "v247")
                    e.label("L_NOSIG")
            ex(2, 5)
            nxt = (i + 1, buf) if i < 7 else (0, buf ^ 1)
            do_qk = not (last and i == 7)
            if i == 7 and do_qk:
                e.wait(vm=("k", buf ^ 1))
            if do_qk:
                self.qk(nxt[0], nxt[1], 0)
            ex(5, 8)
            if do_qk:
                self.qk(nxt[0], nxt[1], 1)
            if i == 7 and not last:
                self.kvload(buf, "k")
            ex(8, 12)
            if i == 0:
                e.wait(vm=("v", buf))
            self.pv(i, buf, 0)
            ex(12, 14)
            if last and 1 <= i <= 6:
                send(i - 1)
            ex(14, 16)

    def attention(self):
        e, p = self.e, self.p
        e.label("L_ATT")
        self.att_proj()
        e.label("L_PASS")
        e(f"s_and_b32 {sTI}, {sRB}, {15*p['KROT']}\ns_lshl_b32 {sKT[0]}, {sTI}, 10\ns_lshl_b32 {sKT[1]}, {sTI}, 7")
        e.vmq = []
        self.kvload(0, "k")
        self.kvload(0, "v")
        self.kvload(1, "k")
        for r in range(128):
            e(f"v_mov_b32 v{r}, 0")
        e.wait(vm=("k", 0))
        self.qk(0, 0, 0)
        self.qk(0, 0, 1)
        e.nop(12)
        self.att_tile(0, first=True)
        e(f"s_mov_b32 {sCNT}, 0")
        e(".p2align 3")
        e.label("L_AT_LOOP")
        if p["STAMP"]:
            e(f"s_add_u32 m0, {sCNT}, 16")
            self.stamp("m0")
        q0 = list(e.vmq)
        self.att_tile(1)
        self.att_tile(0, sig=True)
        assert q0 == e.vmq, (q0, e.vmq)
        e(f"s_add_u32 {sCNT}, {sCNT}, 1\ns_cmp_lt_u32 {sCNT}, 7\ns_cbranch_scc1 L_AT_LOOP")
        self.stamp(6)
        self.lds_wait(C_G2, 4, "v246", "v247")
        for i2 in range(3):
            e(f"s_add_u32 {T0}, {sA}, {1+i2}\ns_and_b32 {T0}, {T0}, 3\ns_mul_i32 {T0}, {T0}, {6*OSL}\ns_add_u32 {T0}, {T0}, {OXA + 2*i2*OSL}")
            e(f"v_lshl_add_u32 v{246+i2}, {vL}, 4, {T0}")
        self.att_tile(1, last=True)
        e.nop(2)
        self.pv(7, 1, 1)
        e("s_mov_b32 exec_hi, 0")
        for i in range(6):
            e.lg(f"ds_write_b128 v{246+(i >> 1)}, {vr(16*i+8,4)} offset:{(i & 1)*OSL + 2048}")
        e("s_mov_b64 exec, -1")
        e("v_add_f32 v128, v10, v26\nv_add_f32 v129, v42, v58\nv_add_f32 v130, v74, v90\nv_min3_f32 v131, v10, v26, v42\nv_min3_f32 v132, v58, v74, v90")
        e("v_add_f32 v128, v128, v129\nv_add_f32 v130, v130, v106\nv_min3_f32 v131, v131, v132, v106\nv_add_f32 v128, v128, v130")
        e("v_add_f32 v128, v128, v122\nv_min_f32 v131, v131, v122")
        e(f"v_cmp_nge_f32 vcc, {f2u(2.0**40):#x}, v128\nv_mov_b32 v129, {f2u(2.0**-64):#x}\ns_mov_b32 {T2}, vcc_lo\nv_cmp_nge_f32 vcc, v131, v129\ns_nop 1\ns_or_b32 {T2}, {T2}, vcc_lo")
        if p["FORCE_FB"]:
            e(f"s_mov_b32 {T2}, 1")
        e(f"s_cmp_lg_u32 {T2}, 0\ns_cselect_b32 {T2}, 0x10001, 1")
        e.wait_all(lg=True)
        self.arrive(C_R, "v128", "v129", val=T2)
        e(f"s_mul_i32 {T0}, {sA}, {6*OSL}\ns_add_u32 {T0}, {T0}, {OXA}\nv_lshl_add_u32 v246, {vL}, 4, {T0}")
        e(f"s_lshl_b32 {T3}, {sPASS}, 2\ns_add_u32 {T3}, {T3}, 4")
        self.lds_wait(C_R, T3, "v128", "v129", mask="0xffff", out=T2)
        self.stamp(7)
        e(f"s_cmp_lg_u32 {sPASS}, 0\ns_cbranch_scc1 L_SAFE\ns_cmp_ge_u32 {T2}, 0x10000\ns_cbranch_scc1 L_FALLBACK")
        e.label("L_SAFE")
        for tt in range(2):
            for i in range(3):
                for q in range(3):
                    e.lg(f"ds_read_b128 {vr(12*(3*tt+i)+4*q,4)}, v246 offset:{(2*i+tt)*OSL + 1024*q}", ("r", tt, i))
        e(f"v_and_b32 v247, 31, {vL}\nv_lshrrev_b32 v248, 5, {vL}\ns_lshl_b32 {T0}, {sJ}, 2\ns_add_u32 {T0}, {T0}, {sA}\ns_lshl_b32 {T0}, {T0}, 11")
        e(f"s_add_u32 {T0}, {T0}, {sAR}\ns_add_u32 {T0}, {T0}, {OM}\nv_lshl_add_u32 v249, v247, 4, {T0}\nv_lshl_add_u32 v249, v248, 10, v249")
        e(f"s_lshl_b32 {T1}, {sJ}, 10\ns_add_u32 {T0}, {sAR}, {T1}\ns_lshl_b32 {T1}, {sA}, 2\ns_add_u32 {T0}, {T0}, {T1}\ns_add_u32 {T0}, {T0}, {OX}")
        e(f"v_lshl_add_u32 v247, v247, 4, {T0}")
        for tt in range(2):
            O = 96 + 16 * tt
            for i in range(3):
                e.wait(lg=("r", tt, i))
                for k in (10, 0, 1, 2, 3, 4, 5, 6, 7, 8, 9):
                    e(f"v_add_f32 v{O+k}, v{O+k}, v{12*(3*tt+i)+k}")
            e(f"v_mov_b32 v128, v{O+10}\nv_mov_b32 v129, v{O+10}\ns_nop 1\nv_permlane32_swap_b32 v128, v129\ns_nop 1\nv_mul_f32 v128, {sNL2E}, v128\nv_rcp_f32 v128, v128\ns_nop 0")
            for k in range(10):
                e(f"v_mul_f32 v{O+k}, v{O+k}, v128")
            for k in range(5):
                e(f"v_cvt_pk_bf16_f32 v{132+8*tt+k}, v{O+2*k}, v{O+2*k+1}")
            e.vm(f"buffer_store_dwordx4 {vr(132+8*tt,4)}, v249, {SWS}, 0 offen offset:{512*tt} sc1")
            e("s_mov_b32 exec_hi, 0")
            e.vm(f"buffer_store_dword v{136+8*tt}, v247, {SWS}, 0 offen offset:{512*tt} sc1")
            e("s_mov_b64 exec, -1")
        self.stamp(8)
        e.wait_all(vm=True)
        self.arrive(C_O, "v128", "v129", rtn=T2)
        e(f"s_cmp_lg_u32 {T2}, 3\ns_cbranch_scc1 L_NOOF")
        self.flag_set(1, 1, "v128", "v129")
        e.label("L_NOOF")
        self.stamp(9)
        e("s_branch L_FIN")
        self.fallback()

    def fallback(self):
        e = self.e
        e.label("L_FALLBACK")
        e(f"s_mov_b32 {sPASS}, 1\ns_mov_b32 {sTI}, 0\ns_mov_b32 {sKT[0]}, 0\ns_mov_b32 {sKT[1]}, 0\ns_mov_b32 {sCNT}, 0")
        for i in range(8):
            e(f"v_mov_b32 v{i}, 0xff800000")
        e.label("L_FB_LOOP")
        self.kvload(0, "k")
        e.wait_all(vm=True)
        for i in range(8):
            self.qk(i, 0, 0, S="v[128:143]")
            self.qk(i, 0, 1, S="v[128:143]")
            e.nop(12)
            for k in range(8):
                e(f"v_max3_f32 v{i}, v{i}, v{128+2*k}, v{129+2*k}")
        e(f"s_add_u32 {sCNT}, {sCNT}, 1\ns_cmp_lt_u32 {sCNT}, 16\ns_cbranch_scc1 L_FB_LOOP")
        e(f"v_and_b32 v247, 31, {vL}")
        for i in range(8):
            e(f"v_mov_b32 v8, v{i}\ns_nop 1\nv_permlane32_swap_b32 v{i}, v8\ns_nop 1\nv_max_f32 v{i}, v{i}, v8")
            e(f"s_lshl_b32 {T0}, {sA}, 1\ns_add_u32 {T0}, {T0}, {2+i}\ns_and_b32 {T0}, {T0}, 7\ns_lshl_b32 {T0}, {T0}, 7\ns_add_u32 {T0}, {T0}, {MX}")
            e(f"v_lshl_add_u32 v{16+i}, v247, 2, {T0}\ns_lshl_b32 {T1}, {sA}, 10\nv_add_u32 v9, {T1}, v{16+i}")
            e(f"ds_write_b32 v9, v{i}")
        e.wait_all(lg=True)
        self.arrive(C_M, "v128", "v129")
        self.lds_wait(C_M, 4, "v128", "v129")
        e("s_mov_b32 exec_hi, 0")
        for i in range(8):
            for a in range(4):
                e(f"ds_read_b32 v{8+a}, v{16+i} offset:{1024*a}")
            e.wait_all(lg=True)
            e("v_max3_f32 v8, v8, v9, v10\nv_max_f32 v8, v8, v11\nv_cvt_pk_bf16_f32 v9, v8, v8\nv_and_b32 v9, 0xffff0000, v9\nv_sub_f32 v10, v8, v9")
            e(f"v_cvt_pk_bf16_f32 v{193+2*i}, -v9, -v10")
        e("s_mov_b64 exec, -1\ns_branch L_PASS")

    def build(self):
        e, p = self.e, self.p
        self.prologue()
        self.ffn()
        self.attention()
        e.label("L_FIN")
        if p["STAMP"]:
            e("s_waitcnt vmcnt(0)")
            self.stamp(12)
            e(f"s_lshl_b32 {T0}, s2, 3\ns_add_u32 {T0}, {T0}, {sW}\ns_lshl_b32 {T0}, {T0}, 8\ns_add_u32 {T0}, {T0}, {STAMPS}\nv_lshlrev_b32 v0, 2, {vL}")
            e(f"buffer_store_dword v255, v0, {SWS}, {T0} offen\ns_add_u32 {T0}, {T0}, 0x80000\nbuffer_store_dword v254, v0, {SWS}, {T0} offen")
            e(f"s_cmp_lg_u32 s2, 100\ns_cbranch_scc1 L_END\ns_cmp_lg_u32 {sW}, 0\ns_cbranch_scc1 L_END")
            e(f"v_readlane_b32 {T0}, v255, 0\ns_nop 1\nv_subrev_u32 v1, {T0}, v255\ns_mov_b64 exec, 0x1ffe\nbuffer_store_dword v1, v0, {SDBG}, 0 offen")
        e.label("L_END")
        e("s_endpgm")
        probs = check_hazards(e.lines)
        head = open("cdna_kernels/" + NAME + ".s.ref").read().split("\n")
        hdr = [l for l in head if l.startswith(";") and "@launch" not in l and "Override" not in l and "grid=ceil" not in l]
        txt = "\n".join(hdr) + f"""
; One persistent workgroup per CU: 64 rows x (576 FFN columns, 4 heads, 72 output columns).
; Waves 0-3: GEMM1 -> SiLU -> GEMM2 -> partial sums -> output projection; waves 4-7: Q/K/V projection, attention.
; @launch grid=(256,1,1) block=(512,1,1) lds={LDS_BYTES}
.amdgcn_target "amdgcn-amd-amdhsa--gfx950"
.text
.globl {NAME}_kernel
.p2align 8
.type {NAME}_kernel,@function
{NAME}_kernel:
{e.text()}
.section .rodata,"a"
.p2align 6
.amdhsa_kernel {NAME}_kernel
  .amdhsa_next_free_vgpr 256
  .amdhsa_next_free_sgpr 102
  .amdhsa_accum_offset 256
  .amdhsa_group_segment_fixed_size 0
  .amdhsa_kernarg_size 88
  .amdhsa_user_sgpr_count 2
  .amdhsa_user_sgpr_kernarg_segment_ptr 1
  .amdhsa_system_sgpr_workgroup_id_x 1
.end_amdhsa_kernel
"""
        return txt, probs


if __name__ == "__main__":
    out = sys.argv[1]
    kw = {}
    for a in sys.argv[2:]:
        k, v = a.split("=")
        kw[k] = int(v, 0)
    txt, probs = G(**kw).build()
    for x in probs[:40]:
        print("HAZARD", x)
    open(out, "w").write(txt)
    print("wrote", out, len(txt), "bytes;", len(probs), "hazards")
```

```python
import sys, math, struct
from emit import E, check_hazards

NAME = "parallel_sum__grouped_kv_mqa__dense_activation_silu__prompt"

DEF = dict(NSL=2, STAMP=0, PRIO_F=1, PRIO_A=0, ROT=1, KROT=1, CODEPF=0, PRIO_P=2, WARMQ=0, TLBW=1, OUTF=2, KSPLIT=1, W1LATE=4, PRE=5, PREU=0, ROTG=0, EXPAT=0, SENT=1, HINT=0, XBAR=1, PACE2=2, PACE=4, DEFER=0, G1SLEEP=16, SPIN=1 << 16, FORCE_FB=0)

KREC = 2304
KM, KX, VT = 0, 1024, 1152
ARENA, ASZ = 0x40000, 0xb0000
PART, OM, OX, FLAGS = 0, 589824, 655360, 663552
STAMPS = 0x1710000
WS_BYTES = 0x1820000
CH = 1040
RING, RSZ = 72 * CH, 15360
ATT = RING + 4 * RSZ
QE, KVW = ATT, ATT + 9216 + 64
QRSZ = 6144
OXA, OSL = 92160, 2560
MX = 153600
QX, SYNC = 162560, 163584
LDS_BYTES = 163840
C_A, C_KV, C_B, C_XN, C_H, C_G2, C_P, C_WO, C_R, C_O, C_G1, C_M, C_E, C_Q, C_L = range(15)
SX, SW1, SW2, SWQ, SKV, SWO, SWS, SDBG, SOUT = (f"s[{b}:{b+3}]" for b in range(28, 64, 4))
sRB, sJ, sW, sA = "s64", "s65", "s66", "s67"
sRING, sK, sCNT, sNL2E, sSPIN, sPASS = "s68", "s69", "s70", "s71", "s72", "s73"
sKT = ("s74", "s75", "s76")
T0, T1, T2, T3, T4 = "s77", "s78", "s79", "s80", "s81"
sVM = "s[82:83]"
sIDX = "s84"
sROT, sBO, sTI, sAR = "s92", "s93", "s94", "s95"
sKQ, sN0, sN1, sNT, sNL = "s96", "s98", "s99", "s100", "s101"
F_P, F_KV, F_O = 0, 128, 256
NONCE = SYNC + 128
vL = "v250"
OOB = 0x40000000


def f2u(x):
    return struct.unpack("<I", struct.pack("<f", x))[0]


def vr(b, n=1):
    return f"v{b}" if n == 1 else f"v[{b}:{b+n-1}]"


class G:
    def __init__(self, **kw):
        self.p = dict(DEF)
        self.p.update(kw)
        self.e = E()
        self.nstamp = 0

    def stamp(self, i):
        if not self.p["STAMP"]:
            return
        e = self.e
        e("s_waitcnt lgkmcnt(0)")
        e.lgq = []
        e("s_memrealtime s[88:89]\ns_memtime s[90:91]")
        e("s_waitcnt lgkmcnt(0)")
        e(f"v_writelane_b32 v255, s88, {i}\nv_writelane_b32 v254, s90, {i}")

    def srd(self, srd, lo, nbytes):
        b = int(srd[2:srd.index(":")])
        self.e(f"s_mov_b32 s{b}, s{lo}\ns_mov_b32 s{b+1}, s{lo+1}\ns_mov_b32 s{b+2}, {nbytes}\ns_mov_b32 s{b+3}, 0x20000")

    def arrive(self, word, va, vb, rtn=None, val="1"):
        e = self.e
        e(f"v_mov_b32 {va}, {SYNC}\nv_mov_b32 {vb}, {val}\ns_mov_b64 exec, 1")
        if rtn is None:
            e.lg(f"ds_add_u32 {va}, {vb} offset:{4*word}")
            e("s_mov_b64 exec, -1")
        else:
            e(f"ds_add_rtn_u32 {vb}, {va}, {vb} offset:{4*word}")
            e.wait_all(lg=True)
            e(f"v_readfirstlane_b32 {rtn}, {vb}\ns_mov_b64 exec, -1\ns_nop 0")

    def lds_wait(self, word, target, va, vb, mask=None, out=None, sleep=1):
        e = self.e
        L, D = e.new("LW"), e.new("LWD")
        out = out or T0
        e(f"v_mov_b32 {va}, {SYNC}\ns_mov_b32 {sSPIN}, 0")
        e.label(L)
        e(f"ds_read_b32 {vb}, {va} offset:{4*word}")
        e.wait_all(lg=True)
        e(f"v_readfirstlane_b32 {out}, {vb}\ns_add_u32 {sSPIN}, {sSPIN}, 1")
        if mask is not None:
            e(f"s_and_b32 {T1}, {out}, {mask}\ns_cmp_ge_u32 {T1}, {target}")
        else:
            e(f"s_cmp_ge_u32 {out}, {target}")
        e(f"s_cbranch_scc1 {D}\ns_sleep {sleep}\ns_cmp_lt_u32 {sSPIN}, {self.p['SPIN']}\ns_cbranch_scc1 {L}")
        e.label(D)

    def flag_poll(self, va, soff, vb, sleep=2):
        e = self.e
        L, D = e.new("FW"), e.new("FWD")
        e(f"s_mov_b32 {sSPIN}, 0")
        e.label(L)
        e(f"buffer_load_dwordx2 v[{vb}:{vb+1}], {va}, {SWS}, {soff} offen sc1")
        e.wait_all(vm=True)
        e(f"v_xor_b32 v{vb}, {sN0}, v{vb}\nv_xor_b32 v{vb+1}, {sN1}, v{vb+1}\nv_or_b32 v{vb}, v{vb}, v{vb+1}")
        e(f"v_cmp_ne_u32 vcc, 0, v{vb}\ns_add_u32 {sSPIN}, {sSPIN}, 1\ns_nop 3")
        e(f"s_cbranch_vccz {D}\ns_sleep {sleep}\ns_cmp_lt_u32 {sSPIN}, {self.p['SPIN']}\ns_cbranch_scc1 {L}")
        e.label(D)

    def flag_wait(self, group, n, va, vb):
        e = self.e
        e(f"v_and_b32 {va}, {n-1}, {vL}\nv_lshlrev_b32 {va}, 3, {va}\ns_add_u32 {T0}, {sAR}, {FLAGS + group}")
        self.flag_poll(va, T0, vb)

    def flag_set(self, group, sidx, va, vb):
        e = self.e
        e(f"s_lshl_b32 {T1}, {sidx}, 3\ns_add_u32 {T0}, {sAR}, {T1}\ns_add_u32 {T0}, {T0}, {FLAGS + group}")
        e(f"v_mov_b32 {va}, 0\nv_mov_b32 v{vb}, {sN0}\nv_mov_b32 v{vb+1}, {sN1}\ns_mov_b64 exec, 1")
        e.vm(f"buffer_store_dwordx2 v[{vb}:{vb+1}], {va}, {SWS}, {T0} offen sc1")
        e("s_mov_b64 exec, -1")

    def get_nonce(self, va, vb):
        e = self.e
        e(f"v_mov_b32 {va}, {NONCE}\nds_read_b64 v[{vb}:{vb+1}], {va}")
        e.wait_all(lg=True)
        e(f"v_readfirstlane_b32 {sN0}, v{vb}\nv_readfirstlane_b32 {sN1}, v{vb+1}\ns_nop 1")

    def prologue(self):
        e, p = self.e, self.p
        nsl = p["NSL"]
        e("s_cmp_ge_u32 s2, 256\ns_cbranch_scc1 L_END")
        e("s_load_dwordx16 s[4:19], s[0:1], 0\ns_load_dwordx4 s[20:23], s[0:1], 64\ns_load_dwordx2 s[24:25], s[0:1], 80")
        if p["STAMP"]:
            e("s_memrealtime s[88:89]\ns_memtime s[90:91]\nv_mov_b32 v255, 0\nv_mov_b32 v254, 0")
        e(f"v_and_b32 {vL}, 63, v0\nv_lshrrev_b32 v1, 6, v0")
        lg = nsl.bit_length() - 1
        e(f"s_and_b32 {T0}, s2, 7\ns_lshr_b32 {sIDX}, s2, 3")
        e(f"s_and_b32 {sJ}, {T0}, {8//nsl - 1}\ns_lshl_b32 {sJ}, {sJ}, {lg}\ns_and_b32 {T1}, {sIDX}, {nsl-1}\ns_add_u32 {sJ}, {sJ}, {T1}")
        e(f"s_lshr_b32 {sRB}, {T0}, {3-lg}\ns_lshl_b32 {sRB}, {sRB}, {5-lg}\ns_lshr_b32 {T1}, {sIDX}, {lg}\ns_add_u32 {sRB}, {sRB}, {T1}")
        e(f"v_readfirstlane_b32 {sW}, v1\ns_mul_i32 {sAR}, {sRB}, {ASZ}\ns_add_u32 {sAR}, {sAR}, {ARENA}")
        e(f"v_lshrrev_b32 v120, 3, v0\nv_and_b32 v121, 7, v0\ns_lshl_b32 {T0}, {sRB}, 6")
        e(f"v_add_u32 v122, {T0}, v120\nv_mul_u32_u24 v122, 1152, v122\nv_lshl_add_u32 v122, v121, 4, v122")
        e(f"v_mul_u32_u24 v123, {CH}, v121\nv_lshl_add_u32 v123, v120, 4, v123\nv_add_u32 v124, {8*CH}, v123")
        e(f"s_and_b32 {sA}, {sW}, 3\nv_mov_b32 v216, 0\nv_mov_b32 v217, 0\nv_mov_b32 v222, 0\nv_mov_b32 v224, 0")
        e("s_waitcnt lgkmcnt(0)")
        if p["STAMP"]:
            e("v_writelane_b32 v255, s88, 0\nv_writelane_b32 v254, s90, 0")
        self.srd(SX, 4, 2359296)
        for u in range(9):
            e.vm(f"buffer_load_dwordx4 v[{4*u}:{4*u+3}], v122, {SX}, 0 offen offset:{128*u}", ("x", u))
        if p["XBAR"]:
            e("s_barrier")
        self.srd(SW1, 16, 5308416)
        self.srd(SW2, 18, 5308416)
        self.srd(SWQ, 6, 663552)
        self.srd(SWO, 12, 663552)
        self.srd(SWS, 24, WS_BYTES)
        self.srd(SDBG, 22, 256)
        self.srd(SOUT, 20, 2359296)
        e(f"s_cmp_ge_u32 {sJ}, 3\ns_cselect_b32 s44, s10, s8\ns_cselect_b32 s45, s11, s9\ns_mov_b32 s46, 20736\ns_mov_b32 s47, 0x20000")
        e(f"s_mov_b32 {sNL2E}, {f2u(-math.log2(math.e)):#x}\ns_mov_b32 {sPASS}, 0")
        e(f"s_cmp_ge_u32 {sW}, 4\ns_cbranch_scc1 L_PRO_A")
        q0 = list(e.vmq)
        self.pro_ffn()
        self.ln_stats(ffn=True)
        e("s_branch L_PRO_J")
        e.vmq = list(q0)
        e.label("L_PRO_A")
        if p["CODEPF"]:
            e(f"s_getpc_b64 s[86:87]")
            e.label("L_PC")
            e(f"s_and_b32 {T0}, {sIDX}, 3\ns_lshl_b32 {T0}, {T0}, 2\ns_add_u32 {T0}, {T0}, {sA}\ns_lshl_b32 {T0}, {T0}, 12")
            e(f"v_lshl_add_u32 v126, {vL}, 6, {T0}\nv_min_u32 v126, L_END-L_PC, v126\nv_mov_b32 v127, s87")
            e("v_add_co_u32 v126, vcc, s86, v126\ns_nop 1\nv_addc_co_u32 v127, vcc, 0, v127, vcc")
            e.vm("global_load_dword v251, v[126:127], off")
        self.ln_stats()
        e(f"s_or_b32 {T0}, s2, {sA}\ns_cmp_lg_u32 {T0}, 0\ns_cbranch_scc1 L_NOTAG\ns_memrealtime s[86:87]\ns_waitcnt lgkmcnt(0)\ns_or_b32 s86, s86, 1")
        e(f"v_mov_b32 v126, s86\nv_mov_b32 v127, s87\nv_mov_b32 v128, 0\ns_mov_b64 exec, 1\nbuffer_store_dwordx2 v[126:127], v128, {SDBG}, 0 offen sc1\ns_mov_b64 exec, -1")
        e.label("L_NOTAG")
        e(f"v_lshlrev_b32 v127, 2, {vL}\nv_add_u32 v127, {SYNC}, v127\nv_mov_b32 v128, 0\nds_write_b32 v127, v128")
        e.label("L_PRO_J")
        self.layernorm()

    def wrap_inc(self, reg, inc, mod):
        self.e(f"s_add_u32 {reg}, {reg}, {inc}\ns_cmp_eq_u32 {reg}, {mod}\ns_cselect_b32 {reg}, 0, {reg}")

    def pro_ffn(self):
        e = self.e
        e(f"s_mul_i32 {T2}, {sW}, 5\ns_lshl_b32 {T3}, {sW}, 2\ns_cmp_eq_u32 {sW}, 3\ns_cselect_b32 {T2}, 14, {T2}\ns_cselect_b32 {T3}, 13, {T3}")
        e(f"s_mul_i32 {sRING}, {sW}, {RSZ}\ns_add_u32 {sRING}, {sRING}, {RING}")
        e(f"v_lshrrev_b32 v125, 2, {vL}\nv_and_b32 v126, 3, {vL}")
        e(f"s_mul_i32 {T0}, {sJ}, 1152\ns_lshl_b32 {T1}, {T2}, 6\ns_add_u32 {T0}, {T0}, {T1}")
        e(f"v_mul_u32_u24 v216, 9216, v125\nv_lshl_add_u32 v216, v126, 4, v216\nv_add_u32 v216, {T0}, v216")
        nsl = self.p["NSL"]
        e(f"s_and_b32 {sROT}, {sRB}, {32//nsl - 1}\ns_mul_i32 {sROT}, {sROT}, {36*nsl*self.p['ROT']}\ns_lshr_b32 {sROT}, {sROT}, 5")
        G_ = self.p["ROTG"]
        if G_:
            e(f"s_and_b32 {sROT}, {sRB}, {32//nsl - 1}\ns_mul_i32 {sROT}, {sROT}, {G_*nsl}\ns_lshr_b32 {sROT}, {sROT}, 5\ns_mul_i32 {sROT}, {sROT}, {36//G_}")
        e(f"s_mul_i32 {sK}, {sROT}, 147456")
        e(f"s_mul_i32 {T0}, {sJ}, 144\ns_lshl_b32 {T1}, {sW}, 6\ns_add_u32 {T0}, {T0}, {T1}\ns_sub_u32 {T0}, {T0}, 128")
        e(f"v_mul_u32_u24 v224, 1152, v125\nv_lshl_add_u32 v224, v126, 4, v224\nv_add_u32 v224, {T0}, v224\ns_mul_i32 {sKQ}, {sROT}, 18432")
        if not self.p["W1LATE"]:
            self.first_loads()
        e(f"s_mul_i32 {T0}, {sJ}, 663552\ns_lshl_b32 {T1}, {T3}, 6\ns_add_u32 {T0}, {T0}, {T1}")
        e(f"v_mul_u32_u24 v217, 1152, v125\nv_lshl_add_u32 v217, v126, 4, v217\nv_add_u32 v217, {T0}, v217")
        e(f"v_lshrrev_b32 v127, 5, {vL}\nv_bfe_u32 v128, {vL}, 2, 2\nv_bfe_u32 v129, {vL}, 4, 1")
        e(f"v_lshlrev_b32 v129, 5, v129\nv_lshl_add_u32 v129, v126, 3, v129\nv_lshl_add_u32 v129, v128, 6, v129\nv_add_u32 v129, {sRING}, v129")
        e("v_lshl_add_u32 v218, v127, 9, v129\nv_lshl_add_u32 v219, v127, 8, v129")
        e(f"v_and_b32 v128, 31, {vL}\nv_lshlrev_b32 v128, 4, v128\nv_mul_u32_u24 v223, {CH}, v127\nv_add_u32 v223, v223, v128")
        e(f"s_mul_i32 {T0}, {T2}, {4*CH}\nv_add_u32 v221, {T0}, v223")
        e(f"s_lshl_b32 {T0}, {T3}, 15\ns_lshl_b32 {T1}, {sJ}, 10\ns_add_u32 {T0}, {T0}, {T1}\ns_add_u32 {T0}, {T0}, {sAR}")
        e(f"v_lshl_add_u32 v222, v127, 13, v128\nv_add_u32 v222, {T0}, v222")

    def first_loads(self, lo=0, hi=15):
        e = self.e
        L, J = e.new("PFL"), e.new("PFJ")
        e(f"s_cmp_ge_u32 {sW}, 2\ns_cbranch_scc1 {L}")
        q0 = list(e.vmq)
        for i in range(lo, hi):
            s, pc = divmod(i, 5)
            e(f"s_add_u32 m0, {sRING}, {s*5120 + 960*pc}\ns_nop 0")
            e.vm(f"buffer_load_dwordx4 v216, {SW1}, {sK} offen offset:{64*pc} lds")
            if pc == 4:
                self.wrap_inc(sK, 147456, 36 * 147456)
        e(f"s_branch {J}")
        e.label(L)
        e.vmq = list(q0)
        for i in range(lo, hi):
            e(f"s_add_u32 m0, {sRING}, {1024*((i + 9) % 15)}\ns_nop 0")
            e.vm(f"buffer_load_dwordx4 v224, {SWQ}, {sKQ} offen lds")
            self.wrap_inc(sKQ, 18432, 36 * 18432)
        e.label(J)

    def q_gemm(self):
        e = self.e
        e.vmq = [("q", i) for i in range(15)]
        e.lgq = []
        e(f"s_mul_i32 {sBO}, {sROT}, 2080")

        def reads(i):
            r = 160 + 12 * (i % 3)
            e(f"v_add_u32 v220, {sBO}, v223")
            e.wait(vm=("q", i))
            o = 1024 * ((i + 9) % 15)
            e.lg(f"ds_read_b64_tr_b16 {vr(r,2)}, v218 offset:{o}", ("r", i))
            e.lg(f"ds_read_b64_tr_b16 {vr(r+2,2)}, v218 offset:{o+256}", ("r", i))
            e.lg(f"ds_read_b128 {vr(r+4,4)}, v220", ("r", i))
            e.lg(f"ds_read_b128 {vr(r+8,4)}, v220 offset:512", ("r", i))
            self.wrap_inc(sBO, 2080, 36 * 2080)
        reads(0)
        reads(1)
        for i in range(36):
            r = 160 + 12 * (i % 3)
            sl = (i + 9) % 15
            e.wait(lg=("r", i))
            w1 = i >= 21 and sl % 5 < 4
            if i < 21 or w1:
                e(f"s_add_u32 m0, {sRING}, {1024*sl - (64*(sl % 5) if w1 else 0)}")
            e(f"v_mfma_f32_32x32x16_bf16 v[128:143], {vr(r,4)}, {vr(r+4,4)}, {'0' if i == 0 else 'v[128:143]'}")
            if i < 21:
                e.vm(f"buffer_load_dwordx4 v224, {SWQ}, {sKQ} offen lds", ("q", i + 15))
                self.wrap_inc(sKQ, 18432, 36 * 18432)
            elif w1:
                e.vm(f"buffer_load_dwordx4 v216, {SW1}, {sK} offen offset:{64*(sl % 5)} lds")
                if sl % 5 == 3:
                    self.wrap_inc(sK, 147456, 36 * 147456)
            e(f"v_mfma_f32_32x32x16_bf16 v[144:159], {vr(r,4)}, {vr(r+8,4)}, {'0' if i == 0 else 'v[144:159]'}")
            if i + 2 < 36:
                reads(i + 2)

    def pro_att(self):
        e, p = self.e, self.p
        e(f"v_mul_u32_u24 v125, 1152, {vL}\ns_mul_i32 {T0}, {sJ}, 144\ns_add_u32 {T0}, {T0}, 128\nv_add_u32 v125, {T0}, v125")
        e(f"s_mul_i32 {T2}, {sA}, 73728\ns_lshl_b32 {T3}, {sA}, 10\ns_add_u32 {T3}, {T3}, {QE}")
        for i in range(2):
            e(f"s_add_u32 m0, {T3}, {4096*i}\ns_add_u32 {T0}, {T2}, {4*73728*i}")
            e.vm(f"buffer_load_dwordx4 v125, {SWQ}, {T0} offen lds", "ext")
        e(f"s_cmp_ge_u32 {sJ}, 3\ns_cselect_b32 {T0}, 3, 0\ns_sub_u32 {T0}, {sJ}, {T0}\ns_cmp_ge_u32 {T0}, 3\ns_cselect_b32 {T0}, 0, {T0}")
        e(f"s_lshl_b32 {T1}, {T0}, 4\ns_min_u32 {T1}, {T1}, 20\nv_mul_u32_u24 v126, 36, {vL}\nv_add_u32 v126, {T1}, v126")
        e(f"s_mul_i32 {T2}, {sA}, 2304\ns_lshl_b32 {T3}, {sA}, 10\ns_add_u32 {T3}, {T3}, {KVW}")
        for i in range(2):
            e(f"s_add_u32 m0, {T3}, {4096*i}\ns_add_u32 {T0}, {T2}, {9216*i}")
            e.vm(f"buffer_load_dwordx4 v126, {SKV}, {T0} offen lds", "ext")
        e(f"s_cmp_lg_u32 {sA}, 0\ns_cbranch_scc1 L_PA_1\ns_mov_b32 m0, {KVW + 8192}\ns_mov_b32 {T0}, {8*2304}")
        e(f"buffer_load_dwordx4 v126, {SKV}, {T0} offen lds")
        e.label("L_PA_1")
        e(f"s_cmp_lg_u32 {sA}, 1\ns_cbranch_scc1 L_PA_2\ns_mov_b32 m0, {QE + 8192}\ns_mov_b32 {T0}, {8*73728}")
        e(f"buffer_load_dwordx4 v125, {SWQ}, {T0} offen lds")
        e.label("L_PA_2")
        nsl = p['NSL']
        if p["TLBW"]:
            e(f"s_mov_b64 exec, 7\ns_cmp_eq_u32 {sA}, 1\ns_cbranch_scc1 L_TLB1\ns_cmp_eq_u32 {sA}, 2\ns_cbranch_scc1 L_TLB2\ns_cmp_eq_u32 {sA}, 3\ns_cbranch_scc1 L_TLB3")
            e(f"v_mul_u32_u24 v126, {ASZ - 64}, {vL}\nv_cmp_eq_u32 vcc, 2, {vL}\nv_add_u32 v126, {sAR}, v126\ns_nop 0\nv_cndmask_b32 v126, v126, 0, vcc")
            e(f"buffer_load_dword v249, v126, {SWS}, 0 offen\ns_branch L_TLBD")
            e.label("L_TLB1")
            e(f"s_mul_i32 {T1}, {sJ}, 663552\nv_mul_u32_u24 v126, 331000, {vL}\nbuffer_load_dword v249, v126, {SW2}, {T1} offen\ns_branch L_TLBD")
            e.label("L_TLB2")
            e(f"s_mul_i32 {T0}, {sRB}, 73728\nv_mul_u32_u24 v126, 36000, {vL}\nbuffer_load_dword v249, v126, {SOUT}, {T0} offen\ns_branch L_TLBD")
            e.label("L_TLB3")
            e(f"v_mov_b32 v126, 0")
            e.vm(f"buffer_load_dword v249, v126, {SDBG}, 0 offen offset:128")
            e.label("L_TLBD")
            e("s_mov_b64 exec, -1")
        if p["WARMQ"]:
            rows = 18 * nsl
            e(f"s_lshl_b32 {T0}, {sA}, 6\nv_add_u32 v126, {T0}, {vL}\nv_lshrrev_b32 v127, 2, v126\nv_and_b32 v128, 3, v126\nv_mul_u32_u24 v127, 1152, v127")
            e(f"v_cmp_gt_u32 vcc, {4*rows}, v126\nv_mul_u32_u24 v128, 52, v128\nv_add_u32 v127, v127, v128\nv_mov_b32 v128, {OOB}\nv_cndmask_b32 v127, v128, v127, vcc")
            e(f"s_and_b32 {T1}, {sRB}, {32//nsl - 1}\ns_mul_i32 {T1}, {T1}, {rows*1152}\ns_mul_i32 {T0}, {sJ}, 144\ns_add_u32 {T1}, {T1}, {T0}")
            e.vm(f"buffer_load_dword v252, v127, {SWQ}, {T1} offen")
            e.vm(f"buffer_load_dword v253, v127, {SWO}, {T1} offen")

    def ln_stats(self, ffn=False):
        e = self.e
        e("v_mov_b32 v112, 0\nv_mov_b32 v113, 0\nv_mov_b32 v114, 0\nv_mov_b32 v115, 0\ns_mov_b32 s85, 0x3f803f80\ns_mov_b32 s86, 0xffff0000")
        for u in range(9):
            e.wait(vm=("x", u))
            if u == 0:
                self.stamp(1)
                if ffn and self.p["W1LATE"] == 1:
                    self.first_loads()
            if ffn and self.p["W1LATE"] == 2 and u in (1, 3, 5, 7, 8):
                n = (1, 3, 5, 7, 8).index(u)
                self.first_loads(3 * n, 3 * n + 3)
            if u == 8:
                self.stamp(30)
            if ffn and self.p["W1LATE"] == 3 and u == 8:
                self.first_loads()
            if ffn and self.p["W1LATE"] == 4 and u == self.p.get("PREU", 8) and self.p["PRE"]:
                self.first_loads(0, self.p["PRE"])
            for k in range(4):
                r = 4 * u + k
                e(f"v_dot2_f32_bf16 v{112+(k&1)}, v{r}, s85, v{112+(k&1)}")
                e(f"v_lshlrev_b32 v{40+2*r}, 16, v{r}")
                e(f"v_dot2_f32_bf16 v{114+(k&1)}, v{r}, v{r}, v{114+(k&1)}")
                e(f"v_and_b32 v{41+2*r}, s86, v{r}")

    def layernorm(self):
        e = self.e
        self.stamp(14)
        e("s_nop 2\nv_add_f32 v112, v112, v113\nv_add_f32 v114, v114, v115\ns_nop 1")
        for m in ("quad_perm:[1,0,3,2]", "quad_perm:[2,3,0,1]", "row_half_mirror"):
            e(f"v_add_f32_dpp v112, v112, v112 {m} row_mask:0xf bank_mask:0xf")
            e(f"v_add_f32_dpp v114, v114, v114 {m} row_mask:0xf bank_mask:0xf\ns_nop 1")
        inv = f"{f2u(1.0/576):#x}"
        e(f"v_mul_f32 v112, {inv}, v112\nv_mul_f32 v114, {inv}, v114\nv_fma_f32 v114, -v112, v112, v114\nv_max_f32 v114, 0, v114")
        e(f"v_add_f32 v114, {f2u(1e-5):#x}, v114\nv_rsq_f32 v114, v114\ns_nop 0\nv_mul_f32 v114, {sNL2E}, v114\nv_mul_f32 v112, v112, v114")
        for u in range(9):
            for k in range(8):
                r = 40 + 8 * u + k
                e(f"v_fma_f32 v{r}, v{r}, v114, -v112")
            for k in range(4):
                e(f"v_cvt_pk_bf16_f32 v{4*u+k}, v{40+8*u+2*k}, v{41+8*u+2*k}")
            if u < 8:
                e(f"ds_write_b128 v123, v[{4*u}:{4*u+3}] offset:{8*CH*u}")
            else:
                e(f"ds_write_b128 v124, v[{4*u}:{4*u+3}] offset:{8*CH*7}")
        self.stamp(15)
        e(f"s_cmp_ge_u32 {sW}, 4\ns_cbranch_scc1 L_ATT")
        e("s_waitcnt lgkmcnt(0)\ns_barrier")

    def gemm(self, T, which, Tn):
        e = self.e
        vT = "v218" if which == 1 else "v219"
        sec = 256 if which == 1 else 512
        vD, SW, kstride = ("v216", SW1, 147456) if which == 1 else ("v217", SW2, 18432)

        def areg(buf, pc):
            return 160 + 20 * buf + 4 * pc

        def breg(buf, rt):
            return 200 + 8 * buf + 4 * rt

        def reads(s, pc):
            if pc < 2:
                e.lg(f"ds_read_b128 {vr(breg(s&1,pc),4)}, v220 offset:{512*pc}", ("B", s, pc))
            o = (s % 3) * 5120 + 1024 * pc
            e.lg(f"ds_read_b64_tr_b16 {vr(areg(s&1,pc),2)}, {vT} offset:{o}", ("A", s, pc))
            e.lg(f"ds_read_b64_tr_b16 {vr(areg(s&1,pc)+2,2)}, {vT} offset:{o+sec}", ("A", s, pc))

        def dma_list(s):
            sn = s + 3
            if sn < 36:
                return [(vD, SW, pc, ("d", sn, pc)) for pc in range(T)]
            if which == 1:
                return [("v217", SW2, pc, ("d2", sn - 36, pc)) for pc in range(Tn)]
            return []

        def step(s, first=False):
            dl = dma_list(s)
            if which == 1 and s == 33:
                e(f"s_mul_i32 {sK}, {sROT}, 18432")
            for gi in range(2 * T):
                pc, rt = gi >> 1, gi & 1
                mine = []
                if rt == 0:
                    mine = [d for d in dl if d[2] == pc or (pc == T - 1 and d[2] > pc)]
                e.wait(lg=[("A", s, pc), ("B", s, 0)] if gi == 0 else ([("B", s, 1)] if gi == 1 else [("A", s, pc)]))
                if mine:
                    e(f"s_add_u32 m0, {sRING}, {(s % 3)*5120 + 960*mine[0][2]}")
                acc = vr(16 * gi, 16)
                e(f"v_mfma_f32_32x32x16_bf16 {acc}, {vr(areg(s&1,pc),4)}, {vr(breg(s&1,rt),4)}, {'0' if first else acc}")
                for n, d in enumerate(mine):
                    if n:
                        e(f"s_add_u32 m0, {sRING}, {(s % 3)*5120 + 960*d[2]}\ns_nop 0")
                    e.vm(f"buffer_load_dwordx4 {d[0]}, {d[1]}, {sK} offen offset:{64*d[2]} lds", d[3])
                if rt == 1 and s + 1 < 36:
                    if pc == 0:
                        e(f"v_add_u32 v220, {sBO}, v223")
                    e.wait(vm=("d", s + 1, pc))
                    reads(s + 1, pc)
                if gi == 2 * T - 3 and s + 2 < 36:
                    self.wrap_inc(sBO, 2080, 36 * 2080)
            if s <= 32:
                self.wrap_inc(sK, kstride, 36 * kstride)
            elif which == 1:
                self.wrap_inc(sK, 18432, 36 * 18432)

        e.vmq = [("d", s, pc) for s in range(3) for pc in range(T)]
        e(f"s_mul_i32 {sBO}, {sROT}, 2080\nv_add_u32 v220, {sBO}, v223")
        self.wrap_inc(sBO, 2080, 36 * 2080)
        e.wait(vm=("d", 0, T - 1))
        e.lgq = []
        for pc in range(T):
            reads(0, pc)
        main = e.lines
        texts = []
        for s in range(36):
            e.lines = []
            step(s, first=(s == 0))
            texts.append(e.lines)
        e.lines = main
        for s in range(1, 27):
            assert texts[s] == texts[s + 6], (s, texts[s], texts[s + 6])
        tag = f"G{which}T{T}"
        e.lines += texts[0]
        e(f"s_mov_b32 {sCNT}, 0\ns_branch L_{tag}_1")
        e(".p2align 3")
        e.label(f"L_{tag}_3")
        if self.p["STAMP"] > 1:
            e(f"s_memrealtime s[88:89]\ns_memtime s[90:91]\ns_add_u32 m0, {sCNT}, {8*which+8}\ns_waitcnt lgkmcnt(0)\nv_writelane_b32 v255, s88, m0\nv_writelane_b32 v254, s90, m0")
        for s in (3, 4, 5, 6):
            e.lines += texts[s]
        e.label(f"L_{tag}_1")
        e.lines += texts[7] + texts[8]
        e(f"s_add_u32 {sCNT}, {sCNT}, 1\ns_cmp_lt_u32 {sCNT}, 6\ns_cbranch_scc1 L_{tag}_3")
        for s in (33, 34, 35):
            e.lines += texts[s]

    def silu(self, T):
        e = self.e
        for g in range(4 * T):
            b = 8 * g
            t = 160 + 8 * (g & 1)
            for k in range(8):
                e(f"v_exp_f32 v{t+k}, v{b+k}")
            for k in range(8):
                e(f"v_add_f32 v{t+k}, 1.0, v{t+k}")
            for k in range(8):
                e(f"v_rcp_f32 v{t+k}, v{t+k}")
            for k in range(8):
                e(f"v_mul_f32 v{t+k}, v{b+k}, v{t+k}")
            for k in range(4):
                e(f"v_cvt_pk_bf16_f32 v{b+k}, v{t+2*k}, v{t+2*k+1}")

    def q_out(self):
        e = self.e
        c = f"{f2u(1.0 / (math.log2(math.e) * math.sqrt(18.0))):#x}"
        e(f"s_lshl_b32 {T2}, {sW}, 5\ns_sub_u32 {T2}, {T2}, 64\nv_lshrrev_b32 v170, 5, {vL}\nv_lshl_add_u32 v170, v170, 2, {T2}")
        e(f"v_and_b32 v171, 31, {vL}\nv_lshlrev_b32 v171, 4, v171\nv_add_u32 v171, {ATT}, v171\ns_mov_b32 {T3}, {c}")
        for pp in range(8):
            self.qaddr(f"v{160+pp}", "v170", 8 * (pp >> 1) + 2 * (pp & 1), "v171", "v172", "v173")
        for r in range(128, 160):
            e(f"v_mul_f32 v{r}, {T3}, v{r}")
        for k in range(16):
            e(f"v_cvt_pk_bf16_f32 v{128+k}, v{128+2*k}, v{129+2*k}")
        self.lds_wait(C_A, 4, "v252", "v253")
        for rt in range(2):
            for pp in range(8):
                e.lg(f"ds_write_b32 v{160+pp}, v{128+8*rt+pp} offset:{1536*rt}")
        e.wait_all(lg=True)
        self.arrive(C_B, "v252", "v253")

    def qaddr(self, dst, vc, cadd, vbase, t0, t1):
        e = self.e
        e(f"v_add_u32 {t0}, {cadd}, {vc}\nv_mul_u32_u24 {t1}, 3641, {t0}\nv_lshrrev_b32 {t1}, 16, {t1}")
        e(f"v_mul_u32_u24 {dst}, 18, {t1}\nv_sub_u32 {t0}, {t0}, {dst}\nv_mul_u32_u24 {dst}, 3072, {t1}\nv_lshrrev_b32 {t1}, 3, {t0}\nv_lshl_add_u32 {dst}, {t1}, 9, {dst}")
        e(f"v_and_b32 {t0}, 7, {t0}\nv_lshl_add_u32 {dst}, {t0}, 1, {dst}\nv_add_u32 {dst}, {vbase}, {dst}")

    def ffn_path(self, T1_, T2_):
        e, p = self.e, self.p
        if T1_ == 4:
            self.q_gemm()
            self.q_out()
            self.stamp(13)
        self.gemm(T1_, 1, T2_)
        self.arrive(C_XN, "v252", "v253")
        self.stamp(3)
        e.nop(2)
        self.silu(T1_)
        self.stamp(4)
        self.lds_wait(C_XN, 8, "v252", "v253")
        for u in range(2 * T1_):
            pc, rt = u >> 1, u & 1
            for hf in range(2):
                e.lg(f"ds_write_b128 v221, {vr(16*u+8*hf,4)} offset:{(4*pc+2*hf)*CH + 512*rt}")
        e.wait_all(lg=True)
        self.arrive(C_H, "v252", "v253")
        self.lds_wait(C_H, 4, "v252", "v253")
        self.stamp(5)
        self.gemm(T2_, 2, 0)
        self.arrive(C_G2, "v252", "v253")
        self.stamp(6)
        if p["SENT"] and T2_ == 4:
            e(f"s_lshl_b32 {T0}, {sJ}, 13\ns_lshl_b32 {T1}, {sW}, 12\ns_add_u32 {T0}, {T0}, {T1}\ns_add_u32 {T0}, {T0}, {sAR}\ns_add_u32 {T0}, {T0}, {OM}")
            e(f"s_lshl_b32 {T1}, {sJ}, 10\ns_add_u32 {T1}, {T1}, {sAR}\ns_add_u32 {T1}, {T1}, {OX}\nv_lshlrev_b32 v168, 4, {vL}")
            e("v_mov_b32 v172, -1\nv_mov_b32 v173, -1\nv_mov_b32 v174, -1\nv_mov_b32 v175, -1")
            for q in range(4):
                e(f"buffer_store_dwordx4 v[172:175], v168, {SWS}, {T0} offen offset:{1024*q} sc1")
            e(f"buffer_store_dwordx4 v[172:175], v168, {SWS}, {T1} offen sc1")
        e.nop(2)
        for u in range(2 * T2_):
            pc, rt = u >> 1, u & 1
            b = 16 * u
            for k in range(8):
                e(f"v_cvt_pk_bf16_f32 v{b+k}, v{b+2*k}, v{b+2*k+1}")
            e(f"s_mov_b32 {T0}, {(4*pc)*8192}\ns_mov_b32 {T1}, {(4*pc+2)*8192}")
            e(f"v_permlane32_swap_b32 v{b}, v{b+2}\nv_permlane32_swap_b32 v{b+1}, v{b+3}")
            e(f"v_permlane32_swap_b32 v{b+4}, v{b+6}\nv_permlane32_swap_b32 v{b+5}, v{b+7}")
            e.vm(f"buffer_store_dwordx4 {vr(b,4)}, v222, {SWS}, {T0} offen offset:{512*rt} sc1", "pst")
            e.vm(f"buffer_store_dwordx4 {vr(b+4,4)}, v222, {SWS}, {T1} offen offset:{512*rt} sc1", "pst")
            if p["PACE"]:
                e(f"s_waitcnt vmcnt({p['PACE']})")

    def ffn(self):
        e, p = self.e, self.p
        if p["W1LATE"] == 4:
            self.first_loads(p["PRE"], 15)
        self.stamp(2)
        if p["PRIO_F"]:
            e(f"s_setprio {p['PRIO_F']}")
        e(f"s_cmp_ge_u32 {sW}, 2\ns_cbranch_scc1 L_FFN_L")
        self.ffn_path(5, 4)
        e("s_branch L_FFN_J")
        e.label("L_FFN_L")
        self.ffn_path(4, 5)
        e.label("L_FFN_J")
        e("s_setprio 0")
        self.stamp(7)
        self.ffn_tail()

    def ffn_tail(self):
        e, p = self.e, self.p
        e.vmq = ["pst"]
        for i in range(5):
            e(f"v_add_u32 v160, {64*i}, {vL}\nv_mul_u32_u24 v161, 6554, v160\nv_lshrrev_b32 v161, 16, v161")
            e(f"v_mul_u32_u24 v162, 10, v161\nv_sub_u32 v162, v160, v162\nv_mul_u32_u24 v161, 1152, v161\nv_lshl_add_u32 v{163+i}, v162, 4, v161")
        e(f"s_mul_i32 {T2}, {sW}, 5\ns_cmp_eq_u32 {sW}, 3\ns_cselect_b32 {T2}, 14, {T2}")
        e(f"s_mul_i32 {T3}, {T2}, 5120\ns_mul_i32 {T2}, {T2}, 36864\ns_mul_i32 {T4}, {sJ}, 144\ns_add_u32 {T2}, {T2}, {T4}")
        e("s_waitcnt vmcnt(0)")
        self.arrive(C_P, "v252", "v253", rtn=T4)
        self.get_nonce("v251", 252)
        e(f"s_cmp_lg_u32 {T4}, 3\ns_cbranch_scc1 L_NOPF")
        self.flag_set(F_P, sJ, "v251", 252)
        e.label("L_NOPF")
        self.lds_wait(C_G2, 4, "v252", "v253")
        for gi in range(5):
            if gi == 4:
                e(f"s_cmp_ge_u32 {sW}, 2\ns_cbranch_scc1 L_WO_D")
            for i in range(5):
                e(f"s_add_u32 m0, {T3}, {gi*5120 + i*1024}\ns_add_u32 {T0}, {T2}, {gi*36864}")
                e.vm(f"buffer_load_dwordx4 v{163+i}, {SWO}, {T0} offen lds", "wo" if gi < 4 else None)
            if p["PACE"]:
                e("s_waitcnt vmcnt(2)")
        e.label("L_WO_D")
        e(f"v_and_b32 v160, 15, {vL}\nv_lshrrev_b32 v161, 4, {vL}\ns_lshl_b32 {T0}, {sW}, 4\nv_add_u32 v162, {T0}, v160")
        e(f"v_and_b32 v163, 1, v161\nv_lshrrev_b32 v164, 1, v161")
        e(f"s_mul_i32 {T1}, {sJ}, 73728\ns_add_u32 {T0}, {sAR}, {T1}")
        e(f"v_lshl_add_u32 v165, v162, 4, {T0}\nv_lshl_add_u32 v240, v163, 13, v165\nv_lshl_add_u32 v240, v164, 10, v240\nv_lshl_add_u32 v241, v161, 10, v165")
        e(f"s_lshl_b32 {T0}, {sRB}, 6\nv_add_u32 v165, {T0}, v162\nv_mul_u32_u24 v165, 1152, v165\ns_mul_i32 {T0}, {sJ}, 144\nv_add_u32 v165, {T0}, v165")
        e(f"v_lshl_add_u32 v242, v161, 4, v165\nv_mov_b32 v166, {OOB}\nv_cmp_gt_u32 vcc, 2, v161\ns_nop 1\nv_cndmask_b32 v242, v166, v242, vcc")
        e(f"v_cmp_eq_u32 vcc, 0, v161\ns_nop 1\nv_cndmask_b32 v243, v166, v165, vcc")
        e(f"v_lshl_add_u32 v244, v163, 5, v165\nv_lshl_add_u32 v244, v164, 4, v244")
        e(f"v_lshl_add_u32 v245, v161, 3, v165\nv_cmp_gt_u32 vcc, 2, v161\ns_nop 1\nv_cndmask_b32 v245, v166, v245, vcc")
        for a in range(5):
            e.vm(f"buffer_load_dwordx4 {vr(92+4*a,4)}, {'v242' if a < 4 else 'v243'}, {SX}, 0 offen offset:{32*a}", ("xr", a))
        e("v_lshlrev_b32 v166, 3, v163\nv_sub_u32 v166, v160, v166\nv_mov_b32 v167, 0x3f80\nv_mov_b32 v168, 0x3f800000")
        for base, src in ((232, "v166"), (236, "v160")):
            for r in range(4):
                e(f"v_cmp_eq_u32 vcc, {2*r}, {src}\nv_cmp_eq_u32 s[86:87], {2*r+1}, {src}\ns_nop 0\nv_cndmask_b32 v{base+r}, 0, v167, vcc")
                e(f"v_cndmask_b32 v{base+r}, v{base+r}, v168, s[86:87]")
        e(f"s_add_u32 {T0}, {sAR}, {OM}\nv_lshl_add_u32 v246, v162, 4, {T0}\nv_lshl_add_u32 v246, v161, 10, v246")
        e(f"s_add_u32 {T0}, {sAR}, {OX}\nv_lshl_add_u32 v247, v162, 4, {T0}\nv_lshl_add_u32 v247, v161, 10, v247")
        e(f"v_bfe_u32 v166, {vL}, 2, 2\nv_and_b32 v167, 3, {vL}\nv_mul_u32_u24 v168, 18, v164\nv_lshl_add_u32 v168, v163, 2, v168\nv_add_u32 v168, v168, v166")
        e("v_mul_u32_u24 v168, 160, v168\nv_lshl_add_u32 v248, v167, 3, v168\nv_add_u32 v249, 46080, v248")
        e("v_mul_u32_u24 v168, 72, v161\nv_lshrrev_b32 v169, 1, v166\nv_mul_u32_u24 v169, 18, v169\nv_and_b32 v166, 1, v166\nv_add3_u32 v168, v168, v169, v166")
        e("v_add_u32 v168, 16, v168\nv_mul_u32_u24 v168, 160, v168\nv_lshl_add_u32 v251, v167, 3, v168")
        e.wait_all(vm=True)
        self.arrive(C_WO, "v252", "v253")
        if p["DEFER"]:
            self.lds_wait(C_L, 4, "v252", "v253", sleep=8)
        self.flag_wait(F_P, 8, "v231", 252)
        self.stamp(8)
        n = 0
        for a in range(4):
            for sp in range(4):
                e(f"s_mov_b32 {T0}, {a*16384 + (sp >> 1)*4096}")
                e.vm(f"buffer_load_dwordx4 {vr(20+4*n,4)}, v240, {SWS}, {T0} offen offset:{(sp & 1)*2048} sc1", ("pl", n))
                if p["PACE2"] and n >= p["PACE2"]:
                    e.wait(vm=("pl", n - p["PACE2"]))
                n += 1
        for q in range(2):
            e(f"s_mov_b32 {T0}, {65536 + q*4096}")
            e.vm(f"buffer_load_dwordx4 {vr(20+4*n,4)}, v241, {SWS}, {T0} offen sc1", ("pl", n))
            n += 1
        for n in range(18):
            a = n // 4 if n < 16 else 4
            e.wait(vm=("pl", n))
            e(f"v_mfma_f32_16x16x32_bf16 {vr(4*a,4)}, {vr(232 if a < 4 else 236,4)}, {vr(20+4*n,4)}, {'0' if n % 4 == 0 else vr(4*a,4)}")
        self.lds_wait(C_WO, 4, "v252", "v253")
        e(f"s_mov_b32 {T0}, {f2u(-math.log(2.0)):#x}")
        for r in range(20):
            e(f"v_mul_f32 v{r}, {T0}, v{r}")
        for a in range(5):
            e(f"v_mfma_f32_16x16x32_bf16 {vr(4*a,4)}, {vr(232 if a < 4 else 236,4)}, {vr(92+4*a,4)}, {vr(4*a,4)}")

        def aop(i):
            kk, t = divmod(i, 5)
            r = 92 + 4 * (i % 35)
            if kk < 16:
                va, o, sec = ("v248" if kk < 8 else "v249"), (kk & 7) * 5760 + 32 * t, 1280
            else:
                va, o, sec = "v251", (kk - 16) * 46080 + 32 * t, 5760
            e.lg(f"ds_read_b64_tr_b16 {vr(r,2)}, {va} offset:{o}", ("a", i))
            e.lg(f"ds_read_b64_tr_b16 {vr(r+2,2)}, {va} offset:{o+sec}", ("a", i))
        e.nop(8)
        for i in range(35):
            aop(i)
        e.wait_all(lg=True)
        self.stamp(9)
        sent = p["SENT"]

        def oload(kk, track=True):
            e(f"s_mov_b32 {T0}, {(kk if kk < 16 else kk - 16)*4096}")
            ins = f"buffer_load_dwordx4 {vr(20+4*kk,4)}, {'v246' if kk < 16 else 'v247'}, {SWS}, {T0} offen sc1"
            e.vm(ins, ("o", kk)) if track else e(ins)

        def ocheck(kk):
            b = 20 + 4 * kk
            return [f"v_max3_u32 v252, v{b}, v{b+1}, v{b+2}", f"v_max_u32 v252, v252, v{b+3}", "v_cmp_eq_u32 vcc, -1, v252"]
        if not sent:
            self.flag_wait(F_O, 32, "v241", 252)
        else:
            e(f"v_bfe_u32 v241, {vL}, 2, 3\nv_lshlrev_b32 v241, 10, v241\nv_and_b32 v252, 3, {vL}\nv_lshl_add_u32 v241, v252, 2, v241\ns_add_u32 {T2}, {sAR}, {OX + 1008}")
            self.lds_wait(C_O, 4, "v252", "v253")
            if p["HINT"]:
                e(f"s_mov_b32 {sSPIN}, 0")
                e.label("L_HINT")
                e(f"buffer_load_dword v252, v241, {SWS}, {T2} offen sc1\ns_waitcnt vmcnt(0)\nv_cmp_eq_u32 vcc, -1, v252\ns_add_u32 {sSPIN}, {sSPIN}, 1\ns_nop 3")
                e(f"s_cbranch_vccz L_HINT_D\ns_cmp_lt_u32 {sSPIN}, {p['SPIN']}\ns_cbranch_scc1 L_HINT")
                e.label("L_HINT_D")
            e(f"s_mov_b32 {sSPIN}, 0")
        self.stamp(10)
        for kk in range(18):
            oload(kk)
        if sent:
            e.wait(vm=("o", 0))
            e("\n".join(ocheck(0)) + "\ns_nop 4")
        for i in range(90):
            kk, t = divmod(i, 5)
            if sent and t == 0:
                e(f"s_cbranch_vccnz L_OS_{kk}")
                e.label(f"L_OR_{kk}")
            e.wait(vm=("o", kk), lg=("a", i))
            e(f"v_mfma_f32_16x16x32_bf16 {vr(4*t,4)}, {vr(92+4*(i % 35),4)}, {vr(20+4*kk,4)}, {vr(4*t,4)}")
            if i >= 1 and i - 1 + 35 < 90:
                aop(i - 1 + 35)
            if sent and t < 3 and kk < 17:
                e.wait(vm=("o", kk + 1))
                e(ocheck(kk + 1)[t])
        if sent:
            stubs = E()
            main, self.e.lines = e.lines, stubs.lines
            for kk in range(18):
                e.label(f"L_OS_{kk}")
                for k2 in range(kk, 18):
                    oload(k2, track=False)
                e(f"s_add_u32 {sSPIN}, {sSPIN}, 1\ns_waitcnt vmcnt({17 - kk})")
                e("\n".join(ocheck(kk)) + f"\ns_cmp_ge_u32 {sSPIN}, {p['SPIN']}\ns_nop 3\ns_cbranch_scc1 L_OR_{kk}\ns_cbranch_vccnz L_OS_{kk}\ns_branch L_OR_{kk}")
            self.stubs = e.lines
            e.lines = main
        e.nop(8)
        for t in range(5):
            e(f"v_cvt_pk_bf16_f32 v{20+2*t}, v{4*t}, v{4*t+1}\nv_cvt_pk_bf16_f32 v{21+2*t}, v{4*t+2}, v{4*t+3}")
        e("v_permlane16_swap_b32 v20, v22\nv_permlane16_swap_b32 v21, v23\nv_permlane16_swap_b32 v24, v26\nv_permlane16_swap_b32 v25, v27")
        fl = ("", " sc1", " nt", " sc0 sc1")[p["OUTF"]]
        e(f"buffer_store_dwordx4 v[20:23], v244, {SOUT}, 0 offen{fl}")
        e(f"buffer_store_dwordx4 v[24:27], v244, {SOUT}, 0 offen offset:64{fl}")
        e(f"buffer_store_dwordx2 v[28:29], v245, {SOUT}, 0 offen offset:128{fl}")
        self.stamp(11)
        e("s_branch L_FIN")
        e.lines += getattr(self, "stubs", [])

    def att_proj(self):
        e, p = self.e, self.p
        c = f"{f2u(1.0 / (math.log2(math.e) * math.sqrt(18.0))):#x}"
        e("s_waitcnt lgkmcnt(0)\ns_barrier")
        e.vmq, e.lgq = [], []
        self.stamp(2)
        e(f"s_setprio {p['PRIO_P']}")
        self.pro_att()
        e(f"v_and_b32 v200, 15, {vL}\nv_lshrrev_b32 v201, 4, {vL}\nv_bfe_u32 v202, {vL}, 2, 2\nv_and_b32 v203, 3, {vL}")
        e(f"v_lshl_add_u32 v204, v201, 3, v202\nv_lshlrev_b32 v204, 4, v204\nv_lshl_add_u32 v204, v203, 3, v204")
        e(f"v_mov_b32 v205, {QE}\nv_mov_b32 v206, {KVW-16}\nv_cmp_gt_u32 vcc, 2, v203\ns_nop 1\nv_cndmask_b32 v205, v206, v205, vcc\nv_add_u32 v204, v204, v205")
        e(f"v_mul_u32_u24 v205, {CH}, v201\nv_lshl_add_u32 v205, v200, 4, v205\nv_add_u32 v206, {9*4*CH}, v205")
        e(f"s_lshl_b32 {T0}, {sA}, 8\nv_add_u32 v207, {T0}, v205\nv_add_u32 v208, {T0}, v206")
        e(f"s_cmp_lg_u32 {sA}, 0\ns_cbranch_scc1 L_TAG_D\nv_mov_b32 v246, 0\ns_mov_b32 {sSPIN}, 0")
        e.label("L_TAG_P")
        e(f"buffer_load_dwordx2 v[248:249], v246, {SDBG}, 0 offen sc1\ns_waitcnt vmcnt(0)\nv_readfirstlane_b32 {T0}, v248\ns_add_u32 {sSPIN}, {sSPIN}, 1")
        e(f"s_cmp_lg_u32 {T0}, 0\ns_cbranch_scc1 L_TAG_Q\ns_sleep 4\ns_cmp_lt_u32 {sSPIN}, {p['SPIN']}\ns_cbranch_scc1 L_TAG_P")
        e.label("L_TAG_Q")
        e(f"v_mov_b32 v246, {NONCE}\nds_write_b64 v246, v[248:249]")
        e.label("L_TAG_D")
        e.wait_all(vm=True, lg=True)
        self.arrive(C_E, "v246", "v247")
        self.lds_wait(C_E, 4, "v246", "v247")
        self.get_nonce("v246", 248)
        self.stamp(10)

        def ext_reads(kk):
            r = 8 * kk
            e.lg(f"ds_read_b64_tr_b16 {vr(r,2)}, v204 offset:{512*kk}", ("e", kk))
            e.lg(f"ds_read_b64_tr_b16 {vr(r+2,2)}, v204 offset:{512*kk+64}", ("e", kk))
            e.lg(f"ds_read_b128 {vr(r+4,4)}, {'v207' if kk < 9 else 'v208'} offset:{4*CH*(kk % 9)}", ("e", kk))
        for kk in range(5):
            ext_reads(kk)
        for kk in range(18):
            e.wait(lg=("e", kk))
            r = 8 * kk
            e(f"v_mfma_f32_16x16x32_bf16 v[144:147], {vr(r,4)}, {vr(r+4,4)}, {'0' if kk == 0 else 'v[144:147]'}")
            e(f"v_mfma_f32_16x16x32_bf16 v[148:151], {vr(r+4,4)}, {vr(r,4)}, {'0' if kk == 0 else 'v[148:151]'}")
            if kk + 5 < 18:
                ext_reads(kk + 5)
        self.arrive(C_A, "v246", "v247")
        self.arrive(C_XN, "v246", "v247")
        e(f"s_lshr_b32 {T2}, {sA}, 1\ns_lshl_b32 {T3}, {sRB}, 1\ns_add_u32 {T2}, {T2}, {T3}\ns_and_b32 {T3}, {sA}, 1")
        e(f"s_lshl_b32 {T4}, {T3}, 4\nv_add_u32 v209, {T4}, v200\nv_mov_b32 v210, {OOB}")
        e("v_cvt_pk_bf16_f32 v152, v144, v145\nv_cvt_pk_bf16_f32 v153, v146, v147\nv_cvt_pk_bf16_f32 v154, v148, v149\nv_cvt_pk_bf16_f32 v155, v150, v151")
        e(f"s_cmp_ge_u32 {sJ}, 6\ns_cbranch_scc1 L_KV_D\ns_cmp_ge_u32 {sJ}, 3\ns_cbranch_scc1 L_KV_V\ns_cmp_eq_u32 {sJ}, 2\ns_cbranch_scc1 L_KV_X")
        e(f"s_mul_i32 {T0}, {T2}, {KREC}\ns_lshl_b32 {T1}, {sJ}, 9\ns_add_u32 {T0}, {T0}, {T1}")
        e("v_lshlrev_b32 v211, 4, v209\nv_and_b32 v212, 1, v201\nv_lshl_add_u32 v211, v212, 3, v211\nv_cmp_le_u32 vcc, 2, v201\ns_nop 1\nv_cndmask_b32 v211, v210, v211, vcc")
        e(f"buffer_store_dwordx2 v[152:153], v211, {SWS}, {T0} offen sc1\ns_branch L_KV_D")
        e.label("L_KV_X")
        e(f"s_mul_i32 {T0}, {T2}, {KREC}\ns_add_u32 {T0}, {T0}, {KX}")
        e("v_lshlrev_b32 v211, 2, v209\nv_cmp_eq_u32 vcc, 3, v201\ns_nop 1\nv_cndmask_b32 v211, v210, v211, vcc")
        e(f"buffer_store_dword v153, v211, {SWS}, {T0} offen sc1\ns_branch L_KV_D")
        e.label("L_KV_V")
        e(f"s_sub_u32 {T0}, {sJ}, 3\ns_lshl_b32 {T0}, {T0}, 3\ns_min_u32 {T0}, {T0}, 10\ns_cmp_eq_u32 {sJ}, 5\ns_cselect_b32 {T1}, 14, 8")
        e(f"v_add_u32 v211, {T0}, v200\nv_lshrrev_b32 v212, 1, v201\nv_mul_u32_u24 v212, 18, v212\nv_add_u32 v211, v211, v212\nv_lshlrev_b32 v211, 4, v211")
        e(f"v_and_b32 v212, 1, v201\nv_lshl_add_u32 v211, v212, 3, v211\nv_cmp_le_u32 vcc, {T1}, v200\ns_nop 1\nv_cndmask_b32 v211, v210, v211, vcc")
        e(f"s_mul_i32 {T0}, {T2}, {KREC}\ns_mul_i32 {T1}, {T3}, 576\ns_add_u32 {T0}, {T0}, {T1}\ns_add_u32 {T0}, {T0}, {VT-128}")
        e(f"buffer_store_dwordx2 v[154:155], v211, {SWS}, {T0} offen sc1")
        e.label("L_KV_D")
        e.vmq += ["kv"]
        e(f"v_mul_f32 v144, {c}, v144\nv_mul_f32 v145, {c}, v145\nv_mul_f32 v146, {c}, v146\nv_mul_f32 v147, {c}, v147")
        e("v_cvt_pk_bf16_f32 v144, v144, v145\nv_cvt_pk_bf16_f32 v145, v146, v147")
        e(f"s_lshr_b32 {T3}, {sA}, 1\ns_mul_i32 {T3}, {T3}, 1536\ns_and_b32 {T4}, {sA}, 1\ns_lshl_b32 {T4}, {T4}, 8\ns_add_u32 {T3}, {T3}, {T4}\ns_add_u32 {T3}, {T3}, {ATT}")
        e(f"v_lshl_add_u32 v214, v200, 4, {T3}\nv_lshlrev_b32 v215, 2, v201")
        self.qaddr("v82", "v215", 64, "v214", "v212", "v213")
        self.qaddr("v83", "v215", 66, "v214", "v212", "v213")
        self.lds_wait(C_A, 4, "v246", "v247")
        e("s_mov_b32 exec_hi, 0")
        e.lg("ds_write_b32 v82, v144")
        e.lg("ds_write_b32 v83, v145")
        e("s_mov_b64 exec, -1")
        e.wait_all(vm=True)
        self.arrive(C_KV, "v246", "v247", rtn=T2)
        e(f"s_cmp_lg_u32 {T2}, 3\ns_cbranch_scc1 L_NOG1")
        self.flag_set(F_KV, sJ, "v246", 248)
        e.label("L_NOG1")
        self.stamp(3)
        e.wait_all(lg=True)
        self.arrive(C_B, "v246", "v247")
        self.stamp(4)
        for r in range(192, 210):
            e(f"v_mov_b32 v{r}, 0")
        for b in (218, 222):
            e(f"v_mov_b32 v{b+1}, 0x3f803f80\nv_mov_b32 v{b+2}, 0\nv_mov_b32 v{b+3}, 0")
        e(f"v_and_b32 v246, 31, {vL}\nv_mov_b32 v247, 0x3f803f80\nv_cmp_eq_u32 vcc, 18, v246\ns_mov_b32 s82, 0x3ffff\ns_mov_b32 s83, 0x3ffff")
        for r in range(226, 242):
            e(f"v_cndmask_b32 v{r}, 0, v247, vcc")
        e("v_mov_b32 v242, 0xdddddddd")
        d = p["KSPLIT"]
        e(f"s_mul_i32 {T2}, {sA}, {16+d}\ns_cmp_eq_u32 {sA}, 3\ns_cselect_b32 {T2}, {48+d}, {T2}\ns_cmp_ge_u32 {sA}, 2\ns_cselect_b32 {sNT}, {16-d}, {16+d}\ns_lshr_b32 {sNL}, {sNT}, 1")
        e(f"s_mul_i32 {T0}, {T2}, {KREC}\ns_mul_i32 {sKT[1]}, {sNT}, {KREC}\nv_lshl_add_u32 v243, {vL}, 4, {T0}\nv_lshl_add_u32 v244, v246, 2, {T0}")
        e(f"s_nop 0\nv_lshrrev_b32 v245, 5, {vL}\nv_mul_u32_u24 v245, 18, v245\nv_add_u32 v245, v245, v246\nv_lshl_add_u32 v245, v245, 4, {T0}")
        e(f"s_setprio {p['PRIO_A']}")
        self.lds_wait(C_B, 6, "v247", "v248", sleep=4)
        for i2 in range(4):
            e(f"s_add_u32 {T0}, {sA}, {1+i2}\ns_and_b32 {T0}, {T0}, 3\ns_mul_i32 {T0}, {T0}, 3072\ns_add_u32 {T0}, {T0}, {ATT}")
            e(f"v_lshl_add_u32 v{128+i2}, {vL}, 4, {T0}")
            for rt in range(2):
                e.lg(f"ds_read_b128 {vr(160+4*(2*i2+rt),4)}, v{128+i2} offset:{1536*rt}")
        e("s_mov_b32 exec_hi, 0")
        for i2 in range(4):
            for rt in range(2):
                e.lg(f"ds_read_b32 v{192+2*(2*i2+rt)}, v{128+i2} offset:{1536*rt+1024}")
        e("s_mov_b64 exec, -1")
        e.wait_all(lg=True)
        e(f"v_lshrrev_b32 v247, 3, {vL}\nv_mul_u32_u24 v247, {ASZ}, v247\nv_and_b32 v248, 7, {vL}\nv_lshl_add_u32 v247, v248, 3, v247")
        e(f"s_mul_i32 {T2}, {sA}, {8*ASZ}\ns_add_u32 {T2}, {T2}, {ARENA + FLAGS + F_KV}")
        self.flag_poll("v247", T2, 248, sleep=p["G1SLEEP"])
        self.arrive(C_G1, "v247", "v248")
        self.lds_wait(C_G1, 4, "v247", "v248")
        e(f"s_setprio {p['PRIO_A']}")
        self.stamp(5)

    def o_addr(self, vm_, vx, vt):
        e = self.e
        e(f"v_and_b32 {vx}, 31, {vL}\nv_lshrrev_b32 {vt}, 5, {vL}\ns_lshl_b32 {T0}, {sJ}, 2\ns_add_u32 {T0}, {T0}, {sA}\ns_lshl_b32 {T0}, {T0}, 11")
        e(f"s_add_u32 {T0}, {T0}, {sAR}\ns_add_u32 {T0}, {T0}, {OM}\nv_lshl_add_u32 {vm_}, {vx}, 4, {T0}\nv_lshl_add_u32 {vm_}, {vt}, 10, {vm_}")
        e(f"s_lshl_b32 {T1}, {sJ}, 10\ns_add_u32 {T0}, {sAR}, {T1}\ns_lshl_b32 {T1}, {sA}, 2\ns_add_u32 {T0}, {T0}, {T1}\ns_add_u32 {T0}, {T0}, {OX}")
        e(f"v_lshl_add_u32 {vx}, {vx}, 4, {T0}")

    def kvload(self, buf, what, step=True):
        e = self.e
        if what == "k":
            e.vm(f"buffer_load_dwordx4 {vr(210+4*buf,4)}, v243, {SWS}, {sKT[0]} offen sc1", ("k", buf))
            e.vm(f"buffer_load_dword v{218+4*buf}, v244, {SWS}, {sKT[0]} offen offset:{KX} sc1", ("k", buf))
        else:
            e(f"s_mov_b64 exec, {sVM}")
            e.vm(f"buffer_load_dwordx4 {vr(226+8*buf,4)}, v245, {SWS}, {sKT[0]} offen offset:{VT} sc1", ("v", buf))
            e.vm(f"buffer_load_dwordx4 {vr(230+8*buf,4)}, v245, {SWS}, {sKT[0]} offen offset:{VT+576} sc1", ("v", buf))
            e("s_mov_b64 exec, -1")
            self.wrap_inc(sKT[0], KREC, sKT[1])

    def qk(self, i, buf, which, S=None):
        S = vr(128 + 16 * (i & 1), 16) if S is None else S
        if which == 0:
            self.e(f"v_mfma_f32_32x32x16_bf16 {S}, {vr(210+4*buf,4)}, {vr(160+4*i,4)}, 0")
        else:
            self.e(f"v_mfma_f32_32x32x16_bf16 {S}, {vr(218+4*buf,4)}, {vr(192+2*i,4)}, {S}")

    def pv(self, i, buf, s):
        self.e(f"v_smfmac_f32_32x32x32_bf16 {vr(16*i,16)}, {vr(226+8*buf+4*s,4)}, {vr(128+16*(i & 1)+8*s,8)}, v242")

    def att_tile(self, buf, first=False, last=False, sig=False):
        e = self.e

        def send(i):
            for hf in range(2):
                e.lg(f"ds_write_b128 v{246+(i >> 1)}, {vr(16*i+4*hf,4)} offset:{(i & 1)*OSL + 1024*hf}")
        for i in range(8):
            S = 128 + 16 * (i & 1)

            pat = self.p["EXPAT"]
            c1, c2 = ((5, 8), (5, 8), (6, 10), (5, 9))[pat]

            def ex(a, b):
                for k in range(a, b):
                    wide = pat in (1, 3) and (b - a) % 2 == 1 and k == a
                    e(f"v_exp_f32{'_e64' if wide else ''} v{S+k}, v{S+k}")
            ex(0, 2)
            if i > 0:
                self.pv(i - 1, buf, 1)
            else:
                self.pv(7, buf ^ 1, 1)
            if i == 0 and not last:
                self.kvload(buf ^ 1, "v")
                if sig:
                    e(f"s_cmp_lg_u32 {sCNT}, 1\ns_cbranch_scc1 L_NOSIG")
                    self.arrive(C_L, "v246", "v247")
                    e.label("L_NOSIG")
            ex(2, c1)
            nxt = (i + 1, buf) if i < 7 else (0, buf ^ 1)
            do_qk = not (last and i == 7)
            if i == 7 and do_qk:
                e.wait(vm=("k", buf ^ 1))
            if do_qk:
                self.qk(nxt[0], nxt[1], 0)
            ex(c1, c2)
            if do_qk:
                self.qk(nxt[0], nxt[1], 1)
            if i == 7 and not last:
                self.kvload(buf, "k")
            c3 = max(12, c2 + 3) if pat != 2 else 14
            ex(c2, c3)
            if i == 0:
                e.wait(vm=("v", buf))
            self.pv(i, buf, 0)
            ex(c3, 14)
            if last and 1 <= i <= 6:
                send(i - 1)
            ex(14, 16)

    def attention(self):
        e, p = self.e, self.p
        e.label("L_ATT")
        self.att_proj()
        e.label("L_PASS")
        b0 = p["KSPLIT"] & 1
        e(f"s_and_b32 {sTI}, {sRB}, {15*p['KROT']}\ns_cmp_ge_u32 {sTI}, {sNT}\ns_cselect_b32 {sTI}, 0, {sTI}\ns_mul_i32 {sKT[0]}, {sTI}, {KREC}")
        e.vmq = []
        self.kvload(b0, "k")
        self.kvload(b0, "v")
        self.kvload(b0 ^ 1, "k")
        for r in list(range(128)) + list(range(152, 160)):
            e(f"v_mov_b32 v{r}, 0")
        e.wait(vm=("k", b0))
        self.qk(0, b0, 0)
        self.qk(0, b0, 1)
        e(f"s_mov_b32 {sCNT}, {sNL}")
        e.nop(11)
        if not b0:
            e("s_branch L_AT_MID")
            e.vmq = [("v", 1), ("v", 1), ("k", 0), ("k", 0)]
        e(".p2align 3")
        e.label("L_AT_LOOP")
        if p["STAMP"]:
            e(f"s_sub_u32 m0, 25, {sCNT}")
            self.stamp("m0")
        q0 = list(e.vmq)
        self.att_tile(1)
        e.label("L_AT_MID")
        self.att_tile(0, sig=True)
        assert q0 == e.vmq, (q0, e.vmq)
        e(f"s_sub_u32 {sCNT}, {sCNT}, 1\ns_cmp_lg_u32 {sCNT}, 0\ns_cbranch_scc1 L_AT_LOOP")
        self.stamp(6)
        self.lds_wait(C_P if p["SENT"] else C_G2, 4, "v246", "v247")
        for i2 in range(3):
            e(f"s_add_u32 {T0}, {sA}, {1+i2}\ns_and_b32 {T0}, {T0}, 3\ns_mul_i32 {T0}, {T0}, {6*OSL}\ns_add_u32 {T0}, {T0}, {OXA + 2*i2*OSL}")
            e(f"v_lshl_add_u32 v{246+i2}, {vL}, 4, {T0}")
        self.att_tile(1, last=True)
        e.nop(2)
        self.pv(7, 1, 1)
        e("s_mov_b32 exec_hi, 0")
        for i in range(6):
            e.lg(f"ds_write_b128 v{246+(i >> 1)}, {vr(16*i+8,4)} offset:{(i & 1)*OSL + 2048}")
        e("s_mov_b64 exec, -1")
        e("v_add_f32 v128, v10, v26\nv_add_f32 v129, v42, v58\nv_add_f32 v130, v74, v90\nv_min3_f32 v131, v10, v26, v42\nv_min3_f32 v132, v58, v74, v90")
        e("v_add_f32 v128, v128, v129\nv_add_f32 v130, v130, v106\nv_min3_f32 v131, v131, v132, v106\nv_add_f32 v128, v128, v130")
        e("v_add_f32 v128, v128, v122\nv_min_f32 v131, v131, v122")
        e(f"v_cmp_nge_f32 vcc, {f2u(2.0**40):#x}, v128\nv_mov_b32 v129, {f2u(2.0**-64):#x}\ns_mov_b32 {T2}, vcc_lo\nv_cmp_nge_f32 vcc, v131, v129\ns_nop 1\ns_or_b32 {T2}, {T2}, vcc_lo")
        if p["FORCE_FB"]:
            e(f"s_mov_b32 {T2}, 1")
        e(f"s_cmp_lg_u32 {T2}, 0\ns_cselect_b32 {T2}, 0x10001, 1")
        e.wait_all(lg=True)
        self.arrive(C_R, "v128", "v129", val=T2)
        e(f"s_mul_i32 {T0}, {sA}, {6*OSL}\ns_add_u32 {T0}, {T0}, {OXA}\nv_lshl_add_u32 v246, {vL}, 4, {T0}")
        self.o_addr("v249", "v247", "v248")
        e(f"s_lshl_b32 {T3}, {sPASS}, 2\ns_add_u32 {T3}, {T3}, 4")
        self.lds_wait(C_R, T3, "v128", "v129", mask="0xffff", out=T2)
        self.stamp(7)
        e(f"s_cmp_lg_u32 {sPASS}, 0\ns_cbranch_scc1 L_SAFE\ns_cmp_ge_u32 {T2}, 0x10000\ns_cbranch_scc1 L_FALLBACK")
        e.label("L_SAFE")
        for tt in range(2):
            for i in range(3):
                for q in range(3):
                    e.lg(f"ds_read_b128 {vr(12*(3*tt+i)+4*q,4)}, v246 offset:{(2*i+tt)*OSL + 1024*q}", ("r", tt, i))
        for tt in range(2):
            O = 96 + 16 * tt
            for i in range(3):
                e.wait(lg=("r", tt, i))
                for k in (10, 0, 1, 2, 3, 4, 5, 6, 7, 8, 9):
                    e(f"v_add_f32 v{O+k}, v{O+k}, v{12*(3*tt+i)+k}")
            e(f"v_mov_b32 v128, v{O+10}\nv_mov_b32 v129, v{O+10}\ns_nop 1\nv_permlane32_swap_b32 v128, v129\ns_nop 1\nv_mul_f32 v128, {sNL2E}, v128\nv_rcp_f32 v128, v128\ns_nop 0")
            for k in range(10):
                e(f"v_mul_f32 v{O+k}, v{O+k}, v128")
            for k in range(5):
                e(f"v_cvt_pk_bf16_f32 v{132+8*tt+k}, v{O+2*k}, v{O+2*k+1}")
            if p["SENT"]:
                for k in range(5):
                    e(f"v_min_u32 v{132+8*tt+k}, -2, v{132+8*tt+k}")
            e.vm(f"buffer_store_dwordx4 {vr(132+8*tt,4)}, v249, {SWS}, 0 offen offset:{512*tt} sc1")
            e("s_mov_b32 exec_hi, 0")
            e.vm(f"buffer_store_dword v{136+8*tt}, v247, {SWS}, 0 offen offset:{512*tt} sc1")
            e("s_mov_b64 exec, -1")
        self.stamp(8)
        if p["SENT"]:
            self.arrive(C_O, "v128", "v129")
        else:
            e.wait_all(vm=True)
            e(f"s_lshl_b32 {T2}, {sJ}, 2\ns_add_u32 {T2}, {T2}, {sA}")
            self.flag_set(F_O, T2, "v128", 130)
        self.stamp(9)
        e("s_branch L_FIN")
        self.fallback()

    def fallback(self):
        e = self.e
        e.label("L_FALLBACK")
        e(f"s_mov_b32 {sPASS}, 1\ns_mov_b32 {sKT[0]}, 0\ns_mov_b32 {sCNT}, 0")
        for i in range(8):
            e(f"v_mov_b32 v{i}, 0xff800000")
        e.label("L_FB_LOOP")
        self.kvload(0, "k")
        e(f"s_add_u32 {sKT[0]}, {sKT[0]}, {KREC}")
        e.wait_all(vm=True)
        for i in range(8):
            self.qk(i, 0, 0, S="v[128:143]")
            self.qk(i, 0, 1, S="v[128:143]")
            e.nop(12)
            for k in range(8):
                e(f"v_max3_f32 v{i}, v{i}, v{128+2*k}, v{129+2*k}")
        e(f"s_add_u32 {sCNT}, {sCNT}, 1\ns_cmp_lt_u32 {sCNT}, {sNT}\ns_cbranch_scc1 L_FB_LOOP")
        e(f"v_and_b32 v247, 31, {vL}")
        for i in range(8):
            e(f"v_mov_b32 v8, v{i}\ns_nop 1\nv_permlane32_swap_b32 v{i}, v8\ns_nop 1\nv_max_f32 v{i}, v{i}, v8")
            e(f"s_lshl_b32 {T0}, {sA}, 1\ns_add_u32 {T0}, {T0}, {2+i}\ns_and_b32 {T0}, {T0}, 7\ns_lshl_b32 {T0}, {T0}, 7\ns_add_u32 {T0}, {T0}, {MX}")
            e(f"v_lshl_add_u32 v{16+i}, v247, 2, {T0}\ns_lshl_b32 {T1}, {sA}, 10\nv_add_u32 v9, {T1}, v{16+i}")
            e(f"ds_write_b32 v9, v{i}")
        e.wait_all(lg=True)
        self.arrive(C_M, "v128", "v129")
        self.lds_wait(C_M, 4, "v128", "v129")
        e("s_mov_b32 exec_hi, 0")
        for i in range(8):
            for a in range(4):
                e(f"ds_read_b32 v{8+a}, v{16+i} offset:{1024*a}")
            e.wait_all(lg=True)
            e("v_max3_f32 v8, v8, v9, v10\nv_max_f32 v8, v8, v11\nv_cvt_pk_bf16_f32 v9, v8, v8\nv_and_b32 v9, 0xffff0000, v9\nv_sub_f32 v10, v8, v9")
            e(f"v_cvt_pk_bf16_f32 v{193+2*i}, -v9, -v10")
        e("s_mov_b64 exec, -1\ns_branch L_PASS")

    def build(self):
        e, p = self.e, self.p
        self.prologue()
        self.ffn()
        self.attention()
        e.label("L_FIN")
        if p["STAMP"]:
            e("s_waitcnt vmcnt(0)")
            self.stamp(12)
            e(f"s_lshl_b32 {T0}, s2, 3\ns_add_u32 {T0}, {T0}, {sW}\ns_lshl_b32 {T0}, {T0}, 8\ns_add_u32 {T0}, {T0}, {STAMPS}\nv_lshlrev_b32 v0, 2, {vL}")
            e(f"buffer_store_dword v255, v0, {SWS}, {T0} offen\ns_add_u32 {T0}, {T0}, 0x80000\nbuffer_store_dword v254, v0, {SWS}, {T0} offen")
            e(f"s_cmp_lg_u32 s2, 100\ns_cbranch_scc1 L_END\ns_cmp_lg_u32 {sW}, 0\ns_cbranch_scc1 L_END")
            e(f"v_readlane_b32 {T0}, v255, 0\ns_nop 1\nv_subrev_u32 v1, {T0}, v255\ns_mov_b64 exec, 0x1ffe\nbuffer_store_dword v1, v0, {SDBG}, 0 offen")
        e.label("L_END")
        e("s_endpgm")
        probs = check_hazards(e.lines)
        head = open("cdna_kernels/" + NAME + ".s.ref").read().split("\n")
        hdr = [l for l in head if l.startswith(";") and "@launch" not in l and "Override" not in l and "grid=ceil" not in l]
        txt = "\n".join(hdr) + f"""
; One persistent workgroup per CU: 64 rows x (576 FFN columns, 4 heads, 72 output columns).
; Waves 0-3: GEMM1 -> SiLU -> GEMM2 -> partial sums -> output projection; waves 4-7: Q/K/V projection, attention.
; @launch grid=(256,1,1) block=(512,1,1) lds={LDS_BYTES}
.amdgcn_target "amdgcn-amd-amdhsa--gfx950"
.text
.globl {NAME}_kernel
.p2align 8
.type {NAME}_kernel,@function
{NAME}_kernel:
{e.text()}
.section .rodata,"a"
.p2align 6
.amdhsa_kernel {NAME}_kernel
  .amdhsa_next_free_vgpr 256
  .amdhsa_next_free_sgpr 102
  .amdhsa_accum_offset 256
  .amdhsa_group_segment_fixed_size 0
  .amdhsa_kernarg_size 88
  .amdhsa_user_sgpr_count 2
  .amdhsa_user_sgpr_kernarg_segment_ptr 1
  .amdhsa_system_sgpr_workgroup_id_x 1
.end_amdhsa_kernel
"""
        return txt, probs


if __name__ == "__main__":
    out = sys.argv[1]
    kw = {}
    for a in sys.argv[2:]:
        k, v = a.split("=")
        kw[k] = int(v, 0)
    txt, probs = G(**kw).build()
    for x in probs[:40]:
        print("HAZARD", x)
    open(out, "w").write(txt)
    print("wrote", out, len(txt), "bytes;", len(probs), "hazards")
```

```python
import sys, math, struct
from emit import E, check_hazards

NAME = "parallel_sum__grouped_kv_mqa__dense_activation_silu__prompt"

DEF = dict(NSL=2, STAMP=0, PRIO_F=1, PRIO_A=0, ROT=1, KROT=1, CODEPF=1, PRIO_P=2, WARMQ=0, TLBW=0, OUTF=2, KSPLIT=1, W1LATE=4, PRE=5, PREU=0, ROTG=0, EXPAT=0, SENT=1, OMODE=2, OROT=1, OSLEEP=0, TADDR=2, X_SEQ=0, X_BIAS=0, EXTU=8, PREL=5, XBAR=1, PACE2=2, PACE3=2, DYNP=1, WARMO=1, PKSILU=1, PACE=4, DEFER=0, G1SLEEP=16, SPIN=1 << 16, FORCE_FB=0)

KREC = 2304
KM, KX, VT = 0, 1024, 1152
ARENA, ASZ = 0x40000, 0xb0000
PART, OM, OX, FLAGS = 0, 589824, 655360, 663552
STAMPS = 0x1710000
WS_BYTES = 0x1820000
CH = 1040
RING, RSZ = 72 * CH, 15360
ATT = RING + 4 * RSZ
QE, KVW = ATT, ATT + 9216 + 64
QRSZ = 6144
OXA, OSL = 92160, 2560
MX = 153600
QX, SYNC = 162560, 163584
LDS_BYTES = 163840
C_A, C_KV, C_B, C_XN, C_H, C_G2, C_P, C_WO, C_R, C_O, C_G1, C_M, C_E, C_Q, C_L = range(15)
SX, SW1, SW2, SWQ, SKV, SWO, SWS, SDBG, SOUT = (f"s[{b}:{b+3}]" for b in range(28, 64, 4))
sRB, sJ, sW, sA = "s64", "s65", "s66", "s67"
sRING, sK, sCNT, sNL2E, sSPIN, sPASS = "s68", "s69", "s70", "s71", "s72", "s73"
sKT = ("s74", "s75", "s76")
T0, T1, T2, T3, T4 = "s77", "s78", "s79", "s80", "s81"
sVM = "s[82:83]"
sIDX = "s84"
sROT, sBO, sTI, sAR = "s92", "s93", "s94", "s95"
sKQ, sN0, sN1, sNT, sNL = "s96", "s98", "s99", "s100", "s101"
F_P, F_KV, F_O = 0, 128, 256
NONCE = SYNC + 128
vL = "v250"
OOB = 0x40000000


def f2u(x):
    return struct.unpack("<I", struct.pack("<f", x))[0]


def vr(b, n=1):
    return f"v{b}" if n == 1 else f"v[{b}:{b+n-1}]"


class G:
    def __init__(self, **kw):
        self.p = dict(DEF)
        self.p.update(kw)
        self.e = E()
        self.nstamp = 0

    def stamp(self, i):
        if not self.p["STAMP"]:
            return
        e = self.e
        e("s_waitcnt lgkmcnt(0)")
        e.lgq = []
        e("s_memrealtime s[88:89]\ns_memtime s[90:91]")
        e("s_waitcnt lgkmcnt(0)")
        e(f"v_writelane_b32 v255, s88, {i}\nv_writelane_b32 v254, s90, {i}")

    def srd(self, srd, lo, nbytes):
        b = int(srd[2:srd.index(":")])
        self.e(f"s_mov_b32 s{b}, s{lo}\ns_mov_b32 s{b+1}, s{lo+1}\ns_mov_b32 s{b+2}, {nbytes}\ns_mov_b32 s{b+3}, 0x20000")

    def arrive(self, word, va, vb, rtn=None, val="1"):
        e = self.e
        e(f"v_mov_b32 {va}, {SYNC}\nv_mov_b32 {vb}, {val}\ns_mov_b64 exec, 1")
        if rtn is None:
            e.lg(f"ds_add_u32 {va}, {vb} offset:{4*word}")
            e("s_mov_b64 exec, -1")
        else:
            e(f"ds_add_rtn_u32 {vb}, {va}, {vb} offset:{4*word}")
            e.wait_all(lg=True)
            e(f"v_readfirstlane_b32 {rtn}, {vb}\ns_mov_b64 exec, -1\ns_nop 0")

    def lds_wait(self, word, target, va, vb, mask=None, out=None, sleep=1):
        e = self.e
        L, D = e.new("LW"), e.new("LWD")
        out = out or T0
        e(f"v_mov_b32 {va}, {SYNC}\ns_mov_b32 {sSPIN}, 0")
        e.label(L)
        e(f"ds_read_b32 {vb}, {va} offset:{4*word}")
        e.wait_all(lg=True)
        e(f"v_readfirstlane_b32 {out}, {vb}\ns_add_u32 {sSPIN}, {sSPIN}, 1")
        if mask is not None:
            e(f"s_and_b32 {T1}, {out}, {mask}\ns_cmp_ge_u32 {T1}, {target}")
        else:
            e(f"s_cmp_ge_u32 {out}, {target}")
        e(f"s_cbranch_scc1 {D}\ns_sleep {sleep}\ns_cmp_lt_u32 {sSPIN}, {self.p['SPIN']}\ns_cbranch_scc1 {L}")
        e.label(D)

    def flag_poll(self, va, soff, vb, sleep=2):
        e = self.e
        L, D = e.new("FW"), e.new("FWD")
        e(f"s_mov_b32 {sSPIN}, 0")
        e.label(L)
        e(f"buffer_load_dwordx2 v[{vb}:{vb+1}], {va}, {SWS}, {soff} offen sc1")
        e.wait_all(vm=True)
        e(f"v_xor_b32 v{vb}, {sN0}, v{vb}\nv_xor_b32 v{vb+1}, {sN1}, v{vb+1}\nv_or_b32 v{vb}, v{vb}, v{vb+1}")
        e(f"v_cmp_ne_u32 vcc, 0, v{vb}\ns_add_u32 {sSPIN}, {sSPIN}, 1\ns_nop 3")
        e(f"s_cbranch_vccz {D}\ns_sleep {sleep}\ns_cmp_lt_u32 {sSPIN}, {self.p['SPIN']}\ns_cbranch_scc1 {L}")
        e.label(D)

    def flag_wait(self, group, n, va, vb):
        e = self.e
        e(f"v_and_b32 {va}, {n-1}, {vL}\nv_lshlrev_b32 {va}, 3, {va}\ns_add_u32 {T0}, {sAR}, {FLAGS + group}")
        self.flag_poll(va, T0, vb)

    def flag_set(self, group, sidx, va, vb):
        e = self.e
        e(f"s_lshl_b32 {T1}, {sidx}, 3\ns_add_u32 {T0}, {sAR}, {T1}\ns_add_u32 {T0}, {T0}, {FLAGS + group}")
        e(f"v_mov_b32 {va}, 0\nv_mov_b32 v{vb}, {sN0}\nv_mov_b32 v{vb+1}, {sN1}\ns_mov_b64 exec, 1")
        e.vm(f"buffer_store_dwordx2 v[{vb}:{vb+1}], {va}, {SWS}, {T0} offen sc1")
        e("s_mov_b64 exec, -1")

    def get_nonce(self, va, vb):
        e = self.e
        e(f"v_mov_b32 {va}, {NONCE}\nds_read_b64 v[{vb}:{vb+1}], {va}")
        e.wait_all(lg=True)
        e(f"v_readfirstlane_b32 {sN0}, v{vb}\nv_readfirstlane_b32 {sN1}, v{vb+1}\ns_nop 1")

    def prologue(self):
        e, p = self.e, self.p
        nsl = p["NSL"]
        e("s_cmp_ge_u32 s2, 256\ns_cbranch_scc1 L_END")
        e("s_load_dwordx16 s[4:19], s[0:1], 0\ns_load_dwordx4 s[20:23], s[0:1], 64\ns_load_dwordx2 s[24:25], s[0:1], 80")
        if p["STAMP"]:
            e("s_memrealtime s[88:89]\ns_memtime s[90:91]\nv_mov_b32 v255, 0\nv_mov_b32 v254, 0")
        e(f"v_and_b32 {vL}, 63, v0\nv_lshrrev_b32 v1, 6, v0")
        lg = nsl.bit_length() - 1
        e(f"s_and_b32 {T0}, s2, 7\ns_lshr_b32 {sIDX}, s2, 3")
        e(f"s_and_b32 {sJ}, {T0}, {8//nsl - 1}\ns_lshl_b32 {sJ}, {sJ}, {lg}\ns_and_b32 {T1}, {sIDX}, {nsl-1}\ns_add_u32 {sJ}, {sJ}, {T1}")
        e(f"s_lshr_b32 {sRB}, {T0}, {3-lg}\ns_lshl_b32 {sRB}, {sRB}, {5-lg}\ns_lshr_b32 {T1}, {sIDX}, {lg}\ns_add_u32 {sRB}, {sRB}, {T1}")
        e(f"v_readfirstlane_b32 {sW}, v1\ns_mul_i32 {sAR}, {sRB}, {ASZ}\ns_add_u32 {sAR}, {sAR}, {ARENA}")
        e(f"v_lshrrev_b32 v120, 3, v0\nv_and_b32 v121, 7, v0\ns_lshl_b32 {T0}, {sRB}, 6")
        e(f"v_add_u32 v122, {T0}, v120\nv_mul_u32_u24 v122, 1152, v122\nv_lshl_add_u32 v122, v121, 4, v122")
        e(f"v_mul_u32_u24 v123, {CH}, v121\nv_lshl_add_u32 v123, v120, 4, v123\nv_add_u32 v124, {8*CH}, v123")
        e(f"s_and_b32 {sA}, {sW}, 3\nv_mov_b32 v216, 0\nv_mov_b32 v217, 0\nv_mov_b32 v222, 0\nv_mov_b32 v224, 0")
        for r in list(range(225, 230)) + list(range(240, 248)):
            e(f"v_mov_b32 v{r}, 0")
        e("s_waitcnt lgkmcnt(0)")
        if p["STAMP"]:
            e("v_writelane_b32 v255, s88, 0\nv_writelane_b32 v254, s90, 0")
        self.srd(SX, 4, 2359296)
        for u in range(9):
            e.vm(f"buffer_load_dwordx4 v[{4*u}:{4*u+3}], v122, {SX}, 0 offen offset:{128*u}", ("x", u))
        if p["XBAR"]:
            e("s_barrier")
        self.srd(SW1, 16, 5308416)
        self.srd(SW2, 18, 5308416)
        self.srd(SWQ, 6, 663552)
        self.srd(SWO, 12, 663552)
        self.srd(SWS, 24, WS_BYTES)
        self.srd(SDBG, 22, 256)
        self.srd(SOUT, 20, 2359296)
        e(f"s_cmp_ge_u32 {sJ}, 3\ns_cselect_b32 s44, s10, s8\ns_cselect_b32 s45, s11, s9\ns_mov_b32 s46, 20736\ns_mov_b32 s47, 0x20000")
        e(f"s_mov_b32 {sNL2E}, {f2u(-math.log2(math.e)):#x}\ns_mov_b32 {sPASS}, 0")
        e(f"s_cmp_ge_u32 {sW}, 4\ns_cbranch_scc1 L_PRO_A")
        q0 = list(e.vmq)
        self.pro_ffn()
        if p["TADDR"] == 0:
            self.q_addresses()
            self.tail_addresses()
        self.ln_stats(ffn=True)
        e("s_branch L_PRO_J")
        e.vmq = list(q0)
        e.label("L_PRO_A")
        if p["CODEPF"]:
            e(f"s_getpc_b64 s[86:87]")
            e.label("L_PC")
            e(f"s_and_b32 {T0}, {sIDX}, 3\ns_lshl_b32 {T0}, {T0}, 2\ns_add_u32 {T0}, {T0}, {sA}\ns_lshl_b32 {T0}, {T0}, 12")
            e(f"v_lshl_add_u32 v126, {vL}, 6, {T0}\nv_min_u32 v126, L_END-L_PC, v126\nv_mov_b32 v127, s87")
            e("v_add_co_u32 v126, vcc, s86, v126\ns_nop 1\nv_addc_co_u32 v127, vcc, 0, v127, vcc")
            e.vm("global_load_dword v251, v[126:127], off")
        self.ln_stats()
        e(f"s_or_b32 {T0}, s2, {sA}\ns_cmp_lg_u32 {T0}, 0\ns_cbranch_scc1 L_NOTAG\ns_memrealtime s[86:87]\ns_waitcnt lgkmcnt(0)\ns_or_b32 s86, s86, 1")
        e(f"v_mov_b32 v126, s86\nv_mov_b32 v127, s87\nv_mov_b32 v128, 0\ns_mov_b64 exec, 1\nbuffer_store_dwordx2 v[126:127], v128, {SDBG}, 0 offen sc1\ns_mov_b64 exec, -1")
        e.label("L_NOTAG")
        e(f"v_lshlrev_b32 v127, 2, {vL}\nv_add_u32 v127, {SYNC}, v127\nv_mov_b32 v128, 0\nds_write_b32 v127, v128")
        e.label("L_PRO_J")
        self.layernorm()

    def wrap_inc(self, reg, inc, mod):
        self.e(f"s_add_u32 {reg}, {reg}, {inc}\ns_cmp_eq_u32 {reg}, {mod}\ns_cselect_b32 {reg}, 0, {reg}")

    def pro_ffn(self):
        e = self.e
        e(f"s_mul_i32 {T2}, {sW}, 5\ns_lshl_b32 {T3}, {sW}, 2\ns_cmp_eq_u32 {sW}, 3\ns_cselect_b32 {T2}, 14, {T2}\ns_cselect_b32 {T3}, 13, {T3}")
        e(f"s_mul_i32 {sRING}, {sW}, {RSZ}\ns_add_u32 {sRING}, {sRING}, {RING}")
        e(f"v_lshrrev_b32 v125, 2, {vL}\nv_and_b32 v126, 3, {vL}")
        e(f"s_mul_i32 {T0}, {sJ}, 1152\ns_lshl_b32 {T1}, {T2}, 6\ns_add_u32 {T0}, {T0}, {T1}")
        e(f"v_mul_u32_u24 v216, 9216, v125\nv_lshl_add_u32 v216, v126, 4, v216\nv_add_u32 v216, {T0}, v216")
        nsl = self.p["NSL"]
        e(f"s_and_b32 {sROT}, {sRB}, {32//nsl - 1}\ns_mul_i32 {sROT}, {sROT}, {36*nsl*self.p['ROT']}\ns_lshr_b32 {sROT}, {sROT}, 5")
        G_ = self.p["ROTG"]
        if G_:
            e(f"s_and_b32 {sROT}, {sRB}, {32//nsl - 1}\ns_mul_i32 {sROT}, {sROT}, {G_*nsl}\ns_lshr_b32 {sROT}, {sROT}, 5\ns_mul_i32 {sROT}, {sROT}, {36//G_}")
        e(f"s_mul_i32 {sK}, {sROT}, 147456")
        e(f"s_mul_i32 {T0}, {sJ}, 144\ns_lshl_b32 {T1}, {sW}, 6\ns_add_u32 {T0}, {T0}, {T1}\ns_sub_u32 {T0}, {T0}, 128")
        e(f"v_mul_u32_u24 v224, 1152, v125\nv_lshl_add_u32 v224, v126, 4, v224\nv_add_u32 v224, {T0}, v224\ns_mul_i32 {sKQ}, {sROT}, 18432")
        if not self.p["W1LATE"]:
            self.first_loads()
        e(f"s_mul_i32 {T0}, {sJ}, 663552\ns_lshl_b32 {T1}, {T3}, 6\ns_add_u32 {T0}, {T0}, {T1}")
        e(f"v_mul_u32_u24 v217, 1152, v125\nv_lshl_add_u32 v217, v126, 4, v217\nv_add_u32 v217, {T0}, v217")
        e(f"v_lshrrev_b32 v127, 5, {vL}\nv_bfe_u32 v128, {vL}, 2, 2\nv_bfe_u32 v129, {vL}, 4, 1")
        e(f"v_lshlrev_b32 v129, 5, v129\nv_lshl_add_u32 v129, v126, 3, v129\nv_lshl_add_u32 v129, v128, 6, v129\nv_add_u32 v129, {sRING}, v129")
        e("v_lshl_add_u32 v218, v127, 9, v129\nv_lshl_add_u32 v219, v127, 8, v129")
        e(f"v_and_b32 v128, 31, {vL}\nv_lshlrev_b32 v128, 4, v128\nv_mul_u32_u24 v223, {CH}, v127\nv_add_u32 v223, v223, v128")
        e(f"s_mul_i32 {T0}, {T2}, {4*CH}\nv_add_u32 v221, {T0}, v223")
        e(f"s_lshl_b32 {T0}, {T3}, 15\ns_lshl_b32 {T1}, {sJ}, 10\ns_add_u32 {T0}, {T0}, {T1}\ns_add_u32 {T0}, {T0}, {sAR}")
        e(f"v_lshl_add_u32 v222, v127, 13, v128\nv_add_u32 v222, {T0}, v222")

    def q_addresses(self):
        e = self.e
        e(f"s_lshl_b32 {T2}, {sW}, 5\ns_sub_u32 {T2}, {T2}, 64\nv_lshrrev_b32 v170, 5, {vL}\nv_lshl_add_u32 v170, v170, 2, {T2}")
        e(f"v_and_b32 v171, 31, {vL}\nv_lshlrev_b32 v171, 4, v171\nv_add_u32 v171, {ATT}, v171")
        for pp in range(8):
            self.qaddr(f"v{196+pp}", "v170", 8 * (pp >> 1) + 2 * (pp & 1), "v171", "v172", "v173")

    def tail_addresses(self):
        e = self.e
        for i in range(5):
            e(f"v_add_u32 v160, {64*i}, {vL}\nv_mul_u32_u24 v161, 6554, v160\nv_lshrrev_b32 v161, 16, v161")
            e(f"v_mul_u32_u24 v162, 10, v161\nv_sub_u32 v162, v160, v162\nv_mul_u32_u24 v161, 1152, v161\nv_lshl_add_u32 v{225+i}, v162, 4, v161")
        e(f"v_and_b32 v160, 15, {vL}\nv_lshrrev_b32 v161, 4, {vL}\ns_lshl_b32 {T0}, {sW}, 4\nv_add_u32 v162, {T0}, v160")
        e(f"v_and_b32 v163, 1, v161\nv_lshrrev_b32 v164, 1, v161")
        e(f"s_mul_i32 {T1}, {sJ}, 73728\ns_add_u32 {T0}, {sAR}, {T1}")
        e(f"v_lshl_add_u32 v165, v162, 4, {T0}\nv_lshl_add_u32 v240, v163, 13, v165\nv_lshl_add_u32 v240, v164, 10, v240\nv_lshl_add_u32 v241, v161, 10, v165")
        e(f"s_lshl_b32 {T0}, {sRB}, 6\nv_add_u32 v165, {T0}, v162\nv_mul_u32_u24 v165, 1152, v165\ns_mul_i32 {T0}, {sJ}, 144\nv_add_u32 v165, {T0}, v165")
        e(f"v_lshl_add_u32 v242, v161, 4, v165\nv_mov_b32 v166, {OOB}\nv_cmp_gt_u32 vcc, 2, v161\ns_nop 1\nv_cndmask_b32 v242, v166, v242, vcc")
        e(f"v_cmp_eq_u32 vcc, 0, v161\ns_nop 1\nv_cndmask_b32 v243, v166, v165, vcc")
        e(f"v_lshl_add_u32 v244, v163, 5, v165\nv_lshl_add_u32 v244, v164, 4, v244")
        e(f"v_lshl_add_u32 v245, v161, 3, v165\nv_cmp_gt_u32 vcc, 2, v161\ns_nop 1\nv_cndmask_b32 v245, v166, v245, vcc")
        e("v_lshlrev_b32 v166, 3, v163\nv_sub_u32 v166, v160, v166\nv_mov_b32 v167, 0x3f80\nv_mov_b32 v168, 0x3f800000")
        for base, src in ((232, "v166"), (236, "v160")):
            for r in range(4):
                e(f"v_cmp_eq_u32 vcc, {2*r}, {src}\nv_cmp_eq_u32 s[86:87], {2*r+1}, {src}\ns_nop 0\nv_cndmask_b32 v{base+r}, 0, v167, vcc")
                e(f"v_cndmask_b32 v{base+r}, v{base+r}, v168, s[86:87]")
        e(f"s_add_u32 {T0}, {sAR}, {OM}\nv_lshl_add_u32 v246, v162, 4, {T0}\nv_lshl_add_u32 v246, v161, 10, v246")
        e(f"s_add_u32 {T0}, {sAR}, {OX}\nv_lshl_add_u32 v247, v162, 4, {T0}\nv_lshl_add_u32 v247, v161, 10, v247")
        e(f"v_bfe_u32 v166, {vL}, 2, 2\nv_and_b32 v167, 3, {vL}\nv_mul_u32_u24 v168, 18, v164\nv_lshl_add_u32 v168, v163, 2, v168\nv_add_u32 v168, v168, v166")
        e("v_mul_u32_u24 v168, 160, v168\nv_lshl_add_u32 v248, v167, 3, v168")
        e("v_mul_u32_u24 v168, 72, v161\nv_lshrrev_b32 v169, 1, v166\nv_mul_u32_u24 v169, 18, v169\nv_and_b32 v166, 1, v166\nv_add3_u32 v168, v168, v169, v166")
        e("v_add_u32 v168, 16, v168\nv_mul_u32_u24 v168, 160, v168\nv_lshl_add_u32 v251, v167, 3, v168")
        e(f"v_mov_b32 v166, {OOB}\nv_cmp_gt_u32 vcc, 32, {vL}\ns_nop 1\nv_cndmask_b32 v241, v166, v241, vcc")

    def first_loads(self, lo=0, hi=15, lo2=None, hi2=None):
        e = self.e
        lo2, hi2 = lo if lo2 is None else lo2, hi if hi2 is None else hi2
        L, J = e.new("PFL"), e.new("PFJ")
        e(f"s_cmp_ge_u32 {sW}, 2\ns_cbranch_scc1 {L}")
        q0 = list(e.vmq)
        for i in range(lo, hi):
            s, pc = divmod(i, 5)
            e(f"s_add_u32 m0, {sRING}, {s*5120 + 960*pc}\ns_nop 0")
            e.vm(f"buffer_load_dwordx4 v216, {SW1}, {sK} offen offset:{64*pc} lds")
            if pc == 4:
                self.wrap_inc(sK, 147456, 36 * 147456)
        e(f"s_branch {J}")
        e.label(L)
        qa = e.vmq
        e.vmq = list(q0)
        for i in range(lo2, hi2):
            e(f"s_add_u32 m0, {sRING}, {1024*((i + 9) % 15)}\ns_nop 0")
            e.vm(f"buffer_load_dwordx4 v224, {SWQ}, {sKQ} offen lds")
            self.wrap_inc(sKQ, 18432, 36 * 18432)
        e.label(J)
        if len(qa) < len(e.vmq):
            e.vmq = qa

    def q_gemm(self):
        e = self.e
        e.vmq = [("q", i) for i in range(15)]
        e.lgq = []
        e(f"s_mul_i32 {sBO}, {sROT}, 2080")

        def reads(i):
            r = 160 + 12 * (i % 3)
            e(f"v_add_u32 v220, {sBO}, v223")
            e.wait(vm=("q", i))
            o = 1024 * ((i + 9) % 15)
            e.lg(f"ds_read_b64_tr_b16 {vr(r,2)}, v218 offset:{o}", ("r", i))
            e.lg(f"ds_read_b64_tr_b16 {vr(r+2,2)}, v218 offset:{o+256}", ("r", i))
            e.lg(f"ds_read_b128 {vr(r+4,4)}, v220", ("r", i))
            e.lg(f"ds_read_b128 {vr(r+8,4)}, v220 offset:512", ("r", i))
            self.wrap_inc(sBO, 2080, 36 * 2080)
        reads(0)
        reads(1)
        for i in range(36):
            r = 160 + 12 * (i % 3)
            sl = (i + 9) % 15
            e.wait(lg=("r", i))
            w1 = i >= 21 and sl % 5 < 4
            if i < 21 or w1:
                e(f"s_add_u32 m0, {sRING}, {1024*sl - (64*(sl % 5) if w1 else 0)}")
            e(f"v_mfma_f32_32x32x16_bf16 v[128:143], {vr(r,4)}, {vr(r+4,4)}, {'0' if i == 0 else 'v[128:143]'}")
            if i < 21:
                e.vm(f"buffer_load_dwordx4 v224, {SWQ}, {sKQ} offen lds", ("q", i + 15))
                self.wrap_inc(sKQ, 18432, 36 * 18432)
            elif w1:
                e.vm(f"buffer_load_dwordx4 v216, {SW1}, {sK} offen offset:{64*(sl % 5)} lds")
                if sl % 5 == 3:
                    self.wrap_inc(sK, 147456, 36 * 147456)
            e(f"v_mfma_f32_32x32x16_bf16 v[144:159], {vr(r,4)}, {vr(r+8,4)}, {'0' if i == 0 else 'v[144:159]'}")
            if i + 2 < 36:
                reads(i + 2)
            if self.p["STAMP"] > 1 and i in (0, 6, 12, 18, 24, 30, 35):
                self.stamp(32 + (i + 1) // 6)

    def pro_att(self):
        e, p = self.e, self.p
        e(f"v_mul_u32_u24 v125, 1152, {vL}\ns_mul_i32 {T0}, {sJ}, 144\ns_add_u32 {T0}, {T0}, 128\nv_add_u32 v125, {T0}, v125")
        e(f"s_mul_i32 {T2}, {sA}, 73728\ns_lshl_b32 {T3}, {sA}, 10\ns_add_u32 {T3}, {T3}, {QE}")
        for i in range(2):
            e(f"s_add_u32 m0, {T3}, {4096*i}\ns_add_u32 {T0}, {T2}, {4*73728*i}")
            e.vm(f"buffer_load_dwordx4 v125, {SWQ}, {T0} offen lds", "ext")
        e(f"s_cmp_ge_u32 {sJ}, 3\ns_cselect_b32 {T0}, 3, 0\ns_sub_u32 {T0}, {sJ}, {T0}\ns_cmp_ge_u32 {T0}, 3\ns_cselect_b32 {T0}, 0, {T0}")
        e(f"s_lshl_b32 {T1}, {T0}, 4\ns_min_u32 {T1}, {T1}, 20\nv_mul_u32_u24 v126, 36, {vL}\nv_add_u32 v126, {T1}, v126")
        e(f"s_mul_i32 {T2}, {sA}, 2304\ns_lshl_b32 {T3}, {sA}, 10\ns_add_u32 {T3}, {T3}, {KVW}")
        for i in range(2):
            e(f"s_add_u32 m0, {T3}, {4096*i}\ns_add_u32 {T0}, {T2}, {9216*i}")
            e.vm(f"buffer_load_dwordx4 v126, {SKV}, {T0} offen lds", "ext")
        e(f"s_cmp_lg_u32 {sA}, 0\ns_cbranch_scc1 L_PA_1\ns_mov_b32 m0, {KVW + 8192}\ns_mov_b32 {T0}, {8*2304}")
        e(f"buffer_load_dwordx4 v126, {SKV}, {T0} offen lds")
        e.label("L_PA_1")
        e(f"s_cmp_lg_u32 {sA}, 1\ns_cbranch_scc1 L_PA_2\ns_mov_b32 m0, {QE + 8192}\ns_mov_b32 {T0}, {8*73728}")
        e(f"buffer_load_dwordx4 v125, {SWQ}, {T0} offen lds")
        e.label("L_PA_2")
        nsl = p['NSL']
        if p["TLBW"]:
            e(f"s_mov_b64 exec, 7\ns_cmp_eq_u32 {sA}, 1\ns_cbranch_scc1 L_TLB1\ns_cmp_eq_u32 {sA}, 2\ns_cbranch_scc1 L_TLB2\ns_cmp_eq_u32 {sA}, 3\ns_cbranch_scc1 L_TLB3")
            e(f"v_mul_u32_u24 v126, {ASZ - 64}, {vL}\nv_cmp_eq_u32 vcc, 2, {vL}\nv_add_u32 v126, {sAR}, v126\ns_nop 0\nv_cndmask_b32 v126, v126, 0, vcc")
            e(f"buffer_load_dword v249, v126, {SWS}, 0 offen\ns_branch L_TLBD")
            e.label("L_TLB1")
            e(f"s_mul_i32 {T1}, {sJ}, 663552\nv_mul_u32_u24 v126, 331000, {vL}\nbuffer_load_dword v249, v126, {SW2}, {T1} offen\ns_branch L_TLBD")
            e.label("L_TLB2")
            e(f"s_mul_i32 {T0}, {sRB}, 73728\nv_mul_u32_u24 v126, 36000, {vL}\nbuffer_load_dword v249, v126, {SOUT}, {T0} offen\ns_branch L_TLBD")
            e.label("L_TLB3")
            e(f"v_mov_b32 v126, 0")
            e.vm(f"buffer_load_dword v249, v126, {SDBG}, 0 offen offset:128")
            e.label("L_TLBD")
            e("s_mov_b64 exec, -1")
        if p["WARMQ"]:
            rows = 18 * nsl
            e(f"s_lshl_b32 {T0}, {sA}, 6\nv_add_u32 v126, {T0}, {vL}\nv_lshrrev_b32 v127, 2, v126\nv_and_b32 v128, 3, v126\nv_mul_u32_u24 v127, 1152, v127")
            e(f"v_cmp_gt_u32 vcc, {4*rows}, v126\nv_mul_u32_u24 v128, 52, v128\nv_add_u32 v127, v127, v128\nv_mov_b32 v128, {OOB}\nv_cndmask_b32 v127, v128, v127, vcc")
            e(f"s_and_b32 {T1}, {sRB}, {32//nsl - 1}\ns_mul_i32 {T1}, {T1}, {rows*1152}\ns_mul_i32 {T0}, {sJ}, 144\ns_add_u32 {T1}, {T1}, {T0}")
            e.vm(f"buffer_load_dword v252, v127, {SWQ}, {T1} offen")
            e.vm(f"buffer_load_dword v253, v127, {SWO}, {T1} offen")

    def ln_stats(self, ffn=False):
        e = self.e
        e("v_mov_b32 v112, 0\nv_mov_b32 v113, 0\nv_mov_b32 v114, 0\nv_mov_b32 v115, 0\ns_mov_b32 s85, 0x3f803f80\ns_mov_b32 s86, 0xffff0000")
        for u in range(9):
            e.wait(vm=("x", u))
            if u == 0:
                self.stamp(1)
                if ffn and self.p["W1LATE"] == 1:
                    self.first_loads()
            if ffn and self.p["W1LATE"] == 2 and u in (1, 3, 5, 7, 8):
                n = (1, 3, 5, 7, 8).index(u)
                self.first_loads(3 * n, 3 * n + 3)
            if not ffn and u == self.p["EXTU"]:
                self.pro_att()
            if u == 8:
                self.stamp(30)
            if ffn and self.p["W1LATE"] == 3 and u == 8:
                self.first_loads()
            if ffn and self.p["W1LATE"] == 4 and u == self.p.get("PREU", 8) and self.p["PRE"]:
                self.first_loads(0, self.p["PRE"], 0, self.p["PREL"])
            for k in range(4):
                r = 4 * u + k
                e(f"v_dot2_f32_bf16 v{112+(k&1)}, v{r}, s85, v{112+(k&1)}")
                e(f"v_lshlrev_b32 v{40+2*r}, 16, v{r}")
                e(f"v_dot2_f32_bf16 v{114+(k&1)}, v{r}, v{r}, v{114+(k&1)}")
                e(f"v_and_b32 v{41+2*r}, s86, v{r}")

    def layernorm(self):
        e = self.e
        self.stamp(14)
        e("s_nop 2\nv_add_f32 v112, v112, v113\nv_add_f32 v114, v114, v115\ns_nop 1")
        for m in ("quad_perm:[1,0,3,2]", "quad_perm:[2,3,0,1]", "row_half_mirror"):
            e(f"v_add_f32_dpp v112, v112, v112 {m} row_mask:0xf bank_mask:0xf")
            e(f"v_add_f32_dpp v114, v114, v114 {m} row_mask:0xf bank_mask:0xf\ns_nop 1")
        inv = f"{f2u(1.0/576):#x}"
        e(f"v_mul_f32 v112, {inv}, v112\nv_mul_f32 v114, {inv}, v114\nv_fma_f32 v114, -v112, v112, v114\nv_max_f32 v114, 0, v114")
        e(f"v_add_f32 v114, {f2u(1e-5):#x}, v114\nv_rsq_f32 v114, v114\ns_nop 0\nv_mul_f32 v114, {sNL2E}, v114\nv_mul_f32 v112, v112, v114")
        for u in range(9):
            for k in range(8):
                r = 40 + 8 * u + k
                e(f"v_fma_f32 v{r}, v{r}, v114, -v112")
            for k in range(4):
                e(f"v_cvt_pk_bf16_f32 v{4*u+k}, v{40+8*u+2*k}, v{41+8*u+2*k}")
            if u < 8:
                e(f"ds_write_b128 v123, v[{4*u}:{4*u+3}] offset:{8*CH*u}")
            else:
                e(f"ds_write_b128 v124, v[{4*u}:{4*u+3}] offset:{8*CH*7}")
        self.stamp(15)
        e(f"s_cmp_ge_u32 {sW}, 4\ns_cbranch_scc1 L_ATT")
        if self.p["TADDR"] in (1, 3):
            self.q_addresses()
        if self.p["TADDR"] == 1:
            self.tail_addresses()
        e("s_waitcnt lgkmcnt(0)\ns_barrier")

    def gemm(self, T, which, Tn):
        e = self.e
        vT = "v218" if which == 1 else "v219"
        sec = 256 if which == 1 else 512
        vD, SW, kstride = ("v216", SW1, 147456) if which == 1 else ("v217", SW2, 18432)

        def areg(buf, pc):
            return 160 + 20 * buf + 4 * pc

        def breg(buf, rt):
            return 200 + 8 * buf + 4 * rt

        def reads(s, pc):
            if pc < 2:
                e.lg(f"ds_read_b128 {vr(breg(s&1,pc),4)}, v220 offset:{512*pc}", ("B", s, pc))
            o = (s % 3) * 5120 + 1024 * pc
            e.lg(f"ds_read_b64_tr_b16 {vr(areg(s&1,pc),2)}, {vT} offset:{o}", ("A", s, pc))
            e.lg(f"ds_read_b64_tr_b16 {vr(areg(s&1,pc)+2,2)}, {vT} offset:{o+sec}", ("A", s, pc))

        def dma_list(s):
            sn = s + 3
            if sn < 36:
                return [(vD, SW, pc, ("d", sn, pc)) for pc in range(T)]
            if which == 1:
                return [("v217", SW2, pc, ("d2", sn - 36, pc)) for pc in range(Tn)]
            return []

        def step(s, first=False):
            dl = dma_list(s)
            if which == 1 and s == 33:
                e(f"s_mul_i32 {sK}, {sROT}, 18432")
            for gi in range(2 * T):
                pc, rt = gi >> 1, gi & 1
                mine = []
                if rt == 0:
                    mine = [d for d in dl if d[2] == pc or (pc == T - 1 and d[2] > pc)]
                e.wait(lg=[("A", s, pc), ("B", s, 0)] if gi == 0 else ([("B", s, 1)] if gi == 1 else [("A", s, pc)]))
                if mine:
                    e(f"s_add_u32 m0, {sRING}, {(s % 3)*5120 + 960*mine[0][2]}")
                acc = vr(16 * gi, 16)
                e(f"v_mfma_f32_32x32x16_bf16 {acc}, {vr(areg(s&1,pc),4)}, {vr(breg(s&1,rt),4)}, {'0' if first else acc}")
                for n, d in enumerate(mine):
                    if n:
                        e(f"s_add_u32 m0, {sRING}, {(s % 3)*5120 + 960*d[2]}\ns_nop 0")
                    e.vm(f"buffer_load_dwordx4 {d[0]}, {d[1]}, {sK} offen offset:{64*d[2]} lds", d[3])
                if rt == 1 and s + 1 < 36:
                    if pc == 0:
                        e(f"v_add_u32 v220, {sBO}, v223")
                    e.wait(vm=("d", s + 1, pc))
                    reads(s + 1, pc)
                if gi == 2 * T - 3 and s + 2 < 36:
                    self.wrap_inc(sBO, 2080, 36 * 2080)
            if s <= 32:
                self.wrap_inc(sK, kstride, 36 * kstride)
            elif which == 1:
                self.wrap_inc(sK, 18432, 36 * 18432)

        e.vmq = [("d", s, pc) for s in range(3) for pc in range(T)]
        e(f"s_mul_i32 {sBO}, {sROT}, 2080\nv_add_u32 v220, {sBO}, v223")
        self.wrap_inc(sBO, 2080, 36 * 2080)
        e.wait(vm=("d", 0, T - 1))
        e.lgq = []
        for pc in range(T):
            reads(0, pc)
        main = e.lines
        texts = []
        for s in range(36):
            e.lines = []
            step(s, first=(s == 0))
            texts.append(e.lines)
        e.lines = main
        for s in range(1, 27):
            assert texts[s] == texts[s + 6], (s, texts[s], texts[s + 6])
        tag = f"G{which}T{T}"
        e.lines += texts[0]
        e(f"s_mov_b32 {sCNT}, 0\ns_branch L_{tag}_1")
        e(".p2align 3")
        e.label(f"L_{tag}_3")
        if self.p["STAMP"] > 1:
            e(f"s_memrealtime s[88:89]\ns_memtime s[90:91]\ns_add_u32 m0, {sCNT}, {8*which+8}\ns_waitcnt lgkmcnt(0)\nv_writelane_b32 v255, s88, m0\nv_writelane_b32 v254, s90, m0")
        for s in (3, 4, 5, 6):
            e.lines += texts[s]
        e.label(f"L_{tag}_1")
        e.lines += texts[7] + texts[8]
        e(f"s_add_u32 {sCNT}, {sCNT}, 1\ns_cmp_lt_u32 {sCNT}, 6\ns_cbranch_scc1 L_{tag}_3")
        for s in (33, 34, 35):
            e.lines += texts[s]

    def silu(self, T):
        e = self.e
        for g in range(4 * T):
            b = 8 * g
            t = 160 + 8 * (g & 1)
            for k in range(8):
                e(f"v_exp_f32 v{t+k}, v{b+k}")
            pk = self.p["PKSILU"]
            for k in range(0, 8, 2 if pk else 1):
                e(f"v_pk_add_f32 v[{t+k}:{t+k+1}], v[{t+k}:{t+k+1}], 1.0 op_sel_hi:[1,0]" if pk else f"v_add_f32 v{t+k}, 1.0, v{t+k}")
            for k in range(8):
                e(f"v_rcp_f32 v{t+k}, v{t+k}")
            for k in range(0, 8, 2 if pk else 1):
                e(f"v_pk_mul_f32 v[{t+k}:{t+k+1}], v[{b+k}:{b+k+1}], v[{t+k}:{t+k+1}]" if pk else f"v_mul_f32 v{t+k}, v{b+k}, v{t+k}")
            for k in range(4):
                e(f"v_cvt_pk_bf16_f32 v{b+k}, v{t+2*k}, v{t+2*k+1}")

    def q_out(self):
        e = self.e
        c = f"{f2u(1.0 / (math.log2(math.e) * math.sqrt(18.0))):#x}"
        if self.p["TADDR"] == 2:
            self.q_addresses()
        e(f"s_mov_b32 {T3}, {c}")
        self.lds_wait(C_A, 4, "v252", "v253")
        e.nop(5)
        for r in range(128, 160):
            e(f"v_mul_f32 v{r}, {T3}, v{r}")
        for k in range(16):
            e(f"v_cvt_pk_bf16_f32 v{128+k}, v{128+2*k}, v{129+2*k}")
        for rt in range(2):
            for pp in range(8):
                e.lg(f"ds_write_b32 v{196+pp}, v{128+8*rt+pp} offset:{1536*rt}")
        e.wait_all(lg=True)
        self.arrive(C_B, "v252", "v253")

    def qaddr(self, dst, vc, cadd, vbase, t0, t1):
        e = self.e
        e(f"v_add_u32 {t0}, {cadd}, {vc}\nv_mul_u32_u24 {t1}, 3641, {t0}\nv_lshrrev_b32 {t1}, 16, {t1}")
        e(f"v_mul_u32_u24 {dst}, 18, {t1}\nv_sub_u32 {t0}, {t0}, {dst}\nv_mul_u32_u24 {dst}, 3072, {t1}\nv_lshrrev_b32 {t1}, 3, {t0}\nv_lshl_add_u32 {dst}, {t1}, 9, {dst}")
        e(f"v_and_b32 {t0}, 7, {t0}\nv_lshl_add_u32 {dst}, {t0}, 1, {dst}\nv_add_u32 {dst}, {vbase}, {dst}")

    def ffn_path(self, T1_, T2_):
        e, p = self.e, self.p
        if T1_ == 4:
            self.q_gemm()
            self.q_out()
            self.stamp(13)
        self.gemm(T1_, 1, T2_)
        self.arrive(C_XN, "v252", "v253")
        self.stamp(3)
        if p["WARMO"]:
            nsl = p["NSL"]
            rows = 18 * nsl
            e(f"s_lshl_b32 {T0}, {sW}, 6\nv_add_u32 v176, {T0}, {vL}\nv_lshrrev_b32 v177, 2, v176\nv_and_b32 v178, 3, v176\nv_mul_u32_u24 v177, 1152, v177")
            e(f"v_cmp_gt_u32 vcc, {4*rows}, v176\nv_mul_u32_u24 v178, 52, v178\nv_add_u32 v177, v177, v178\nv_mov_b32 v178, {OOB}\nv_cndmask_b32 v177, v178, v177, vcc")
            e(f"s_and_b32 {T1}, {sRB}, {32//nsl - 1}\ns_mul_i32 {T1}, {T1}, {rows*1152}\ns_mul_i32 {T0}, {sJ}, 144\ns_add_u32 {T1}, {T1}, {T0}")
            e(f"buffer_load_dword v230, v177, {SWO}, {T1} offen")
        e.nop(2)
        self.silu(T1_)
        self.stamp(4)
        self.lds_wait(C_XN, 8, "v252", "v253")
        for u in range(2 * T1_):
            pc, rt = u >> 1, u & 1
            for hf in range(2):
                e.lg(f"ds_write_b128 v221, {vr(16*u+8*hf,4)} offset:{(4*pc+2*hf)*CH + 512*rt}")
        e.wait_all(lg=True)
        self.arrive(C_H, "v252", "v253")
        self.lds_wait(C_H, 4, "v252", "v253")
        self.stamp(5)
        self.gemm(T2_, 2, 0)
        self.arrive(C_G2, "v252", "v253")
        self.stamp(6)
        if p["SENT"] and T2_ == 4:
            e(f"s_lshl_b32 {T0}, {sJ}, 13\ns_lshl_b32 {T1}, {sW}, 12\ns_add_u32 {T0}, {T0}, {T1}\ns_add_u32 {T0}, {T0}, {sAR}\ns_add_u32 {T0}, {T0}, {OM}")
            e(f"s_lshl_b32 {T1}, {sJ}, 10\ns_add_u32 {T1}, {T1}, {sAR}\ns_add_u32 {T1}, {T1}, {OX}\nv_lshlrev_b32 v168, 4, {vL}")
            e("v_mov_b32 v172, -1\nv_mov_b32 v173, -1\nv_mov_b32 v174, -1\nv_mov_b32 v175, -1")
            for q in range(4):
                e(f"buffer_store_dwordx4 v[172:175], v168, {SWS}, {T0} offen offset:{1024*q} sc1")
            e(f"buffer_store_dwordx4 v[172:175], v168, {SWS}, {T1} offen sc1")
        e.nop(2)
        for u in range(2 * T2_):
            pc, rt = u >> 1, u & 1
            b = 16 * u
            for k in range(8):
                e(f"v_cvt_pk_bf16_f32 v{b+k}, v{b+2*k}, v{b+2*k+1}")
            e(f"s_mov_b32 {T0}, {(4*pc)*8192}\ns_mov_b32 {T1}, {(4*pc+2)*8192}")
            e(f"v_permlane32_swap_b32 v{b}, v{b+2}\nv_permlane32_swap_b32 v{b+1}, v{b+3}")
            e(f"v_permlane32_swap_b32 v{b+4}, v{b+6}\nv_permlane32_swap_b32 v{b+5}, v{b+7}")
            e.vm(f"buffer_store_dwordx4 {vr(b,4)}, v222, {SWS}, {T0} offen offset:{512*rt} sc1", "pst")
            e.vm(f"buffer_store_dwordx4 {vr(b+4,4)}, v222, {SWS}, {T1} offen offset:{512*rt} sc1", "pst")
            if p["PACE"]:
                e(f"s_waitcnt vmcnt({p['PACE']})")

    def ffn(self):
        e, p = self.e, self.p
        if p["W1LATE"] == 4:
            self.first_loads(p["PRE"], 15, p["PREL"], 15)
        self.stamp(2)
        if p["PRIO_F"]:
            e(f"s_setprio {p['PRIO_F']}")
        e(f"s_cmp_ge_u32 {sW}, 2\ns_cbranch_scc1 L_FFN_L")
        self.ffn_path(5, 4)
        e("s_branch L_FFN_J")
        e.label("L_FFN_L")
        self.ffn_path(4, 5)
        e.label("L_FFN_J")
        e("s_setprio 0")
        self.stamp(7)
        self.ffn_tail()

    def partials_dyn(self):
        e, p = self.e, self.p
        for r in range(20):
            e(f"v_mov_b32 v{r}, 0")
        e(f"s_add_u32 {T3}, {sAR}, {FLAGS + F_P}\ns_mov_b32 {T4}, 0x55")
        e(f"v_and_b32 v231, 7, {vL}\nv_lshlrev_b32 v231, 3, v231\ns_mov_b32 {sSPIN}, 0")
        e.label("L_PD_POLL")
        e(f"buffer_load_dwordx2 v[252:253], v231, {SWS}, {T3} offen sc1\ns_waitcnt vmcnt(0)")
        e(f"v_xor_b32 v252, {sN0}, v252\nv_xor_b32 v253, {sN1}, v253\nv_or_b32 v252, v252, v253\nv_cmp_eq_u32 vcc, 0, v252\ns_add_u32 {sSPIN}, {sSPIN}, 1\ns_nop 1")
        e(f"s_lshr_b32 {T2}, vcc_lo, 1\ns_and_b32 {T2}, {T2}, vcc_lo\ns_cmp_ge_u32 {sSPIN}, {p['SPIN']}\ns_cselect_b32 {T2}, -1, {T2}\ns_and_b32 {T2}, {T2}, {T4}\ns_cbranch_scc1 L_PD_GO\ns_sleep 4\ns_branch L_PD_POLL")
        e.label("L_PD_GO")
        e(f"s_ff1_i32_b32 {T1}, {T2}\ns_bitset0_b32 {T2}, {T1}\ns_bitset0_b32 {T4}, {T1}\ns_lshl_b32 {T1}, {T1}, 10")
        e.vmq = []
        for a in range(5):
            e(f"s_add_u32 {T0}, {T1}, {a*16384}")
            e.vm(f"buffer_load_dwordx4 {vr(20+4*a,4)}, {'v240' if a < 4 else 'v241'}, {SWS}, {T0} offen sc1", ("pl", a))
        for a in range(5):
            e.wait(vm=("pl", a))
            e(f"v_mfma_f32_16x16x32_bf16 {vr(4*a,4)}, {vr(232 if a < 4 else 236,4)}, {vr(20+4*a,4)}, {vr(4*a,4)}")
        e(f"s_cmp_lg_u32 {T2}, 0\ns_cbranch_scc1 L_PD_GO\ns_cmp_lg_u32 {T4}, 0\ns_cbranch_scc1 L_PD_POLL")
        self.stamp(8)

    def ffn_tail(self):
        e, p = self.e, self.p
        e.vmq = ["pst"]
        if p["TADDR"] >= 2:
            self.tail_addresses()
        e(f"s_mul_i32 {T2}, {sW}, 5\ns_cmp_eq_u32 {sW}, 3\ns_cselect_b32 {T2}, 14, {T2}")
        e(f"s_mul_i32 {T3}, {T2}, 5120\ns_mul_i32 {T2}, {T2}, 36864\ns_mul_i32 {T4}, {sJ}, 144\ns_add_u32 {T2}, {T2}, {T4}")
        e("s_waitcnt vmcnt(0)")
        self.arrive(C_P, "v252", "v253", rtn=T4)
        self.get_nonce("v231", 252)
        e(f"s_cmp_lg_u32 {T4}, 3\ns_cbranch_scc1 L_NOPF")
        self.flag_set(F_P, sJ, "v231", 252)
        e.label("L_NOPF")
        self.lds_wait(C_G2, 4, "v252", "v253")
        e(f"s_lshr_b32 {sCNT}, {sW}, 1")
        e.label("L_WO_L")
        for i in range(5):
            e(f"s_add_u32 m0, {T3}, {i*1024}\ns_nop 0")
            e(f"buffer_load_dwordx4 v{225+i}, {SWO}, {T2} offen lds")
        e(f"s_add_u32 {T3}, {T3}, 5120\ns_add_u32 {T2}, {T2}, 36864\ns_add_u32 {sCNT}, {sCNT}, 1\ns_waitcnt vmcnt({p['PACE3']})\ns_cmp_lt_u32 {sCNT}, 5\ns_cbranch_scc1 L_WO_L")
        e.label("L_WO_D")
        for a in range(5):
            e.vm(f"buffer_load_dwordx4 {vr(92+4*a,4)}, {'v242' if a < 4 else 'v243'}, {SX}, 0 offen offset:{32*a}", ("xr", a))
        e.wait_all(vm=True)
        self.arrive(C_WO, "v252", "v253")
        self.partials_dyn()
        self.lds_wait(C_WO, 4, "v252", "v253")
        e(f"s_mov_b32 {T0}, {f2u(-math.log(2.0)):#x}")
        for r in range(20):
            e(f"v_mul_f32 v{r}, {T0}, v{r}")
            if p["X_BIAS"]:
                e(f"v_add_f32 v{r}, {f2u(p['X_BIAS']*1e-4):#x}, v{r}")
        for a in range(5):
            e(f"v_mfma_f32_16x16x32_bf16 {vr(4*a,4)}, {vr(232 if a < 4 else 236,4)}, {vr(92+4*a,4)}, {vr(4*a,4)}")

        sG = ("s74", "s75", "s76", "s97")
        vG = ("v225", "v226", "v227", "v228")
        for b in range(4):
            e(f"s_lshr_b32 {T0}, {sJ}, 1\ns_add_u32 {T0}, {T0}, {b+p['OROT']}\ns_and_b32 {T0}, {T0}, 3\ns_lshl_b32 {sG[b]}, {T0}, 14\ns_mul_i32 {T0}, {T0}, 23040\nv_add_u32 {vG[b]}, {T0}, v248")

        def aop(i):
            kk, t = divmod(i, 5)
            r = 92 + 4 * (i % 33)
            if kk < 16:
                va, o, sec = vG[kk >> 2], (kk & 3) * 5760 + 32 * t, 1280
            else:
                va, o, sec = "v251", (kk - 16) * 46080 + 32 * t, 5760
            e.lg(f"ds_read_b64_tr_b16 {vr(r,2)}, {va} offset:{o}", ("a", i))
            e.lg(f"ds_read_b64_tr_b16 {vr(r+2,2)}, {va} offset:{o+sec}", ("a", i))
        e.nop(4)
        for i in range(33):
            aop(i)
        e.wait_all(lg=True)
        self.stamp(9)

        def oload(kk, track=True):
            if kk < 16:
                e(f"s_add_u32 {T0}, {sG[kk >> 2]}, {(kk & 3)*4096}")
            else:
                e(f"s_mov_b32 {T0}, {(kk - 16)*4096}")
            ins = f"buffer_load_dwordx4 {vr(20+4*kk,4)}, {'v246' if kk < 16 else 'v247'}, {SWS}, {T0} offen sc1"
            e.vm(ins, ("o", kk)) if track else e(ins)

        def ocheck(kk):
            b = 20 + 4 * kk
            return [f"v_max3_u32 v252, v{b}, v{b+1}, v{b+2}", f"v_max_u32 v252, v252, v{b+3}", "v_cmp_eq_u32 vcc, -1, v252"]
        om = p["OMODE"]
        if om in (0, 4):
            self.lds_wait(C_O, 4, "v252", "v253", sleep=2)
            self.flag_wait(F_O, 32, "v241", 252)
        else:
            e(f"v_bfe_u32 v241, {vL}, 2, 3\nv_lshlrev_b32 v241, 10, v241\nv_and_b32 v252, 3, {vL}\nv_lshl_add_u32 v241, v252, 2, v241\ns_add_u32 {T2}, {sAR}, {OX + 1008}")
            self.lds_wait(C_O, 4, "v252", "v253", sleep=2)
            if om == 1:
                e(f"s_mov_b32 {sSPIN}, 0")
                e.label("L_HINT")
                e(f"buffer_load_dword v252, v241, {SWS}, {T2} offen sc1\ns_waitcnt vmcnt(0)\nv_cmp_eq_u32 vcc, -1, v252\ns_add_u32 {sSPIN}, {sSPIN}, 1\ns_nop 3")
                e(f"s_cbranch_vccz L_HINT_D\ns_cmp_lt_u32 {sSPIN}, {p['SPIN']}\ns_cbranch_scc1 L_HINT")
                e.label("L_HINT_D")
        e(f"s_mov_b32 {sSPIN}, 0")
        self.stamp(10)
        e.vmq = []
        for kk in range(18):
            oload(kk)
        e.wait(vm=("o", 0))
        e("\n".join(ocheck(0)) + "\ns_nop 4")
        for i in range(90):
            kk, t = divmod(i, 5)
            if t == 0:
                e(f"s_cbranch_vccnz L_OS_{kk}")
                e.label(f"L_OR_{kk}")
                if p["STAMP"] > 1 and kk in (0, 4, 8, 12, 16):
                    e(f"s_memrealtime s[88:89]\ns_waitcnt lgkmcnt(0)\nv_writelane_b32 v255, s88, {40 + kk // 4}\nv_writelane_b32 v254, {sSPIN}, {40 + kk // 4}")
                    e.lgq = []
            e.wait(vm=("o", kk), lg=("a", i))
            e(f"v_mfma_f32_16x16x32_bf16 {vr(4*t,4)}, {vr(92+4*(i % 33),4)}, {vr(20+4*kk,4)}, {vr(4*t,4)}")
            if i >= 1 and i - 1 + 33 < 90:
                aop(i - 1 + 33)
            if t < 3 and kk < 17:
                e.wait(vm=("o", kk + 1))
                e(ocheck(kk + 1)[t])
        main, e.lines = e.lines, []
        for kk in range(18):
            e.label(f"L_OS_{kk}")
            allk = om == 2
            for k2 in range(kk, (kk | 3) + 1 if kk < 16 and not allk else 18):
                oload(k2, track=False)
            e(f"s_add_u32 {sSPIN}, {sSPIN}, 1\ns_waitcnt vmcnt({17 - kk if allk else 0})")
            e("\n".join(ocheck(kk)) + f"\ns_cmp_ge_u32 {sSPIN}, {p['SPIN']}\ns_nop 3\ns_cbranch_scc1 L_OR_{kk}\ns_cbranch_vccz L_OR_{kk}\ns_sleep {p['OSLEEP']}\ns_branch L_OS_{kk}")
        self.stubs = e.lines
        e.lines = main
        e.nop(8)
        for t in range(5):
            e(f"v_cvt_pk_bf16_f32 v{20+2*t}, v{4*t}, v{4*t+1}\nv_cvt_pk_bf16_f32 v{21+2*t}, v{4*t+2}, v{4*t+3}")
        e("v_permlane16_swap_b32 v20, v22\nv_permlane16_swap_b32 v21, v23\nv_permlane16_swap_b32 v24, v26\nv_permlane16_swap_b32 v25, v27")
        fl = ("", " sc1", " nt", " sc0 sc1")[p["OUTF"]]
        e(f"buffer_store_dwordx4 v[20:23], v244, {SOUT}, 0 offen{fl}")
        e(f"buffer_store_dwordx4 v[24:27], v244, {SOUT}, 0 offen offset:64{fl}")
        e(f"buffer_store_dwordx2 v[28:29], v245, {SOUT}, 0 offen offset:128{fl}")
        self.stamp(11)
        e("s_branch L_FIN")
        e.lines += getattr(self, "stubs", [])

    def att_proj(self):
        e, p = self.e, self.p
        c = f"{f2u(1.0 / (math.log2(math.e) * math.sqrt(18.0))):#x}"
        e("s_waitcnt lgkmcnt(0)\ns_barrier")
        e.vmq, e.lgq = [], []
        self.stamp(2)
        e(f"s_setprio {p['PRIO_P']}")
        if p["EXTU"] < 0:
            self.pro_att()
        e(f"v_and_b32 v200, 15, {vL}\nv_lshrrev_b32 v201, 4, {vL}\nv_bfe_u32 v202, {vL}, 2, 2\nv_and_b32 v203, 3, {vL}")
        e(f"v_lshl_add_u32 v204, v201, 3, v202\nv_lshlrev_b32 v204, 4, v204\nv_lshl_add_u32 v204, v203, 3, v204")
        e(f"v_mov_b32 v205, {QE}\nv_mov_b32 v206, {KVW-16}\nv_cmp_gt_u32 vcc, 2, v203\ns_nop 1\nv_cndmask_b32 v205, v206, v205, vcc\nv_add_u32 v204, v204, v205")
        e(f"v_mul_u32_u24 v205, {CH}, v201\nv_lshl_add_u32 v205, v200, 4, v205\nv_add_u32 v206, {9*4*CH}, v205")
        e(f"s_lshl_b32 {T0}, {sA}, 8\nv_add_u32 v207, {T0}, v205\nv_add_u32 v208, {T0}, v206")
        e(f"s_cmp_lg_u32 {sA}, 0\ns_cbranch_scc1 L_TAG_D\nv_mov_b32 v246, 0\ns_mov_b32 {sSPIN}, 0")
        e.label("L_TAG_P")
        e(f"buffer_load_dwordx2 v[248:249], v246, {SDBG}, 0 offen sc1\ns_waitcnt vmcnt(0)\nv_readfirstlane_b32 {T0}, v248\ns_add_u32 {sSPIN}, {sSPIN}, 1")
        e(f"s_cmp_lg_u32 {T0}, 0\ns_cbranch_scc1 L_TAG_Q\ns_sleep 4\ns_cmp_lt_u32 {sSPIN}, {p['SPIN']}\ns_cbranch_scc1 L_TAG_P")
        e.label("L_TAG_Q")
        e(f"v_mov_b32 v246, {NONCE}\nds_write_b64 v246, v[248:249]")
        e.label("L_TAG_D")
        e.wait_all(vm=True, lg=True)
        self.arrive(C_E, "v246", "v247")
        self.lds_wait(C_E, 4, "v246", "v247")
        self.get_nonce("v246", 248)
        self.stamp(10)

        def ext_reads(kk):
            r = 8 * kk
            e.lg(f"ds_read_b64_tr_b16 {vr(r,2)}, v204 offset:{512*kk}", ("e", kk))
            e.lg(f"ds_read_b64_tr_b16 {vr(r+2,2)}, v204 offset:{512*kk+64}", ("e", kk))
            e.lg(f"ds_read_b128 {vr(r+4,4)}, {'v207' if kk < 9 else 'v208'} offset:{4*CH*(kk % 9)}", ("e", kk))
        for kk in range(5):
            ext_reads(kk)
        for kk in range(18):
            e.wait(lg=("e", kk))
            r = 8 * kk
            e(f"v_mfma_f32_16x16x32_bf16 v[144:147], {vr(r,4)}, {vr(r+4,4)}, {'0' if kk == 0 else 'v[144:147]'}")
            e(f"v_mfma_f32_16x16x32_bf16 v[148:151], {vr(r+4,4)}, {vr(r,4)}, {'0' if kk == 0 else 'v[148:151]'}")
            if kk + 5 < 18:
                ext_reads(kk + 5)
        self.arrive(C_A, "v246", "v247")
        self.arrive(C_XN, "v246", "v247")
        e(f"s_lshr_b32 {T2}, {sA}, 1\ns_lshl_b32 {T3}, {sRB}, 1\ns_add_u32 {T2}, {T2}, {T3}\ns_and_b32 {T3}, {sA}, 1")
        e(f"s_lshl_b32 {T4}, {T3}, 4\nv_add_u32 v209, {T4}, v200\nv_mov_b32 v210, {OOB}")
        e("v_cvt_pk_bf16_f32 v152, v144, v145\nv_cvt_pk_bf16_f32 v153, v146, v147\nv_cvt_pk_bf16_f32 v154, v148, v149\nv_cvt_pk_bf16_f32 v155, v150, v151")
        e(f"s_cmp_ge_u32 {sJ}, 6\ns_cbranch_scc1 L_KV_D\ns_cmp_ge_u32 {sJ}, 3\ns_cbranch_scc1 L_KV_V\ns_cmp_eq_u32 {sJ}, 2\ns_cbranch_scc1 L_KV_X")
        e(f"s_mul_i32 {T0}, {T2}, {KREC}\ns_lshl_b32 {T1}, {sJ}, 9\ns_add_u32 {T0}, {T0}, {T1}")
        e("v_lshlrev_b32 v211, 4, v209\nv_and_b32 v212, 1, v201\nv_lshl_add_u32 v211, v212, 3, v211\nv_cmp_le_u32 vcc, 2, v201\ns_nop 1\nv_cndmask_b32 v211, v210, v211, vcc")
        e(f"buffer_store_dwordx2 v[152:153], v211, {SWS}, {T0} offen sc1\ns_branch L_KV_D")
        e.label("L_KV_X")
        e(f"s_mul_i32 {T0}, {T2}, {KREC}\ns_add_u32 {T0}, {T0}, {KX}")
        e("v_lshlrev_b32 v211, 2, v209\nv_cmp_eq_u32 vcc, 3, v201\ns_nop 1\nv_cndmask_b32 v211, v210, v211, vcc")
        e(f"buffer_store_dword v153, v211, {SWS}, {T0} offen sc1\ns_branch L_KV_D")
        e.label("L_KV_V")
        e(f"s_sub_u32 {T0}, {sJ}, 3\ns_lshl_b32 {T0}, {T0}, 3\ns_min_u32 {T0}, {T0}, 10\ns_cmp_eq_u32 {sJ}, 5\ns_cselect_b32 {T1}, 14, 8")
        e(f"v_add_u32 v211, {T0}, v200\nv_lshrrev_b32 v212, 1, v201\nv_mul_u32_u24 v212, 18, v212\nv_add_u32 v211, v211, v212\nv_lshlrev_b32 v211, 4, v211")
        e(f"v_and_b32 v212, 1, v201\nv_lshl_add_u32 v211, v212, 3, v211\nv_cmp_le_u32 vcc, {T1}, v200\ns_nop 1\nv_cndmask_b32 v211, v210, v211, vcc")
        e(f"s_mul_i32 {T0}, {T2}, {KREC}\ns_mul_i32 {T1}, {T3}, 576\ns_add_u32 {T0}, {T0}, {T1}\ns_add_u32 {T0}, {T0}, {VT-128}")
        e(f"buffer_store_dwordx2 v[154:155], v211, {SWS}, {T0} offen sc1")
        e.label("L_KV_D")
        e.vmq += ["kv"]
        e(f"v_mul_f32 v144, {c}, v144\nv_mul_f32 v145, {c}, v145\nv_mul_f32 v146, {c}, v146\nv_mul_f32 v147, {c}, v147")
        e("v_cvt_pk_bf16_f32 v144, v144, v145\nv_cvt_pk_bf16_f32 v145, v146, v147")
        e(f"s_lshr_b32 {T3}, {sA}, 1\ns_mul_i32 {T3}, {T3}, 1536\ns_and_b32 {T4}, {sA}, 1\ns_lshl_b32 {T4}, {T4}, 8\ns_add_u32 {T3}, {T3}, {T4}\ns_add_u32 {T3}, {T3}, {ATT}")
        e(f"v_lshl_add_u32 v214, v200, 4, {T3}\nv_lshlrev_b32 v215, 2, v201")
        self.qaddr("v82", "v215", 64, "v214", "v212", "v213")
        self.qaddr("v83", "v215", 66, "v214", "v212", "v213")
        self.lds_wait(C_A, 4, "v246", "v247")
        e("s_mov_b32 exec_hi, 0")
        e.lg("ds_write_b32 v82, v144")
        e.lg("ds_write_b32 v83, v145")
        e("s_mov_b64 exec, -1")
        e.wait_all(vm=True)
        self.arrive(C_KV, "v246", "v247", rtn=T2)
        e(f"s_cmp_lg_u32 {T2}, 3\ns_cbranch_scc1 L_NOG1")
        self.flag_set(F_KV, sJ, "v246", 248)
        e.label("L_NOG1")
        self.stamp(3)
        e.wait_all(lg=True)
        self.arrive(C_B, "v246", "v247")
        self.stamp(4)
        for r in range(192, 210):
            e(f"v_mov_b32 v{r}, 0")
        for b in (218, 222):
            e(f"v_mov_b32 v{b+1}, 0x3f803f80\nv_mov_b32 v{b+2}, 0\nv_mov_b32 v{b+3}, 0")
        e(f"v_and_b32 v246, 31, {vL}\nv_mov_b32 v247, 0x3f803f80\nv_cmp_eq_u32 vcc, 18, v246\ns_mov_b32 s82, 0x3ffff\ns_mov_b32 s83, 0x3ffff")
        for r in range(226, 242):
            e(f"v_cndmask_b32 v{r}, 0, v247, vcc")
        e("v_mov_b32 v242, 0xdddddddd")
        d = p["KSPLIT"]
        e(f"s_mul_i32 {T2}, {sA}, {16+d}\ns_cmp_eq_u32 {sA}, 3\ns_cselect_b32 {T2}, {48+d}, {T2}\ns_cmp_ge_u32 {sA}, 2\ns_cselect_b32 {sNT}, {16-d}, {16+d}\ns_lshr_b32 {sNL}, {sNT}, 1")
        e(f"s_mul_i32 {T0}, {T2}, {KREC}\ns_mul_i32 {sKT[1]}, {sNT}, {KREC}\nv_lshl_add_u32 v243, {vL}, 4, {T0}\nv_lshl_add_u32 v244, v246, 2, {T0}")
        e(f"s_nop 0\nv_lshrrev_b32 v245, 5, {vL}\nv_mul_u32_u24 v245, 18, v245\nv_add_u32 v245, v245, v246\nv_lshl_add_u32 v245, v245, 4, {T0}")
        e(f"s_setprio {p['PRIO_A']}")
        self.zero_acc()
        self.lds_wait(C_B, 6, "v247", "v248", sleep=4)
        for i2 in range(4):
            e(f"s_add_u32 {T0}, {sA}, {1+i2}\ns_and_b32 {T0}, {T0}, 3\ns_mul_i32 {T0}, {T0}, 3072\ns_add_u32 {T0}, {T0}, {ATT}")
            e(f"v_lshl_add_u32 v{128+i2}, {vL}, 4, {T0}")
            for rt in range(2):
                e.lg(f"ds_read_b128 {vr(160+4*(2*i2+rt),4)}, v{128+i2} offset:{1536*rt}")
        e("s_mov_b32 exec_hi, 0")
        for i2 in range(4):
            for rt in range(2):
                e.lg(f"ds_read_b32 v{192+2*(2*i2+rt)}, v{128+i2} offset:{1536*rt+1024}")
        e("s_mov_b64 exec, -1")
        e.wait_all(lg=True)
        e(f"v_lshrrev_b32 v247, 3, {vL}\nv_mul_u32_u24 v247, {ASZ}, v247\nv_and_b32 v248, 7, {vL}\nv_lshl_add_u32 v247, v248, 3, v247")
        e(f"s_mul_i32 {T2}, {sA}, {8*ASZ}\ns_add_u32 {T2}, {T2}, {ARENA + FLAGS + F_KV}")
        self.flag_poll("v247", T2, 248, sleep=p["G1SLEEP"])
        self.arrive(C_G1, "v247", "v248")
        self.lds_wait(C_G1, 4, "v247", "v248")
        if p["X_SEQ"]:
            self.lds_wait((C_G2, C_H, C_XN)[p["X_SEQ"] - 1], (4, 4, 8)[p["X_SEQ"] - 1], "v247", "v248", sleep=8)
        e(f"s_setprio {p['PRIO_A']}")
        self.stamp(5)

    def zero_acc(self):
        for r in list(range(128)) + list(range(152, 160)):
            self.e(f"v_mov_b32 v{r}, 0")

    def o_addr(self, vm_, vx, vt):
        e = self.e
        e(f"v_and_b32 {vx}, 31, {vL}\nv_lshrrev_b32 {vt}, 5, {vL}\ns_lshl_b32 {T0}, {sJ}, 2\ns_add_u32 {T0}, {T0}, {sA}\ns_lshl_b32 {T0}, {T0}, 11")
        e(f"s_add_u32 {T0}, {T0}, {sAR}\ns_add_u32 {T0}, {T0}, {OM}\nv_lshl_add_u32 {vm_}, {vx}, 4, {T0}\nv_lshl_add_u32 {vm_}, {vt}, 10, {vm_}")
        e(f"s_lshl_b32 {T1}, {sJ}, 10\ns_add_u32 {T0}, {sAR}, {T1}\ns_lshl_b32 {T1}, {sA}, 2\ns_add_u32 {T0}, {T0}, {T1}\ns_add_u32 {T0}, {T0}, {OX}")
        e(f"v_lshl_add_u32 {vx}, {vx}, 4, {T0}")

    def kvload(self, buf, what, step=True):
        e = self.e
        if what == "k":
            e.vm(f"buffer_load_dwordx4 {vr(210+4*buf,4)}, v243, {SWS}, {sKT[0]} offen sc1", ("k", buf))
            e.vm(f"buffer_load_dword v{218+4*buf}, v244, {SWS}, {sKT[0]} offen offset:{KX} sc1", ("k", buf))
        else:
            e(f"s_mov_b64 exec, {sVM}")
            e.vm(f"buffer_load_dwordx4 {vr(226+8*buf,4)}, v245, {SWS}, {sKT[0]} offen offset:{VT} sc1", ("v", buf))
            e.vm(f"buffer_load_dwordx4 {vr(230+8*buf,4)}, v245, {SWS}, {sKT[0]} offen offset:{VT+576} sc1", ("v", buf))
            e("s_mov_b64 exec, -1")
            self.wrap_inc(sKT[0], KREC, sKT[1])

    def qk(self, i, buf, which, S=None):
        S = vr(128 + 16 * (i & 1), 16) if S is None else S
        if which == 0:
            self.e(f"v_mfma_f32_32x32x16_bf16 {S}, {vr(210+4*buf,4)}, {vr(160+4*i,4)}, 0")
        else:
            self.e(f"v_mfma_f32_32x32x16_bf16 {S}, {vr(218+4*buf,4)}, {vr(192+2*i,4)}, {S}")

    def pv(self, i, buf, s):
        self.e(f"v_smfmac_f32_32x32x32_bf16 {vr(16*i,16)}, {vr(226+8*buf+4*s,4)}, {vr(128+16*(i & 1)+8*s,8)}, v242")

    def att_tile(self, buf, first=False, last=False, sig=False):
        e = self.e

        def send(i):
            for hf in range(2):
                e.lg(f"ds_write_b128 v{246+(i >> 1)}, {vr(16*i+4*hf,4)} offset:{(i & 1)*OSL + 1024*hf}")
        for i in range(8):
            S = 128 + 16 * (i & 1)

            pat = self.p["EXPAT"]
            c1, c2 = ((5, 8), (5, 8), (6, 10), (5, 9))[pat]

            def ex(a, b):
                for k in range(a, b):
                    wide = pat in (1, 3) and (b - a) % 2 == 1 and k == a
                    e(f"v_exp_f32{'_e64' if wide else ''} v{S+k}, v{S+k}")
            ex(0, 2)
            if i > 0:
                self.pv(i - 1, buf, 1)
            else:
                self.pv(7, buf ^ 1, 1)
            if i == 0 and not last:
                self.kvload(buf ^ 1, "v")
                if sig:
                    e(f"s_cmp_lg_u32 {sCNT}, 1\ns_cbranch_scc1 L_NOSIG")
                    self.arrive(C_L, "v246", "v247")
                    e.label("L_NOSIG")
            ex(2, c1)
            nxt = (i + 1, buf) if i < 7 else (0, buf ^ 1)
            do_qk = not (last and i == 7)
            if i == 7 and do_qk:
                e.wait(vm=("k", buf ^ 1))
            if do_qk:
                self.qk(nxt[0], nxt[1], 0)
            ex(c1, c2)
            if do_qk:
                self.qk(nxt[0], nxt[1], 1)
            if i == 7 and not last:
                self.kvload(buf, "k")
            c3 = max(12, c2 + 3) if pat != 2 else 14
            ex(c2, c3)
            if i == 0:
                e.wait(vm=("v", buf))
            self.pv(i, buf, 0)
            ex(c3, 14)
            if last and 1 <= i <= 6:
                send(i - 1)
            ex(14, 16)

    def attention(self):
        e, p = self.e, self.p
        e.label("L_ATT")
        self.att_proj()
        e.label("L_PASS")
        b0 = p["KSPLIT"] & 1
        e(f"s_and_b32 {sTI}, {sRB}, {15*p['KROT']}\ns_cmp_ge_u32 {sTI}, {sNT}\ns_cselect_b32 {sTI}, 0, {sTI}\ns_mul_i32 {sKT[0]}, {sTI}, {KREC}")
        e.vmq = []
        self.kvload(b0, "k")
        self.kvload(b0, "v")
        self.kvload(b0 ^ 1, "k")
        e.wait(vm=("k", b0))
        self.qk(0, b0, 0)
        self.qk(0, b0, 1)
        e(f"s_mov_b32 {sCNT}, {sNL}")
        e.nop(11)
        if not b0:
            e("s_branch L_AT_MID")
            e.vmq = [("v", 1), ("v", 1), ("k", 0), ("k", 0)]
        e(".p2align 3")
        e.label("L_AT_LOOP")
        if p["STAMP"]:
            e(f"s_sub_u32 m0, 25, {sCNT}")
            self.stamp("m0")
        q0 = list(e.vmq)
        self.att_tile(1)
        e.label("L_AT_MID")
        self.att_tile(0, sig=True)
        assert q0 == e.vmq, (q0, e.vmq)
        e(f"s_sub_u32 {sCNT}, {sCNT}, 1\ns_cmp_lg_u32 {sCNT}, 0\ns_cbranch_scc1 L_AT_LOOP")
        self.stamp(6)
        self.lds_wait(C_P if p["SENT"] else C_G2, 4, "v246", "v247")
        for i2 in range(3):
            e(f"s_add_u32 {T0}, {sA}, {1+i2}\ns_and_b32 {T0}, {T0}, 3\ns_mul_i32 {T0}, {T0}, {6*OSL}\ns_add_u32 {T0}, {T0}, {OXA + 2*i2*OSL}")
            e(f"v_lshl_add_u32 v{246+i2}, {vL}, 4, {T0}")
        self.att_tile(1, last=True)
        e.nop(2)
        self.pv(7, 1, 1)
        e("s_mov_b32 exec_hi, 0")
        for i in range(6):
            e.lg(f"ds_write_b128 v{246+(i >> 1)}, {vr(16*i+8,4)} offset:{(i & 1)*OSL + 2048}")
        e("s_mov_b64 exec, -1")
        e("v_add_f32 v128, v10, v26\nv_add_f32 v129, v42, v58\nv_add_f32 v130, v74, v90\nv_min3_f32 v131, v10, v26, v42\nv_min3_f32 v132, v58, v74, v90")
        e("v_add_f32 v128, v128, v129\nv_add_f32 v130, v130, v106\nv_min3_f32 v131, v131, v132, v106\nv_add_f32 v128, v128, v130")
        e("v_add_f32 v128, v128, v122\nv_min_f32 v131, v131, v122")
        e(f"v_cmp_nge_f32 vcc, {f2u(2.0**40):#x}, v128\nv_mov_b32 v129, {f2u(2.0**-64):#x}\ns_mov_b32 {T2}, vcc_lo\nv_cmp_nge_f32 vcc, v131, v129\ns_nop 1\ns_or_b32 {T2}, {T2}, vcc_lo")
        if p["FORCE_FB"]:
            e(f"s_mov_b32 {T2}, 1")
        e(f"s_cmp_lg_u32 {T2}, 0\ns_cselect_b32 {T2}, 0x10001, 1")
        e.wait_all(lg=True)
        self.arrive(C_R, "v128", "v129", val=T2)
        e(f"s_mul_i32 {T0}, {sA}, {6*OSL}\ns_add_u32 {T0}, {T0}, {OXA}\nv_lshl_add_u32 v246, {vL}, 4, {T0}")
        self.o_addr("v249", "v247", "v248")
        e(f"s_lshl_b32 {T3}, {sPASS}, 2\ns_add_u32 {T3}, {T3}, 4")
        self.lds_wait(C_R, T3, "v128", "v129", mask="0xffff", out=T2)
        self.stamp(7)
        e(f"s_cmp_lg_u32 {sPASS}, 0\ns_cbranch_scc1 L_SAFE\ns_cmp_ge_u32 {T2}, 0x10000\ns_cbranch_scc1 L_FALLBACK")
        e.label("L_SAFE")
        for tt in range(2):
            for i in range(3):
                for q in range(3):
                    e.lg(f"ds_read_b128 {vr(12*(3*tt+i)+4*q,4)}, v246 offset:{(2*i+tt)*OSL + 1024*q}", ("r", tt, i))
        for tt in range(2):
            O = 96 + 16 * tt
            for i in range(3):
                e.wait(lg=("r", tt, i))
                for k in (10, 0, 1, 2, 3, 4, 5, 6, 7, 8, 9):
                    e(f"v_add_f32 v{O+k}, v{O+k}, v{12*(3*tt+i)+k}")
            e(f"v_mov_b32 v128, v{O+10}\nv_mov_b32 v129, v{O+10}\ns_nop 1\nv_permlane32_swap_b32 v128, v129\ns_nop 1\nv_mul_f32 v128, {sNL2E}, v128\nv_rcp_f32 v128, v128\ns_nop 0")
            for k in range(10):
                e(f"v_mul_f32 v{O+k}, v{O+k}, v128")
            for k in range(5):
                e(f"v_cvt_pk_bf16_f32 v{132+8*tt+k}, v{O+2*k}, v{O+2*k+1}")
            if p["SENT"]:
                for k in range(5):
                    e(f"v_min_u32 v{132+8*tt+k}, -2, v{132+8*tt+k}")
            e.vm(f"buffer_store_dwordx4 {vr(132+8*tt,4)}, v249, {SWS}, 0 offen offset:{512*tt} sc1")
            e("s_mov_b32 exec_hi, 0")
            e.vm(f"buffer_store_dword v{136+8*tt}, v247, {SWS}, 0 offen offset:{512*tt} sc1")
            e("s_mov_b64 exec, -1")
        self.stamp(8)
        if p["OMODE"] == 0:
            e.wait_all(vm=True)
        if p["OMODE"] in (0, 4):
            e(f"s_lshl_b32 {T2}, {sJ}, 2\ns_add_u32 {T2}, {T2}, {sA}")
            self.flag_set(F_O, T2, "v128", 130)
        self.arrive(C_O, "v128", "v129")
        self.stamp(9)
        e("s_branch L_FIN")
        self.fallback()

    def fallback(self):
        e = self.e
        e.label("L_FALLBACK")
        e(f"s_mov_b32 {sPASS}, 1\ns_mov_b32 {sKT[0]}, 0\ns_mov_b32 {sCNT}, 0")
        for i in range(8):
            e(f"v_mov_b32 v{i}, 0xff800000")
        e.label("L_FB_LOOP")
        self.kvload(0, "k")
        e(f"s_add_u32 {sKT[0]}, {sKT[0]}, {KREC}")
        e.wait_all(vm=True)
        for i in range(8):
            self.qk(i, 0, 0, S="v[128:143]")
            self.qk(i, 0, 1, S="v[128:143]")
            e.nop(12)
            for k in range(8):
                e(f"v_max3_f32 v{i}, v{i}, v{128+2*k}, v{129+2*k}")
        e(f"s_add_u32 {sCNT}, {sCNT}, 1\ns_cmp_lt_u32 {sCNT}, {sNT}\ns_cbranch_scc1 L_FB_LOOP")
        e(f"v_and_b32 v247, 31, {vL}")
        for i in range(8):
            e(f"v_mov_b32 v8, v{i}\ns_nop 1\nv_permlane32_swap_b32 v{i}, v8\ns_nop 1\nv_max_f32 v{i}, v{i}, v8")
            e(f"s_lshl_b32 {T0}, {sA}, 1\ns_add_u32 {T0}, {T0}, {2+i}\ns_and_b32 {T0}, {T0}, 7\ns_lshl_b32 {T0}, {T0}, 7\ns_add_u32 {T0}, {T0}, {MX}")
            e(f"v_lshl_add_u32 v{16+i}, v247, 2, {T0}\ns_lshl_b32 {T1}, {sA}, 10\nv_add_u32 v9, {T1}, v{16+i}")
            e(f"ds_write_b32 v9, v{i}")
        e.wait_all(lg=True)
        self.arrive(C_M, "v128", "v129")
        self.lds_wait(C_M, 4, "v128", "v129")
        e("s_mov_b32 exec_hi, 0")
        for i in range(8):
            for a in range(4):
                e(f"ds_read_b32 v{8+a}, v{16+i} offset:{1024*a}")
            e.wait_all(lg=True)
            e("v_max3_f32 v8, v8, v9, v10\nv_max_f32 v8, v8, v11\nv_cvt_pk_bf16_f32 v9, v8, v8\nv_and_b32 v9, 0xffff0000, v9\nv_sub_f32 v10, v8, v9")
            e(f"v_cvt_pk_bf16_f32 v{193+2*i}, -v9, -v10")
        e("s_mov_b64 exec, -1")
        self.zero_acc()
        e("s_branch L_PASS")

    def build(self):
        e, p = self.e, self.p
        self.prologue()
        self.ffn()
        self.attention()
        e.label("L_FIN")
        if p["STAMP"]:
            e("s_waitcnt vmcnt(0)")
            self.stamp(12)
            e(f"s_lshl_b32 {T0}, s2, 3\ns_add_u32 {T0}, {T0}, {sW}\ns_lshl_b32 {T0}, {T0}, 8\ns_add_u32 {T0}, {T0}, {STAMPS}\nv_lshlrev_b32 v0, 2, {vL}")
            e(f"buffer_store_dword v255, v0, {SWS}, {T0} offen\ns_add_u32 {T0}, {T0}, 0x80000\nbuffer_store_dword v254, v0, {SWS}, {T0} offen")
            e(f"s_cmp_lg_u32 s2, 100\ns_cbranch_scc1 L_END\ns_cmp_lg_u32 {sW}, 0\ns_cbranch_scc1 L_END")
            e(f"v_readlane_b32 {T0}, v255, 0\ns_nop 1\nv_subrev_u32 v1, {T0}, v255\ns_mov_b64 exec, 0x1ffe\nbuffer_store_dword v1, v0, {SDBG}, 0 offen")
        e.label("L_END")
        e("s_endpgm")
        probs = check_hazards(e.lines)
        head = open("cdna_kernels/" + NAME + ".s.ref").read().split("\n")
        hdr = [l for l in head if l.startswith(";") and "@launch" not in l and "Override" not in l and "grid=ceil" not in l]
        txt = "\n".join(hdr) + f"""
; One persistent workgroup per CU: 64 rows x (576 FFN columns, 4 heads, 72 output columns).
; Waves 0-3: GEMM1 -> SiLU -> GEMM2 -> partial sums -> output projection; waves 4-7: Q/K/V projection, attention.
; @launch grid=(256,1,1) block=(512,1,1) lds={LDS_BYTES}
.amdgcn_target "amdgcn-amd-amdhsa--gfx950"
.text
.globl {NAME}_kernel
.p2align 8
.type {NAME}_kernel,@function
{NAME}_kernel:
{e.text()}
.section .rodata,"a"
.p2align 6
.amdhsa_kernel {NAME}_kernel
  .amdhsa_next_free_vgpr 256
  .amdhsa_next_free_sgpr 102
  .amdhsa_accum_offset 256
  .amdhsa_group_segment_fixed_size 0
  .amdhsa_kernarg_size 88
  .amdhsa_user_sgpr_count 2
  .amdhsa_user_sgpr_kernarg_segment_ptr 1
  .amdhsa_system_sgpr_workgroup_id_x 1
.end_amdhsa_kernel
"""
        return txt, probs


if __name__ == "__main__":
    out = sys.argv[1]
    kw = {}
    for a in sys.argv[2:]:
        k, v = a.split("=")
        kw[k] = int(v, 0)
    txt, probs = G(**kw).build()
    for x in probs[:40]:
        print("HAZARD", x)
    open(out, "w").write(txt)
    print("wrote", out, len(txt), "bytes;", len(probs), "hazards")
```

```python
import sys, math, struct
from emit import E, check_hazards

NAME = "parallel_sum__grouped_kv_mqa__dense_activation_silu__prompt"

DEF = dict(NSL=2, STAMP=0, PRIO_F=1, PRIO_A=0, ROT=1, KROT=1, CODEPF=1, PRIO_P=2, WARMQ=0, TLBW=0, OUTF=2, KSPLIT=1, W1LATE=4, PRE=5, PREU=0, ROTG=0, EXPAT=0, SENT=1, OMODE=2, OROT=1, OSLEEP=0, TADDR=2, PRIO_T=1, TRIM=1, TLBU=-1, GATE=0, AHI=0, ALO=0, X_SEQ=0, X_BIAS=0, EXTU=8, PREL=5, QROT=1, KVEARLY=0, KVU=0, PKLN=0, XBAR=1, PACE2=2, PACE3=2, DYNP=1, WARMO=1, PKSILU=1, PACE=4, DEFER=0, G1SLEEP=16, SPIN=1 << 16, FORCE_FB=0)

KREC = 2304
KM, KX, VT = 0, 1024, 1152
ARENA, ASZ = 0x40000, 0xb0000
PART, OM, OX, FLAGS = 0, 589824, 655360, 663552
STAMPS = 0x1710000
WS_BYTES = 0x1820000
CH = 1040
RING, RSZ = 72 * CH, 15360
ATT = RING + 4 * RSZ
QE, KVW = ATT, ATT + 9216 + 64
QRSZ = 6144
OXA, OSL = 92160, 2560
MX = 153600
QX, SYNC = 162560, 163584
LDS_BYTES = 163840
C_A, C_KV, C_B, C_XN, C_H, C_G2, C_P, C_WO, C_R, C_O, C_G1, C_M, C_E, C_Q, C_L = range(15)
SX, SW1, SW2, SWQ, SKV, SWO, SWS, SDBG, SOUT = (f"s[{b}:{b+3}]" for b in range(28, 64, 4))
sRB, sJ, sW, sA = "s64", "s65", "s66", "s67"
sRING, sK, sCNT, sNL2E, sSPIN, sPASS = "s68", "s69", "s70", "s71", "s72", "s73"
sKT = ("s74", "s75", "s76")
T0, T1, T2, T3, T4 = "s77", "s78", "s79", "s80", "s81"
sVM = "s[82:83]"
sIDX = "s84"
sROT, sBO, sTI, sAR = "s92", "s93", "s94", "s95"
sKQ, sN0, sN1, sNT, sNL = "s96", "s98", "s99", "s100", "s101"
F_P, F_KV, F_O = 0, 128, 256
NONCE = SYNC + 128
vL = "v250"
OOB = 0x40000000


def f2u(x):
    return struct.unpack("<I", struct.pack("<f", x))[0]


def vr(b, n=1):
    return f"v{b}" if n == 1 else f"v[{b}:{b+n-1}]"


class G:
    def __init__(self, **kw):
        self.p = dict(DEF)
        self.p.update(kw)
        self.e = E()
        self.nstamp = 0

    def stamp(self, i):
        if not self.p["STAMP"]:
            return
        e = self.e
        e("s_waitcnt lgkmcnt(0)")
        e.lgq = []
        e("s_memrealtime s[88:89]\ns_memtime s[90:91]")
        e("s_waitcnt lgkmcnt(0)")
        e(f"v_writelane_b32 v255, s88, {i}\nv_writelane_b32 v254, s90, {i}")

    def srd(self, srd, lo, nbytes):
        b = int(srd[2:srd.index(":")])
        self.e(f"s_mov_b32 s{b}, s{lo}\ns_mov_b32 s{b+1}, s{lo+1}\ns_mov_b32 s{b+2}, {nbytes}\ns_mov_b32 s{b+3}, 0x20000")

    def arrive(self, word, va, vb, rtn=None, val="1"):
        e = self.e
        e(f"v_mov_b32 {va}, {SYNC}\nv_mov_b32 {vb}, {val}\ns_mov_b64 exec, 1")
        if rtn is None:
            e.lg(f"ds_add_u32 {va}, {vb} offset:{4*word}")
            e("s_mov_b64 exec, -1")
        else:
            e(f"ds_add_rtn_u32 {vb}, {va}, {vb} offset:{4*word}")
            e.wait_all(lg=True)
            e(f"v_readfirstlane_b32 {rtn}, {vb}\ns_mov_b64 exec, -1\ns_nop 0")

    def lds_wait(self, word, target, va, vb, mask=None, out=None, sleep=1):
        e = self.e
        L, D = e.new("LW"), e.new("LWD")
        out = out or T0
        e(f"v_mov_b32 {va}, {SYNC}\ns_mov_b32 {sSPIN}, 0")
        e.label(L)
        e(f"ds_read_b32 {vb}, {va} offset:{4*word}")
        e.wait_all(lg=True)
        e(f"v_readfirstlane_b32 {out}, {vb}\ns_add_u32 {sSPIN}, {sSPIN}, 1")
        if mask is not None:
            e(f"s_and_b32 {T1}, {out}, {mask}\ns_cmp_ge_u32 {T1}, {target}")
        else:
            e(f"s_cmp_ge_u32 {out}, {target}")
        e(f"s_cbranch_scc1 {D}\ns_sleep {sleep}\ns_cmp_lt_u32 {sSPIN}, {self.p['SPIN']}\ns_cbranch_scc1 {L}")
        e.label(D)

    def flag_poll(self, va, soff, vb, sleep=2):
        e = self.e
        L, D = e.new("FW"), e.new("FWD")
        e(f"s_mov_b32 {sSPIN}, 0")
        e.label(L)
        e(f"buffer_load_dwordx2 v[{vb}:{vb+1}], {va}, {SWS}, {soff} offen sc1")
        e.wait_all(vm=True)
        e(f"v_xor_b32 v{vb}, {sN0}, v{vb}\nv_xor_b32 v{vb+1}, {sN1}, v{vb+1}\nv_or_b32 v{vb}, v{vb}, v{vb+1}")
        e(f"v_cmp_ne_u32 vcc, 0, v{vb}\ns_add_u32 {sSPIN}, {sSPIN}, 1\ns_nop 3")
        e(f"s_cbranch_vccz {D}\ns_sleep {sleep}\ns_cmp_lt_u32 {sSPIN}, {self.p['SPIN']}\ns_cbranch_scc1 {L}")
        e.label(D)

    def flag_wait(self, group, n, va, vb):
        e = self.e
        e(f"v_and_b32 {va}, {n-1}, {vL}\nv_lshlrev_b32 {va}, 3, {va}\ns_add_u32 {T0}, {sAR}, {FLAGS + group}")
        self.flag_poll(va, T0, vb)

    def flag_set(self, group, sidx, va, vb):
        e = self.e
        e(f"s_lshl_b32 {T1}, {sidx}, 3\ns_add_u32 {T0}, {sAR}, {T1}\ns_add_u32 {T0}, {T0}, {FLAGS + group}")
        e(f"v_mov_b32 {va}, 0\nv_mov_b32 v{vb}, {sN0}\nv_mov_b32 v{vb+1}, {sN1}\ns_mov_b64 exec, 1")
        e.vm(f"buffer_store_dwordx2 v[{vb}:{vb+1}], {va}, {SWS}, {T0} offen sc1")
        e("s_mov_b64 exec, -1")

    def get_nonce(self, va, vb):
        e = self.e
        e(f"v_mov_b32 {va}, {NONCE}\nds_read_b64 v[{vb}:{vb+1}], {va}")
        e.wait_all(lg=True)
        e(f"v_readfirstlane_b32 {sN0}, v{vb}\nv_readfirstlane_b32 {sN1}, v{vb+1}\ns_nop 1")

    def prologue(self):
        e, p = self.e, self.p
        nsl = p["NSL"]
        e("s_cmp_ge_u32 s2, 256\ns_cbranch_scc1 L_END")
        e("s_load_dwordx16 s[4:19], s[0:1], 0\ns_load_dwordx4 s[20:23], s[0:1], 64\ns_load_dwordx2 s[24:25], s[0:1], 80")
        if p["STAMP"]:
            e("s_memrealtime s[88:89]\ns_memtime s[90:91]\nv_mov_b32 v255, 0\nv_mov_b32 v254, 0")
        e(f"v_and_b32 {vL}, 63, v0\nv_lshrrev_b32 v1, 6, v0")
        lg = nsl.bit_length() - 1
        e(f"s_and_b32 {T0}, s2, 7\ns_lshr_b32 {sIDX}, s2, 3")
        e(f"s_and_b32 {sJ}, {T0}, {8//nsl - 1}\ns_lshl_b32 {sJ}, {sJ}, {lg}\ns_and_b32 {T1}, {sIDX}, {nsl-1}\ns_add_u32 {sJ}, {sJ}, {T1}")
        e(f"s_lshr_b32 {sRB}, {T0}, {3-lg}\ns_lshl_b32 {sRB}, {sRB}, {5-lg}\ns_lshr_b32 {T1}, {sIDX}, {lg}\ns_add_u32 {sRB}, {sRB}, {T1}")
        e(f"v_readfirstlane_b32 {sW}, v1\ns_mul_i32 {sAR}, {sRB}, {ASZ}\ns_add_u32 {sAR}, {sAR}, {ARENA}")
        e(f"v_lshrrev_b32 v120, 3, v0\nv_and_b32 v121, 7, v0\ns_lshl_b32 {T0}, {sRB}, 6")
        e(f"v_add_u32 v122, {T0}, v120\nv_mul_u32_u24 v122, 1152, v122\nv_lshl_add_u32 v122, v121, 4, v122")
        e(f"v_mul_u32_u24 v123, {CH}, v121\nv_lshl_add_u32 v123, v120, 4, v123\nv_add_u32 v124, {8*CH}, v123")
        e(f"s_and_b32 {sA}, {sW}, 3\nv_mov_b32 v216, 0\nv_mov_b32 v217, 0\nv_mov_b32 v222, 0\nv_mov_b32 v224, 0")
        for r in list(range(212, 216)) + list(range(225, 230)) + list(range(240, 248)):
            e(f"v_mov_b32 v{r}, 0")
        e("s_waitcnt lgkmcnt(0)")
        if p["STAMP"]:
            e("v_writelane_b32 v255, s88, 0\nv_writelane_b32 v254, s90, 0")
        self.srd(SX, 4, 2359296)
        for u in range(9):
            e.vm(f"buffer_load_dwordx4 v[{4*u}:{4*u+3}], v122, {SX}, 0 offen offset:{128*u}", ("x", u))
        if p["XBAR"]:
            e("s_barrier")
        self.srd(SW1, 16, 5308416)
        self.srd(SW2, 18, 5308416)
        self.srd(SWQ, 6, 663552)
        self.srd(SWO, 12, 663552)
        self.srd(SWS, 24, WS_BYTES)
        self.srd(SDBG, 22, 256)
        self.srd(SOUT, 20, 2359296)
        e(f"s_cmp_ge_u32 {sJ}, 3\ns_cselect_b32 s44, s10, s8\ns_cselect_b32 s45, s11, s9\ns_mov_b32 s46, 20736\ns_mov_b32 s47, 0x20000")
        e(f"s_mov_b32 {sNL2E}, {f2u(-math.log2(math.e)):#x}\ns_mov_b32 {sPASS}, 0")
        e(f"s_cmp_ge_u32 {sW}, 4\ns_cbranch_scc1 L_PRO_A")
        q0 = list(e.vmq)
        self.pro_ffn()
        if p["TADDR"] == 0:
            self.q_addresses()
            self.tail_addresses()
        self.ln_stats(ffn=True)
        e("s_branch L_PRO_J")
        e.vmq = list(q0)
        e.label("L_PRO_A")
        if p["CODEPF"]:
            e(f"s_getpc_b64 s[86:87]")
            e.label("L_PC")
            e(f"s_and_b32 {T0}, {sIDX}, 3\ns_lshl_b32 {T0}, {T0}, 2\ns_add_u32 {T0}, {T0}, {sA}\ns_lshl_b32 {T0}, {T0}, 12")
            e(f"v_lshl_add_u32 v126, {vL}, 6, {T0}\nv_min_u32 v126, L_END-L_PC, v126\nv_mov_b32 v127, s87")
            e("v_add_co_u32 v126, vcc, s86, v126\ns_nop 1\nv_addc_co_u32 v127, vcc, 0, v127, vcc")
            e.vm("global_load_dword v251, v[126:127], off")
        self.ln_stats()
        e(f"s_or_b32 {T0}, s2, {sA}\ns_cmp_lg_u32 {T0}, 0\ns_cbranch_scc1 L_NOTAG\ns_memrealtime s[86:87]\ns_waitcnt lgkmcnt(0)\ns_or_b32 s86, s86, 1")
        e(f"v_mov_b32 v126, s86\nv_mov_b32 v127, s87\nv_mov_b32 v128, 0\ns_mov_b64 exec, 1\nbuffer_store_dwordx2 v[126:127], v128, {SDBG}, 0 offen sc1\ns_mov_b64 exec, -1")
        e.label("L_NOTAG")
        e(f"v_lshlrev_b32 v127, 2, {vL}\nv_add_u32 v127, {SYNC}, v127\nv_mov_b32 v128, 0\nds_write_b32 v127, v128")
        e.label("L_PRO_J")
        self.layernorm()

    def wrap_inc(self, reg, inc, mod):
        self.e(f"s_add_u32 {reg}, {reg}, {inc}\ns_cmp_eq_u32 {reg}, {mod}\ns_cselect_b32 {reg}, 0, {reg}")

    def pro_ffn(self):
        e = self.e
        e(f"s_mul_i32 {T2}, {sW}, 5\ns_lshl_b32 {T3}, {sW}, 2\ns_cmp_eq_u32 {sW}, 3\ns_cselect_b32 {T2}, 14, {T2}\ns_cselect_b32 {T3}, 13, {T3}")
        e(f"s_mul_i32 {sRING}, {sW}, {RSZ}\ns_add_u32 {sRING}, {sRING}, {RING}")
        e(f"v_lshrrev_b32 v125, 2, {vL}\nv_and_b32 v126, 3, {vL}")
        e(f"s_mul_i32 {T0}, {sJ}, 1152\ns_lshl_b32 {T1}, {T2}, 6\ns_add_u32 {T0}, {T0}, {T1}")
        e(f"v_mul_u32_u24 v216, 9216, v125\nv_lshl_add_u32 v216, v126, 4, v216\nv_add_u32 v216, {T0}, v216")
        nsl = self.p["NSL"]
        e(f"s_and_b32 {sROT}, {sRB}, {32//nsl - 1}\ns_mul_i32 {sROT}, {sROT}, {36*nsl*self.p['ROT']}\ns_lshr_b32 {sROT}, {sROT}, 5")
        G_ = self.p["ROTG"]
        if G_:
            e(f"s_and_b32 {sROT}, {sRB}, {32//nsl - 1}\ns_mul_i32 {sROT}, {sROT}, {G_*nsl}\ns_lshr_b32 {sROT}, {sROT}, 5\ns_mul_i32 {sROT}, {sROT}, {36//G_}")
        e(f"s_mul_i32 {sK}, {sROT}, 147456")
        e(f"s_mul_i32 {T0}, {sJ}, 144\ns_lshl_b32 {T1}, {sW}, 6\ns_add_u32 {T0}, {T0}, {T1}\ns_sub_u32 {T0}, {T0}, 128")
        e(f"v_mul_u32_u24 v224, 1152, v125\nv_lshl_add_u32 v224, v126, 4, v224\nv_add_u32 v224, {T0}, v224\ns_mul_i32 {sKQ}, {sROT}, {18432*self.p['QROT']}")
        if not self.p["W1LATE"]:
            self.first_loads()
        e(f"s_mul_i32 {T0}, {sJ}, 663552\ns_lshl_b32 {T1}, {T3}, 6\ns_add_u32 {T0}, {T0}, {T1}")
        e(f"v_mul_u32_u24 v217, 1152, v125\nv_lshl_add_u32 v217, v126, 4, v217\nv_add_u32 v217, {T0}, v217")
        e(f"v_lshrrev_b32 v127, 5, {vL}\nv_bfe_u32 v128, {vL}, 2, 2\nv_bfe_u32 v129, {vL}, 4, 1")
        e(f"v_lshlrev_b32 v129, 5, v129\nv_lshl_add_u32 v129, v126, 3, v129\nv_lshl_add_u32 v129, v128, 6, v129\nv_add_u32 v129, {sRING}, v129")
        e("v_lshl_add_u32 v218, v127, 9, v129\nv_lshl_add_u32 v219, v127, 8, v129")
        e(f"v_and_b32 v128, 31, {vL}\nv_lshlrev_b32 v128, 4, v128\nv_mul_u32_u24 v223, {CH}, v127\nv_add_u32 v223, v223, v128")
        e(f"s_mul_i32 {T0}, {T2}, {4*CH}\nv_add_u32 v221, {T0}, v223")
        e(f"s_lshl_b32 {T0}, {T3}, 15\ns_lshl_b32 {T1}, {sJ}, 10\ns_add_u32 {T0}, {T0}, {T1}\ns_add_u32 {T0}, {T0}, {sAR}")
        e(f"v_lshl_add_u32 v222, v127, 13, v128\nv_add_u32 v222, {T0}, v222")

    def q_addresses(self):
        e = self.e
        e(f"s_lshl_b32 {T2}, {sW}, 5\ns_sub_u32 {T2}, {T2}, 64\nv_lshrrev_b32 v170, 5, {vL}\nv_lshl_add_u32 v170, v170, 2, {T2}")
        e(f"v_and_b32 v171, 31, {vL}\nv_lshlrev_b32 v171, 4, v171\nv_add_u32 v171, {ATT}, v171")
        for pp in range(8):
            self.qaddr(f"v{196+pp}", "v170", 8 * (pp >> 1) + 2 * (pp & 1), "v171", "v172", "v173")

    def wo_addresses(self, base):
        e = self.e
        for i in range(5):
            e(f"v_add_u32 v160, {64*i}, {vL}\nv_mul_u32_u24 v161, 6554, v160\nv_lshrrev_b32 v161, 16, v161")
            e(f"v_mul_u32_u24 v162, 10, v161\nv_sub_u32 v162, v160, v162\nv_mul_u32_u24 v161, 1152, v161\nv_lshl_add_u32 v{base+i}, v162, 4, v161")

    def tail_addresses(self, wo=True):
        e = self.e
        if wo:
            self.wo_addresses(225)
        e(f"v_and_b32 v160, 15, {vL}\nv_lshrrev_b32 v161, 4, {vL}\ns_lshl_b32 {T0}, {sW}, 4\nv_add_u32 v162, {T0}, v160")
        e(f"v_and_b32 v163, 1, v161\nv_lshrrev_b32 v164, 1, v161")
        e(f"s_mul_i32 {T1}, {sJ}, 73728\ns_add_u32 {T0}, {sAR}, {T1}")
        e(f"v_lshl_add_u32 v165, v162, 4, {T0}\nv_lshl_add_u32 v240, v163, 13, v165\nv_lshl_add_u32 v240, v164, 10, v240\nv_lshl_add_u32 v241, v161, 10, v165")
        e(f"s_lshl_b32 {T0}, {sRB}, 6\nv_add_u32 v165, {T0}, v162\nv_mul_u32_u24 v165, 1152, v165\ns_mul_i32 {T0}, {sJ}, 144\nv_add_u32 v165, {T0}, v165")
        e(f"v_lshl_add_u32 v242, v161, 4, v165\nv_mov_b32 v166, {OOB}\nv_cmp_gt_u32 vcc, 2, v161\ns_nop 1\nv_cndmask_b32 v242, v166, v242, vcc")
        e(f"v_cmp_eq_u32 vcc, 0, v161\ns_nop 1\nv_cndmask_b32 v243, v166, v165, vcc")
        e(f"v_lshl_add_u32 v244, v163, 5, v165\nv_lshl_add_u32 v244, v164, 4, v244")
        e(f"v_lshl_add_u32 v245, v161, 3, v165\nv_cmp_gt_u32 vcc, 2, v161\ns_nop 1\nv_cndmask_b32 v245, v166, v245, vcc")
        e("v_lshlrev_b32 v166, 3, v163\nv_sub_u32 v166, v160, v166\nv_mov_b32 v167, 0x3f80\nv_mov_b32 v168, 0x3f800000")
        for base, src in ((232, "v166"), (236, "v160")):
            for r in range(4):
                e(f"v_cmp_eq_u32 vcc, {2*r}, {src}\nv_cmp_eq_u32 s[86:87], {2*r+1}, {src}\ns_nop 0\nv_cndmask_b32 v{base+r}, 0, v167, vcc")
                e(f"v_cndmask_b32 v{base+r}, v{base+r}, v168, s[86:87]")
        e(f"s_add_u32 {T0}, {sAR}, {OM}\nv_lshl_add_u32 v246, v162, 4, {T0}\nv_lshl_add_u32 v246, v161, 10, v246")
        e(f"s_add_u32 {T0}, {sAR}, {OX}\nv_lshl_add_u32 v247, v162, 4, {T0}\nv_lshl_add_u32 v247, v161, 10, v247")
        e(f"v_bfe_u32 v166, {vL}, 2, 2\nv_and_b32 v167, 3, {vL}\nv_mul_u32_u24 v168, 18, v164\nv_lshl_add_u32 v168, v163, 2, v168\nv_add_u32 v168, v168, v166")
        e("v_mul_u32_u24 v168, 160, v168\nv_lshl_add_u32 v248, v167, 3, v168")
        e("v_mul_u32_u24 v168, 72, v161\nv_lshrrev_b32 v169, 1, v166\nv_mul_u32_u24 v169, 18, v169\nv_and_b32 v166, 1, v166\nv_add3_u32 v168, v168, v169, v166")
        e("v_add_u32 v168, 16, v168\nv_mul_u32_u24 v168, 160, v168\nv_lshl_add_u32 v251, v167, 3, v168")
        e(f"v_mov_b32 v166, {OOB}\nv_cmp_gt_u32 vcc, 32, {vL}\ns_nop 1\nv_cndmask_b32 v241, v166, v241, vcc")

    def first_loads(self, lo=0, hi=15, lo2=None, hi2=None):
        e = self.e
        lo2, hi2 = lo if lo2 is None else lo2, hi if hi2 is None else hi2
        L, J = e.new("PFL"), e.new("PFJ")
        e(f"s_cmp_ge_u32 {sW}, 2\ns_cbranch_scc1 {L}")
        q0 = list(e.vmq)
        for i in range(lo, hi):
            s, pc = divmod(i, 5)
            e(f"s_add_u32 m0, {sRING}, {s*5120 + 960*pc}\ns_nop 0")
            e.vm(f"buffer_load_dwordx4 v216, {SW1}, {sK} offen offset:{64*pc} lds")
            if pc == 4:
                self.wrap_inc(sK, 147456, 36 * 147456)
        e(f"s_branch {J}")
        e.label(L)
        qa = e.vmq
        e.vmq = list(q0)
        for i in range(lo2, hi2):
            e(f"s_add_u32 m0, {sRING}, {1024*((i + 9) % 15)}\ns_nop 0")
            e.vm(f"buffer_load_dwordx4 v224, {SWQ}, {sKQ} offen lds")
            self.q_inc()
        e.label(J)
        if len(qa) < len(e.vmq):
            e.vmq = qa

    def q_inc(self):
        if self.p["QROT"]:
            self.wrap_inc(sKQ, 18432, 36 * 18432)
        else:
            self.e(f"s_add_u32 {sKQ}, {sKQ}, 18432")

    def q_gemm(self):
        e = self.e
        e.vmq = [("q", i) for i in range(15)]
        e.lgq = []
        rot = self.p["QROT"]
        e(f"s_mul_i32 {sBO}, {sROT}, 2080" if rot else f"v_add_u32 v220, {18*2080}, v223")

        def reads(i):
            r = 160 + 12 * (i % 3)
            vb, ob = ("v220", 0) if rot else (("v223", 2080 * i) if i < 18 else ("v220", 2080 * (i - 18)))
            if rot:
                e(f"v_add_u32 v220, {sBO}, v223")
            e.wait(vm=("q", i))
            o = 1024 * ((i + 9) % 15)
            e.lg(f"ds_read_b64_tr_b16 {vr(r,2)}, v218 offset:{o}", ("r", i))
            e.lg(f"ds_read_b64_tr_b16 {vr(r+2,2)}, v218 offset:{o+256}", ("r", i))
            e.lg(f"ds_read_b128 {vr(r+4,4)}, {vb} offset:{ob}", ("r", i))
            e.lg(f"ds_read_b128 {vr(r+8,4)}, {vb} offset:{ob+512}", ("r", i))
            if rot:
                self.wrap_inc(sBO, 2080, 36 * 2080)
        reads(0)
        reads(1)
        for i in range(36):
            r = 160 + 12 * (i % 3)
            sl = (i + 9) % 15
            e.wait(lg=("r", i))
            w1 = i >= 21 and sl % 5 < 4
            if i < 21 or w1:
                e(f"s_add_u32 m0, {sRING}, {1024*sl - (64*(sl % 5) if w1 else 0)}")
            e(f"v_mfma_f32_32x32x16_bf16 v[128:143], {vr(r,4)}, {vr(r+4,4)}, {'0' if i == 0 else 'v[128:143]'}")
            if i < 21:
                e.vm(f"buffer_load_dwordx4 v224, {SWQ}, {sKQ} offen lds", ("q", i + 15))
                self.q_inc()
            elif w1:
                e.vm(f"buffer_load_dwordx4 v216, {SW1}, {sK} offen offset:{64*(sl % 5)} lds")
                if sl % 5 == 3:
                    self.wrap_inc(sK, 147456, 36 * 147456)
            e(f"v_mfma_f32_32x32x16_bf16 v[144:159], {vr(r,4)}, {vr(r+8,4)}, {'0' if i == 0 else 'v[144:159]'}")
            if i + 2 < 36:
                reads(i + 2)
            if self.p["STAMP"] > 1 and i in (0, 6, 12, 18, 24, 30, 35):
                self.stamp(32 + (i + 1) // 6)

    def kv_loads(self):
        e = self.e
        e(f"s_cmp_ge_u32 {sJ}, 3\ns_cselect_b32 {T0}, 3, 0\ns_sub_u32 {T0}, {sJ}, {T0}\ns_cmp_ge_u32 {T0}, 3\ns_cselect_b32 {T0}, 0, {T0}")
        e(f"s_lshl_b32 {T1}, {T0}, 4\ns_min_u32 {T1}, {T1}, 20\nv_mul_u32_u24 v126, 36, {vL}\nv_add_u32 v126, {T1}, v126")
        e(f"s_mul_i32 {T2}, {sA}, 2304\ns_lshl_b32 {T3}, {sA}, 10\ns_add_u32 {T3}, {T3}, {KVW}")
        for i in range(2):
            e(f"s_add_u32 m0, {T3}, {4096*i}\ns_add_u32 {T0}, {T2}, {9216*i}")
            e.vm(f"buffer_load_dwordx4 v126, {SKV}, {T0} offen lds", "kvw")
        e(f"s_mov_b32 m0, {KVW + 8192}\ns_mov_b32 {T0}, {8*2304}")
        e.vm(f"buffer_load_dwordx4 v126, {SKV}, {T0} offen lds", "kvw")

    def pro_att(self):
        e, p = self.e, self.p
        if not p["KVEARLY"]:
            self.kv_loads()
        e(f"v_mul_u32_u24 v125, 1152, {vL}\ns_mul_i32 {T0}, {sJ}, 144\ns_add_u32 {T0}, {T0}, 128\nv_add_u32 v125, {T0}, v125")
        e(f"s_mul_i32 {T2}, {sA}, 73728\ns_lshl_b32 {T3}, {sA}, 10\ns_add_u32 {T3}, {T3}, {QE}")
        for i in range(2):
            e(f"s_add_u32 m0, {T3}, {4096*i}\ns_add_u32 {T0}, {T2}, {4*73728*i}")
            e.vm(f"buffer_load_dwordx4 v125, {SWQ}, {T0} offen lds", "ext")
        e(f"s_cmp_lg_u32 {sA}, 1\ns_cbranch_scc1 L_PA_2\ns_mov_b32 m0, {QE + 8192}\ns_mov_b32 {T0}, {8*73728}")
        e(f"buffer_load_dwordx4 v125, {SWQ}, {T0} offen lds")
        e.label("L_PA_2")
        nsl = p['NSL']
        if p["TLBW"] and p["TLBU"] < 0:
            self.tlb_touch()
        if p["WARMQ"]:
            rows = 18 * nsl
            e(f"s_lshl_b32 {T0}, {sA}, 6\nv_add_u32 v126, {T0}, {vL}\nv_lshrrev_b32 v127, 2, v126\nv_and_b32 v128, 3, v126\nv_mul_u32_u24 v127, 1152, v127")
            e(f"v_cmp_gt_u32 vcc, {4*rows}, v126\nv_mul_u32_u24 v128, 52, v128\nv_add_u32 v127, v127, v128\nv_mov_b32 v128, {OOB}\nv_cndmask_b32 v127, v128, v127, vcc")
            e(f"s_and_b32 {T1}, {sRB}, {32//nsl - 1}\ns_mul_i32 {T1}, {T1}, {rows*1152}\ns_mul_i32 {T0}, {sJ}, 144\ns_add_u32 {T1}, {T1}, {T0}")
            e.vm(f"buffer_load_dword v252, v127, {SWQ}, {T1} offen")
            e.vm(f"buffer_load_dword v253, v127, {SWO}, {T1} offen")

    def tlb_touch(self):
        e, p = self.e, self.p
        e(f"s_mov_b64 exec, 7\ns_cmp_eq_u32 {sA}, 1\ns_cbranch_scc1 L_TLB1\ns_cmp_eq_u32 {sA}, 2\ns_cbranch_scc1 L_TLB2\ns_cmp_eq_u32 {sA}, 3\ns_cbranch_scc1 L_TLB3")
        if p["TLBW"] == 1:
            e(f"v_mul_u32_u24 v126, {ASZ - 64}, {vL}\nv_cmp_eq_u32 vcc, 2, {vL}\nv_add_u32 v126, {sAR}, v126\ns_nop 0\nv_cndmask_b32 v126, v126, 0, vcc")
        else:
            e(f"s_mov_b64 exec, 0xfff\nv_lshlrev_b32 v126, 21, {vL}\nv_add_u32 v126, 0x30000, v126")
        e(f"buffer_load_dword v253, v126, {SWS}, 0 offen\ns_branch L_TLBD")
        e.label("L_TLB1")
        e(f"s_mul_i32 {T1}, {sJ}, 663552\nv_mul_u32_u24 v126, 331000, {vL}\nbuffer_load_dword v253, v126, {SW2}, {T1} offen\ns_branch L_TLBD")
        e.label("L_TLB2")
        e(f"s_mul_i32 {T0}, {sRB}, 73728\nv_mul_u32_u24 v126, 36000, {vL}\nbuffer_load_dword v253, v126, {SOUT}, {T0} offen\ns_branch L_TLBD")
        e.label("L_TLB3")
        e(f"v_mov_b32 v126, 0")
        e.vm(f"buffer_load_dword v253, v126, {SDBG if p['TLBW'] == 1 else SWO}, 0 offen offset:128")
        e.label("L_TLBD")
        e("s_mov_b64 exec, -1")

    def ln_stats(self, ffn=False):
        e = self.e
        e("v_mov_b32 v112, 0\nv_mov_b32 v113, 0\nv_mov_b32 v114, 0\nv_mov_b32 v115, 0\ns_mov_b32 s85, 0x3f803f80\ns_mov_b32 s86, 0xffff0000")
        for u in range(9):
            e.wait(vm=("x", u))
            if u == 0:
                self.stamp(1)
                if ffn and self.p["W1LATE"] == 1:
                    self.first_loads()
            if ffn and self.p["W1LATE"] == 2 and u in (1, 3, 5, 7, 8):
                n = (1, 3, 5, 7, 8).index(u)
                self.first_loads(3 * n, 3 * n + 3)
            if not ffn and self.p["TLBW"] and u == self.p["TLBU"]:
                self.tlb_touch()
            if not ffn and self.p["KVEARLY"] and u == self.p["KVU"]:
                self.kv_loads()
            if not ffn and u == self.p["EXTU"] and not self.p["KVEARLY"]:
                self.pro_att()
            if u == 8:
                self.stamp(30)
            if ffn and self.p["W1LATE"] == 3 and u == 8:
                self.first_loads()
            if ffn and self.p["W1LATE"] == 4 and u == self.p.get("PREU", 8) and self.p["PRE"]:
                self.first_loads(0, self.p["PRE"], 0, self.p["PREL"])
            for k in range(4):
                r = 4 * u + k
                e(f"v_dot2_f32_bf16 v{112+(k&1)}, v{r}, s85, v{112+(k&1)}")
                e(f"v_lshlrev_b32 v{40+2*r}, 16, v{r}")
                e(f"v_dot2_f32_bf16 v{114+(k&1)}, v{r}, v{r}, v{114+(k&1)}")
                e(f"v_and_b32 v{41+2*r}, s86, v{r}")

    def layernorm(self):
        e = self.e
        self.stamp(14)
        e("s_nop 2\nv_add_f32 v112, v112, v113\nv_add_f32 v114, v114, v115\ns_nop 1")
        for m in ("quad_perm:[1,0,3,2]", "quad_perm:[2,3,0,1]", "row_half_mirror"):
            e(f"v_add_f32_dpp v112, v112, v112 {m} row_mask:0xf bank_mask:0xf")
            e(f"v_add_f32_dpp v114, v114, v114 {m} row_mask:0xf bank_mask:0xf\ns_nop 1")
        inv = f"{f2u(1.0/576):#x}"
        e(f"v_mul_f32 v112, {inv}, v112\nv_mul_f32 v114, {inv}, v114\nv_fma_f32 v114, -v112, v112, v114\nv_max_f32 v114, 0, v114")
        e(f"v_add_f32 v114, {f2u(1e-5):#x}, v114\nv_rsq_f32 v114, v114\ns_nop 0\nv_mul_f32 v114, {sNL2E}, v114\nv_mul_f32 v112, v112, v114")
        for u in range(9):
            for k in range(0, 8, 2 if self.p["PKLN"] else 1):
                r = 40 + 8 * u + k
                if self.p["PKLN"]:
                    e(f"v_pk_fma_f32 v[{r}:{r+1}], v[{r}:{r+1}], v[114:115], v[112:113] op_sel_hi:[1,0,0] neg_lo:[0,0,1] neg_hi:[0,0,1]")
                else:
                    e(f"v_fma_f32 v{r}, v{r}, v114, -v112")
            for k in range(4):
                e(f"v_cvt_pk_bf16_f32 v{4*u+k}, v{40+8*u+2*k}, v{41+8*u+2*k}")
            if u < 8:
                e(f"ds_write_b128 v123, v[{4*u}:{4*u+3}] offset:{8*CH*u}")
            else:
                e(f"ds_write_b128 v124, v[{4*u}:{4*u+3}] offset:{8*CH*7}")
        self.stamp(15)
        e(f"s_cmp_ge_u32 {sW}, 4\ns_cbranch_scc1 L_ATT")
        if self.p["TADDR"] in (1, 3):
            self.q_addresses()
        if self.p["TADDR"] == 1:
            self.tail_addresses()
        e("s_waitcnt lgkmcnt(0)\ns_barrier")

    def gemm(self, T, which, Tn):
        e = self.e
        vT = "v218" if which == 1 else "v219"
        sec = 256 if which == 1 else 512
        vD, SW, kstride = ("v216", SW1, 147456) if which == 1 else ("v217", SW2, 18432)

        def areg(buf, pc):
            return 160 + 20 * buf + 4 * pc

        def breg(buf, rt):
            return 200 + 8 * buf + 4 * rt

        def reads(s, pc):
            if pc < 2:
                e.lg(f"ds_read_b128 {vr(breg(s&1,pc),4)}, v220 offset:{512*pc}", ("B", s, pc))
            o = (s % 3) * 5120 + 1024 * pc
            e.lg(f"ds_read_b64_tr_b16 {vr(areg(s&1,pc),2)}, {vT} offset:{o}", ("A", s, pc))
            e.lg(f"ds_read_b64_tr_b16 {vr(areg(s&1,pc)+2,2)}, {vT} offset:{o+sec}", ("A", s, pc))

        def dma_list(s):
            sn = s + 3
            if sn < 36:
                return [(vD, SW, pc, ("d", sn, pc)) for pc in range(T)]
            if which == 1:
                return [("v217", SW2, pc, ("d2", sn - 36, pc)) for pc in range(Tn)]
            return []

        def step(s, first=False):
            dl = dma_list(s)
            if which == 1 and s == 33:
                e(f"s_mul_i32 {sK}, {sROT}, 18432")
            for gi in range(2 * T):
                pc, rt = gi >> 1, gi & 1
                mine = []
                if rt == 0:
                    mine = [d for d in dl if d[2] == pc or (pc == T - 1 and d[2] > pc)]
                e.wait(lg=[("A", s, pc), ("B", s, 0)] if gi == 0 else ([("B", s, 1)] if gi == 1 else [("A", s, pc)]))
                if mine:
                    e(f"s_add_u32 m0, {sRING}, {(s % 3)*5120 + 960*mine[0][2]}")
                acc = vr(16 * gi, 16)
                e(f"v_mfma_f32_32x32x16_bf16 {acc}, {vr(areg(s&1,pc),4)}, {vr(breg(s&1,rt),4)}, {'0' if first else acc}")
                for n, d in enumerate(mine):
                    if n:
                        e(f"s_add_u32 m0, {sRING}, {(s % 3)*5120 + 960*d[2]}\ns_nop 0")
                    e.vm(f"buffer_load_dwordx4 {d[0]}, {d[1]}, {sK} offen offset:{64*d[2]} lds", d[3])
                if rt == 1 and s + 1 < 36:
                    if pc == 0:
                        e(f"v_add_u32 v220, {sBO}, v223")
                    e.wait(vm=("d", s + 1, pc))
                    reads(s + 1, pc)
                if gi == 2 * T - 3 and s + 2 < 36:
                    self.wrap_inc(sBO, 2080, 36 * 2080)
            if s <= 32:
                self.wrap_inc(sK, kstride, 36 * kstride)
            elif which == 1:
                self.wrap_inc(sK, 18432, 36 * 18432)

        e.vmq = [("d", s, pc) for s in range(3) for pc in range(T)]
        e(f"s_mul_i32 {sBO}, {sROT}, 2080\nv_add_u32 v220, {sBO}, v223")
        self.wrap_inc(sBO, 2080, 36 * 2080)
        e.wait(vm=("d", 0, T - 1))
        e.lgq = []
        for pc in range(T):
            reads(0, pc)
        main = e.lines
        texts = []
        for s in range(36):
            e.lines = []
            step(s, first=(s == 0))
            texts.append(e.lines)
        e.lines = main
        for s in range(1, 27):
            assert texts[s] == texts[s + 6], (s, texts[s], texts[s + 6])
        tag = f"G{which}T{T}"
        e.lines += texts[0]
        e(f"s_mov_b32 {sCNT}, 0\ns_branch L_{tag}_1")
        e(".p2align 3")
        e.label(f"L_{tag}_3")
        if self.p["STAMP"] > 1:
            e(f"s_memrealtime s[88:89]\ns_memtime s[90:91]\ns_add_u32 m0, {sCNT}, {8*which+8}\ns_waitcnt lgkmcnt(0)\nv_writelane_b32 v255, s88, m0\nv_writelane_b32 v254, s90, m0")
        for s in (3, 4, 5, 6):
            e.lines += texts[s]
        e.label(f"L_{tag}_1")
        e.lines += texts[7] + texts[8]
        e(f"s_add_u32 {sCNT}, {sCNT}, 1\ns_cmp_lt_u32 {sCNT}, 6\ns_cbranch_scc1 L_{tag}_3")
        for s in (33, 34, 35):
            e.lines += texts[s]

    def silu(self, T):
        e = self.e
        for g in range(4 * T):
            b = 8 * g
            t = 160 + 8 * (g & 1)
            for k in range(8):
                e(f"v_exp_f32 v{t+k}, v{b+k}")
            pk = self.p["PKSILU"]
            for k in range(0, 8, 2 if pk else 1):
                e(f"v_pk_add_f32 v[{t+k}:{t+k+1}], v[{t+k}:{t+k+1}], 1.0 op_sel_hi:[1,0]" if pk else f"v_add_f32 v{t+k}, 1.0, v{t+k}")
            for k in range(8):
                e(f"v_rcp_f32 v{t+k}, v{t+k}")
            for k in range(0, 8, 2 if pk else 1):
                e(f"v_pk_mul_f32 v[{t+k}:{t+k+1}], v[{b+k}:{b+k+1}], v[{t+k}:{t+k+1}]" if pk else f"v_mul_f32 v{t+k}, v{b+k}, v{t+k}")
            for k in range(4):
                e(f"v_cvt_pk_bf16_f32 v{b+k}, v{t+2*k}, v{t+2*k+1}")

    def q_out(self):
        e = self.e
        c = f"{f2u(1.0 / (math.log2(math.e) * math.sqrt(18.0))):#x}"
        if self.p["TADDR"] == 2:
            self.q_addresses()
        e(f"s_mov_b32 {T3}, {c}")
        self.lds_wait(C_A, 4, "v252", "v253")
        e.nop(5)
        for r in range(128, 160):
            e(f"v_mul_f32 v{r}, {T3}, v{r}")
        for k in range(16):
            e(f"v_cvt_pk_bf16_f32 v{128+k}, v{128+2*k}, v{129+2*k}")
        for rt in range(2):
            for pp in range(8):
                e.lg(f"ds_write_b32 v{196+pp}, v{128+8*rt+pp} offset:{1536*rt}")
        e.wait_all(lg=True)
        self.arrive(C_B, "v252", "v253")

    def qaddr(self, dst, vc, cadd, vbase, t0, t1):
        e = self.e
        e(f"v_add_u32 {t0}, {cadd}, {vc}\nv_mul_u32_u24 {t1}, 3641, {t0}\nv_lshrrev_b32 {t1}, 16, {t1}")
        e(f"v_mul_u32_u24 {dst}, 18, {t1}\nv_sub_u32 {t0}, {t0}, {dst}\nv_mul_u32_u24 {dst}, 3072, {t1}\nv_lshrrev_b32 {t1}, 3, {t0}\nv_lshl_add_u32 {dst}, {t1}, 9, {dst}")
        e(f"v_and_b32 {t0}, 7, {t0}\nv_lshl_add_u32 {dst}, {t0}, 1, {dst}\nv_add_u32 {dst}, {vbase}, {dst}")

    def ffn_path(self, T1_, T2_):
        e, p = self.e, self.p
        if T1_ == 4:
            self.q_gemm()
            self.q_out()
            self.stamp(13)
        self.gemm(T1_, 1, T2_)
        self.arrive(C_XN, "v252", "v253")
        self.stamp(3)
        if p["WARMO"]:
            nsl = p["NSL"]
            rows = 18 * nsl
            e(f"s_lshl_b32 {T0}, {sW}, 6\nv_add_u32 v176, {T0}, {vL}\nv_lshrrev_b32 v177, 2, v176\nv_and_b32 v178, 3, v176\nv_mul_u32_u24 v177, 1152, v177")
            e(f"v_cmp_gt_u32 vcc, {4*rows}, v176\nv_mul_u32_u24 v178, 52, v178\nv_add_u32 v177, v177, v178\nv_mov_b32 v178, {OOB}\nv_cndmask_b32 v177, v178, v177, vcc")
            e(f"s_and_b32 {T1}, {sRB}, {32//nsl - 1}\ns_mul_i32 {T1}, {T1}, {rows*1152}\ns_mul_i32 {T0}, {sJ}, 144\ns_add_u32 {T1}, {T1}, {T0}")
            e(f"buffer_load_dword v230, v177, {SWO}, {T1} offen")
        e.nop(2)
        self.silu(T1_)
        self.stamp(4)
        self.lds_wait(C_XN, 8, "v252", "v253")
        for u in range(2 * T1_):
            pc, rt = u >> 1, u & 1
            for hf in range(2):
                e.lg(f"ds_write_b128 v221, {vr(16*u+8*hf,4)} offset:{(4*pc+2*hf)*CH + 512*rt}")
        e.wait_all(lg=True)
        self.arrive(C_H, "v252", "v253")
        self.lds_wait(C_H, 4, "v252", "v253")
        self.stamp(5)
        self.gemm(T2_, 2, 0)
        self.arrive(C_G2, "v252", "v253")
        if p["PRIO_T"] != p["PRIO_F"]:
            e(f"s_setprio {p['PRIO_T']}")
        self.stamp(6)
        if p["SENT"] and T2_ == 4:
            e(f"s_lshl_b32 {T0}, {sJ}, 13\ns_lshl_b32 {T1}, {sW}, 12\ns_add_u32 {T0}, {T0}, {T1}\ns_add_u32 {T0}, {T0}, {sAR}\ns_add_u32 {T0}, {T0}, {OM}")
            e(f"s_lshl_b32 {T1}, {sJ}, 10\ns_add_u32 {T1}, {T1}, {sAR}\ns_add_u32 {T1}, {T1}, {OX}\nv_lshlrev_b32 v168, 4, {vL}")
            e("v_mov_b32 v172, -1\nv_mov_b32 v173, -1\nv_mov_b32 v174, -1\nv_mov_b32 v175, -1")
            for q in range(4):
                e(f"buffer_store_dwordx4 v[172:175], v168, {SWS}, {T0} offen offset:{1024*q} sc1")
            e(f"buffer_store_dwordx4 v[172:175], v168, {SWS}, {T1} offen sc1")
        e.nop(2)
        for u in range(2 * T2_):
            pc, rt = u >> 1, u & 1
            b = 16 * u
            for k in range(8):
                e(f"v_cvt_pk_bf16_f32 v{b+k}, v{b+2*k}, v{b+2*k+1}")
            e(f"s_mov_b32 {T0}, {(4*pc)*8192}\ns_mov_b32 {T1}, {(4*pc+2)*8192}")
            e(f"v_permlane32_swap_b32 v{b}, v{b+2}\nv_permlane32_swap_b32 v{b+1}, v{b+3}")
            e(f"v_permlane32_swap_b32 v{b+4}, v{b+6}\nv_permlane32_swap_b32 v{b+5}, v{b+7}")
            e.vm(f"buffer_store_dwordx4 {vr(b,4)}, v222, {SWS}, {T0} offen offset:{512*rt} sc1", "pst")
            e.vm(f"buffer_store_dwordx4 {vr(b+4,4)}, v222, {SWS}, {T1} offen offset:{512*rt} sc1", "pst")
            if p["PACE"]:
                e(f"s_waitcnt vmcnt({p['PACE']})")

    def ffn(self):
        e, p = self.e, self.p
        if p["W1LATE"] == 4:
            self.first_loads(p["PRE"], 15, p["PREL"], 15)
        self.stamp(2)
        if p["PRIO_F"]:
            e(f"s_setprio {p['PRIO_F']}")
        e(f"s_cmp_ge_u32 {sW}, 2\ns_cbranch_scc1 L_FFN_L")
        self.ffn_path(5, 4)
        e("s_branch L_FFN_J")
        e.label("L_FFN_L")
        self.ffn_path(4, 5)
        e.label("L_FFN_J")
        e("s_setprio 0")
        self.stamp(7)
        self.ffn_tail()

    def partials_dyn(self):
        e, p = self.e, self.p
        for r in range(20):
            e(f"v_mov_b32 v{r}, 0")
        e(f"s_add_u32 {T3}, {sAR}, {FLAGS + F_P}\ns_mov_b32 {T4}, 0x55")
        e(f"v_and_b32 v231, 7, {vL}\nv_lshlrev_b32 v231, 3, v231\ns_mov_b32 {sSPIN}, 0")
        e.label("L_PD_POLL")
        e(f"buffer_load_dwordx2 v[252:253], v231, {SWS}, {T3} offen sc1\ns_waitcnt vmcnt(0)")
        e(f"v_xor_b32 v252, {sN0}, v252\nv_xor_b32 v253, {sN1}, v253\nv_or_b32 v252, v252, v253\nv_cmp_eq_u32 vcc, 0, v252\ns_add_u32 {sSPIN}, {sSPIN}, 1\ns_nop 1")
        e(f"s_lshr_b32 {T2}, vcc_lo, 1\ns_and_b32 {T2}, {T2}, vcc_lo\ns_cmp_ge_u32 {sSPIN}, {p['SPIN']}\ns_cselect_b32 {T2}, -1, {T2}\ns_and_b32 {T2}, {T2}, {T4}\ns_cbranch_scc1 L_PD_GO\ns_sleep 4\ns_branch L_PD_POLL")
        e.label("L_PD_GO")
        e(f"s_ff1_i32_b32 {T1}, {T2}\ns_bitset0_b32 {T2}, {T1}\ns_bitset0_b32 {T4}, {T1}\ns_lshl_b32 {T1}, {T1}, 10")
        e.vmq = []
        for a in range(5):
            e(f"s_add_u32 {T0}, {T1}, {a*16384}")
            e.vm(f"buffer_load_dwordx4 {vr(20+4*a,4)}, {'v240' if a < 4 else 'v241'}, {SWS}, {T0} offen sc1", ("pl", a))
        for a in range(5):
            e.wait(vm=("pl", a))
            e(f"v_mfma_f32_16x16x32_bf16 {vr(4*a,4)}, {vr(232 if a < 4 else 236,4)}, {vr(20+4*a,4)}, {vr(4*a,4)}")
        e(f"s_cmp_lg_u32 {T2}, 0\ns_cbranch_scc1 L_PD_GO\ns_cmp_lg_u32 {T4}, 0\ns_cbranch_scc1 L_PD_POLL")
        self.stamp(8)

    def ffn_tail(self):
        e, p = self.e, self.p
        e.vmq = ["pst"]
        if p["TADDR"] >= 2:
            self.tail_addresses()
        e(f"s_mul_i32 {T2}, {sW}, 5\ns_cmp_eq_u32 {sW}, 3\ns_cselect_b32 {T2}, 14, {T2}")
        e(f"s_mul_i32 {T3}, {T2}, 5120\ns_mul_i32 {T2}, {T2}, 36864\ns_mul_i32 {T4}, {sJ}, 144\ns_add_u32 {T2}, {T2}, {T4}")
        e("s_waitcnt vmcnt(0)")
        self.arrive(C_P, "v252", "v253", rtn=T4)
        self.get_nonce("v231", 252)
        e(f"s_cmp_lg_u32 {T4}, 3\ns_cbranch_scc1 L_NOPF")
        self.flag_set(F_P, sJ, "v231", 252)
        e.label("L_NOPF")
        self.lds_wait(C_G2, 4, "v252", "v253")
        e(f"s_lshr_b32 {sCNT}, {sW}, 1")
        e.label("L_WO_L")
        for i in range(5):
            e(f"s_add_u32 m0, {T3}, {i*1024}\ns_nop 0")
            e(f"buffer_load_dwordx4 v{225+i}, {SWO}, {T2} offen lds")
        e(f"s_add_u32 {T3}, {T3}, 5120\ns_add_u32 {T2}, {T2}, 36864\ns_add_u32 {sCNT}, {sCNT}, 1\ns_waitcnt vmcnt({p['PACE3']})\ns_cmp_lt_u32 {sCNT}, 5\ns_cbranch_scc1 L_WO_L")
        e.label("L_WO_D")
        for a in range(5):
            e.vm(f"buffer_load_dwordx4 {vr(92+4*a,4)}, {'v242' if a < 4 else 'v243'}, {SX}, 0 offen offset:{32*a}", ("xr", a))
        e.wait_all(vm=True)
        self.arrive(C_WO, "v252", "v253")
        self.partials_dyn()
        self.lds_wait(C_WO, 4, "v252", "v253")
        e(f"s_mov_b32 {T0}, {f2u(-math.log(2.0)):#x}")
        for r in range(20):
            e(f"v_mul_f32 v{r}, {T0}, v{r}")
            if p["X_BIAS"]:
                e(f"v_add_f32 v{r}, {f2u(p['X_BIAS']*1e-4):#x}, v{r}")
        for a in range(5):
            e(f"v_mfma_f32_16x16x32_bf16 {vr(4*a,4)}, {vr(232 if a < 4 else 236,4)}, {vr(92+4*a,4)}, {vr(4*a,4)}")

        sG = ("s74", "s75", "s76", "s97")
        vG = ("v225", "v226", "v227", "v228")
        for b in range(4):
            e(f"s_lshr_b32 {T0}, {sJ}, 1\ns_add_u32 {T0}, {T0}, {b+p['OROT']}\ns_and_b32 {T0}, {T0}, 3\ns_lshl_b32 {sG[b]}, {T0}, 14\ns_mul_i32 {T0}, {T0}, 23040\nv_add_u32 {vG[b]}, {T0}, v248")

        def aop(i):
            kk, t = divmod(i, 5)
            r = 92 + 4 * (i % 33)
            if kk < 16:
                va, o, sec = vG[kk >> 2], (kk & 3) * 5760 + 32 * t, 1280
            else:
                va, o, sec = "v251", (kk - 16) * 46080 + 32 * t, 5760
            e.lg(f"ds_read_b64_tr_b16 {vr(r,2)}, {va} offset:{o}", ("a", i))
            e.lg(f"ds_read_b64_tr_b16 {vr(r+2,2)}, {va} offset:{o+sec}", ("a", i))
        e.nop(4)
        for i in range(33):
            aop(i)
        e.wait_all(lg=True)
        self.stamp(9)

        def oload(kk, track=True):
            if kk < 16:
                e(f"s_add_u32 {T0}, {sG[kk >> 2]}, {(kk & 3)*4096}")
            else:
                e(f"s_mov_b32 {T0}, {(kk - 16)*4096}")
            ins = f"buffer_load_dwordx4 {vr(20+4*kk,4)}, {'v246' if kk < 16 else 'v247'}, {SWS}, {T0} offen sc1"
            e.vm(ins, ("o", kk)) if track else e(ins)

        def ocheck(kk):
            b = 20 + 4 * kk
            return [f"v_max3_u32 v252, v{b}, v{b+1}, v{b+2}", f"v_max_u32 v252, v252, v{b+3}", "v_cmp_eq_u32 vcc, -1, v252"]
        om = p["OMODE"]
        if om in (0, 4):
            self.lds_wait(C_O, 4, "v252", "v253", sleep=2)
            self.flag_wait(F_O, 32, "v241", 252)
        else:
            e(f"v_bfe_u32 v241, {vL}, 2, 3\nv_lshlrev_b32 v241, 10, v241\nv_and_b32 v252, 3, {vL}\nv_lshl_add_u32 v241, v252, 2, v241\ns_add_u32 {T2}, {sAR}, {OX + 1008}")
            self.lds_wait(C_O, 4, "v252", "v253", sleep=2)
            if om == 1:
                e(f"s_mov_b32 {sSPIN}, 0")
                e.label("L_HINT")
                e(f"buffer_load_dword v252, v241, {SWS}, {T2} offen sc1\ns_waitcnt vmcnt(0)\nv_cmp_eq_u32 vcc, -1, v252\ns_add_u32 {sSPIN}, {sSPIN}, 1\ns_nop 3")
                e(f"s_cbranch_vccz L_HINT_D\ns_cmp_lt_u32 {sSPIN}, {p['SPIN']}\ns_cbranch_scc1 L_HINT")
                e.label("L_HINT_D")
        e(f"s_mov_b32 {sSPIN}, 0")
        self.stamp(10)
        e.vmq = []
        for kk in range(18):
            oload(kk)
        e.wait(vm=("o", 0))
        e("\n".join(ocheck(0)) + "\ns_nop 4")
        for i in range(90):
            kk, t = divmod(i, 5)
            if t == 0:
                e(f"s_cbranch_vccnz L_OS_{kk}")
                e.label(f"L_OR_{kk}")
                if p["STAMP"] > 1 and kk in (0, 4, 8, 12, 16):
                    e(f"s_memrealtime s[88:89]\ns_waitcnt lgkmcnt(0)\nv_writelane_b32 v255, s88, {40 + kk // 4}\nv_writelane_b32 v254, {sSPIN}, {40 + kk // 4}")
                    e.lgq = []
            e.wait(vm=("o", kk), lg=("a", i))
            e(f"v_mfma_f32_16x16x32_bf16 {vr(4*t,4)}, {vr(92+4*(i % 33),4)}, {vr(20+4*kk,4)}, {vr(4*t,4)}")
            if i >= 1 and i - 1 + 33 < 90:
                aop(i - 1 + 33)
            if t < 3 and kk < 17:
                e.wait(vm=("o", kk + 1))
                e(ocheck(kk + 1)[t])
        main, e.lines = e.lines, []
        for kk in range(18):
            e.label(f"L_OS_{kk}")
            allk = om == 2
            for k2 in range(kk, (kk | 3) + 1 if kk < 16 and not allk else 18):
                oload(k2, track=False)
            e(f"s_add_u32 {sSPIN}, {sSPIN}, 1\ns_waitcnt vmcnt({17 - kk if allk else 0})")
            e("\n".join(ocheck(kk)) + f"\ns_cmp_ge_u32 {sSPIN}, {p['SPIN']}\ns_nop 3\ns_cbranch_scc1 L_OR_{kk}\ns_cbranch_vccz L_OR_{kk}\ns_sleep {p['OSLEEP']}\ns_branch L_OS_{kk}")
        self.stubs = e.lines
        e.lines = main
        e.nop(8)
        for t in range(5):
            e(f"v_cvt_pk_bf16_f32 v{20+2*t}, v{4*t}, v{4*t+1}\nv_cvt_pk_bf16_f32 v{21+2*t}, v{4*t+2}, v{4*t+3}")
        e("v_permlane16_swap_b32 v20, v22\nv_permlane16_swap_b32 v21, v23\nv_permlane16_swap_b32 v24, v26\nv_permlane16_swap_b32 v25, v27")
        fl = ("", " sc1", " nt", " sc0 sc1")[p["OUTF"]]
        e(f"buffer_store_dwordx4 v[20:23], v244, {SOUT}, 0 offen{fl}")
        e(f"buffer_store_dwordx4 v[24:27], v244, {SOUT}, 0 offen offset:64{fl}")
        e(f"buffer_store_dwordx2 v[28:29], v245, {SOUT}, 0 offen offset:128{fl}")
        self.stamp(11)
        e("s_branch L_FIN")
        e.lines += getattr(self, "stubs", [])

    def att_proj(self):
        e, p = self.e, self.p
        c = f"{f2u(1.0 / (math.log2(math.e) * math.sqrt(18.0))):#x}"
        early = p["KVEARLY"]
        e("s_waitcnt vmcnt(0) lgkmcnt(0)\ns_barrier" if early else "s_waitcnt lgkmcnt(0)\ns_barrier")
        e.vmq, e.lgq = [], []
        self.stamp(2)
        e(f"s_setprio {p['PRIO_P']}")
        e(f"v_mov_b32 v246, 0\nbuffer_load_dwordx2 v[248:249], v246, {SDBG}, 0 offen sc1")
        if early or p["EXTU"] < 0:
            self.pro_att()
        e(f"v_and_b32 v200, 15, {vL}\nv_lshrrev_b32 v201, 4, {vL}\nv_bfe_u32 v202, {vL}, 2, 2\nv_and_b32 v203, 3, {vL}")
        e(f"v_lshl_add_u32 v204, v201, 3, v202\nv_lshlrev_b32 v204, 4, v204\nv_and_b32 v205, 1, v203\nv_lshl_add_u32 v204, v205, 3, v204")
        e(f"v_add_u32 v216, {QE}, v204\nv_add_u32 v204, {KVW}, v204")
        if not early:
            e(f"v_cmp_gt_u32 vcc, 2, v203\ns_nop 1\nv_cndmask_b32 v204, v204, v216, vcc")
        e(f"v_mul_u32_u24 v205, {CH}, v201\nv_lshl_add_u32 v205, v200, 4, v205\nv_add_u32 v206, {9*4*CH}, v205")
        e(f"s_lshl_b32 {T0}, {sA}, 8\nv_add_u32 v207, {T0}, v205\nv_add_u32 v208, {T0}, v206")
        if not early:
            e.wait_all(vm=True, lg=True)
            self.arrive(C_E, "v246", "v247")
            self.lds_wait(C_E, 4, "v246", "v247")
        self.stamp(10)

        def ext_reads(kk):
            r = 8 * kk
            e.lg(f"ds_read_b64_tr_b16 {vr(r,2)}, v204 offset:{512*kk}", ("e", kk))
            e.lg(f"ds_read_b64_tr_b16 {vr(r+2,2)}, v204 offset:{512*kk+64}", ("e", kk))
            e.lg(f"ds_read_b128 {vr(r+4,4)}, {'v207' if kk < 9 else 'v208'} offset:{4*CH*(kk % 9)}", ("e", kk))
        for kk in range(5):
            ext_reads(kk)
        for kk in range(18):
            e.wait(lg=("e", kk))
            r = 8 * kk
            e(f"v_mfma_f32_16x16x32_bf16 v[144:147], {vr(r,4)}, {vr(r+4,4)}, {'0' if kk == 0 else 'v[144:147]'}")
            e(f"v_mfma_f32_16x16x32_bf16 v[148:151], {vr(r+4,4)}, {vr(r,4)}, {'0' if kk == 0 else 'v[148:151]'}")
            if kk + 5 < 18:
                ext_reads(kk + 5)
        if not early:
            self.arrive(C_A, "v246", "v247")
        e(f"s_lshr_b32 {T2}, {sA}, 1\ns_lshl_b32 {T3}, {sRB}, 1\ns_add_u32 {T2}, {T2}, {T3}\ns_and_b32 {T3}, {sA}, 1")
        e(f"s_lshl_b32 {T4}, {T3}, 4\nv_add_u32 v209, {T4}, v200\nv_mov_b32 v210, {OOB}")
        e("v_cvt_pk_bf16_f32 v152, v144, v145\nv_cvt_pk_bf16_f32 v153, v146, v147\nv_cvt_pk_bf16_f32 v154, v148, v149\nv_cvt_pk_bf16_f32 v155, v150, v151")
        e(f"s_cmp_ge_u32 {sJ}, 6\ns_cbranch_scc1 L_KV_D\ns_cmp_ge_u32 {sJ}, 3\ns_cbranch_scc1 L_KV_V\ns_cmp_eq_u32 {sJ}, 2\ns_cbranch_scc1 L_KV_X")
        e(f"s_mul_i32 {T0}, {T2}, {KREC}\ns_lshl_b32 {T1}, {sJ}, 9\ns_add_u32 {T0}, {T0}, {T1}")
        e("v_lshlrev_b32 v211, 4, v209\nv_and_b32 v212, 1, v201\nv_lshl_add_u32 v211, v212, 3, v211\nv_cmp_le_u32 vcc, 2, v201\ns_nop 1\nv_cndmask_b32 v211, v210, v211, vcc")
        e(f"buffer_store_dwordx2 v[152:153], v211, {SWS}, {T0} offen sc1\ns_branch L_KV_D")
        e.label("L_KV_X")
        e(f"s_mul_i32 {T0}, {T2}, {KREC}\ns_add_u32 {T0}, {T0}, {KX}")
        e("v_lshlrev_b32 v211, 2, v209\nv_cmp_eq_u32 vcc, 3, v201\ns_nop 1\nv_cndmask_b32 v211, v210, v211, vcc")
        e(f"buffer_store_dword v153, v211, {SWS}, {T0} offen sc1\ns_branch L_KV_D")
        e.label("L_KV_V")
        e(f"s_sub_u32 {T0}, {sJ}, 3\ns_lshl_b32 {T0}, {T0}, 3\ns_min_u32 {T0}, {T0}, 10\ns_cmp_eq_u32 {sJ}, 5\ns_cselect_b32 {T1}, 14, 8")
        e(f"v_add_u32 v211, {T0}, v200\nv_lshrrev_b32 v212, 1, v201\nv_mul_u32_u24 v212, 18, v212\nv_add_u32 v211, v211, v212\nv_lshlrev_b32 v211, 4, v211")
        e(f"v_and_b32 v212, 1, v201\nv_lshl_add_u32 v211, v212, 3, v211\nv_cmp_le_u32 vcc, {T1}, v200\ns_nop 1\nv_cndmask_b32 v211, v210, v211, vcc")
        e(f"s_mul_i32 {T0}, {T2}, {KREC}\ns_mul_i32 {T1}, {T3}, 576\ns_add_u32 {T0}, {T0}, {T1}\ns_add_u32 {T0}, {T0}, {VT-128}")
        e(f"buffer_store_dwordx2 v[154:155], v211, {SWS}, {T0} offen sc1")
        e.label("L_KV_D")
        e(f"s_mov_b32 {sSPIN}, 0")
        e.label("L_TAG_P")
        e(f"s_waitcnt vmcnt(0)\nv_readfirstlane_b32 {sN0}, v248\nv_readfirstlane_b32 {sN1}, v249\ns_add_u32 {sSPIN}, {sSPIN}, 1\ns_cmp_lg_u32 {sN0}, 0\ns_cbranch_scc1 L_TAG_Q")
        e(f"v_mov_b32 v246, 0\nbuffer_load_dwordx2 v[248:249], v246, {SDBG}, 0 offen sc1\ns_cmp_lt_u32 {sSPIN}, {p['SPIN']}\ns_cbranch_scc1 L_TAG_P")
        e.label("L_TAG_Q")
        e.vmq = []
        e(f"v_mov_b32 v246, {NONCE}\nds_write_b64 v246, v[248:249]\ns_waitcnt lgkmcnt(0)")
        self.kv_flag()
        if early:
            self.arrive(C_E, "v246", "v247")
        self.arrive(C_XN, "v246", "v247")
        if early:
            self.lds_wait(C_E, 4, "v246", "v247")
            for kk in range(18):
                e.lg(f"ds_read_b64_tr_b16 {vr(8*kk,2)}, v216 offset:{512*kk}", ("e2", kk))
                e.lg(f"ds_read_b64_tr_b16 {vr(8*kk+2,2)}, v216 offset:{512*kk+64}", ("e2", kk))
                if kk >= 6:
                    e.wait(lg=("e2", kk - 6))
                    r = 8 * (kk - 6)
                    e(f"v_mfma_f32_16x16x32_bf16 v[144:147], {vr(r,4)}, {vr(r+4,4)}, {'0' if kk == 6 else 'v[144:147]'}")
            for kk in range(12, 18):
                e.wait(lg=("e2", kk))
                e(f"v_mfma_f32_16x16x32_bf16 v[144:147], {vr(8*kk,4)}, {vr(8*kk+4,4)}, v[144:147]")
            self.arrive(C_A, "v246", "v247")
            e.nop(3)
        e(f"v_mul_f32 v144, {c}, v144\nv_mul_f32 v145, {c}, v145\nv_mul_f32 v146, {c}, v146\nv_mul_f32 v147, {c}, v147")
        e("v_cvt_pk_bf16_f32 v144, v144, v145\nv_cvt_pk_bf16_f32 v145, v146, v147")
        e(f"s_lshr_b32 {T3}, {sA}, 1\ns_mul_i32 {T3}, {T3}, 1536\ns_and_b32 {T4}, {sA}, 1\ns_lshl_b32 {T4}, {T4}, 8\ns_add_u32 {T3}, {T3}, {T4}\ns_add_u32 {T3}, {T3}, {ATT}")
        e(f"v_lshl_add_u32 v214, v200, 4, {T3}\nv_lshlrev_b32 v215, 2, v201")
        self.qaddr("v82", "v215", 64, "v214", "v212", "v213")
        self.qaddr("v83", "v215", 66, "v214", "v212", "v213")
        self.lds_wait(C_A, 4, "v246", "v247")
        e("s_mov_b32 exec_hi, 0")
        e.lg("ds_write_b32 v82, v144")
        e.lg("ds_write_b32 v83, v145")
        e("s_mov_b64 exec, -1")
        self.stamp(3)
        e.wait_all(lg=True)
        self.arrive(C_B, "v246", "v247")
        self.stamp(4)
        for r in range(192, 210):
            e(f"v_mov_b32 v{r}, 0")
        for b in (218, 222):
            e(f"v_mov_b32 v{b+1}, 0x3f803f80\nv_mov_b32 v{b+2}, 0\nv_mov_b32 v{b+3}, 0")
        e(f"v_and_b32 v246, 31, {vL}\nv_mov_b32 v247, 0x3f803f80\nv_cmp_eq_u32 vcc, 18, v246\ns_mov_b32 s82, 0x3ffff\ns_mov_b32 s83, 0x3ffff")
        for r in range(226, 242):
            e(f"v_cndmask_b32 v{r}, 0, v247, vcc")
        e("v_mov_b32 v242, 0xdddddddd")
        d = p["KSPLIT"]
        e(f"s_mul_i32 {T2}, {sA}, {16+d}\ns_cmp_eq_u32 {sA}, 3\ns_cselect_b32 {T2}, {48+d}, {T2}\ns_cmp_ge_u32 {sA}, 2\ns_cselect_b32 {sNT}, {16-d}, {16+d}\ns_lshr_b32 {sNL}, {sNT}, 1")
        e(f"s_mul_i32 {T0}, {T2}, {KREC}\ns_mul_i32 {sKT[1]}, {sNT}, {KREC}\nv_lshl_add_u32 v243, {vL}, 4, {T0}\nv_lshl_add_u32 v244, v246, 2, {T0}")
        e(f"s_nop 0\nv_lshrrev_b32 v245, 5, {vL}\nv_mul_u32_u24 v245, 18, v245\nv_add_u32 v245, v245, v246\nv_lshl_add_u32 v245, v245, 4, {T0}")
        e(f"s_setprio {p['PRIO_A']}")
        self.zero_acc()
        self.lds_wait(C_B, 6, "v247", "v248", sleep=4)
        for i2 in range(4):
            e(f"s_add_u32 {T0}, {sA}, {1+i2}\ns_and_b32 {T0}, {T0}, 3\ns_mul_i32 {T0}, {T0}, 3072\ns_add_u32 {T0}, {T0}, {ATT}")
            e(f"v_lshl_add_u32 v{128+i2}, {vL}, 4, {T0}")
            for rt in range(2):
                e.lg(f"ds_read_b128 {vr(160+4*(2*i2+rt),4)}, v{128+i2} offset:{1536*rt}")
        e("s_mov_b32 exec_hi, 0")
        for i2 in range(4):
            for rt in range(2):
                e.lg(f"ds_read_b32 v{192+2*(2*i2+rt)}, v{128+i2} offset:{1536*rt+1024}")
        e("s_mov_b64 exec, -1")
        e.wait_all(lg=True)
        e(f"v_lshrrev_b32 v247, 3, {vL}\nv_mul_u32_u24 v247, {ASZ}, v247\nv_and_b32 v248, 7, {vL}\nv_lshl_add_u32 v247, v248, 3, v247")
        e(f"s_mul_i32 {T2}, {sA}, {8*ASZ}\ns_add_u32 {T2}, {T2}, {ARENA + FLAGS + F_KV}")
        self.flag_poll("v247", T2, 248, sleep=p["G1SLEEP"])
        self.arrive(C_G1, "v247", "v248")
        self.lds_wait(C_G1, 4, "v247", "v248")
        if p["X_SEQ"]:
            self.lds_wait((C_G2, C_H, C_XN)[p["X_SEQ"] - 1], (4, 4, 8)[p["X_SEQ"] - 1], "v247", "v248", sleep=8)
        e(f"s_setprio {p['PRIO_A']}")
        self.stamp(5)

    def kv_flag(self):
        e = self.e
        self.arrive(C_KV, "v246", "v247", rtn=T2)
        e(f"s_cmp_lg_u32 {T2}, 3\ns_cbranch_scc1 L_NOG1")
        self.flag_set(F_KV, sJ, "v246", 248)
        e.label("L_NOG1")

    def send_addr(self):
        e = self.e
        for i2 in range(3):
            e(f"s_add_u32 {T0}, {sA}, {1+i2}\ns_and_b32 {T0}, {T0}, 3\ns_mul_i32 {T0}, {T0}, {6*OSL}\ns_add_u32 {T0}, {T0}, {OXA + 2*i2*OSL}")
            e(f"v_lshl_add_u32 v{246+i2}, {vL}, 4, {T0}")

    def zero_acc(self):
        for r in list(range(128)) + list(range(152, 160)):
            self.e(f"v_mov_b32 v{r}, 0")

    def o_addr(self, vm_, vx, vt):
        e = self.e
        e(f"v_and_b32 {vx}, 31, {vL}\nv_lshrrev_b32 {vt}, 5, {vL}\ns_lshl_b32 {T0}, {sJ}, 2\ns_add_u32 {T0}, {T0}, {sA}\ns_lshl_b32 {T0}, {T0}, 11")
        e(f"s_add_u32 {T0}, {T0}, {sAR}\ns_add_u32 {T0}, {T0}, {OM}\nv_lshl_add_u32 {vm_}, {vx}, 4, {T0}\nv_lshl_add_u32 {vm_}, {vt}, 10, {vm_}")
        e(f"s_lshl_b32 {T1}, {sJ}, 10\ns_add_u32 {T0}, {sAR}, {T1}\ns_lshl_b32 {T1}, {sA}, 2\ns_add_u32 {T0}, {T0}, {T1}\ns_add_u32 {T0}, {T0}, {OX}")
        e(f"v_lshl_add_u32 {vx}, {vx}, 4, {T0}")

    def kvload(self, buf, what, step=True):
        e = self.e
        if what == "k":
            e.vm(f"buffer_load_dwordx4 {vr(210+4*buf,4)}, v243, {SWS}, {sKT[0]} offen sc1", ("k", buf))
            e.vm(f"buffer_load_dword v{218+4*buf}, v244, {SWS}, {sKT[0]} offen offset:{KX} sc1", ("k", buf))
        else:
            e(f"s_mov_b64 exec, {sVM}")
            e.vm(f"buffer_load_dwordx4 {vr(226+8*buf,4)}, v245, {SWS}, {sKT[0]} offen offset:{VT} sc1", ("v", buf))
            e.vm(f"buffer_load_dwordx4 {vr(230+8*buf,4)}, v245, {SWS}, {sKT[0]} offen offset:{VT+576} sc1", ("v", buf))
            e("s_mov_b64 exec, -1")
            self.wrap_inc(sKT[0], KREC, sKT[1])

    def qk(self, i, buf, which, S=None):
        S = vr(128 + 16 * (i & 1), 16) if S is None else S
        if which == 0:
            self.e(f"v_mfma_f32_32x32x16_bf16 {S}, {vr(210+4*buf,4)}, {vr(160+4*i,4)}, 0")
        else:
            self.e(f"v_mfma_f32_32x32x16_bf16 {S}, {vr(218+4*buf,4)}, {vr(192+2*i,4)}, {S}")

    def pv(self, i, buf, s):
        self.e(f"v_smfmac_f32_32x32x32_bf16 {vr(16*i,16)}, {vr(226+8*buf+4*s,4)}, {vr(128+16*(i & 1)+8*s,8)}, v242")

    def att_tile(self, buf, first=False, last=False, sig=False):
        e = self.e

        def send(i):
            for hf in range(2):
                e.lg(f"ds_write_b128 v{246+(i >> 1)}, {vr(16*i+4*hf,4)} offset:{(i & 1)*OSL + 1024*hf}")
        for i in range(8):
            S = 128 + 16 * (i & 1)

            pat = self.p["EXPAT"]
            c1, c2 = ((5, 8), (5, 8), (6, 10), (5, 9))[pat]

            def ex(a, b):
                for k in range(a, b):
                    wide = pat in (1, 3) and (b - a) % 2 == 1 and k == a
                    e(f"v_exp_f32{'_e64' if wide else ''} v{S+k}, v{S+k}")
            ex(0, 2)
            if i > 0:
                self.pv(i - 1, buf, 1)
            else:
                self.pv(7, buf ^ 1, 1)
            if i == 0 and not last:
                self.kvload(buf ^ 1, "v")
                if sig and not self.p["TRIM"]:
                    e(f"s_cmp_lg_u32 {sCNT}, 1\ns_cbranch_scc1 L_NOSIG")
                    self.arrive(C_L, "v246", "v247")
                    e.label("L_NOSIG")
            ex(2, c1)
            nxt = (i + 1, buf) if i < 7 else (0, buf ^ 1)
            do_qk = not (last and i == 7)
            if i == 7 and do_qk:
                e.wait(vm=("k", buf ^ 1))
            if do_qk:
                self.qk(nxt[0], nxt[1], 0)
            ex(c1, c2)
            if do_qk:
                self.qk(nxt[0], nxt[1], 1)
            if i == 7 and not last:
                self.kvload(buf, "k")
            c3 = max(12, c2 + 3) if pat != 2 else 14
            ex(c2, c3)
            if i == 0:
                e.wait(vm=("v", buf))
            self.pv(i, buf, 0)
            ex(c3, 14)
            if last and 1 <= i <= 6:
                send(i - 1)
            ex(14, 16)

    def attention(self):
        e, p = self.e, self.p
        e.label("L_ATT")
        self.att_proj()
        e.label("L_PASS")
        b0 = p["KSPLIT"] & 1
        e(f"s_and_b32 {sTI}, {sRB}, {15*p['KROT']}\ns_cmp_ge_u32 {sTI}, {sNT}\ns_cselect_b32 {sTI}, 0, {sTI}\ns_mul_i32 {sKT[0]}, {sTI}, {KREC}")
        e.vmq = []
        self.kvload(b0, "k")
        self.kvload(b0, "v")
        self.kvload(b0 ^ 1, "k")
        if p["TRIM"]:
            self.o_addr("v249", "v251", "v246")
            self.send_addr()
        e.wait(vm=("k", b0))
        self.qk(0, b0, 0)
        self.qk(0, b0, 1)
        e(f"s_mov_b32 {sCNT}, {sNL}")
        e.nop(11)
        if not b0:
            e("s_branch L_AT_MID")
            e.vmq = [("v", 1), ("v", 1), ("k", 0), ("k", 0)]
        e(".p2align 3")
        e.label("L_AT_LOOP")
        if p["STAMP"]:
            e(f"s_sub_u32 m0, 25, {sCNT}")
            self.stamp("m0")
        if p["AHI"]:
            e(f"s_cmp_lg_u32 {sCNT}, {p['AHI']}\ns_cbranch_scc1 L_NOHI\ns_setprio 2")
            e.label("L_NOHI")
            e(f"s_cmp_lg_u32 {sCNT}, {p['ALO']}\ns_cbranch_scc1 L_NOLO\ns_setprio 0")
            e.label("L_NOLO")
        if p["GATE"]:
            e(f"s_cmp_lg_u32 {sCNT}, {p['GATE']}\ns_cbranch_scc1 L_NOGATE")
            self.lds_wait(C_G2, 4, "v246", "v247", sleep=4)
            e.label("L_NOGATE")
        q0 = list(e.vmq)
        self.att_tile(1)
        e.label("L_AT_MID")
        self.att_tile(0, sig=True)
        assert q0 == e.vmq, (q0, e.vmq)
        e(f"s_sub_u32 {sCNT}, {sCNT}, 1\ns_cmp_lg_u32 {sCNT}, 0\ns_cbranch_scc1 L_AT_LOOP")
        self.stamp(6)
        self.lds_wait(C_G2 if p.get("NEWTAIL") else C_P, 4, *(("v128", "v129")[:0] or (("v252", "v253") if p["TRIM"] else ("v246", "v247"))))
        if not p["TRIM"]:
            self.send_addr()
        self.att_tile(1, last=True)
        e.nop(2)
        self.pv(7, 1, 1)
        e("s_mov_b32 exec_hi, 0")
        for i in range(6):
            e.lg(f"ds_write_b128 v{246+(i >> 1)}, {vr(16*i+8,4)} offset:{(i & 1)*OSL + 2048}")
        e("s_mov_b64 exec, -1")
        e("v_add_f32 v128, v10, v26\nv_add_f32 v129, v42, v58\nv_add_f32 v130, v74, v90\nv_min3_f32 v131, v10, v26, v42\nv_min3_f32 v132, v58, v74, v90")
        e("v_add_f32 v128, v128, v129\nv_add_f32 v130, v130, v106\nv_min3_f32 v131, v131, v132, v106\nv_add_f32 v128, v128, v130")
        e("v_add_f32 v128, v128, v122\nv_min_f32 v131, v131, v122")
        e(f"v_cmp_nge_f32 vcc, {f2u(2.0**40):#x}, v128\nv_mov_b32 v129, {f2u(2.0**-64):#x}\ns_mov_b32 {T2}, vcc_lo\nv_cmp_nge_f32 vcc, v131, v129\ns_nop 1\ns_or_b32 {T2}, {T2}, vcc_lo")
        if p["FORCE_FB"]:
            e(f"s_mov_b32 {T2}, 1")
        e(f"s_cmp_lg_u32 {T2}, 0\ns_cselect_b32 {T2}, 0x10001, 1")
        e.wait_all(lg=True)
        self.arrive(C_R, "v128", "v129", val=T2)
        e(f"s_mul_i32 {T0}, {sA}, {6*OSL}\ns_add_u32 {T0}, {T0}, {OXA}\nv_lshl_add_u32 v246, {vL}, 4, {T0}")
        if not p["TRIM"]:
            self.o_addr("v249", "v251", "v248")
        e(f"s_lshl_b32 {T3}, {sPASS}, 2\ns_add_u32 {T3}, {T3}, 4")
        self.lds_wait(C_R, T3, "v128", "v129", mask="0xffff", out=T2)
        self.stamp(7)
        e(f"s_cmp_lg_u32 {sPASS}, 0\ns_cbranch_scc1 L_SAFE\ns_cmp_ge_u32 {T2}, 0x10000\ns_cbranch_scc1 L_FALLBACK")
        e.label("L_SAFE")
        for tt in range(2):
            for i in range(3):
                for q in range(3):
                    e.lg(f"ds_read_b128 {vr(12*(3*tt+i)+4*q,4)}, v246 offset:{(2*i+tt)*OSL + 1024*q}", ("r", tt, i))
        for tt in range(2):
            O = 96 + 16 * tt
            for i in range(3):
                e.wait(lg=("r", tt, i))
                r0 = 12 * (3 * tt + i)
                if p["TRIM"]:
                    e(f"v_add_f32 v{O+10}, v{O+10}, v{r0+10}")
                    for k in range(0, 10, 2):
                        e(f"v_pk_add_f32 v[{O+k}:{O+k+1}], v[{O+k}:{O+k+1}], v[{r0+k}:{r0+k+1}]")
                else:
                    for k in (10, 0, 1, 2, 3, 4, 5, 6, 7, 8, 9):
                        e(f"v_add_f32 v{O+k}, v{O+k}, v{r0+k}")
            e(f"v_mov_b32 v128, v{O+10}\nv_mov_b32 v129, v{O+10}\ns_nop 1\nv_permlane32_swap_b32 v128, v129\ns_nop 1\nv_mul_f32 v128, {sNL2E}, v128\nv_rcp_f32 v128, v128\ns_nop 0")
            for k in range(0, 10, 2 if p["TRIM"] else 1):
                e(f"v_pk_mul_f32 v[{O+k}:{O+k+1}], v[{O+k}:{O+k+1}], v[128:129] op_sel_hi:[1,0]" if p["TRIM"] else f"v_mul_f32 v{O+k}, v{O+k}, v128")
            for k in range(5):
                e(f"v_cvt_pk_bf16_f32 v{132+8*tt+k}, v{O+2*k}, v{O+2*k+1}")
            if p["SENT"]:
                for k in range(5):
                    e(f"v_min_u32 v{132+8*tt+k}, -2, v{132+8*tt+k}")
            e.vm(f"buffer_store_dwordx4 {vr(132+8*tt,4)}, v249, {SWS}, 0 offen offset:{512*tt} sc1")
            e("s_mov_b32 exec_hi, 0")
            e.vm(f"buffer_store_dword v{136+8*tt}, v251, {SWS}, 0 offen offset:{512*tt} sc1")
            e("s_mov_b64 exec, -1")
        self.stamp(8)
        if p["OMODE"] == 0:
            e.wait_all(vm=True)
        if p["OMODE"] in (0, 4):
            e(f"s_lshl_b32 {T2}, {sJ}, 2\ns_add_u32 {T2}, {T2}, {sA}")
            self.flag_set(F_O, T2, "v128", 130)
        self.arrive(C_O, "v128", "v129")
        self.stamp(9)
        e("s_branch L_FIN")
        self.fallback()

    def fallback(self):
        e = self.e
        e.label("L_FALLBACK")
        e(f"s_mov_b32 {sPASS}, 1\ns_mov_b32 {sKT[0]}, 0\ns_mov_b32 {sCNT}, 0")
        for i in range(8):
            e(f"v_mov_b32 v{i}, 0xff800000")
        e.label("L_FB_LOOP")
        self.kvload(0, "k")
        e(f"s_add_u32 {sKT[0]}, {sKT[0]}, {KREC}")
        e.wait_all(vm=True)
        for i in range(8):
            self.qk(i, 0, 0, S="v[128:143]")
            self.qk(i, 0, 1, S="v[128:143]")
            e.nop(12)
            for k in range(8):
                e(f"v_max3_f32 v{i}, v{i}, v{128+2*k}, v{129+2*k}")
        e(f"s_add_u32 {sCNT}, {sCNT}, 1\ns_cmp_lt_u32 {sCNT}, {sNT}\ns_cbranch_scc1 L_FB_LOOP")
        e(f"v_and_b32 v247, 31, {vL}")
        for i in range(8):
            e(f"v_mov_b32 v8, v{i}\ns_nop 1\nv_permlane32_swap_b32 v{i}, v8\ns_nop 1\nv_max_f32 v{i}, v{i}, v8")
            e(f"s_lshl_b32 {T0}, {sA}, 1\ns_add_u32 {T0}, {T0}, {2+i}\ns_and_b32 {T0}, {T0}, 7\ns_lshl_b32 {T0}, {T0}, 7\ns_add_u32 {T0}, {T0}, {MX}")
            e(f"v_lshl_add_u32 v{16+i}, v247, 2, {T0}\ns_lshl_b32 {T1}, {sA}, 10\nv_add_u32 v9, {T1}, v{16+i}")
            e(f"ds_write_b32 v9, v{i}")
        e.wait_all(lg=True)
        self.arrive(C_M, "v128", "v129")
        self.lds_wait(C_M, 4, "v128", "v129")
        e("s_mov_b32 exec_hi, 0")
        for i in range(8):
            for a in range(4):
                e(f"ds_read_b32 v{8+a}, v{16+i} offset:{1024*a}")
            e.wait_all(lg=True)
            e("v_max3_f32 v8, v8, v9, v10\nv_max_f32 v8, v8, v11\nv_cvt_pk_bf16_f32 v9, v8, v8\nv_and_b32 v9, 0xffff0000, v9\nv_sub_f32 v10, v8, v9")
            e(f"v_cvt_pk_bf16_f32 v{193+2*i}, -v9, -v10")
        e("s_mov_b64 exec, -1")
        self.zero_acc()
        e("s_branch L_PASS")

    def build(self):
        e, p = self.e, self.p
        self.prologue()
        self.ffn()
        self.attention()
        e.label("L_FIN")
        if p["STAMP"]:
            e("s_waitcnt vmcnt(0)")
            self.stamp(12)
            e(f"s_lshl_b32 {T0}, s2, 3\ns_add_u32 {T0}, {T0}, {sW}\ns_lshl_b32 {T0}, {T0}, 8\ns_add_u32 {T0}, {T0}, {STAMPS}\nv_lshlrev_b32 v0, 2, {vL}")
            e(f"buffer_store_dword v255, v0, {SWS}, {T0} offen\ns_add_u32 {T0}, {T0}, 0x80000\nbuffer_store_dword v254, v0, {SWS}, {T0} offen")
            e(f"s_cmp_lg_u32 s2, 100\ns_cbranch_scc1 L_END\ns_cmp_lg_u32 {sW}, 0\ns_cbranch_scc1 L_END")
            e(f"v_readlane_b32 {T0}, v255, 0\ns_nop 1\nv_subrev_u32 v1, {T0}, v255\ns_mov_b64 exec, 0x1ffe\nbuffer_store_dword v1, v0, {SDBG}, 0 offen")
        e.label("L_END")
        e("s_endpgm")
        probs = check_hazards(e.lines)
        head = open("cdna_kernels/" + NAME + ".s.ref").read().split("\n")
        hdr = [l for l in head if l.startswith(";") and "@launch" not in l and "Override" not in l and "grid=ceil" not in l]
        txt = "\n".join(hdr) + f"""
; One persistent workgroup per CU: 64 rows x (576 FFN columns, 4 heads, 72 output columns).
; Waves 0-3: GEMM1 -> SiLU -> GEMM2 -> partial sums -> output projection; waves 4-7: Q/K/V projection, attention.
; @launch grid=(256,1,1) block=(512,1,1) lds={LDS_BYTES}
.amdgcn_target "amdgcn-amd-amdhsa--gfx950"
.text
.globl {NAME}_kernel
.p2align 8
.type {NAME}_kernel,@function
{NAME}_kernel:
{e.text()}
.section .rodata,"a"
.p2align 6
.amdhsa_kernel {NAME}_kernel
  .amdhsa_next_free_vgpr 256
  .amdhsa_next_free_sgpr 102
  .amdhsa_accum_offset 256
  .amdhsa_group_segment_fixed_size 0
  .amdhsa_kernarg_size 88
  .amdhsa_user_sgpr_count 2
  .amdhsa_user_sgpr_kernarg_segment_ptr 1
  .amdhsa_system_sgpr_workgroup_id_x 1
.end_amdhsa_kernel
"""
        return txt, probs


if __name__ == "__main__":
    out = sys.argv[1]
    kw = {}
    for a in sys.argv[2:]:
        k, v = a.split("=")
        kw[k] = int(v, 0)
    txt, probs = G(**kw).build()
    for x in probs[:40]:
        print("HAZARD", x)
    open(out, "w").write(txt)
    print("wrote", out, len(txt), "bytes;", len(probs), "hazards")
```

```python
import sys, math, struct
from emit import E, check_hazards

NAME = "parallel_sum__grouped_kv_mqa__dense_activation_silu__prompt"

DEF = dict(NSL=2, STAMP=0, PRIO_F=1, PRIO_A=0, ROT=1, KROT=1, CODEPF=1, PRIO_P=2, WARMQ=0, TLBW=2, OUTF=2, KSPLIT=1, W1LATE=4, PRE=5, PREU=0, ROTG=0, EXPAT=0, SENT=1, OMODE=2, OROT=1, OSLEEP=0, TADDR=2, PRIO_T=1, TRIM=1, TLBU=0, TLB0=0, GATE=0, AHI=0, ALO=0, X_SEQ=0, X_BIAS=0, EXTU=8, PREL=5, QROT=1, KVEARLY=0, KVU=0, PKLN=0, XBAR=1, PACE2=2, PACE3=2, DYNP=1, WARMO=1, PKSILU=1, PACE=4, DEFER=0, G1SLEEP=16, SPIN=1 << 16, FORCE_FB=0)

KREC = 2304
KM, KX, VT = 0, 1024, 1152
ARENA, ASZ = 0x40000, 0xb0000
PART, OM, OX, FLAGS = 0, 589824, 655360, 663552
STAMPS = 0x1710000
WS_BYTES = 0x1820000
CH = 1040
RING, RSZ = 72 * CH, 15360
ATT = RING + 4 * RSZ
QE, KVW = ATT, ATT + 9216 + 64
QRSZ = 6144
OXA, OSL = 92160, 2560
MX = 153600
QX, SYNC = 162560, 163584
LDS_BYTES = 163840
C_A, C_KV, C_B, C_XN, C_H, C_G2, C_P, C_WO, C_R, C_O, C_G1, C_M, C_E, C_Q, C_L = range(15)
SX, SW1, SW2, SWQ, SKV, SWO, SWS, SDBG, SOUT = (f"s[{b}:{b+3}]" for b in range(28, 64, 4))
sRB, sJ, sW, sA = "s64", "s65", "s66", "s67"
sRING, sK, sCNT, sNL2E, sSPIN, sPASS = "s68", "s69", "s70", "s71", "s72", "s73"
sKT = ("s74", "s75", "s76")
T0, T1, T2, T3, T4 = "s77", "s78", "s79", "s80", "s81"
sVM = "s[82:83]"
sIDX = "s84"
sROT, sBO, sTI, sAR = "s92", "s93", "s94", "s95"
sKQ, sN0, sN1, sNT, sNL = "s96", "s98", "s99", "s100", "s101"
sT0 = "s26"
F_P, F_KV, F_O = 0, 128, 256
NONCE = SYNC + 128
vL = "v250"
OOB = 0x40000000


def f2u(x):
    return struct.unpack("<I", struct.pack("<f", x))[0]


def vr(b, n=1):
    return f"v{b}" if n == 1 else f"v[{b}:{b+n-1}]"


class G:
    def __init__(self, **kw):
        self.p = dict(DEF)
        self.p.update(kw)
        self.e = E()
        self.nstamp = 0

    def stamp(self, i):
        if not self.p["STAMP"]:
            return
        e = self.e
        e("s_waitcnt lgkmcnt(0)")
        e.lgq = []
        e("s_memrealtime s[88:89]\ns_memtime s[90:91]")
        e("s_waitcnt lgkmcnt(0)")
        e(f"v_writelane_b32 v255, s88, {i}\nv_writelane_b32 v254, s90, {i}")

    def srd(self, srd, lo, nbytes):
        b = int(srd[2:srd.index(":")])
        self.e(f"s_mov_b32 s{b}, s{lo}\ns_mov_b32 s{b+1}, s{lo+1}\ns_mov_b32 s{b+2}, {nbytes}\ns_mov_b32 s{b+3}, 0x20000")

    def arrive(self, word, va, vb, rtn=None, val="1"):
        e = self.e
        e(f"v_mov_b32 {va}, {SYNC}\nv_mov_b32 {vb}, {val}\ns_mov_b64 exec, 1")
        if rtn is None:
            e.lg(f"ds_add_u32 {va}, {vb} offset:{4*word}")
            e("s_mov_b64 exec, -1")
        else:
            e(f"ds_add_rtn_u32 {vb}, {va}, {vb} offset:{4*word}")
            e.wait_all(lg=True)
            e(f"v_readfirstlane_b32 {rtn}, {vb}\ns_mov_b64 exec, -1\ns_nop 0")

    def lds_wait(self, word, target, va, vb, mask=None, out=None, sleep=1):
        e = self.e
        L, D = e.new("LW"), e.new("LWD")
        out = out or T0
        e(f"v_mov_b32 {va}, {SYNC}\ns_mov_b32 {sSPIN}, 0")
        e.label(L)
        e(f"ds_read_b32 {vb}, {va} offset:{4*word}")
        e.wait_all(lg=True)
        e(f"v_readfirstlane_b32 {out}, {vb}\ns_add_u32 {sSPIN}, {sSPIN}, 1")
        if mask is not None:
            e(f"s_and_b32 {T1}, {out}, {mask}\ns_cmp_ge_u32 {T1}, {target}")
        else:
            e(f"s_cmp_ge_u32 {out}, {target}")
        e(f"s_cbranch_scc1 {D}\ns_sleep {sleep}\ns_cmp_lt_u32 {sSPIN}, {self.p['SPIN']}\ns_cbranch_scc1 {L}")
        e.label(D)

    def flag_poll(self, va, soff, vb, sleep=2):
        e = self.e
        L, D = e.new("FW"), e.new("FWD")
        e(f"s_mov_b32 {sSPIN}, 0")
        e.label(L)
        e(f"buffer_load_dwordx2 v[{vb}:{vb+1}], {va}, {SWS}, {soff} offen sc1")
        e.wait_all(vm=True)
        e(f"v_xor_b32 v{vb}, {sN0}, v{vb}\nv_xor_b32 v{vb+1}, {sN1}, v{vb+1}\nv_or_b32 v{vb}, v{vb}, v{vb+1}")
        e(f"v_cmp_ne_u32 vcc, 0, v{vb}\ns_add_u32 {sSPIN}, {sSPIN}, 1\ns_nop 3")
        e(f"s_cbranch_vccz {D}\ns_sleep {sleep}\ns_cmp_lt_u32 {sSPIN}, {self.p['SPIN']}\ns_cbranch_scc1 {L}")
        e.label(D)

    def flag_wait(self, group, n, va, vb):
        e = self.e
        e(f"v_and_b32 {va}, {n-1}, {vL}\nv_lshlrev_b32 {va}, 3, {va}\ns_add_u32 {T0}, {sAR}, {FLAGS + group}")
        self.flag_poll(va, T0, vb)

    def flag_set(self, group, sidx, va, vb):
        e = self.e
        e(f"s_lshl_b32 {T1}, {sidx}, 3\ns_add_u32 {T0}, {sAR}, {T1}\ns_add_u32 {T0}, {T0}, {FLAGS + group}")
        e(f"v_mov_b32 {va}, 0\nv_mov_b32 v{vb}, {sN0}\nv_mov_b32 v{vb+1}, {sN1}\ns_mov_b64 exec, 1")
        e.vm(f"buffer_store_dwordx2 v[{vb}:{vb+1}], {va}, {SWS}, {T0} offen sc1")
        e("s_mov_b64 exec, -1")

    def get_nonce(self, va, vb):
        e = self.e
        e(f"v_mov_b32 {va}, {NONCE}\nds_read_b64 v[{vb}:{vb+1}], {va}")
        e.wait_all(lg=True)
        e(f"v_readfirstlane_b32 {sN0}, v{vb}\nv_readfirstlane_b32 {sN1}, v{vb+1}\ns_nop 1")

    def prologue(self):
        e, p = self.e, self.p
        nsl = p["NSL"]
        e("s_cmp_ge_u32 s2, 256\ns_cbranch_scc1 L_END")
        e("s_load_dwordx16 s[4:19], s[0:1], 0\ns_load_dwordx4 s[20:23], s[0:1], 64\ns_load_dwordx2 s[24:25], s[0:1], 80\ns_memrealtime s[26:27]")
        if p["STAMP"]:
            e("s_memrealtime s[88:89]\ns_memtime s[90:91]\nv_mov_b32 v255, 0\nv_mov_b32 v254, 0")
        e(f"v_and_b32 {vL}, 63, v0\nv_lshrrev_b32 v1, 6, v0")
        lg = nsl.bit_length() - 1
        e(f"s_and_b32 {T0}, s2, 7\ns_lshr_b32 {sIDX}, s2, 3")
        e(f"s_and_b32 {sJ}, {T0}, {8//nsl - 1}\ns_lshl_b32 {sJ}, {sJ}, {lg}\ns_and_b32 {T1}, {sIDX}, {nsl-1}\ns_add_u32 {sJ}, {sJ}, {T1}")
        e(f"s_lshr_b32 {sRB}, {T0}, {3-lg}\ns_lshl_b32 {sRB}, {sRB}, {5-lg}\ns_lshr_b32 {T1}, {sIDX}, {lg}\ns_add_u32 {sRB}, {sRB}, {T1}")
        e(f"v_readfirstlane_b32 {sW}, v1\ns_mul_i32 {sAR}, {sRB}, {ASZ}\ns_add_u32 {sAR}, {sAR}, {ARENA}")
        e(f"v_lshrrev_b32 v120, 3, v0\nv_and_b32 v121, 7, v0\ns_lshl_b32 {T0}, {sRB}, 6")
        e(f"v_add_u32 v122, {T0}, v120\nv_mul_u32_u24 v122, 1152, v122\nv_lshl_add_u32 v122, v121, 4, v122")
        e(f"v_mul_u32_u24 v123, {CH}, v121\nv_lshl_add_u32 v123, v120, 4, v123\nv_add_u32 v124, {8*CH}, v123")
        e(f"s_and_b32 {sA}, {sW}, 3\nv_mov_b32 v216, 0\nv_mov_b32 v217, 0\nv_mov_b32 v222, 0\nv_mov_b32 v224, 0")
        for r in list(range(212, 216)) + list(range(225, 230)) + list(range(240, 248)):
            e(f"v_mov_b32 v{r}, 0")
        e("s_waitcnt lgkmcnt(0)")
        if p["STAMP"]:
            e("v_writelane_b32 v255, s88, 0\nv_writelane_b32 v254, s90, 0")
        self.srd(SX, 4, 2359296)
        for u in range(9):
            e.vm(f"buffer_load_dwordx4 v[{4*u}:{4*u+3}], v122, {SX}, 0 offen offset:{128*u}", ("x", u))
        if p["XBAR"]:
            e("s_barrier")
        self.srd(SW1, 16, 5308416)
        self.srd(SW2, 18, 5308416)
        self.srd(SWQ, 6, 663552)
        self.srd(SWO, 12, 663552)
        self.srd(SWS, 24, WS_BYTES)
        self.srd(SDBG, 22, 256)
        self.srd(SOUT, 20, 2359296)
        e(f"s_cmp_ge_u32 {sJ}, 3\ns_cselect_b32 s44, s10, s8\ns_cselect_b32 s45, s11, s9\ns_mov_b32 s46, 20736\ns_mov_b32 s47, 0x20000")
        e(f"s_mov_b32 {sNL2E}, {f2u(-math.log2(math.e)):#x}\ns_mov_b32 {sPASS}, 0")
        e(f"s_cmp_ge_u32 {sW}, 4\ns_cbranch_scc1 L_PRO_A")
        q0 = list(e.vmq)
        self.pro_ffn()
        if p["TLB0"]:
            e(f"s_mov_b64 exec, 1\ns_cmp_ge_u32 {sW}, 2\ns_cbranch_scc1 L_T0Q\nbuffer_load_dword v253, v216, {SW1}, {sK} offen\ns_branch L_T0J")
            e.label("L_T0Q")
            e.vm(f"buffer_load_dword v253, v224, {SWQ}, 0 offen")
            e.label("L_T0J")
            e("s_mov_b64 exec, -1")
        if p["TADDR"] == 0:
            self.q_addresses()
            self.tail_addresses()
        self.ln_stats(ffn=True)
        e("s_branch L_PRO_J")
        e.vmq = list(q0)
        e.label("L_PRO_A")
        if p["CODEPF"]:
            e(f"s_getpc_b64 s[86:87]")
            e.label("L_PC")
            e(f"s_and_b32 {T0}, {sIDX}, 3\ns_lshl_b32 {T0}, {T0}, 2\ns_add_u32 {T0}, {T0}, {sA}\ns_lshl_b32 {T0}, {T0}, 12")
            e(f"v_lshl_add_u32 v126, {vL}, 6, {T0}\nv_min_u32 v126, L_END-L_PC, v126\nv_mov_b32 v127, s87")
            e("v_add_co_u32 v126, vcc, s86, v126\ns_nop 1\nv_addc_co_u32 v127, vcc, 0, v127, vcc")
            e.vm("global_load_dword v251, v[126:127], off")
        if p["TLB0"]:
            e(f"s_mov_b64 exec, 1\nv_mov_b32 v126, 0")
            e.vm(f"buffer_load_dword v252, v126, {SKV}, 0 offen")
            e("s_mov_b64 exec, -1")
            if p["TLBU"] == -2:
                self.tlb_touch()
        self.ln_stats()
        e(f"s_or_b32 {T0}, s2, {sA}\ns_cmp_lg_u32 {T0}, 0\ns_cbranch_scc1 L_NOTAG\ns_or_b32 {T0}, s26, 1")
        e(f"v_mov_b32 v126, {T0}\nv_mov_b32 v127, s27\nv_mov_b32 v128, 0\ns_mov_b64 exec, 1\nbuffer_store_dwordx2 v[126:127], v128, {SDBG}, 0 offen sc1\ns_mov_b64 exec, -1")
        e.label("L_NOTAG")
        e(f"v_lshlrev_b32 v127, 2, {vL}\nv_add_u32 v127, {SYNC}, v127\nv_mov_b32 v128, 0\nds_write_b32 v127, v128")
        e.label("L_PRO_J")
        self.layernorm()

    def wrap_inc(self, reg, inc, mod):
        self.e(f"s_add_u32 {reg}, {reg}, {inc}\ns_cmp_eq_u32 {reg}, {mod}\ns_cselect_b32 {reg}, 0, {reg}")

    def pro_ffn(self):
        e = self.e
        e(f"s_mul_i32 {T2}, {sW}, 5\ns_lshl_b32 {T3}, {sW}, 2\ns_cmp_eq_u32 {sW}, 3\ns_cselect_b32 {T2}, 14, {T2}\ns_cselect_b32 {T3}, 13, {T3}")
        e(f"s_mul_i32 {sRING}, {sW}, {RSZ}\ns_add_u32 {sRING}, {sRING}, {RING}")
        e(f"v_lshrrev_b32 v125, 2, {vL}\nv_and_b32 v126, 3, {vL}")
        e(f"s_mul_i32 {T0}, {sJ}, 1152\ns_lshl_b32 {T1}, {T2}, 6\ns_add_u32 {T0}, {T0}, {T1}")
        e(f"v_mul_u32_u24 v216, 9216, v125\nv_lshl_add_u32 v216, v126, 4, v216\nv_add_u32 v216, {T0}, v216")
        nsl = self.p["NSL"]
        e(f"s_and_b32 {sROT}, {sRB}, {32//nsl - 1}\ns_mul_i32 {sROT}, {sROT}, {36*nsl*self.p['ROT']}\ns_lshr_b32 {sROT}, {sROT}, 5")
        G_ = self.p["ROTG"]
        if G_:
            e(f"s_and_b32 {sROT}, {sRB}, {32//nsl - 1}\ns_mul_i32 {sROT}, {sROT}, {G_*nsl}\ns_lshr_b32 {sROT}, {sROT}, 5\ns_mul_i32 {sROT}, {sROT}, {36//G_}")
        e(f"s_mul_i32 {sK}, {sROT}, 147456")
        e(f"s_mul_i32 {T0}, {sJ}, 144\ns_lshl_b32 {T1}, {sW}, 6\ns_add_u32 {T0}, {T0}, {T1}\ns_sub_u32 {T0}, {T0}, 128")
        e(f"v_mul_u32_u24 v224, 1152, v125\nv_lshl_add_u32 v224, v126, 4, v224\nv_add_u32 v224, {T0}, v224\ns_mul_i32 {sKQ}, {sROT}, {18432*self.p['QROT']}")
        if not self.p["W1LATE"]:
            self.first_loads()
        e(f"s_mul_i32 {T0}, {sJ}, 663552\ns_lshl_b32 {T1}, {T3}, 6\ns_add_u32 {T0}, {T0}, {T1}")
        e(f"v_mul_u32_u24 v217, 1152, v125\nv_lshl_add_u32 v217, v126, 4, v217\nv_add_u32 v217, {T0}, v217")
        e(f"v_lshrrev_b32 v127, 5, {vL}\nv_bfe_u32 v128, {vL}, 2, 2\nv_bfe_u32 v129, {vL}, 4, 1")
        e(f"v_lshlrev_b32 v129, 5, v129\nv_lshl_add_u32 v129, v126, 3, v129\nv_lshl_add_u32 v129, v128, 6, v129\nv_add_u32 v129, {sRING}, v129")
        e("v_lshl_add_u32 v218, v127, 9, v129\nv_lshl_add_u32 v219, v127, 8, v129")
        e(f"v_and_b32 v128, 31, {vL}\nv_lshlrev_b32 v128, 4, v128\nv_mul_u32_u24 v223, {CH}, v127\nv_add_u32 v223, v223, v128")
        e(f"s_mul_i32 {T0}, {T2}, {4*CH}\nv_add_u32 v221, {T0}, v223")
        e(f"s_lshl_b32 {T0}, {T3}, 15\ns_lshl_b32 {T1}, {sJ}, 10\ns_add_u32 {T0}, {T0}, {T1}\ns_add_u32 {T0}, {T0}, {sAR}")
        e(f"v_lshl_add_u32 v222, v127, 13, v128\nv_add_u32 v222, {T0}, v222")

    def q_addresses(self):
        e = self.e
        e(f"s_lshl_b32 {T2}, {sW}, 5\ns_sub_u32 {T2}, {T2}, 64\nv_lshrrev_b32 v170, 5, {vL}\nv_lshl_add_u32 v170, v170, 2, {T2}")
        e(f"v_and_b32 v171, 31, {vL}\nv_lshlrev_b32 v171, 4, v171\nv_add_u32 v171, {ATT}, v171")
        for pp in range(8):
            self.qaddr(f"v{196+pp}", "v170", 8 * (pp >> 1) + 2 * (pp & 1), "v171", "v172", "v173")

    def wo_addresses(self, base):
        e = self.e
        for i in range(5):
            e(f"v_add_u32 v160, {64*i}, {vL}\nv_mul_u32_u24 v161, 6554, v160\nv_lshrrev_b32 v161, 16, v161")
            e(f"v_mul_u32_u24 v162, 10, v161\nv_sub_u32 v162, v160, v162\nv_mul_u32_u24 v161, 1152, v161\nv_lshl_add_u32 v{base+i}, v162, 4, v161")

    def tail_addresses(self, wo=True):
        e = self.e
        if wo:
            self.wo_addresses(225)
        e(f"v_and_b32 v160, 15, {vL}\nv_lshrrev_b32 v161, 4, {vL}\ns_lshl_b32 {T0}, {sW}, 4\nv_add_u32 v162, {T0}, v160")
        e(f"v_and_b32 v163, 1, v161\nv_lshrrev_b32 v164, 1, v161")
        e(f"s_mul_i32 {T1}, {sJ}, 73728\ns_add_u32 {T0}, {sAR}, {T1}")
        e(f"v_lshl_add_u32 v165, v162, 4, {T0}\nv_lshl_add_u32 v240, v163, 13, v165\nv_lshl_add_u32 v240, v164, 10, v240\nv_lshl_add_u32 v241, v161, 10, v165")
        e(f"s_lshl_b32 {T0}, {sRB}, 6\nv_add_u32 v165, {T0}, v162\nv_mul_u32_u24 v165, 1152, v165\ns_mul_i32 {T0}, {sJ}, 144\nv_add_u32 v165, {T0}, v165")
        e(f"v_lshl_add_u32 v242, v161, 4, v165\nv_mov_b32 v166, {OOB}\nv_cmp_gt_u32 vcc, 2, v161\ns_nop 1\nv_cndmask_b32 v242, v166, v242, vcc")
        e(f"v_cmp_eq_u32 vcc, 0, v161\ns_nop 1\nv_cndmask_b32 v243, v166, v165, vcc")
        e(f"v_lshl_add_u32 v244, v163, 5, v165\nv_lshl_add_u32 v244, v164, 4, v244")
        e(f"v_lshl_add_u32 v245, v161, 3, v165\nv_cmp_gt_u32 vcc, 2, v161\ns_nop 1\nv_cndmask_b32 v245, v166, v245, vcc")
        e("v_lshlrev_b32 v166, 3, v163\nv_sub_u32 v166, v160, v166\nv_mov_b32 v167, 0x3f80\nv_mov_b32 v168, 0x3f800000")
        for base, src in ((232, "v166"), (236, "v160")):
            for r in range(4):
                e(f"v_cmp_eq_u32 vcc, {2*r}, {src}\nv_cmp_eq_u32 s[86:87], {2*r+1}, {src}\ns_nop 0\nv_cndmask_b32 v{base+r}, 0, v167, vcc")
                e(f"v_cndmask_b32 v{base+r}, v{base+r}, v168, s[86:87]")
        e(f"s_add_u32 {T0}, {sAR}, {OM}\nv_lshl_add_u32 v246, v162, 4, {T0}\nv_lshl_add_u32 v246, v161, 10, v246")
        e(f"s_add_u32 {T0}, {sAR}, {OX}\nv_lshl_add_u32 v247, v162, 4, {T0}\nv_lshl_add_u32 v247, v161, 10, v247")
        e(f"v_bfe_u32 v166, {vL}, 2, 2\nv_and_b32 v167, 3, {vL}\nv_mul_u32_u24 v168, 18, v164\nv_lshl_add_u32 v168, v163, 2, v168\nv_add_u32 v168, v168, v166")
        e("v_mul_u32_u24 v168, 160, v168\nv_lshl_add_u32 v248, v167, 3, v168")
        e("v_mul_u32_u24 v168, 72, v161\nv_lshrrev_b32 v169, 1, v166\nv_mul_u32_u24 v169, 18, v169\nv_and_b32 v166, 1, v166\nv_add3_u32 v168, v168, v169, v166")
        e("v_add_u32 v168, 16, v168\nv_mul_u32_u24 v168, 160, v168\nv_lshl_add_u32 v251, v167, 3, v168")
        e(f"v_mov_b32 v166, {OOB}\nv_cmp_gt_u32 vcc, 32, {vL}\ns_nop 1\nv_cndmask_b32 v241, v166, v241, vcc")

    def first_loads(self, lo=0, hi=15, lo2=None, hi2=None):
        e = self.e
        lo2, hi2 = lo if lo2 is None else lo2, hi if hi2 is None else hi2
        L, J = e.new("PFL"), e.new("PFJ")
        e(f"s_cmp_ge_u32 {sW}, 2\ns_cbranch_scc1 {L}")
        q0 = list(e.vmq)
        for i in range(lo, hi):
            s, pc = divmod(i, 5)
            e(f"s_add_u32 m0, {sRING}, {s*5120 + 960*pc}\ns_nop 0")
            e.vm(f"buffer_load_dwordx4 v216, {SW1}, {sK} offen offset:{64*pc} lds")
            if pc == 4:
                self.wrap_inc(sK, 147456, 36 * 147456)
        e(f"s_branch {J}")
        e.label(L)
        qa = e.vmq
        e.vmq = list(q0)
        for i in range(lo2, hi2):
            e(f"s_add_u32 m0, {sRING}, {1024*((i + 9) % 15)}\ns_nop 0")
            e.vm(f"buffer_load_dwordx4 v224, {SWQ}, {sKQ} offen lds")
            self.q_inc()
        e.label(J)
        if len(qa) < len(e.vmq):
            e.vmq = qa

    def q_inc(self):
        if self.p["QROT"]:
            self.wrap_inc(sKQ, 18432, 36 * 18432)
        else:
            self.e(f"s_add_u32 {sKQ}, {sKQ}, 18432")

    def q_gemm(self):
        e = self.e
        e.vmq = [("q", i) for i in range(15)]
        e.lgq = []
        rot = self.p["QROT"]
        e(f"s_mul_i32 {sBO}, {sROT}, 2080" if rot else f"v_add_u32 v220, {18*2080}, v223")

        def reads(i):
            r = 160 + 12 * (i % 3)
            vb, ob = ("v220", 0) if rot else (("v223", 2080 * i) if i < 18 else ("v220", 2080 * (i - 18)))
            if rot:
                e(f"v_add_u32 v220, {sBO}, v223")
            e.wait(vm=("q", i))
            o = 1024 * ((i + 9) % 15)
            e.lg(f"ds_read_b64_tr_b16 {vr(r,2)}, v218 offset:{o}", ("r", i))
            e.lg(f"ds_read_b64_tr_b16 {vr(r+2,2)}, v218 offset:{o+256}", ("r", i))
            e.lg(f"ds_read_b128 {vr(r+4,4)}, {vb} offset:{ob}", ("r", i))
            e.lg(f"ds_read_b128 {vr(r+8,4)}, {vb} offset:{ob+512}", ("r", i))
            if rot:
                self.wrap_inc(sBO, 2080, 36 * 2080)
        reads(0)
        reads(1)
        for i in range(36):
            r = 160 + 12 * (i % 3)
            sl = (i + 9) % 15
            e.wait(lg=("r", i))
            w1 = i >= 21 and sl % 5 < 4
            if i < 21 or w1:
                e(f"s_add_u32 m0, {sRING}, {1024*sl - (64*(sl % 5) if w1 else 0)}")
            e(f"v_mfma_f32_32x32x16_bf16 v[128:143], {vr(r,4)}, {vr(r+4,4)}, {'0' if i == 0 else 'v[128:143]'}")
            if i < 21:
                e.vm(f"buffer_load_dwordx4 v224, {SWQ}, {sKQ} offen lds", ("q", i + 15))
                self.q_inc()
            elif w1:
                e.vm(f"buffer_load_dwordx4 v216, {SW1}, {sK} offen offset:{64*(sl % 5)} lds")
                if sl % 5 == 3:
                    self.wrap_inc(sK, 147456, 36 * 147456)
            e(f"v_mfma_f32_32x32x16_bf16 v[144:159], {vr(r,4)}, {vr(r+8,4)}, {'0' if i == 0 else 'v[144:159]'}")
            if i + 2 < 36:
                reads(i + 2)
            if self.p["STAMP"] > 1 and i in (0, 6, 12, 18, 24, 30, 35):
                self.stamp(32 + (i + 1) // 6)

    def kv_loads(self):
        e = self.e
        e(f"s_cmp_ge_u32 {sJ}, 3\ns_cselect_b32 {T0}, 3, 0\ns_sub_u32 {T0}, {sJ}, {T0}\ns_cmp_ge_u32 {T0}, 3\ns_cselect_b32 {T0}, 0, {T0}")
        e(f"s_lshl_b32 {T1}, {T0}, 4\ns_min_u32 {T1}, {T1}, 20\nv_mul_u32_u24 v126, 36, {vL}\nv_add_u32 v126, {T1}, v126")
        e(f"s_mul_i32 {T2}, {sA}, 2304\ns_lshl_b32 {T3}, {sA}, 10\ns_add_u32 {T3}, {T3}, {KVW}")
        for i in range(2):
            e(f"s_add_u32 m0, {T3}, {4096*i}\ns_add_u32 {T0}, {T2}, {9216*i}")
            e.vm(f"buffer_load_dwordx4 v126, {SKV}, {T0} offen lds", "kvw")
        e(f"s_mov_b32 m0, {KVW + 8192}\ns_mov_b32 {T0}, {8*2304}")
        e.vm(f"buffer_load_dwordx4 v126, {SKV}, {T0} offen lds", "kvw")

    def pro_att(self):
        e, p = self.e, self.p
        if not p["KVEARLY"]:
            self.kv_loads()
        e(f"v_mul_u32_u24 v125, 1152, {vL}\ns_mul_i32 {T0}, {sJ}, 144\ns_add_u32 {T0}, {T0}, 128\nv_add_u32 v125, {T0}, v125")
        e(f"s_mul_i32 {T2}, {sA}, 73728\ns_lshl_b32 {T3}, {sA}, 10\ns_add_u32 {T3}, {T3}, {QE}")
        for i in range(2):
            e(f"s_add_u32 m0, {T3}, {4096*i}\ns_add_u32 {T0}, {T2}, {4*73728*i}")
            e.vm(f"buffer_load_dwordx4 v125, {SWQ}, {T0} offen lds", "ext")
        e(f"s_cmp_lg_u32 {sA}, 1\ns_cbranch_scc1 L_PA_2\ns_mov_b32 m0, {QE + 8192}\ns_mov_b32 {T0}, {8*73728}")
        e(f"buffer_load_dwordx4 v125, {SWQ}, {T0} offen lds")
        e.label("L_PA_2")
        nsl = p['NSL']
        if p["TLBW"] and p["TLBU"] == -1:
            self.tlb_touch()
        if p["WARMQ"]:
            rows = 18 * nsl
            e(f"s_lshl_b32 {T0}, {sA}, 6\nv_add_u32 v126, {T0}, {vL}\nv_lshrrev_b32 v127, 2, v126\nv_and_b32 v128, 3, v126\nv_mul_u32_u24 v127, 1152, v127")
            e(f"v_cmp_gt_u32 vcc, {4*rows}, v126\nv_mul_u32_u24 v128, 52, v128\nv_add_u32 v127, v127, v128\nv_mov_b32 v128, {OOB}\nv_cndmask_b32 v127, v128, v127, vcc")
            e(f"s_and_b32 {T1}, {sRB}, {32//nsl - 1}\ns_mul_i32 {T1}, {T1}, {rows*1152}\ns_mul_i32 {T0}, {sJ}, 144\ns_add_u32 {T1}, {T1}, {T0}")
            e.vm(f"buffer_load_dword v252, v127, {SWQ}, {T1} offen")
            e.vm(f"buffer_load_dword v253, v127, {SWO}, {T1} offen")

    def tlb_touch(self):
        e, p = self.e, self.p
        e(f"s_mov_b64 exec, 7\ns_cmp_eq_u32 {sA}, 1\ns_cbranch_scc1 L_TLB1\ns_cmp_eq_u32 {sA}, 2\ns_cbranch_scc1 L_TLB2\ns_cmp_eq_u32 {sA}, 3\ns_cbranch_scc1 L_TLB3")
        if p["TLBW"] == 1:
            e(f"v_mul_u32_u24 v126, {ASZ - 64}, {vL}\nv_cmp_eq_u32 vcc, 2, {vL}\nv_add_u32 v126, {sAR}, v126\ns_nop 0\nv_cndmask_b32 v126, v126, 0, vcc")
        else:
            e(f"s_mov_b64 exec, 0xfff\nv_lshlrev_b32 v126, 21, {vL}\nv_add_u32 v126, 0x30000, v126")
        e(f"buffer_load_dword v253, v126, {SWS}, 0 offen\ns_branch L_TLBD")
        e.label("L_TLB1")
        e(f"s_mul_i32 {T1}, {sJ}, 663552\nv_mul_u32_u24 v126, 331000, {vL}\nbuffer_load_dword v253, v126, {SW2}, {T1} offen\ns_branch L_TLBD")
        e.label("L_TLB2")
        e(f"s_mul_i32 {T0}, {sRB}, 73728\nv_mul_u32_u24 v126, 36000, {vL}\nbuffer_load_dword v253, v126, {SOUT}, {T0} offen\ns_branch L_TLBD")
        e.label("L_TLB3")
        e(f"v_mov_b32 v126, 0")
        e.vm(f"buffer_load_dword v253, v126, {SDBG if p['TLBW'] == 1 else SWO}, 0 offen offset:128")
        e.label("L_TLBD")
        e("s_mov_b64 exec, -1")

    def ln_stats(self, ffn=False):
        e = self.e
        e("v_mov_b32 v112, 0\nv_mov_b32 v113, 0\nv_mov_b32 v114, 0\nv_mov_b32 v115, 0\ns_mov_b32 s85, 0x3f803f80\ns_mov_b32 s86, 0xffff0000")
        for u in range(9):
            e.wait(vm=("x", u))
            if u == 0:
                self.stamp(1)
                if ffn and self.p["W1LATE"] == 1:
                    self.first_loads()
            if ffn and self.p["W1LATE"] == 2 and u in (1, 3, 5, 7, 8):
                n = (1, 3, 5, 7, 8).index(u)
                self.first_loads(3 * n, 3 * n + 3)
            if not ffn and self.p["TLBW"] and u == self.p["TLBU"]:
                self.tlb_touch()
            if not ffn and self.p["KVEARLY"] and u == self.p["KVU"]:
                self.kv_loads()
            if not ffn and u == self.p["EXTU"] and not self.p["KVEARLY"]:
                self.pro_att()
            if u == 8:
                self.stamp(30)
            if ffn and self.p["W1LATE"] == 3 and u == 8:
                self.first_loads()
            if ffn and self.p["W1LATE"] == 4 and u == self.p.get("PREU", 8) and self.p["PRE"]:
                self.first_loads(0, self.p["PRE"], 0, self.p["PREL"])
            for k in range(4):
                r = 4 * u + k
                e(f"v_dot2_f32_bf16 v{112+(k&1)}, v{r}, s85, v{112+(k&1)}")
                e(f"v_lshlrev_b32 v{40+2*r}, 16, v{r}")
                e(f"v_dot2_f32_bf16 v{114+(k&1)}, v{r}, v{r}, v{114+(k&1)}")
                e(f"v_and_b32 v{41+2*r}, s86, v{r}")

    def layernorm(self):
        e = self.e
        self.stamp(14)
        e("s_nop 2\nv_add_f32 v112, v112, v113\nv_add_f32 v114, v114, v115\ns_nop 1")
        for m in ("quad_perm:[1,0,3,2]", "quad_perm:[2,3,0,1]", "row_half_mirror"):
            e(f"v_add_f32_dpp v112, v112, v112 {m} row_mask:0xf bank_mask:0xf")
            e(f"v_add_f32_dpp v114, v114, v114 {m} row_mask:0xf bank_mask:0xf\ns_nop 1")
        inv = f"{f2u(1.0/576):#x}"
        e(f"v_mul_f32 v112, {inv}, v112\nv_mul_f32 v114, {inv}, v114\nv_fma_f32 v114, -v112, v112, v114\nv_max_f32 v114, 0, v114")
        e(f"v_add_f32 v114, {f2u(1e-5):#x}, v114\nv_rsq_f32 v114, v114\ns_nop 0\nv_mul_f32 v114, {sNL2E}, v114\nv_mul_f32 v112, v112, v114")
        for u in range(9):
            for k in range(0, 8, 2 if self.p["PKLN"] else 1):
                r = 40 + 8 * u + k
                if self.p["PKLN"]:
                    e(f"v_pk_fma_f32 v[{r}:{r+1}], v[{r}:{r+1}], v[114:115], v[112:113] op_sel_hi:[1,0,0] neg_lo:[0,0,1] neg_hi:[0,0,1]")
                else:
                    e(f"v_fma_f32 v{r}, v{r}, v114, -v112")
            for k in range(4):
                e(f"v_cvt_pk_bf16_f32 v{4*u+k}, v{40+8*u+2*k}, v{41+8*u+2*k}")
            if u < 8:
                e(f"ds_write_b128 v123, v[{4*u}:{4*u+3}] offset:{8*CH*u}")
            else:
                e(f"ds_write_b128 v124, v[{4*u}:{4*u+3}] offset:{8*CH*7}")
        self.stamp(15)
        e(f"s_cmp_ge_u32 {sW}, 4\ns_cbranch_scc1 L_ATT")
        if self.p["TADDR"] in (1, 3):
            self.q_addresses()
        if self.p["TADDR"] == 1:
            self.tail_addresses()
        e("s_waitcnt lgkmcnt(0)\ns_barrier")

    def gemm(self, T, which, Tn):
        e = self.e
        vT = "v218" if which == 1 else "v219"
        sec = 256 if which == 1 else 512
        vD, SW, kstride = ("v216", SW1, 147456) if which == 1 else ("v217", SW2, 18432)

        def areg(buf, pc):
            return 160 + 20 * buf + 4 * pc

        def breg(buf, rt):
            return 200 + 8 * buf + 4 * rt

        def reads(s, pc):
            if pc < 2:
                e.lg(f"ds_read_b128 {vr(breg(s&1,pc),4)}, v220 offset:{512*pc}", ("B", s, pc))
            o = (s % 3) * 5120 + 1024 * pc
            e.lg(f"ds_read_b64_tr_b16 {vr(areg(s&1,pc),2)}, {vT} offset:{o}", ("A", s, pc))
            e.lg(f"ds_read_b64_tr_b16 {vr(areg(s&1,pc)+2,2)}, {vT} offset:{o+sec}", ("A", s, pc))

        def dma_list(s):
            sn = s + 3
            if sn < 36:
                return [(vD, SW, pc, ("d", sn, pc)) for pc in range(T)]
            if which == 1:
                return [("v217", SW2, pc, ("d2", sn - 36, pc)) for pc in range(Tn)]
            return []

        def step(s, first=False):
            dl = dma_list(s)
            if which == 1 and s == 33:
                e(f"s_mul_i32 {sK}, {sROT}, 18432")
            for gi in range(2 * T):
                pc, rt = gi >> 1, gi & 1
                mine = []
                if rt == 0:
                    mine = [d for d in dl if d[2] == pc or (pc == T - 1 and d[2] > pc)]
                e.wait(lg=[("A", s, pc), ("B", s, 0)] if gi == 0 else ([("B", s, 1)] if gi == 1 else [("A", s, pc)]))
                if mine:
                    e(f"s_add_u32 m0, {sRING}, {(s % 3)*5120 + 960*mine[0][2]}")
                acc = vr(16 * gi, 16)
                e(f"v_mfma_f32_32x32x16_bf16 {acc}, {vr(areg(s&1,pc),4)}, {vr(breg(s&1,rt),4)}, {'0' if first else acc}")
                for n, d in enumerate(mine):
                    if n:
                        e(f"s_add_u32 m0, {sRING}, {(s % 3)*5120 + 960*d[2]}\ns_nop 0")
                    e.vm(f"buffer_load_dwordx4 {d[0]}, {d[1]}, {sK} offen offset:{64*d[2]} lds", d[3])
                if rt == 1 and s + 1 < 36:
                    if pc == 0:
                        e(f"v_add_u32 v220, {sBO}, v223")
                    e.wait(vm=("d", s + 1, pc))
                    reads(s + 1, pc)
                if gi == 2 * T - 3 and s + 2 < 36:
                    self.wrap_inc(sBO, 2080, 36 * 2080)
            if s <= 32:
                self.wrap_inc(sK, kstride, 36 * kstride)
            elif which == 1:
                self.wrap_inc(sK, 18432, 36 * 18432)

        e.vmq = [("d", s, pc) for s in range(3) for pc in range(T)]
        e(f"s_mul_i32 {sBO}, {sROT}, 2080\nv_add_u32 v220, {sBO}, v223")
        self.wrap_inc(sBO, 2080, 36 * 2080)
        e.wait(vm=("d", 0, T - 1))
        e.lgq = []
        for pc in range(T):
            reads(0, pc)
        main = e.lines
        texts = []
        for s in range(36):
            e.lines = []
            step(s, first=(s == 0))
            texts.append(e.lines)
        e.lines = main
        for s in range(1, 27):
            assert texts[s] == texts[s + 6], (s, texts[s], texts[s + 6])
        tag = f"G{which}T{T}"
        e.lines += texts[0]
        e(f"s_mov_b32 {sCNT}, 0\ns_branch L_{tag}_1")
        e(".p2align 3")
        e.label(f"L_{tag}_3")
        if self.p["STAMP"] > 1:
            e(f"s_memrealtime s[88:89]\ns_memtime s[90:91]\ns_add_u32 m0, {sCNT}, {8*which+8}\ns_waitcnt lgkmcnt(0)\nv_writelane_b32 v255, s88, m0\nv_writelane_b32 v254, s90, m0")
        for s in (3, 4, 5, 6):
            e.lines += texts[s]
        e.label(f"L_{tag}_1")
        e.lines += texts[7] + texts[8]
        e(f"s_add_u32 {sCNT}, {sCNT}, 1\ns_cmp_lt_u32 {sCNT}, 6\ns_cbranch_scc1 L_{tag}_3")
        for s in (33, 34, 35):
            e.lines += texts[s]

    def silu(self, T):
        e = self.e
        for g in range(4 * T):
            b = 8 * g
            t = 160 + 8 * (g & 1)
            for k in range(8):
                e(f"v_exp_f32 v{t+k}, v{b+k}")
            pk = self.p["PKSILU"]
            for k in range(0, 8, 2 if pk else 1):
                e(f"v_pk_add_f32 v[{t+k}:{t+k+1}], v[{t+k}:{t+k+1}], 1.0 op_sel_hi:[1,0]" if pk else f"v_add_f32 v{t+k}, 1.0, v{t+k}")
            for k in range(8):
                e(f"v_rcp_f32 v{t+k}, v{t+k}")
            for k in range(0, 8, 2 if pk else 1):
                e(f"v_pk_mul_f32 v[{t+k}:{t+k+1}], v[{b+k}:{b+k+1}], v[{t+k}:{t+k+1}]" if pk else f"v_mul_f32 v{t+k}, v{b+k}, v{t+k}")
            for k in range(4):
                e(f"v_cvt_pk_bf16_f32 v{b+k}, v{t+2*k}, v{t+2*k+1}")

    def q_out(self):
        e = self.e
        c = f"{f2u(1.0 / (math.log2(math.e) * math.sqrt(18.0))):#x}"
        if self.p["TADDR"] == 2:
            self.q_addresses()
        e(f"s_mov_b32 {T3}, {c}")
        self.lds_wait(C_A, 4, "v252", "v253")
        e.nop(5)
        for r in range(128, 160):
            e(f"v_mul_f32 v{r}, {T3}, v{r}")
        for k in range(16):
            e(f"v_cvt_pk_bf16_f32 v{128+k}, v{128+2*k}, v{129+2*k}")
        for rt in range(2):
            for pp in range(8):
                e.lg(f"ds_write_b32 v{196+pp}, v{128+8*rt+pp} offset:{1536*rt}")
        e.wait_all(lg=True)
        self.arrive(C_B, "v252", "v253")

    def qaddr(self, dst, vc, cadd, vbase, t0, t1):
        e = self.e
        e(f"v_add_u32 {t0}, {cadd}, {vc}\nv_mul_u32_u24 {t1}, 3641, {t0}\nv_lshrrev_b32 {t1}, 16, {t1}")
        e(f"v_mul_u32_u24 {dst}, 18, {t1}\nv_sub_u32 {t0}, {t0}, {dst}\nv_mul_u32_u24 {dst}, 3072, {t1}\nv_lshrrev_b32 {t1}, 3, {t0}\nv_lshl_add_u32 {dst}, {t1}, 9, {dst}")
        e(f"v_and_b32 {t0}, 7, {t0}\nv_lshl_add_u32 {dst}, {t0}, 1, {dst}\nv_add_u32 {dst}, {vbase}, {dst}")

    def ffn_path(self, T1_, T2_):
        e, p = self.e, self.p
        if T1_ == 4:
            self.q_gemm()
            self.q_out()
            self.stamp(13)
        self.gemm(T1_, 1, T2_)
        self.arrive(C_XN, "v252", "v253")
        self.stamp(3)
        if p["WARMO"]:
            nsl = p["NSL"]
            rows = 18 * nsl
            e(f"s_lshl_b32 {T0}, {sW}, 6\nv_add_u32 v176, {T0}, {vL}\nv_lshrrev_b32 v177, 2, v176\nv_and_b32 v178, 3, v176\nv_mul_u32_u24 v177, 1152, v177")
            e(f"v_cmp_gt_u32 vcc, {4*rows}, v176\nv_mul_u32_u24 v178, 52, v178\nv_add_u32 v177, v177, v178\nv_mov_b32 v178, {OOB}\nv_cndmask_b32 v177, v178, v177, vcc")
            e(f"s_and_b32 {T1}, {sRB}, {32//nsl - 1}\ns_mul_i32 {T1}, {T1}, {rows*1152}\ns_mul_i32 {T0}, {sJ}, 144\ns_add_u32 {T1}, {T1}, {T0}")
            e(f"buffer_load_dword v230, v177, {SWO}, {T1} offen")
        e.nop(2)
        self.silu(T1_)
        self.stamp(4)
        self.lds_wait(C_XN, 8, "v252", "v253")
        for u in range(2 * T1_):
            pc, rt = u >> 1, u & 1
            for hf in range(2):
                e.lg(f"ds_write_b128 v221, {vr(16*u+8*hf,4)} offset:{(4*pc+2*hf)*CH + 512*rt}")
        e.wait_all(lg=True)
        self.arrive(C_H, "v252", "v253")
        self.lds_wait(C_H, 4, "v252", "v253")
        self.stamp(5)
        self.gemm(T2_, 2, 0)
        self.arrive(C_G2, "v252", "v253")
        if p["PRIO_T"] != p["PRIO_F"]:
            e(f"s_setprio {p['PRIO_T']}")
        self.stamp(6)
        if p["SENT"] and T2_ == 4:
            e(f"s_lshl_b32 {T0}, {sJ}, 13\ns_lshl_b32 {T1}, {sW}, 12\ns_add_u32 {T0}, {T0}, {T1}\ns_add_u32 {T0}, {T0}, {sAR}\ns_add_u32 {T0}, {T0}, {OM}")
            e(f"s_lshl_b32 {T1}, {sJ}, 10\ns_add_u32 {T1}, {T1}, {sAR}\ns_add_u32 {T1}, {T1}, {OX}\nv_lshlrev_b32 v168, 4, {vL}")
            e("v_mov_b32 v172, -1\nv_mov_b32 v173, -1\nv_mov_b32 v174, -1\nv_mov_b32 v175, -1")
            for q in range(4):
                e(f"buffer_store_dwordx4 v[172:175], v168, {SWS}, {T0} offen offset:{1024*q} sc1")
            e(f"buffer_store_dwordx4 v[172:175], v168, {SWS}, {T1} offen sc1")
        e.nop(2)
        for u in range(2 * T2_):
            pc, rt = u >> 1, u & 1
            b = 16 * u
            for k in range(8):
                e(f"v_cvt_pk_bf16_f32 v{b+k}, v{b+2*k}, v{b+2*k+1}")
            e(f"s_mov_b32 {T0}, {(4*pc)*8192}\ns_mov_b32 {T1}, {(4*pc+2)*8192}")
            e(f"v_permlane32_swap_b32 v{b}, v{b+2}\nv_permlane32_swap_b32 v{b+1}, v{b+3}")
            e(f"v_permlane32_swap_b32 v{b+4}, v{b+6}\nv_permlane32_swap_b32 v{b+5}, v{b+7}")
            e.vm(f"buffer_store_dwordx4 {vr(b,4)}, v222, {SWS}, {T0} offen offset:{512*rt} sc1", "pst")
            e.vm(f"buffer_store_dwordx4 {vr(b+4,4)}, v222, {SWS}, {T1} offen offset:{512*rt} sc1", "pst")
            if p["PACE"]:
                e(f"s_waitcnt vmcnt({p['PACE']})")

    def ffn(self):
        e, p = self.e, self.p
        if p["W1LATE"] == 4:
            self.first_loads(p["PRE"], 15, p["PREL"], 15)
        self.stamp(2)
        if p["PRIO_F"]:
            e(f"s_setprio {p['PRIO_F']}")
        e(f"s_cmp_ge_u32 {sW}, 2\ns_cbranch_scc1 L_FFN_L")
        self.ffn_path(5, 4)
        e("s_branch L_FFN_J")
        e.label("L_FFN_L")
        self.ffn_path(4, 5)
        e.label("L_FFN_J")
        e("s_setprio 0")
        self.stamp(7)
        self.ffn_tail()

    def partials_dyn(self):
        e, p = self.e, self.p
        for r in range(20):
            e(f"v_mov_b32 v{r}, 0")
        e(f"s_add_u32 {T3}, {sAR}, {FLAGS + F_P}\ns_mov_b32 {T4}, 0x55")
        e(f"v_and_b32 v231, 7, {vL}\nv_lshlrev_b32 v231, 3, v231\ns_mov_b32 {sSPIN}, 0")
        e.label("L_PD_POLL")
        e(f"buffer_load_dwordx2 v[252:253], v231, {SWS}, {T3} offen sc1\ns_waitcnt vmcnt(0)")
        e(f"v_xor_b32 v252, {sN0}, v252\nv_xor_b32 v253, {sN1}, v253\nv_or_b32 v252, v252, v253\nv_cmp_eq_u32 vcc, 0, v252\ns_add_u32 {sSPIN}, {sSPIN}, 1\ns_nop 1")
        e(f"s_lshr_b32 {T2}, vcc_lo, 1\ns_and_b32 {T2}, {T2}, vcc_lo\ns_cmp_ge_u32 {sSPIN}, {p['SPIN']}\ns_cselect_b32 {T2}, -1, {T2}\ns_and_b32 {T2}, {T2}, {T4}\ns_cbranch_scc1 L_PD_GO\ns_sleep 4\ns_branch L_PD_POLL")
        e.label("L_PD_GO")
        e(f"s_ff1_i32_b32 {T1}, {T2}\ns_bitset0_b32 {T2}, {T1}\ns_bitset0_b32 {T4}, {T1}\ns_lshl_b32 {T1}, {T1}, 10")
        e.vmq = []
        for a in range(5):
            e(f"s_add_u32 {T0}, {T1}, {a*16384}")
            e.vm(f"buffer_load_dwordx4 {vr(20+4*a,4)}, {'v240' if a < 4 else 'v241'}, {SWS}, {T0} offen sc1", ("pl", a))
        for a in range(5):
            e.wait(vm=("pl", a))
            e(f"v_mfma_f32_16x16x32_bf16 {vr(4*a,4)}, {vr(232 if a < 4 else 236,4)}, {vr(20+4*a,4)}, {vr(4*a,4)}")
        e(f"s_cmp_lg_u32 {T2}, 0\ns_cbranch_scc1 L_PD_GO\ns_cmp_lg_u32 {T4}, 0\ns_cbranch_scc1 L_PD_POLL")
        self.stamp(8)

    def ffn_tail(self):
        e, p = self.e, self.p
        e.vmq = ["pst"]
        if p["TADDR"] >= 2:
            self.tail_addresses()
        e(f"s_mul_i32 {T2}, {sW}, 5\ns_cmp_eq_u32 {sW}, 3\ns_cselect_b32 {T2}, 14, {T2}")
        e(f"s_mul_i32 {T3}, {T2}, 5120\ns_mul_i32 {T2}, {T2}, 36864\ns_mul_i32 {T4}, {sJ}, 144\ns_add_u32 {T2}, {T2}, {T4}")
        e("s_waitcnt vmcnt(0)")
        self.arrive(C_P, "v252", "v253", rtn=T4)
        self.get_nonce("v231", 252)
        e(f"s_cmp_lg_u32 {T4}, 3\ns_cbranch_scc1 L_NOPF")
        self.flag_set(F_P, sJ, "v231", 252)
        e.label("L_NOPF")
        self.lds_wait(C_G2, 4, "v252", "v253")
        e(f"s_lshr_b32 {sCNT}, {sW}, 1")
        e.label("L_WO_L")
        for i in range(5):
            e(f"s_add_u32 m0, {T3}, {i*1024}\ns_nop 0")
            e(f"buffer_load_dwordx4 v{225+i}, {SWO}, {T2} offen lds")
        e(f"s_add_u32 {T3}, {T3}, 5120\ns_add_u32 {T2}, {T2}, 36864\ns_add_u32 {sCNT}, {sCNT}, 1\ns_waitcnt vmcnt({p['PACE3']})\ns_cmp_lt_u32 {sCNT}, 5\ns_cbranch_scc1 L_WO_L")
        e.label("L_WO_D")
        for a in range(5):
            e.vm(f"buffer_load_dwordx4 {vr(92+4*a,4)}, {'v242' if a < 4 else 'v243'}, {SX}, 0 offen offset:{32*a}", ("xr", a))
        e.wait_all(vm=True)
        self.arrive(C_WO, "v252", "v253")
        self.partials_dyn()
        self.lds_wait(C_WO, 4, "v252", "v253")
        e(f"s_mov_b32 {T0}, {f2u(-math.log(2.0)):#x}")
        for r in range(20):
            e(f"v_mul_f32 v{r}, {T0}, v{r}")
            if p["X_BIAS"]:
                e(f"v_add_f32 v{r}, {f2u(p['X_BIAS']*1e-4):#x}, v{r}")
        for a in range(5):
            e(f"v_mfma_f32_16x16x32_bf16 {vr(4*a,4)}, {vr(232 if a < 4 else 236,4)}, {vr(92+4*a,4)}, {vr(4*a,4)}")

        sG = ("s74", "s75", "s76", "s97")
        vG = ("v225", "v226", "v227", "v228")
        for b in range(4):
            e(f"s_lshr_b32 {T0}, {sJ}, 1\ns_add_u32 {T0}, {T0}, {b+p['OROT']}\ns_and_b32 {T0}, {T0}, 3\ns_lshl_b32 {sG[b]}, {T0}, 14\ns_mul_i32 {T0}, {T0}, 23040\nv_add_u32 {vG[b]}, {T0}, v248")

        def aop(i):
            kk, t = divmod(i, 5)
            r = 92 + 4 * (i % 33)
            if kk < 16:
                va, o, sec = vG[kk >> 2], (kk & 3) * 5760 + 32 * t, 1280
            else:
                va, o, sec = "v251", (kk - 16) * 46080 + 32 * t, 5760
            e.lg(f"ds_read_b64_tr_b16 {vr(r,2)}, {va} offset:{o}", ("a", i))
            e.lg(f"ds_read_b64_tr_b16 {vr(r+2,2)}, {va} offset:{o+sec}", ("a", i))
        e.nop(4)
        for i in range(33):
            aop(i)
        e.wait_all(lg=True)
        self.stamp(9)

        def oload(kk, track=True):
            if kk < 16:
                e(f"s_add_u32 {T0}, {sG[kk >> 2]}, {(kk & 3)*4096}")
            else:
                e(f"s_mov_b32 {T0}, {(kk - 16)*4096}")
            ins = f"buffer_load_dwordx4 {vr(20+4*kk,4)}, {'v246' if kk < 16 else 'v247'}, {SWS}, {T0} offen sc1"
            e.vm(ins, ("o", kk)) if track else e(ins)

        def ocheck(kk):
            b = 20 + 4 * kk
            return [f"v_max3_u32 v252, v{b}, v{b+1}, v{b+2}", f"v_max_u32 v252, v252, v{b+3}", "v_cmp_eq_u32 vcc, -1, v252"]
        om = p["OMODE"]
        if om in (0, 4):
            self.lds_wait(C_O, 4, "v252", "v253", sleep=2)
            self.flag_wait(F_O, 32, "v241", 252)
        else:
            e(f"v_bfe_u32 v241, {vL}, 2, 3\nv_lshlrev_b32 v241, 10, v241\nv_and_b32 v252, 3, {vL}\nv_lshl_add_u32 v241, v252, 2, v241\ns_add_u32 {T2}, {sAR}, {OX + 1008}")
            self.lds_wait(C_O, 4, "v252", "v253", sleep=2)
            if om == 1:
                e(f"s_mov_b32 {sSPIN}, 0")
                e.label("L_HINT")
                e(f"buffer_load_dword v252, v241, {SWS}, {T2} offen sc1\ns_waitcnt vmcnt(0)\nv_cmp_eq_u32 vcc, -1, v252\ns_add_u32 {sSPIN}, {sSPIN}, 1\ns_nop 3")
                e(f"s_cbranch_vccz L_HINT_D\ns_cmp_lt_u32 {sSPIN}, {p['SPIN']}\ns_cbranch_scc1 L_HINT")
                e.label("L_HINT_D")
        e(f"s_mov_b32 {sSPIN}, 0")
        self.stamp(10)
        e.vmq = []
        for kk in range(18):
            oload(kk)
        e.wait(vm=("o", 0))
        e("\n".join(ocheck(0)) + "\ns_nop 4")
        for i in range(90):
            kk, t = divmod(i, 5)
            if t == 0:
                e(f"s_cbranch_vccnz L_OS_{kk}")
                e.label(f"L_OR_{kk}")
                if p["STAMP"] > 1 and kk in (0, 4, 8, 12, 16):
                    e(f"s_memrealtime s[88:89]\ns_waitcnt lgkmcnt(0)\nv_writelane_b32 v255, s88, {40 + kk // 4}\nv_writelane_b32 v254, {sSPIN}, {40 + kk // 4}")
                    e.lgq = []
            e.wait(vm=("o", kk), lg=("a", i))
            e(f"v_mfma_f32_16x16x32_bf16 {vr(4*t,4)}, {vr(92+4*(i % 33),4)}, {vr(20+4*kk,4)}, {vr(4*t,4)}")
            if i >= 1 and i - 1 + 33 < 90:
                aop(i - 1 + 33)
            if t < 3 and kk < 17:
                e.wait(vm=("o", kk + 1))
                e(ocheck(kk + 1)[t])
        main, e.lines = e.lines, []
        for kk in range(18):
            e.label(f"L_OS_{kk}")
            allk = om == 2
            for k2 in range(kk, (kk | 3) + 1 if kk < 16 and not allk else 18):
                oload(k2, track=False)
            e(f"s_add_u32 {sSPIN}, {sSPIN}, 1\ns_waitcnt vmcnt({17 - kk if allk else 0})")
            e("\n".join(ocheck(kk)) + f"\ns_cmp_ge_u32 {sSPIN}, {p['SPIN']}\ns_nop 3\ns_cbranch_scc1 L_OR_{kk}\ns_cbranch_vccz L_OR_{kk}\ns_sleep {p['OSLEEP']}\ns_branch L_OS_{kk}")
        self.stubs = e.lines
        e.lines = main
        e.nop(8)
        for t in range(5):
            e(f"v_cvt_pk_bf16_f32 v{20+2*t}, v{4*t}, v{4*t+1}\nv_cvt_pk_bf16_f32 v{21+2*t}, v{4*t+2}, v{4*t+3}")
        e("v_permlane16_swap_b32 v20, v22\nv_permlane16_swap_b32 v21, v23\nv_permlane16_swap_b32 v24, v26\nv_permlane16_swap_b32 v25, v27")
        fl = ("", " sc1", " nt", " sc0 sc1")[p["OUTF"]]
        e(f"buffer_store_dwordx4 v[20:23], v244, {SOUT}, 0 offen{fl}")
        e(f"buffer_store_dwordx4 v[24:27], v244, {SOUT}, 0 offen offset:64{fl}")
        e(f"buffer_store_dwordx2 v[28:29], v245, {SOUT}, 0 offen offset:128{fl}")
        self.stamp(11)
        e("s_branch L_FIN")
        e.lines += getattr(self, "stubs", [])

    def att_proj(self):
        e, p = self.e, self.p
        c = f"{f2u(1.0 / (math.log2(math.e) * math.sqrt(18.0))):#x}"
        early = p["KVEARLY"]
        e("s_waitcnt vmcnt(0) lgkmcnt(0)\ns_barrier" if early else "s_waitcnt lgkmcnt(0)\ns_barrier")
        e.vmq, e.lgq = [], []
        self.stamp(2)
        e(f"s_setprio {p['PRIO_P']}")
        e(f"v_mov_b32 v246, 0\nbuffer_load_dwordx2 v[248:249], v246, {SDBG}, 0 offen sc1")
        if early or p["EXTU"] < 0:
            self.pro_att()
        e(f"v_and_b32 v200, 15, {vL}\nv_lshrrev_b32 v201, 4, {vL}\nv_bfe_u32 v202, {vL}, 2, 2\nv_and_b32 v203, 3, {vL}")
        e(f"v_lshl_add_u32 v204, v201, 3, v202\nv_lshlrev_b32 v204, 4, v204\nv_and_b32 v205, 1, v203\nv_lshl_add_u32 v204, v205, 3, v204")
        e(f"v_add_u32 v216, {QE}, v204\nv_add_u32 v204, {KVW}, v204")
        if not early:
            e(f"v_cmp_gt_u32 vcc, 2, v203\ns_nop 1\nv_cndmask_b32 v204, v204, v216, vcc")
        e(f"v_mul_u32_u24 v205, {CH}, v201\nv_lshl_add_u32 v205, v200, 4, v205\nv_add_u32 v206, {9*4*CH}, v205")
        e(f"s_lshl_b32 {T0}, {sA}, 8\nv_add_u32 v207, {T0}, v205\nv_add_u32 v208, {T0}, v206")
        if not early:
            e.wait_all(vm=True, lg=True)
            self.arrive(C_E, "v246", "v247")
            self.lds_wait(C_E, 4, "v246", "v247")
        self.stamp(10)

        def ext_reads(kk):
            r = 8 * kk
            e.lg(f"ds_read_b64_tr_b16 {vr(r,2)}, v204 offset:{512*kk}", ("e", kk))
            e.lg(f"ds_read_b64_tr_b16 {vr(r+2,2)}, v204 offset:{512*kk+64}", ("e", kk))
            e.lg(f"ds_read_b128 {vr(r+4,4)}, {'v207' if kk < 9 else 'v208'} offset:{4*CH*(kk % 9)}", ("e", kk))
        for kk in range(5):
            ext_reads(kk)
        for kk in range(18):
            e.wait(lg=("e", kk))
            r = 8 * kk
            e(f"v_mfma_f32_16x16x32_bf16 v[144:147], {vr(r,4)}, {vr(r+4,4)}, {'0' if kk == 0 else 'v[144:147]'}")
            e(f"v_mfma_f32_16x16x32_bf16 v[148:151], {vr(r+4,4)}, {vr(r,4)}, {'0' if kk == 0 else 'v[148:151]'}")
            if kk + 5 < 18:
                ext_reads(kk + 5)
        if not early:
            self.arrive(C_A, "v246", "v247")
        e(f"s_lshr_b32 {T2}, {sA}, 1\ns_lshl_b32 {T3}, {sRB}, 1\ns_add_u32 {T2}, {T2}, {T3}\ns_and_b32 {T3}, {sA}, 1")
        e(f"s_lshl_b32 {T4}, {T3}, 4\nv_add_u32 v209, {T4}, v200\nv_mov_b32 v210, {OOB}")
        e("v_cvt_pk_bf16_f32 v152, v144, v145\nv_cvt_pk_bf16_f32 v153, v146, v147\nv_cvt_pk_bf16_f32 v154, v148, v149\nv_cvt_pk_bf16_f32 v155, v150, v151")
        e(f"s_cmp_ge_u32 {sJ}, 6\ns_cbranch_scc1 L_KV_D\ns_cmp_ge_u32 {sJ}, 3\ns_cbranch_scc1 L_KV_V\ns_cmp_eq_u32 {sJ}, 2\ns_cbranch_scc1 L_KV_X")
        e(f"s_mul_i32 {T0}, {T2}, {KREC}\ns_lshl_b32 {T1}, {sJ}, 9\ns_add_u32 {T0}, {T0}, {T1}")
        e("v_lshlrev_b32 v211, 4, v209\nv_and_b32 v212, 1, v201\nv_lshl_add_u32 v211, v212, 3, v211\nv_cmp_le_u32 vcc, 2, v201\ns_nop 1\nv_cndmask_b32 v211, v210, v211, vcc")
        e(f"buffer_store_dwordx2 v[152:153], v211, {SWS}, {T0} offen sc1\ns_branch L_KV_D")
        e.label("L_KV_X")
        e(f"s_mul_i32 {T0}, {T2}, {KREC}\ns_add_u32 {T0}, {T0}, {KX}")
        e("v_lshlrev_b32 v211, 2, v209\nv_cmp_eq_u32 vcc, 3, v201\ns_nop 1\nv_cndmask_b32 v211, v210, v211, vcc")
        e(f"buffer_store_dword v153, v211, {SWS}, {T0} offen sc1\ns_branch L_KV_D")
        e.label("L_KV_V")
        e(f"s_sub_u32 {T0}, {sJ}, 3\ns_lshl_b32 {T0}, {T0}, 3\ns_min_u32 {T0}, {T0}, 10\ns_cmp_eq_u32 {sJ}, 5\ns_cselect_b32 {T1}, 14, 8")
        e(f"v_add_u32 v211, {T0}, v200\nv_lshrrev_b32 v212, 1, v201\nv_mul_u32_u24 v212, 18, v212\nv_add_u32 v211, v211, v212\nv_lshlrev_b32 v211, 4, v211")
        e(f"v_and_b32 v212, 1, v201\nv_lshl_add_u32 v211, v212, 3, v211\nv_cmp_le_u32 vcc, {T1}, v200\ns_nop 1\nv_cndmask_b32 v211, v210, v211, vcc")
        e(f"s_mul_i32 {T0}, {T2}, {KREC}\ns_mul_i32 {T1}, {T3}, 576\ns_add_u32 {T0}, {T0}, {T1}\ns_add_u32 {T0}, {T0}, {VT-128}")
        e(f"buffer_store_dwordx2 v[154:155], v211, {SWS}, {T0} offen sc1")
        e.label("L_KV_D")
        e(f"s_mov_b32 {sSPIN}, 0")
        e.label("L_TAG_P")
        e(f"s_waitcnt vmcnt(0)\nv_readfirstlane_b32 {sN0}, v248\nv_readfirstlane_b32 {sN1}, v249\ns_add_u32 {sSPIN}, {sSPIN}, 1")
        e(f"s_sub_u32 {T0}, {sT0}, {sN0}\ns_cmp_gt_i32 {T0}, 3000\ns_cselect_b32 {T0}, 0, {sN0}\ns_cmp_ge_u32 {sSPIN}, 256\ns_cselect_b32 {T0}, {sN0}, {T0}\ns_cmp_lg_u32 {T0}, 0\ns_cbranch_scc1 L_TAG_Q")
        e(f"v_mov_b32 v246, 0\nbuffer_load_dwordx2 v[248:249], v246, {SDBG}, 0 offen sc1\ns_cmp_lt_u32 {sSPIN}, {p['SPIN']}\ns_cbranch_scc1 L_TAG_P")
        e.label("L_TAG_Q")
        e.vmq = []
        e(f"v_mov_b32 v246, {NONCE}\nds_write_b64 v246, v[248:249]\ns_waitcnt lgkmcnt(0)")
        self.kv_flag()
        if early:
            self.arrive(C_E, "v246", "v247")
        self.arrive(C_XN, "v246", "v247")
        if early:
            self.lds_wait(C_E, 4, "v246", "v247")
            for kk in range(18):
                e.lg(f"ds_read_b64_tr_b16 {vr(8*kk,2)}, v216 offset:{512*kk}", ("e2", kk))
                e.lg(f"ds_read_b64_tr_b16 {vr(8*kk+2,2)}, v216 offset:{512*kk+64}", ("e2", kk))
                if kk >= 6:
                    e.wait(lg=("e2", kk - 6))
                    r = 8 * (kk - 6)
                    e(f"v_mfma_f32_16x16x32_bf16 v[144:147], {vr(r,4)}, {vr(r+4,4)}, {'0' if kk == 6 else 'v[144:147]'}")
            for kk in range(12, 18):
                e.wait(lg=("e2", kk))
                e(f"v_mfma_f32_16x16x32_bf16 v[144:147], {vr(8*kk,4)}, {vr(8*kk+4,4)}, v[144:147]")
            self.arrive(C_A, "v246", "v247")
            e.nop(3)
        e(f"v_mul_f32 v144, {c}, v144\nv_mul_f32 v145, {c}, v145\nv_mul_f32 v146, {c}, v146\nv_mul_f32 v147, {c}, v147")
        e("v_cvt_pk_bf16_f32 v144, v144, v145\nv_cvt_pk_bf16_f32 v145, v146, v147")
        e(f"s_lshr_b32 {T3}, {sA}, 1\ns_mul_i32 {T3}, {T3}, 1536\ns_and_b32 {T4}, {sA}, 1\ns_lshl_b32 {T4}, {T4}, 8\ns_add_u32 {T3}, {T3}, {T4}\ns_add_u32 {T3}, {T3}, {ATT}")
        e(f"v_lshl_add_u32 v214, v200, 4, {T3}\nv_lshlrev_b32 v215, 2, v201")
        self.qaddr("v82", "v215", 64, "v214", "v212", "v213")
        self.qaddr("v83", "v215", 66, "v214", "v212", "v213")
        self.lds_wait(C_A, 4, "v246", "v247")
        e("s_mov_b32 exec_hi, 0")
        e.lg("ds_write_b32 v82, v144")
        e.lg("ds_write_b32 v83, v145")
        e("s_mov_b64 exec, -1")
        self.stamp(3)
        e.wait_all(lg=True)
        self.arrive(C_B, "v246", "v247")
        self.stamp(4)
        for r in range(192, 210):
            e(f"v_mov_b32 v{r}, 0")
        for b in (218, 222):
            e(f"v_mov_b32 v{b+1}, 0x3f803f80\nv_mov_b32 v{b+2}, 0\nv_mov_b32 v{b+3}, 0")
        e(f"v_and_b32 v246, 31, {vL}\nv_mov_b32 v247, 0x3f803f80\nv_cmp_eq_u32 vcc, 18, v246\ns_mov_b32 s82, 0x3ffff\ns_mov_b32 s83, 0x3ffff")
        for r in range(226, 242):
            e(f"v_cndmask_b32 v{r}, 0, v247, vcc")
        e("v_mov_b32 v242, 0xdddddddd")
        d = p["KSPLIT"]
        e(f"s_mul_i32 {T2}, {sA}, {16+d}\ns_cmp_eq_u32 {sA}, 3\ns_cselect_b32 {T2}, {48+d}, {T2}\ns_cmp_ge_u32 {sA}, 2\ns_cselect_b32 {sNT}, {16-d}, {16+d}\ns_lshr_b32 {sNL}, {sNT}, 1")
        e(f"s_mul_i32 {T0}, {T2}, {KREC}\ns_mul_i32 {sKT[1]}, {sNT}, {KREC}\nv_lshl_add_u32 v243, {vL}, 4, {T0}\nv_lshl_add_u32 v244, v246, 2, {T0}")
        e(f"s_nop 0\nv_lshrrev_b32 v245, 5, {vL}\nv_mul_u32_u24 v245, 18, v245\nv_add_u32 v245, v245, v246\nv_lshl_add_u32 v245, v245, 4, {T0}")
        e(f"s_setprio {p['PRIO_A']}")
        self.zero_acc()
        self.lds_wait(C_B, 6, "v247", "v248", sleep=4)
        for i2 in range(4):
            e(f"s_add_u32 {T0}, {sA}, {1+i2}\ns_and_b32 {T0}, {T0}, 3\ns_mul_i32 {T0}, {T0}, 3072\ns_add_u32 {T0}, {T0}, {ATT}")
            e(f"v_lshl_add_u32 v{128+i2}, {vL}, 4, {T0}")
            for rt in range(2):
                e.lg(f"ds_read_b128 {vr(160+4*(2*i2+rt),4)}, v{128+i2} offset:{1536*rt}")
        e("s_mov_b32 exec_hi, 0")
        for i2 in range(4):
            for rt in range(2):
                e.lg(f"ds_read_b32 v{192+2*(2*i2+rt)}, v{128+i2} offset:{1536*rt+1024}")
        e("s_mov_b64 exec, -1")
        e.wait_all(lg=True)
        e(f"v_lshrrev_b32 v247, 3, {vL}\nv_mul_u32_u24 v247, {ASZ}, v247\nv_and_b32 v248, 7, {vL}\nv_lshl_add_u32 v247, v248, 3, v247")
        e(f"s_mul_i32 {T2}, {sA}, {8*ASZ}\ns_add_u32 {T2}, {T2}, {ARENA + FLAGS + F_KV}")
        self.flag_poll("v247", T2, 248, sleep=p["G1SLEEP"])
        self.arrive(C_G1, "v247", "v248")
        self.lds_wait(C_G1, 4, "v247", "v248")
        if p["X_SEQ"]:
            self.lds_wait((C_G2, C_H, C_XN)[p["X_SEQ"] - 1], (4, 4, 8)[p["X_SEQ"] - 1], "v247", "v248", sleep=8)
        e(f"s_setprio {p['PRIO_A']}")
        self.stamp(5)

    def kv_flag(self):
        e = self.e
        self.arrive(C_KV, "v246", "v247", rtn=T2)
        e(f"s_cmp_lg_u32 {T2}, 3\ns_cbranch_scc1 L_NOG1")
        self.flag_set(F_KV, sJ, "v246", 248)
        e.label("L_NOG1")

    def send_addr(self):
        e = self.e
        for i2 in range(3):
            e(f"s_add_u32 {T0}, {sA}, {1+i2}\ns_and_b32 {T0}, {T0}, 3\ns_mul_i32 {T0}, {T0}, {6*OSL}\ns_add_u32 {T0}, {T0}, {OXA + 2*i2*OSL}")
            e(f"v_lshl_add_u32 v{246+i2}, {vL}, 4, {T0}")

    def zero_acc(self):
        for r in list(range(128)) + list(range(152, 160)):
            self.e(f"v_mov_b32 v{r}, 0")

    def o_addr(self, vm_, vx, vt):
        e = self.e
        e(f"v_and_b32 {vx}, 31, {vL}\nv_lshrrev_b32 {vt}, 5, {vL}\ns_lshl_b32 {T0}, {sJ}, 2\ns_add_u32 {T0}, {T0}, {sA}\ns_lshl_b32 {T0}, {T0}, 11")
        e(f"s_add_u32 {T0}, {T0}, {sAR}\ns_add_u32 {T0}, {T0}, {OM}\nv_lshl_add_u32 {vm_}, {vx}, 4, {T0}\nv_lshl_add_u32 {vm_}, {vt}, 10, {vm_}")
        e(f"s_lshl_b32 {T1}, {sJ}, 10\ns_add_u32 {T0}, {sAR}, {T1}\ns_lshl_b32 {T1}, {sA}, 2\ns_add_u32 {T0}, {T0}, {T1}\ns_add_u32 {T0}, {T0}, {OX}")
        e(f"v_lshl_add_u32 {vx}, {vx}, 4, {T0}")

    def kvload(self, buf, what, step=True):
        e = self.e
        if what == "k":
            e.vm(f"buffer_load_dwordx4 {vr(210+4*buf,4)}, v243, {SWS}, {sKT[0]} offen sc1", ("k", buf))
            e.vm(f"buffer_load_dword v{218+4*buf}, v244, {SWS}, {sKT[0]} offen offset:{KX} sc1", ("k", buf))
        else:
            e(f"s_mov_b64 exec, {sVM}")
            e.vm(f"buffer_load_dwordx4 {vr(226+8*buf,4)}, v245, {SWS}, {sKT[0]} offen offset:{VT} sc1", ("v", buf))
            e.vm(f"buffer_load_dwordx4 {vr(230+8*buf,4)}, v245, {SWS}, {sKT[0]} offen offset:{VT+576} sc1", ("v", buf))
            e("s_mov_b64 exec, -1")
            self.wrap_inc(sKT[0], KREC, sKT[1])

    def qk(self, i, buf, which, S=None):
        S = vr(128 + 16 * (i & 1), 16) if S is None else S
        if which == 0:
            self.e(f"v_mfma_f32_32x32x16_bf16 {S}, {vr(210+4*buf,4)}, {vr(160+4*i,4)}, 0")
        else:
            self.e(f"v_mfma_f32_32x32x16_bf16 {S}, {vr(218+4*buf,4)}, {vr(192+2*i,4)}, {S}")

    def pv(self, i, buf, s):
        self.e(f"v_smfmac_f32_32x32x32_bf16 {vr(16*i,16)}, {vr(226+8*buf+4*s,4)}, {vr(128+16*(i & 1)+8*s,8)}, v242")

    def att_tile(self, buf, first=False, last=False, sig=False):
        e = self.e

        def send(i):
            for hf in range(2):
                e.lg(f"ds_write_b128 v{246+(i >> 1)}, {vr(16*i+4*hf,4)} offset:{(i & 1)*OSL + 1024*hf}")
        for i in range(8):
            S = 128 + 16 * (i & 1)

            pat = self.p["EXPAT"]
            c1, c2 = ((5, 8), (5, 8), (6, 10), (5, 9))[pat]

            def ex(a, b):
                for k in range(a, b):
                    wide = pat in (1, 3) and (b - a) % 2 == 1 and k == a
                    e(f"v_exp_f32{'_e64' if wide else ''} v{S+k}, v{S+k}")
            ex(0, 2)
            if i > 0:
                self.pv(i - 1, buf, 1)
            else:
                self.pv(7, buf ^ 1, 1)
            if i == 0 and not last:
                self.kvload(buf ^ 1, "v")
                if sig and not self.p["TRIM"]:
                    e(f"s_cmp_lg_u32 {sCNT}, 1\ns_cbranch_scc1 L_NOSIG")
                    self.arrive(C_L, "v246", "v247")
                    e.label("L_NOSIG")
            ex(2, c1)
            nxt = (i + 1, buf) if i < 7 else (0, buf ^ 1)
            do_qk = not (last and i == 7)
            if i == 7 and do_qk:
                e.wait(vm=("k", buf ^ 1))
            if do_qk:
                self.qk(nxt[0], nxt[1], 0)
            ex(c1, c2)
            if do_qk:
                self.qk(nxt[0], nxt[1], 1)
            if i == 7 and not last:
                self.kvload(buf, "k")
            c3 = max(12, c2 + 3) if pat != 2 else 14
            ex(c2, c3)
            if i == 0:
                e.wait(vm=("v", buf))
            self.pv(i, buf, 0)
            ex(c3, 14)
            if last and 1 <= i <= 6:
                send(i - 1)
            ex(14, 16)

    def attention(self):
        e, p = self.e, self.p
        e.label("L_ATT")
        self.att_proj()
        e.label("L_PASS")
        b0 = p["KSPLIT"] & 1
        e(f"s_and_b32 {sTI}, {sRB}, {15*p['KROT']}\ns_cmp_ge_u32 {sTI}, {sNT}\ns_cselect_b32 {sTI}, 0, {sTI}\ns_mul_i32 {sKT[0]}, {sTI}, {KREC}")
        e.vmq = []
        self.kvload(b0, "k")
        self.kvload(b0, "v")
        self.kvload(b0 ^ 1, "k")
        if p["TRIM"]:
            self.o_addr("v249", "v251", "v246")
            self.send_addr()
        e.wait(vm=("k", b0))
        self.qk(0, b0, 0)
        self.qk(0, b0, 1)
        e(f"s_mov_b32 {sCNT}, {sNL}")
        e.nop(11)
        if not b0:
            e("s_branch L_AT_MID")
            e.vmq = [("v", 1), ("v", 1), ("k", 0), ("k", 0)]
        e(".p2align 3")
        e.label("L_AT_LOOP")
        if p["STAMP"]:
            e(f"s_sub_u32 m0, 25, {sCNT}")
            self.stamp("m0")
        if p["AHI"]:
            e(f"s_cmp_lg_u32 {sCNT}, {p['AHI']}\ns_cbranch_scc1 L_NOHI\ns_setprio 2")
            e.label("L_NOHI")
            e(f"s_cmp_lg_u32 {sCNT}, {p['ALO']}\ns_cbranch_scc1 L_NOLO\ns_setprio 0")
            e.label("L_NOLO")
        if p["GATE"]:
            e(f"s_cmp_lg_u32 {sCNT}, {p['GATE']}\ns_cbranch_scc1 L_NOGATE")
            self.lds_wait(C_G2, 4, "v246", "v247", sleep=4)
            e.label("L_NOGATE")
        q0 = list(e.vmq)
        self.att_tile(1)
        e.label("L_AT_MID")
        self.att_tile(0, sig=True)
        assert q0 == e.vmq, (q0, e.vmq)
        e(f"s_sub_u32 {sCNT}, {sCNT}, 1\ns_cmp_lg_u32 {sCNT}, 0\ns_cbranch_scc1 L_AT_LOOP")
        self.stamp(6)
        self.lds_wait(C_G2 if p.get("NEWTAIL") else C_P, 4, *(("v128", "v129")[:0] or (("v252", "v253") if p["TRIM"] else ("v246", "v247"))))
        if not p["TRIM"]:
            self.send_addr()
        self.att_tile(1, last=True)
        e.nop(2)
        self.pv(7, 1, 1)
        e("s_mov_b32 exec_hi, 0")
        for i in range(6):
            e.lg(f"ds_write_b128 v{246+(i >> 1)}, {vr(16*i+8,4)} offset:{(i & 1)*OSL + 2048}")
        e("s_mov_b64 exec, -1")
        e("v_add_f32 v128, v10, v26\nv_add_f32 v129, v42, v58\nv_add_f32 v130, v74, v90\nv_min3_f32 v131, v10, v26, v42\nv_min3_f32 v132, v58, v74, v90")
        e("v_add_f32 v128, v128, v129\nv_add_f32 v130, v130, v106\nv_min3_f32 v131, v131, v132, v106\nv_add_f32 v128, v128, v130")
        e("v_add_f32 v128, v128, v122\nv_min_f32 v131, v131, v122")
        e(f"v_cmp_nge_f32 vcc, {f2u(2.0**40):#x}, v128\nv_mov_b32 v129, {f2u(2.0**-64):#x}\ns_mov_b32 {T2}, vcc_lo\nv_cmp_nge_f32 vcc, v131, v129\ns_nop 1\ns_or_b32 {T2}, {T2}, vcc_lo")
        if p["FORCE_FB"]:
            e(f"s_mov_b32 {T2}, 1")
        e(f"s_cmp_lg_u32 {T2}, 0\ns_cselect_b32 {T2}, 0x10001, 1")
        e.wait_all(lg=True)
        self.arrive(C_R, "v128", "v129", val=T2)
        e(f"s_mul_i32 {T0}, {sA}, {6*OSL}\ns_add_u32 {T0}, {T0}, {OXA}\nv_lshl_add_u32 v246, {vL}, 4, {T0}")
        if not p["TRIM"]:
            self.o_addr("v249", "v251", "v248")
        e(f"s_lshl_b32 {T3}, {sPASS}, 2\ns_add_u32 {T3}, {T3}, 4")
        self.lds_wait(C_R, T3, "v128", "v129", mask="0xffff", out=T2)
        self.stamp(7)
        e(f"s_cmp_lg_u32 {sPASS}, 0\ns_cbranch_scc1 L_SAFE\ns_cmp_ge_u32 {T2}, 0x10000\ns_cbranch_scc1 L_FALLBACK")
        e.label("L_SAFE")
        for tt in range(2):
            for i in range(3):
                for q in range(3):
                    e.lg(f"ds_read_b128 {vr(12*(3*tt+i)+4*q,4)}, v246 offset:{(2*i+tt)*OSL + 1024*q}", ("r", tt, i))
        for tt in range(2):
            O = 96 + 16 * tt
            for i in range(3):
                e.wait(lg=("r", tt, i))
                r0 = 12 * (3 * tt + i)
                if p["TRIM"]:
                    e(f"v_add_f32 v{O+10}, v{O+10}, v{r0+10}")
                    for k in range(0, 10, 2):
                        e(f"v_pk_add_f32 v[{O+k}:{O+k+1}], v[{O+k}:{O+k+1}], v[{r0+k}:{r0+k+1}]")
                else:
                    for k in (10, 0, 1, 2, 3, 4, 5, 6, 7, 8, 9):
                        e(f"v_add_f32 v{O+k}, v{O+k}, v{r0+k}")
            e(f"v_mov_b32 v128, v{O+10}\nv_mov_b32 v129, v{O+10}\ns_nop 1\nv_permlane32_swap_b32 v128, v129\ns_nop 1\nv_mul_f32 v128, {sNL2E}, v128\nv_rcp_f32 v128, v128\ns_nop 0")
            for k in range(0, 10, 2 if p["TRIM"] else 1):
                e(f"v_pk_mul_f32 v[{O+k}:{O+k+1}], v[{O+k}:{O+k+1}], v[128:129] op_sel_hi:[1,0]" if p["TRIM"] else f"v_mul_f32 v{O+k}, v{O+k}, v128")
            for k in range(5):
                e(f"v_cvt_pk_bf16_f32 v{132+8*tt+k}, v{O+2*k}, v{O+2*k+1}")
            if p["SENT"]:
                for k in range(5):
                    e(f"v_min_u32 v{132+8*tt+k}, -2, v{132+8*tt+k}")
            e.vm(f"buffer_store_dwordx4 {vr(132+8*tt,4)}, v249, {SWS}, 0 offen offset:{512*tt} sc1")
            e("s_mov_b32 exec_hi, 0")
            e.vm(f"buffer_store_dword v{136+8*tt}, v251, {SWS}, 0 offen offset:{512*tt} sc1")
            e("s_mov_b64 exec, -1")
        self.stamp(8)
        if p["OMODE"] == 0:
            e.wait_all(vm=True)
        if p["OMODE"] in (0, 4):
            e(f"s_lshl_b32 {T2}, {sJ}, 2\ns_add_u32 {T2}, {T2}, {sA}")
            self.flag_set(F_O, T2, "v128", 130)
        self.arrive(C_O, "v128", "v129")
        self.stamp(9)
        e("s_branch L_FIN")
        self.fallback()

    def fallback(self):
        e = self.e
        e.label("L_FALLBACK")
        e(f"s_mov_b32 {sPASS}, 1\ns_mov_b32 {sKT[0]}, 0\ns_mov_b32 {sCNT}, 0")
        for i in range(8):
            e(f"v_mov_b32 v{i}, 0xff800000")
        e.label("L_FB_LOOP")
        self.kvload(0, "k")
        e(f"s_add_u32 {sKT[0]}, {sKT[0]}, {KREC}")
        e.wait_all(vm=True)
        for i in range(8):
            self.qk(i, 0, 0, S="v[128:143]")
            self.qk(i, 0, 1, S="v[128:143]")
            e.nop(12)
            for k in range(8):
                e(f"v_max3_f32 v{i}, v{i}, v{128+2*k}, v{129+2*k}")
        e(f"s_add_u32 {sCNT}, {sCNT}, 1\ns_cmp_lt_u32 {sCNT}, {sNT}\ns_cbranch_scc1 L_FB_LOOP")
        e(f"v_and_b32 v247, 31, {vL}")
        for i in range(8):
            e(f"v_mov_b32 v8, v{i}\ns_nop 1\nv_permlane32_swap_b32 v{i}, v8\ns_nop 1\nv_max_f32 v{i}, v{i}, v8")
            e(f"s_lshl_b32 {T0}, {sA}, 1\ns_add_u32 {T0}, {T0}, {2+i}\ns_and_b32 {T0}, {T0}, 7\ns_lshl_b32 {T0}, {T0}, 7\ns_add_u32 {T0}, {T0}, {MX}")
            e(f"v_lshl_add_u32 v{16+i}, v247, 2, {T0}\ns_lshl_b32 {T1}, {sA}, 10\nv_add_u32 v9, {T1}, v{16+i}")
            e(f"ds_write_b32 v9, v{i}")
        e.wait_all(lg=True)
        self.arrive(C_M, "v128", "v129")
        self.lds_wait(C_M, 4, "v128", "v129")
        e("s_mov_b32 exec_hi, 0")
        for i in range(8):
            for a in range(4):
                e(f"ds_read_b32 v{8+a}, v{16+i} offset:{1024*a}")
            e.wait_all(lg=True)
            e("v_max3_f32 v8, v8, v9, v10\nv_max_f32 v8, v8, v11\nv_cvt_pk_bf16_f32 v9, v8, v8\nv_and_b32 v9, 0xffff0000, v9\nv_sub_f32 v10, v8, v9")
            e(f"v_cvt_pk_bf16_f32 v{193+2*i}, -v9, -v10")
        e("s_mov_b64 exec, -1")
        self.zero_acc()
        e("s_branch L_PASS")

    def build(self):
        e, p = self.e, self.p
        self.prologue()
        self.ffn()
        self.attention()
        e.label("L_FIN")
        if p["STAMP"]:
            e("s_waitcnt vmcnt(0)")
            self.stamp(12)
            e(f"s_lshl_b32 {T0}, s2, 3\ns_add_u32 {T0}, {T0}, {sW}\ns_lshl_b32 {T0}, {T0}, 8\ns_add_u32 {T0}, {T0}, {STAMPS}\nv_lshlrev_b32 v0, 2, {vL}")
            e(f"buffer_store_dword v255, v0, {SWS}, {T0} offen\ns_add_u32 {T0}, {T0}, 0x80000\nbuffer_store_dword v254, v0, {SWS}, {T0} offen")
            e(f"s_cmp_lg_u32 s2, 100\ns_cbranch_scc1 L_END\ns_cmp_lg_u32 {sW}, 0\ns_cbranch_scc1 L_END")
            e(f"v_readlane_b32 {T0}, v255, 0\ns_nop 1\nv_subrev_u32 v1, {T0}, v255\ns_mov_b64 exec, 0x1ffe\nbuffer_store_dword v1, v0, {SDBG}, 0 offen")
        e.label("L_END")
        e("s_endpgm")
        probs = check_hazards(e.lines)
        head = open("cdna_kernels/" + NAME + ".s.ref").read().split("\n")
        hdr = [l for l in head if l.startswith(";") and "@launch" not in l and "Override" not in l and "grid=ceil" not in l]
        txt = "\n".join(hdr) + f"""
; One persistent workgroup per CU: 64 rows x (576 FFN columns, 4 heads, 72 output columns).
; Waves 0-3: GEMM1 -> SiLU -> GEMM2 -> partial sums -> output projection; waves 4-7: Q/K/V projection, attention.
; @launch grid=(256,1,1) block=(512,1,1) lds={LDS_BYTES}
.amdgcn_target "amdgcn-amd-amdhsa--gfx950"
.text
.globl {NAME}_kernel
.p2align 8
.type {NAME}_kernel,@function
{NAME}_kernel:
{e.text()}
.section .rodata,"a"
.p2align 6
.amdhsa_kernel {NAME}_kernel
  .amdhsa_next_free_vgpr 256
  .amdhsa_next_free_sgpr 102
  .amdhsa_accum_offset 256
  .amdhsa_group_segment_fixed_size 0
  .amdhsa_kernarg_size 88
  .amdhsa_user_sgpr_count 2
  .amdhsa_user_sgpr_kernarg_segment_ptr 1
  .amdhsa_system_sgpr_workgroup_id_x 1
.end_amdhsa_kernel
"""
        return txt, probs


if __name__ == "__main__":
    out = sys.argv[1]
    kw = {}
    for a in sys.argv[2:]:
        k, v = a.split("=")
        kw[k] = int(v, 0)
    txt, probs = G(**kw).build()
    for x in probs[:40]:
        print("HAZARD", x)
    open(out, "w").write(txt)
    print("wrote", out, len(txt), "bytes;", len(probs), "hazards")
```

```python
import sys, math, struct
from emit import E, check_hazards

NAME = "parallel_sum__grouped_kv_mqa__dense_activation_silu__prompt"

DEF = dict(NSL=2, STAMP=0, PRIO_F=1, PRIO_A=0, ROT=1, KROT=0, CODEPF=1, PRIO_P=2, WARMQ=0, TLBW=2, OUTF=2, KSPLIT=1, W1LATE=4, PRE=5, PREU=0, ROTG=0, EXPAT=0, SENT=1, OMODE=2, OROT=1, OSLEEP=0, TADDR=2, PRIO_T=1, TRIM=1, WOS=7, PREA=1, EARLYKV=0, RESTB=0, TLBU=0, TLB0=0, GATE=0, AHI=0, ALO=0, X_SEQ=0, X_BIAS=0, EXTU=8, PREL=5, QROT=1, KVEARLY=0, KVU=0, PKLN=0, XBAR=1, PACE2=2, PACE3=2, DYNP=2, WARMO=1, PKSILU=1, PACE=4, DEFER=0, G1SLEEP=16, SPIN=1 << 16, FORCE_FB=0)

KREC = 2304
KM, KX, VT = 0, 1024, 1152
ARENA, ASZ = 0x40000, 0xb0000
PART, OM, OX, FLAGS = 0, 589824, 655360, 663552
STAMPS = 0x1710000
WS_BYTES = 0x1820000
CH = 1040
RING, RSZ = 72 * CH, 15360
ATT = RING + 4 * RSZ
QE, KVW = ATT, ATT + 9216 + 64
QRSZ = 6144
OXA, OSL = 92160, 2560
MX = 153600
QX, SYNC = 162560, 163584
LDS_BYTES = 163840
C_A, C_KV, C_B, C_XN, C_H, C_G2, C_P, C_WO, C_R, C_O, C_G1, C_M, C_E, C_Q, C_L = range(15)
SX, SW1, SW2, SWQ, SKV, SWO, SWS, SDBG, SOUT = (f"s[{b}:{b+3}]" for b in range(28, 64, 4))
sRB, sJ, sW, sA = "s64", "s65", "s66", "s67"
sRING, sK, sCNT, sNL2E, sSPIN, sPASS = "s68", "s69", "s70", "s71", "s72", "s73"
sKT = ("s74", "s75", "s76")
T0, T1, T2, T3, T4 = "s77", "s78", "s79", "s80", "s81"
sVM = "s[82:83]"
sIDX = "s84"
sROT, sBO, sTI, sAR = "s92", "s93", "s94", "s95"
sKQ, sN0, sN1, sNT, sNL = "s96", "s98", "s99", "s100", "s101"
sT0 = "s26"
F_P, F_KV, F_O = 0, 128, 256
NONCE = SYNC + 128
vL = "v250"
OOB = 0x40000000


def f2u(x):
    return struct.unpack("<I", struct.pack("<f", x))[0]


def vr(b, n=1):
    return f"v{b}" if n == 1 else f"v[{b}:{b+n-1}]"


class G:
    def __init__(self, **kw):
        self.p = dict(DEF)
        self.p.update(kw)
        self.e = E()
        self.nstamp = 0

    def stamp(self, i):
        if not self.p["STAMP"]:
            return
        e = self.e
        e("s_waitcnt lgkmcnt(0)")
        e.lgq = []
        e("s_memrealtime s[88:89]\ns_memtime s[90:91]")
        e("s_waitcnt lgkmcnt(0)")
        e(f"v_writelane_b32 v255, s88, {i}\nv_writelane_b32 v254, s90, {i}")

    def srd(self, srd, lo, nbytes):
        b = int(srd[2:srd.index(":")])
        self.e(f"s_mov_b32 s{b}, s{lo}\ns_mov_b32 s{b+1}, s{lo+1}\ns_mov_b32 s{b+2}, {nbytes}\ns_mov_b32 s{b+3}, 0x20000")

    def arrive(self, word, va, vb, rtn=None, val="1"):
        e = self.e
        e(f"v_mov_b32 {va}, {SYNC}\nv_mov_b32 {vb}, {val}\ns_mov_b64 exec, 1")
        if rtn is None:
            e.lg(f"ds_add_u32 {va}, {vb} offset:{4*word}")
            e("s_mov_b64 exec, -1")
        else:
            e(f"ds_add_rtn_u32 {vb}, {va}, {vb} offset:{4*word}")
            e.wait_all(lg=True)
            e(f"v_readfirstlane_b32 {rtn}, {vb}\ns_mov_b64 exec, -1\ns_nop 0")

    def lds_wait(self, word, target, va, vb, mask=None, out=None, sleep=1):
        e = self.e
        L, D = e.new("LW"), e.new("LWD")
        out = out or T0
        e(f"v_mov_b32 {va}, {SYNC}\ns_mov_b32 {sSPIN}, 0")
        e.label(L)
        e(f"ds_read_b32 {vb}, {va} offset:{4*word}")
        e.wait_all(lg=True)
        e(f"v_readfirstlane_b32 {out}, {vb}\ns_add_u32 {sSPIN}, {sSPIN}, 1")
        if mask is not None:
            e(f"s_and_b32 {T1}, {out}, {mask}\ns_cmp_ge_u32 {T1}, {target}")
        else:
            e(f"s_cmp_ge_u32 {out}, {target}")
        e(f"s_cbranch_scc1 {D}\ns_sleep {sleep}\ns_cmp_lt_u32 {sSPIN}, {self.p['SPIN']}\ns_cbranch_scc1 {L}")
        e.label(D)

    def flag_poll(self, va, soff, vb, sleep=2):
        e = self.e
        L, D = e.new("FW"), e.new("FWD")
        e(f"s_mov_b32 {sSPIN}, 0")
        e.label(L)
        e(f"buffer_load_dwordx2 v[{vb}:{vb+1}], {va}, {SWS}, {soff} offen sc1")
        e.wait_all(vm=True)
        e(f"v_xor_b32 v{vb}, {sN0}, v{vb}\nv_xor_b32 v{vb+1}, {sN1}, v{vb+1}\nv_or_b32 v{vb}, v{vb}, v{vb+1}")
        e(f"v_cmp_ne_u32 vcc, 0, v{vb}\ns_add_u32 {sSPIN}, {sSPIN}, 1\ns_nop 3")
        e(f"s_cbranch_vccz {D}\ns_sleep {sleep}\ns_cmp_lt_u32 {sSPIN}, {self.p['SPIN']}\ns_cbranch_scc1 {L}")
        e.label(D)

    def flag_wait(self, group, n, va, vb):
        e = self.e
        e(f"v_and_b32 {va}, {n-1}, {vL}\nv_lshlrev_b32 {va}, 3, {va}\ns_add_u32 {T0}, {sAR}, {FLAGS + group}")
        self.flag_poll(va, T0, vb)

    def flag_set(self, group, sidx, va, vb):
        e = self.e
        e(f"s_lshl_b32 {T1}, {sidx}, 3\ns_add_u32 {T0}, {sAR}, {T1}\ns_add_u32 {T0}, {T0}, {FLAGS + group}")
        e(f"v_mov_b32 {va}, 0\nv_mov_b32 v{vb}, {sN0}\nv_mov_b32 v{vb+1}, {sN1}\ns_mov_b64 exec, 1")
        e.vm(f"buffer_store_dwordx2 v[{vb}:{vb+1}], {va}, {SWS}, {T0} offen sc1")
        e("s_mov_b64 exec, -1")

    def get_nonce(self, va, vb):
        e = self.e
        e(f"v_mov_b32 {va}, {NONCE}\nds_read_b64 v[{vb}:{vb+1}], {va}")
        e.wait_all(lg=True)
        e(f"v_readfirstlane_b32 {sN0}, v{vb}\nv_readfirstlane_b32 {sN1}, v{vb+1}\ns_nop 1")

    def prologue(self):
        e, p = self.e, self.p
        nsl = p["NSL"]
        e("s_cmp_ge_u32 s2, 256\ns_cbranch_scc1 L_END")
        e("s_load_dwordx16 s[4:19], s[0:1], 0\ns_load_dwordx4 s[20:23], s[0:1], 64\ns_load_dwordx2 s[24:25], s[0:1], 80\ns_memrealtime s[26:27]")
        if p["STAMP"]:
            e("s_memrealtime s[88:89]\ns_memtime s[90:91]\nv_mov_b32 v255, 0\nv_mov_b32 v254, 0")
        e(f"v_and_b32 {vL}, 63, v0\nv_lshrrev_b32 v1, 6, v0")
        lg = nsl.bit_length() - 1
        e(f"s_and_b32 {T0}, s2, 7\ns_lshr_b32 {sIDX}, s2, 3")
        e(f"s_and_b32 {sJ}, {T0}, {8//nsl - 1}\ns_lshl_b32 {sJ}, {sJ}, {lg}\ns_and_b32 {T1}, {sIDX}, {nsl-1}\ns_add_u32 {sJ}, {sJ}, {T1}")
        e(f"s_lshr_b32 {sRB}, {T0}, {3-lg}\ns_lshl_b32 {sRB}, {sRB}, {5-lg}\ns_lshr_b32 {T1}, {sIDX}, {lg}\ns_add_u32 {sRB}, {sRB}, {T1}")
        e(f"v_readfirstlane_b32 {sW}, v1\ns_mul_i32 {sAR}, {sRB}, {ASZ}\ns_add_u32 {sAR}, {sAR}, {ARENA}")
        e(f"v_lshrrev_b32 v120, 3, v0\nv_and_b32 v121, 7, v0\ns_lshl_b32 {T0}, {sRB}, 6")
        e(f"v_add_u32 v122, {T0}, v120\nv_mul_u32_u24 v122, 1152, v122\nv_lshl_add_u32 v122, v121, 4, v122")
        e(f"v_mul_u32_u24 v123, {CH}, v121\nv_lshl_add_u32 v123, v120, 4, v123\nv_add_u32 v124, {8*CH}, v123")
        e(f"s_and_b32 {sA}, {sW}, 3\nv_mov_b32 v216, 0\nv_mov_b32 v217, 0\nv_mov_b32 v222, 0\nv_mov_b32 v224, 0")
        for r in list(range(212, 216)) + list(range(225, 230)) + list(range(240, 248)):
            e(f"v_mov_b32 v{r}, 0")
        e("s_waitcnt lgkmcnt(0)")
        if p["STAMP"]:
            e("v_writelane_b32 v255, s88, 0\nv_writelane_b32 v254, s90, 0")
        self.srd(SX, 4, 2359296)
        for u in range(9):
            e.vm(f"buffer_load_dwordx4 v[{4*u}:{4*u+3}], v122, {SX}, 0 offen offset:{128*u}", ("x", u))
        if p["XBAR"]:
            e("s_barrier")
        self.srd(SW1, 16, 5308416)
        self.srd(SW2, 18, 5308416)
        self.srd(SWQ, 6, 663552)
        self.srd(SWO, 12, 663552)
        self.srd(SWS, 24, WS_BYTES)
        self.srd(SDBG, 22, 256)
        self.srd(SOUT, 20, 2359296)
        e(f"s_cmp_ge_u32 {sJ}, 3\ns_cselect_b32 s44, s10, s8\ns_cselect_b32 s45, s11, s9\ns_mov_b32 s46, 20736\ns_mov_b32 s47, 0x20000")
        e(f"s_mov_b32 {sNL2E}, {f2u(-math.log2(math.e)):#x}\ns_mov_b32 {sPASS}, 0")
        e(f"s_cmp_ge_u32 {sW}, 4\ns_cbranch_scc1 L_PRO_A")
        q0 = list(e.vmq)
        self.pro_ffn()
        if p["TLB0"]:
            e(f"s_mov_b64 exec, 1\ns_cmp_ge_u32 {sW}, 2\ns_cbranch_scc1 L_T0Q\nbuffer_load_dword v253, v216, {SW1}, {sK} offen\ns_branch L_T0J")
            e.label("L_T0Q")
            e.vm(f"buffer_load_dword v253, v224, {SWQ}, 0 offen")
            e.label("L_T0J")
            e("s_mov_b64 exec, -1")
        if p["TADDR"] == 0:
            self.q_addresses()
            self.tail_addresses()
        self.ln_stats(ffn=True)
        e("s_branch L_PRO_J")
        e.vmq = list(q0)
        e.label("L_PRO_A")
        if p["CODEPF"]:
            e(f"s_getpc_b64 s[86:87]")
            e.label("L_PC")
            e(f"s_and_b32 {T0}, {sIDX}, 3\ns_lshl_b32 {T0}, {T0}, 2\ns_add_u32 {T0}, {T0}, {sA}\ns_lshl_b32 {T0}, {T0}, 12")
            e(f"v_lshl_add_u32 v126, {vL}, 6, {T0}\nv_min_u32 v126, L_END-L_PC, v126\nv_mov_b32 v127, s87")
            e("v_add_co_u32 v126, vcc, s86, v126\ns_nop 1\nv_addc_co_u32 v127, vcc, 0, v127, vcc")
            e.vm("global_load_dword v251, v[126:127], off")
        if p["TLB0"]:
            e(f"s_mov_b64 exec, 1\nv_mov_b32 v126, 0")
            e.vm(f"buffer_load_dword v252, v126, {SKV}, 0 offen")
            e("s_mov_b64 exec, -1")
            if p["TLBU"] == -2:
                self.tlb_touch()
        self.ln_stats()
        e(f"s_or_b32 {T0}, s2, {sA}\ns_cmp_lg_u32 {T0}, 0\ns_cbranch_scc1 L_NOTAG\ns_or_b32 {T0}, s26, 1")
        e(f"v_mov_b32 v126, {T0}\nv_mov_b32 v127, s27\nv_mov_b32 v128, 0\ns_mov_b64 exec, 1\nbuffer_store_dwordx2 v[126:127], v128, {SDBG}, 0 offen sc1\ns_mov_b64 exec, -1")
        e.label("L_NOTAG")
        e(f"v_lshlrev_b32 v127, 2, {vL}\nv_add_u32 v127, {SYNC}, v127\nv_mov_b32 v128, 0\nds_write_b32 v127, v128")
        e.label("L_PRO_J")
        self.layernorm()

    def wrap_inc(self, reg, inc, mod):
        self.e(f"s_add_u32 {reg}, {reg}, {inc}\ns_cmp_eq_u32 {reg}, {mod}\ns_cselect_b32 {reg}, 0, {reg}")

    def pro_ffn(self):
        e = self.e
        e(f"s_mul_i32 {T2}, {sW}, 5\ns_lshl_b32 {T3}, {sW}, 2\ns_cmp_eq_u32 {sW}, 3\ns_cselect_b32 {T2}, 14, {T2}\ns_cselect_b32 {T3}, 13, {T3}")
        e(f"s_mul_i32 {sRING}, {sW}, {RSZ}\ns_add_u32 {sRING}, {sRING}, {RING}")
        e(f"v_lshrrev_b32 v125, 2, {vL}\nv_and_b32 v126, 3, {vL}")
        e(f"s_mul_i32 {T0}, {sJ}, 1152\ns_lshl_b32 {T1}, {T2}, 6\ns_add_u32 {T0}, {T0}, {T1}")
        e(f"v_mul_u32_u24 v216, 9216, v125\nv_lshl_add_u32 v216, v126, 4, v216\nv_add_u32 v216, {T0}, v216")
        nsl = self.p["NSL"]
        e(f"s_and_b32 {sROT}, {sRB}, {32//nsl - 1}\ns_mul_i32 {sROT}, {sROT}, {36*nsl*self.p['ROT']}\ns_lshr_b32 {sROT}, {sROT}, 5")
        G_ = self.p["ROTG"]
        if G_:
            e(f"s_and_b32 {sROT}, {sRB}, {32//nsl - 1}\ns_mul_i32 {sROT}, {sROT}, {G_*nsl}\ns_lshr_b32 {sROT}, {sROT}, 5\ns_mul_i32 {sROT}, {sROT}, {36//G_}")
        e(f"s_mul_i32 {sK}, {sROT}, 147456")
        e(f"s_mul_i32 {T0}, {sJ}, 144\ns_lshl_b32 {T1}, {sW}, 6\ns_add_u32 {T0}, {T0}, {T1}\ns_sub_u32 {T0}, {T0}, 128")
        e(f"v_mul_u32_u24 v224, 1152, v125\nv_lshl_add_u32 v224, v126, 4, v224\nv_add_u32 v224, {T0}, v224\ns_mul_i32 {sKQ}, {sROT}, {18432*self.p['QROT']}")
        if not self.p["W1LATE"]:
            self.first_loads()
        e(f"s_mul_i32 {T0}, {sJ}, 663552\ns_lshl_b32 {T1}, {T3}, 6\ns_add_u32 {T0}, {T0}, {T1}")
        e(f"v_mul_u32_u24 v217, 1152, v125\nv_lshl_add_u32 v217, v126, 4, v217\nv_add_u32 v217, {T0}, v217")
        e(f"v_lshrrev_b32 v127, 5, {vL}\nv_bfe_u32 v128, {vL}, 2, 2\nv_bfe_u32 v129, {vL}, 4, 1")
        e(f"v_lshlrev_b32 v129, 5, v129\nv_lshl_add_u32 v129, v126, 3, v129\nv_lshl_add_u32 v129, v128, 6, v129\nv_add_u32 v129, {sRING}, v129")
        e("v_lshl_add_u32 v218, v127, 9, v129\nv_lshl_add_u32 v219, v127, 8, v129")
        e(f"v_and_b32 v128, 31, {vL}\nv_lshlrev_b32 v128, 4, v128\nv_mul_u32_u24 v223, {CH}, v127\nv_add_u32 v223, v223, v128")
        e(f"s_mul_i32 {T0}, {T2}, {4*CH}\nv_add_u32 v221, {T0}, v223")
        e(f"s_lshl_b32 {T0}, {T3}, 15\ns_lshl_b32 {T1}, {sJ}, 10\ns_add_u32 {T0}, {T0}, {T1}\ns_add_u32 {T0}, {T0}, {sAR}")
        e(f"v_lshl_add_u32 v222, v127, 13, v128\nv_add_u32 v222, {T0}, v222")

    def q_addresses(self):
        e = self.e
        e(f"s_lshl_b32 {T2}, {sW}, 5\ns_sub_u32 {T2}, {T2}, 64\nv_lshrrev_b32 v170, 5, {vL}\nv_lshl_add_u32 v170, v170, 2, {T2}")
        e(f"v_and_b32 v171, 31, {vL}\nv_lshlrev_b32 v171, 4, v171\nv_add_u32 v171, {ATT}, v171")
        for pp in range(8):
            self.qaddr(f"v{196+pp}", "v170", 8 * (pp >> 1) + 2 * (pp & 1), "v171", "v172", "v173")

    def wo_addresses(self, base):
        e = self.e
        for i in range(5):
            e(f"v_add_u32 v160, {64*i}, {vL}\nv_mul_u32_u24 v161, 6554, v160\nv_lshrrev_b32 v161, 16, v161")
            e(f"v_mul_u32_u24 v162, 10, v161\nv_sub_u32 v162, v160, v162\nv_mul_u32_u24 v161, 1152, v161\nv_lshl_add_u32 v{base+i}, v162, 4, v161")

    def tail_addresses(self, wo=True):
        e = self.e
        if wo:
            self.wo_addresses(225)
        e(f"v_and_b32 v160, 15, {vL}\nv_lshrrev_b32 v161, 4, {vL}\ns_lshl_b32 {T0}, {sW}, 4\nv_add_u32 v162, {T0}, v160")
        e(f"v_and_b32 v163, 1, v161\nv_lshrrev_b32 v164, 1, v161")
        e(f"s_mul_i32 {T1}, {sJ}, 73728\ns_add_u32 {T0}, {sAR}, {T1}")
        e(f"v_lshl_add_u32 v165, v162, 4, {T0}\nv_lshl_add_u32 v240, v163, 13, v165\nv_lshl_add_u32 v240, v164, 10, v240\nv_lshl_add_u32 v241, v161, 10, v165")
        e(f"s_lshl_b32 {T0}, {sRB}, 6\nv_add_u32 v165, {T0}, v162\nv_mul_u32_u24 v165, 1152, v165\ns_mul_i32 {T0}, {sJ}, 144\nv_add_u32 v165, {T0}, v165")
        e(f"v_lshl_add_u32 v242, v161, 4, v165\nv_mov_b32 v166, {OOB}\nv_cmp_gt_u32 vcc, 2, v161\ns_nop 1\nv_cndmask_b32 v242, v166, v242, vcc")
        e(f"v_cmp_eq_u32 vcc, 0, v161\ns_nop 1\nv_cndmask_b32 v243, v166, v165, vcc")
        e(f"v_lshl_add_u32 v244, v163, 5, v165\nv_lshl_add_u32 v244, v164, 4, v244")
        e(f"v_lshl_add_u32 v245, v161, 3, v165\nv_cmp_gt_u32 vcc, 2, v161\ns_nop 1\nv_cndmask_b32 v245, v166, v245, vcc")
        e("v_lshlrev_b32 v166, 3, v163\nv_sub_u32 v166, v160, v166\nv_mov_b32 v167, 0x3f80\nv_mov_b32 v168, 0x3f800000")
        for base, src in ((232, "v166"), (236, "v160")):
            for r in range(4):
                e(f"v_cmp_eq_u32 vcc, {2*r}, {src}\nv_cmp_eq_u32 s[86:87], {2*r+1}, {src}\ns_nop 0\nv_cndmask_b32 v{base+r}, 0, v167, vcc")
                e(f"v_cndmask_b32 v{base+r}, v{base+r}, v168, s[86:87]")
        e(f"s_add_u32 {T0}, {sAR}, {OM}\nv_lshl_add_u32 v246, v162, 4, {T0}\nv_lshl_add_u32 v246, v161, 10, v246")
        e(f"s_add_u32 {T0}, {sAR}, {OX}\nv_lshl_add_u32 v247, v162, 4, {T0}\nv_lshl_add_u32 v247, v161, 10, v247")
        e(f"v_bfe_u32 v166, {vL}, 2, 2\nv_and_b32 v167, 3, {vL}\nv_mul_u32_u24 v168, 18, v164\nv_lshl_add_u32 v168, v163, 2, v168\nv_add_u32 v168, v168, v166")
        e("v_mul_u32_u24 v168, 160, v168\nv_lshl_add_u32 v248, v167, 3, v168")
        e("v_mul_u32_u24 v168, 72, v161\nv_lshrrev_b32 v169, 1, v166\nv_mul_u32_u24 v169, 18, v169\nv_and_b32 v166, 1, v166\nv_add3_u32 v168, v168, v169, v166")
        e("v_add_u32 v168, 16, v168\nv_mul_u32_u24 v168, 160, v168\nv_lshl_add_u32 v251, v167, 3, v168")
        e(f"v_mov_b32 v166, {OOB}\nv_cmp_gt_u32 vcc, 32, {vL}\ns_nop 1\nv_cndmask_b32 v241, v166, v241, vcc")

    def first_loads(self, lo=0, hi=15, lo2=None, hi2=None):
        e = self.e
        lo2, hi2 = lo if lo2 is None else lo2, hi if hi2 is None else hi2
        L, J = e.new("PFL"), e.new("PFJ")
        e(f"s_cmp_ge_u32 {sW}, 2\ns_cbranch_scc1 {L}")
        q0 = list(e.vmq)
        for i in range(lo, hi):
            s, pc = divmod(i, 5)
            e(f"s_add_u32 m0, {sRING}, {s*5120 + 960*pc}\ns_nop 0")
            e.vm(f"buffer_load_dwordx4 v216, {SW1}, {sK} offen offset:{64*pc} lds")
            if pc == 4:
                self.wrap_inc(sK, 147456, 36 * 147456)
        e(f"s_branch {J}")
        e.label(L)
        qa = e.vmq
        e.vmq = list(q0)
        for i in range(lo2, hi2):
            e(f"s_add_u32 m0, {sRING}, {1024*((i + 9) % 15)}\ns_nop 0")
            e.vm(f"buffer_load_dwordx4 v224, {SWQ}, {sKQ} offen lds")
            self.q_inc()
        e.label(J)
        if len(qa) < len(e.vmq):
            e.vmq = qa

    def q_inc(self):
        if self.p["QROT"]:
            self.wrap_inc(sKQ, 18432, 36 * 18432)
        else:
            self.e(f"s_add_u32 {sKQ}, {sKQ}, 18432")

    def q_gemm(self):
        e = self.e
        e.vmq = [("q", i) for i in range(15)]
        e.lgq = []
        rot = self.p["QROT"]
        e(f"s_mul_i32 {sBO}, {sROT}, 2080" if rot else f"v_add_u32 v220, {18*2080}, v223")

        def reads(i):
            r = 160 + 12 * (i % 3)
            vb, ob = ("v220", 0) if rot else (("v223", 2080 * i) if i < 18 else ("v220", 2080 * (i - 18)))
            if rot:
                e(f"v_add_u32 v220, {sBO}, v223")
            e.wait(vm=("q", i))
            o = 1024 * ((i + 9) % 15)
            e.lg(f"ds_read_b64_tr_b16 {vr(r,2)}, v218 offset:{o}", ("r", i))
            e.lg(f"ds_read_b64_tr_b16 {vr(r+2,2)}, v218 offset:{o+256}", ("r", i))
            e.lg(f"ds_read_b128 {vr(r+4,4)}, {vb} offset:{ob}", ("r", i))
            e.lg(f"ds_read_b128 {vr(r+8,4)}, {vb} offset:{ob+512}", ("r", i))
            if rot:
                self.wrap_inc(sBO, 2080, 36 * 2080)
        reads(0)
        reads(1)
        for i in range(36):
            r = 160 + 12 * (i % 3)
            sl = (i + 9) % 15
            e.wait(lg=("r", i))
            w1 = i >= 21 and sl % 5 < 4
            if i < 21 or w1:
                e(f"s_add_u32 m0, {sRING}, {1024*sl - (64*(sl % 5) if w1 else 0)}")
            e(f"v_mfma_f32_32x32x16_bf16 v[128:143], {vr(r,4)}, {vr(r+4,4)}, {'0' if i == 0 else 'v[128:143]'}")
            if i < 21:
                e.vm(f"buffer_load_dwordx4 v224, {SWQ}, {sKQ} offen lds", ("q", i + 15))
                self.q_inc()
            elif w1:
                e.vm(f"buffer_load_dwordx4 v216, {SW1}, {sK} offen offset:{64*(sl % 5)} lds")
                if sl % 5 == 3:
                    self.wrap_inc(sK, 147456, 36 * 147456)
            e(f"v_mfma_f32_32x32x16_bf16 v[144:159], {vr(r,4)}, {vr(r+8,4)}, {'0' if i == 0 else 'v[144:159]'}")
            if i + 2 < 36:
                reads(i + 2)
            if self.p["STAMP"] > 1 and i in (0, 6, 12, 18, 24, 30, 35):
                self.stamp(32 + (i + 1) // 6)

    def kv_loads(self):
        e = self.e
        e(f"s_cmp_ge_u32 {sJ}, 3\ns_cselect_b32 {T0}, 3, 0\ns_sub_u32 {T0}, {sJ}, {T0}\ns_cmp_ge_u32 {T0}, 3\ns_cselect_b32 {T0}, 0, {T0}")
        e(f"s_lshl_b32 {T1}, {T0}, 4\ns_min_u32 {T1}, {T1}, 20\nv_mul_u32_u24 v126, 36, {vL}\nv_add_u32 v126, {T1}, v126")
        e(f"s_mul_i32 {T2}, {sA}, 2304\ns_lshl_b32 {T3}, {sA}, 10\ns_add_u32 {T3}, {T3}, {KVW}")
        for i in range(2):
            e(f"s_add_u32 m0, {T3}, {4096*i}\ns_add_u32 {T0}, {T2}, {9216*i}")
            e.vm(f"buffer_load_dwordx4 v126, {SKV}, {T0} offen lds", "kvw")
        e(f"s_mov_b32 m0, {KVW + 8192}\ns_mov_b32 {T0}, {8*2304}")
        e.vm(f"buffer_load_dwordx4 v126, {SKV}, {T0} offen lds", "kvw")

    def pro_att(self):
        e, p = self.e, self.p
        if not p["KVEARLY"]:
            self.kv_loads()
        e(f"v_mul_u32_u24 v125, 1152, {vL}\ns_mul_i32 {T0}, {sJ}, 144\ns_add_u32 {T0}, {T0}, 128\nv_add_u32 v125, {T0}, v125")
        e(f"s_mul_i32 {T2}, {sA}, 73728\ns_lshl_b32 {T3}, {sA}, 10\ns_add_u32 {T3}, {T3}, {QE}")
        for i in range(2):
            e(f"s_add_u32 m0, {T3}, {4096*i}\ns_add_u32 {T0}, {T2}, {4*73728*i}")
            e.vm(f"buffer_load_dwordx4 v125, {SWQ}, {T0} offen lds", "ext")
        e(f"s_cmp_lg_u32 {sA}, 1\ns_cbranch_scc1 L_PA_2\ns_mov_b32 m0, {QE + 8192}\ns_mov_b32 {T0}, {8*73728}")
        e(f"buffer_load_dwordx4 v125, {SWQ}, {T0} offen lds")
        e.label("L_PA_2")
        nsl = p['NSL']
        if p["TLBW"] and p["TLBU"] == -1:
            self.tlb_touch()
        if p["WARMQ"]:
            rows = 18 * nsl
            e(f"s_lshl_b32 {T0}, {sA}, 6\nv_add_u32 v126, {T0}, {vL}\nv_lshrrev_b32 v127, 2, v126\nv_and_b32 v128, 3, v126\nv_mul_u32_u24 v127, 1152, v127")
            e(f"v_cmp_gt_u32 vcc, {4*rows}, v126\nv_mul_u32_u24 v128, 52, v128\nv_add_u32 v127, v127, v128\nv_mov_b32 v128, {OOB}\nv_cndmask_b32 v127, v128, v127, vcc")
            e(f"s_and_b32 {T1}, {sRB}, {32//nsl - 1}\ns_mul_i32 {T1}, {T1}, {rows*1152}\ns_mul_i32 {T0}, {sJ}, 144\ns_add_u32 {T1}, {T1}, {T0}")
            e.vm(f"buffer_load_dword v252, v127, {SWQ}, {T1} offen")
            e.vm(f"buffer_load_dword v253, v127, {SWO}, {T1} offen")

    def tlb_touch(self):
        e, p = self.e, self.p
        e(f"s_mov_b64 exec, 7\ns_cmp_eq_u32 {sA}, 1\ns_cbranch_scc1 L_TLB1\ns_cmp_eq_u32 {sA}, 2\ns_cbranch_scc1 L_TLB2\ns_cmp_eq_u32 {sA}, 3\ns_cbranch_scc1 L_TLB3")
        if p["TLBW"] == 1:
            e(f"v_mul_u32_u24 v126, {ASZ - 64}, {vL}\nv_cmp_eq_u32 vcc, 2, {vL}\nv_add_u32 v126, {sAR}, v126\ns_nop 0\nv_cndmask_b32 v126, v126, 0, vcc")
        else:
            e(f"s_mov_b64 exec, 0xfff\nv_lshlrev_b32 v126, 21, {vL}\nv_add_u32 v126, 0x30000, v126")
        e(f"buffer_load_dword v253, v126, {SWS}, 0 offen\ns_branch L_TLBD")
        e.label("L_TLB1")
        e(f"s_mul_i32 {T1}, {sJ}, 663552\nv_mul_u32_u24 v126, 331000, {vL}\nbuffer_load_dword v253, v126, {SW2}, {T1} offen\ns_branch L_TLBD")
        e.label("L_TLB2")
        e(f"s_mul_i32 {T0}, {sRB}, 73728\nv_mul_u32_u24 v126, 36000, {vL}\nbuffer_load_dword v253, v126, {SOUT}, {T0} offen\ns_branch L_TLBD")
        e.label("L_TLB3")
        e(f"v_mov_b32 v126, 0")
        e.vm(f"buffer_load_dword v253, v126, {SDBG if p['TLBW'] == 1 else SWO}, 0 offen offset:128")
        e.label("L_TLBD")
        e("s_mov_b64 exec, -1")

    def ln_stats(self, ffn=False):
        e = self.e
        e("v_mov_b32 v112, 0\nv_mov_b32 v113, 0\nv_mov_b32 v114, 0\nv_mov_b32 v115, 0\ns_mov_b32 s85, 0x3f803f80\ns_mov_b32 s86, 0xffff0000")
        for u in range(9):
            e.wait(vm=("x", u))
            if u == 0:
                self.stamp(1)
                if ffn and self.p["W1LATE"] == 1:
                    self.first_loads()
            if ffn and self.p["W1LATE"] == 2 and u in (1, 3, 5, 7, 8):
                n = (1, 3, 5, 7, 8).index(u)
                self.first_loads(3 * n, 3 * n + 3)
            if not ffn and self.p["TLBW"] and u == self.p["TLBU"]:
                self.tlb_touch()
            if not ffn and self.p["KVEARLY"] and u == self.p["KVU"]:
                self.kv_loads()
            if not ffn and u == self.p["EXTU"] and not self.p["KVEARLY"]:
                self.pro_att()
            if u == 8:
                self.stamp(30)
            if ffn and self.p["W1LATE"] == 3 and u == 8:
                self.first_loads()
            if ffn and self.p["W1LATE"] == 4 and u == self.p.get("PREU", 8) and self.p["PRE"]:
                self.first_loads(0, self.p["PRE"], 0, self.p["PREL"])
            for k in range(4):
                r = 4 * u + k
                e(f"v_dot2_f32_bf16 v{112+(k&1)}, v{r}, s85, v{112+(k&1)}")
                e(f"v_lshlrev_b32 v{40+2*r}, 16, v{r}")
                e(f"v_dot2_f32_bf16 v{114+(k&1)}, v{r}, v{r}, v{114+(k&1)}")
                e(f"v_and_b32 v{41+2*r}, s86, v{r}")

    def layernorm(self):
        e = self.e
        self.stamp(14)
        e("s_nop 2\nv_add_f32 v112, v112, v113\nv_add_f32 v114, v114, v115\ns_nop 1")
        for m in ("quad_perm:[1,0,3,2]", "quad_perm:[2,3,0,1]", "row_half_mirror"):
            e(f"v_add_f32_dpp v112, v112, v112 {m} row_mask:0xf bank_mask:0xf")
            e(f"v_add_f32_dpp v114, v114, v114 {m} row_mask:0xf bank_mask:0xf\ns_nop 1")
        inv = f"{f2u(1.0/576):#x}"
        e(f"v_mul_f32 v112, {inv}, v112\nv_mul_f32 v114, {inv}, v114\nv_fma_f32 v114, -v112, v112, v114\nv_max_f32 v114, 0, v114")
        e(f"v_add_f32 v114, {f2u(1e-5):#x}, v114\nv_rsq_f32 v114, v114\ns_nop 0\nv_mul_f32 v114, {sNL2E}, v114\nv_mul_f32 v112, v112, v114")
        for u in range(9):
            for k in range(0, 8, 2 if self.p["PKLN"] else 1):
                r = 40 + 8 * u + k
                if self.p["PKLN"]:
                    e(f"v_pk_fma_f32 v[{r}:{r+1}], v[{r}:{r+1}], v[114:115], v[112:113] op_sel_hi:[1,0,0] neg_lo:[0,0,1] neg_hi:[0,0,1]")
                else:
                    e(f"v_fma_f32 v{r}, v{r}, v114, -v112")
            for k in range(4):
                e(f"v_cvt_pk_bf16_f32 v{4*u+k}, v{40+8*u+2*k}, v{41+8*u+2*k}")
            if u < 8:
                e(f"ds_write_b128 v123, v[{4*u}:{4*u+3}] offset:{8*CH*u}")
            else:
                e(f"ds_write_b128 v124, v[{4*u}:{4*u+3}] offset:{8*CH*7}")
        self.stamp(15)
        e(f"s_cmp_ge_u32 {sW}, 4\ns_cbranch_scc1 L_ATT")
        if self.p["RESTB"]:
            self.first_loads(self.p["PRE"], self.p["RESTB"], self.p["PREL"], self.p["RESTB"])
        if self.p["TADDR"] in (1, 3):
            self.q_addresses()
        if self.p["TADDR"] == 1:
            self.tail_addresses()
        e("s_waitcnt lgkmcnt(0)\ns_barrier")

    def gemm(self, T, which, Tn):
        e = self.e
        vT = "v218" if which == 1 else "v219"
        sec = 256 if which == 1 else 512
        vD, SW, kstride = ("v216", SW1, 147456) if which == 1 else ("v217", SW2, 18432)

        def areg(buf, pc):
            return 160 + 20 * buf + 4 * pc

        def breg(buf, rt):
            return 200 + 8 * buf + 4 * rt

        def reads(s, pc):
            if pc < 2:
                e.lg(f"ds_read_b128 {vr(breg(s&1,pc),4)}, v220 offset:{512*pc}", ("B", s, pc))
            o = (s % 3) * 5120 + 1024 * pc
            e.lg(f"ds_read_b64_tr_b16 {vr(areg(s&1,pc),2)}, {vT} offset:{o}", ("A", s, pc))
            e.lg(f"ds_read_b64_tr_b16 {vr(areg(s&1,pc)+2,2)}, {vT} offset:{o+sec}", ("A", s, pc))

        def dma_list(s):
            sn = s + 3
            if sn < 36:
                return [(vD, SW, pc, ("d", sn, pc)) for pc in range(T)]
            if which == 1:
                return [("v217", SW2, pc, ("d2", sn - 36, pc)) for pc in range(Tn)]
            return []

        def step(s, first=False):
            dl = dma_list(s)
            if which == 1 and s == 33:
                e(f"s_mul_i32 {sK}, {sROT}, 18432")
            for gi in range(2 * T):
                pc, rt = gi >> 1, gi & 1
                mine = []
                if rt == 0:
                    mine = [d for d in dl if d[2] == pc or (pc == T - 1 and d[2] > pc)]
                e.wait(lg=[("A", s, pc), ("B", s, 0)] if gi == 0 else ([("B", s, 1)] if gi == 1 else [("A", s, pc)]))
                if mine:
                    e(f"s_add_u32 m0, {sRING}, {(s % 3)*5120 + 960*mine[0][2]}")
                acc = vr(16 * gi, 16)
                e(f"v_mfma_f32_32x32x16_bf16 {acc}, {vr(areg(s&1,pc),4)}, {vr(breg(s&1,rt),4)}, {'0' if first else acc}")
                for n, d in enumerate(mine):
                    if n:
                        e(f"s_add_u32 m0, {sRING}, {(s % 3)*5120 + 960*d[2]}\ns_nop 0")
                    e.vm(f"buffer_load_dwordx4 {d[0]}, {d[1]}, {sK} offen offset:{64*d[2]} lds", d[3])
                if rt == 1 and s + 1 < 36:
                    if pc == 0:
                        e(f"v_add_u32 v220, {sBO}, v223")
                    e.wait(vm=("d", s + 1, pc))
                    reads(s + 1, pc)
                if gi == 2 * T - 3 and s + 2 < 36:
                    self.wrap_inc(sBO, 2080, 36 * 2080)
            if s <= 32:
                self.wrap_inc(sK, kstride, 36 * kstride)
            elif which == 1:
                self.wrap_inc(sK, 18432, 36 * 18432)

        e.vmq = [("d", s, pc) for s in range(3) for pc in range(T)]
        e(f"s_mul_i32 {sBO}, {sROT}, 2080\nv_add_u32 v220, {sBO}, v223")
        self.wrap_inc(sBO, 2080, 36 * 2080)
        e.wait(vm=("d", 0, T - 1))
        e.lgq = []
        for pc in range(T):
            reads(0, pc)
        main = e.lines
        texts = []
        for s in range(36):
            e.lines = []
            step(s, first=(s == 0))
            texts.append(e.lines)
        e.lines = main
        for s in range(1, 27):
            assert texts[s] == texts[s + 6], (s, texts[s], texts[s + 6])
        tag = f"G{which}T{T}"
        e.lines += texts[0]
        e(f"s_mov_b32 {sCNT}, 0\ns_branch L_{tag}_1")
        e(".p2align 3")
        e.label(f"L_{tag}_3")
        if self.p["STAMP"] > 1:
            e(f"s_memrealtime s[88:89]\ns_memtime s[90:91]\ns_add_u32 m0, {sCNT}, {8*which+8}\ns_waitcnt lgkmcnt(0)\nv_writelane_b32 v255, s88, m0\nv_writelane_b32 v254, s90, m0")
        for s in (3, 4, 5, 6):
            e.lines += texts[s]
        e.label(f"L_{tag}_1")
        e.lines += texts[7] + texts[8]
        e(f"s_add_u32 {sCNT}, {sCNT}, 1\ns_cmp_lt_u32 {sCNT}, 6\ns_cbranch_scc1 L_{tag}_3")
        for s in (33, 34, 35):
            e.lines += texts[s]

    def silu(self, T):
        e = self.e
        for g in range(4 * T):
            b = 8 * g
            t = 160 + 8 * (g & 1)
            if self.p.get("X_NOSILU"):
                for k in range(4):
                    e(f"v_cvt_pk_bf16_f32 v{b+k}, v{b+2*k}, v{b+2*k+1}")
                continue
            for k in range(8):
                e(f"v_exp_f32 v{t+k}, v{b+k}")
            pk = self.p["PKSILU"]
            for k in range(0, 8, 2 if pk else 1):
                e(f"v_pk_add_f32 v[{t+k}:{t+k+1}], v[{t+k}:{t+k+1}], 1.0 op_sel_hi:[1,0]" if pk else f"v_add_f32 v{t+k}, 1.0, v{t+k}")
            for k in range(8):
                e(f"v_rcp_f32 v{t+k}, v{t+k}")
            for k in range(0, 8, 2 if pk else 1):
                e(f"v_pk_mul_f32 v[{t+k}:{t+k+1}], v[{b+k}:{b+k+1}], v[{t+k}:{t+k+1}]" if pk else f"v_mul_f32 v{t+k}, v{b+k}, v{t+k}")
            for k in range(4):
                e(f"v_cvt_pk_bf16_f32 v{b+k}, v{t+2*k}, v{t+2*k+1}")

    def q_out(self):
        e = self.e
        c = f"{f2u(1.0 / (math.log2(math.e) * math.sqrt(18.0))):#x}"
        if self.p["TADDR"] in (2, 4):
            self.q_addresses()
        e(f"s_mov_b32 {T3}, {c}")
        self.lds_wait(C_A, 4, "v252", "v253")
        e.nop(5)
        e(f"v_mov_b32 v174, {T3}")
        for r in range(128, 160, 2):
            e(f"v_pk_mul_f32 v[{r}:{r+1}], v[{r}:{r+1}], v[174:175] op_sel_hi:[1,0]")
        for k in range(16):
            e(f"v_cvt_pk_bf16_f32 v{128+k}, v{128+2*k}, v{129+2*k}")
        for rt in range(2):
            for pp in range(8):
                e.lg(f"ds_write_b32 v{196+pp}, v{128+8*rt+pp} offset:{1536*rt}")
        e.wait_all(lg=True)
        self.arrive(C_B, "v252", "v253")

    def qaddr(self, dst, vc, cadd, vbase, t0, t1):
        e = self.e
        e(f"v_add_u32 {t0}, {cadd}, {vc}\nv_mul_u32_u24 {t1}, 3641, {t0}\nv_lshrrev_b32 {t1}, 16, {t1}")
        e(f"v_mul_u32_u24 {dst}, 18, {t1}\nv_sub_u32 {t0}, {t0}, {dst}\nv_mul_u32_u24 {dst}, 3072, {t1}\nv_lshrrev_b32 {t1}, 3, {t0}\nv_lshl_add_u32 {dst}, {t1}, 9, {dst}")
        e(f"v_and_b32 {t0}, 7, {t0}\nv_lshl_add_u32 {dst}, {t0}, 1, {dst}\nv_add_u32 {dst}, {vbase}, {dst}")

    def ffn_path(self, T1_, T2_):
        e, p = self.e, self.p
        if T1_ == 4:
            self.q_gemm()
            self.q_out()
            self.stamp(13)
        self.gemm(T1_, 1, T2_)
        self.arrive(C_XN, "v252", "v253")
        self.stamp(3)
        if p["WARMO"]:
            nsl = p["NSL"]
            rows = 18 * nsl
            e(f"s_lshl_b32 {T0}, {sW}, 6\nv_add_u32 v176, {T0}, {vL}\nv_lshrrev_b32 v177, 2, v176\nv_and_b32 v178, 3, v176\nv_mul_u32_u24 v177, 1152, v177")
            e(f"v_cmp_gt_u32 vcc, {4*rows}, v176\nv_mul_u32_u24 v178, 52, v178\nv_add_u32 v177, v177, v178\nv_mov_b32 v178, {OOB}\nv_cndmask_b32 v177, v178, v177, vcc")
            e(f"s_and_b32 {T1}, {sRB}, {32//nsl - 1}\ns_mul_i32 {T1}, {T1}, {rows*1152}\ns_mul_i32 {T0}, {sJ}, 144\ns_add_u32 {T1}, {T1}, {T0}")
            e(f"buffer_load_dword v230, v177, {SWO}, {T1} offen")
        e.nop(2)
        self.silu(T1_)
        self.stamp(4)
        if p["TADDR"] == 4:
            self.tail_addresses()
        self.lds_wait(C_XN, 8, "v252", "v253")
        for u in range(2 * T1_):
            pc, rt = u >> 1, u & 1
            for hf in range(2):
                e.lg(f"ds_write_b128 v221, {vr(16*u+8*hf,4)} offset:{(4*pc+2*hf)*CH + 512*rt}")
        e.wait_all(lg=True)
        self.arrive(C_H, "v252", "v253")
        self.lds_wait(C_H, 4, "v252", "v253")
        self.stamp(5)
        self.gemm(T2_, 2, 0)
        self.arrive(C_G2, "v252", "v253")
        if p["PRIO_T"] != p["PRIO_F"]:
            e(f"s_setprio {p['PRIO_T']}")
        self.stamp(6)
        if p["SENT"] and T2_ == 4:
            e(f"s_lshl_b32 {T0}, {sJ}, 13\ns_lshl_b32 {T1}, {sW}, 12\ns_add_u32 {T0}, {T0}, {T1}\ns_add_u32 {T0}, {T0}, {sAR}\ns_add_u32 {T0}, {T0}, {OM}")
            e(f"s_lshl_b32 {T1}, {sJ}, 10\ns_add_u32 {T1}, {T1}, {sAR}\ns_add_u32 {T1}, {T1}, {OX}\nv_lshlrev_b32 v168, 4, {vL}")
            e("v_mov_b32 v172, -1\nv_mov_b32 v173, -1\nv_mov_b32 v174, -1\nv_mov_b32 v175, -1")
            for q in range(4):
                e(f"buffer_store_dwordx4 v[172:175], v168, {SWS}, {T0} offen offset:{1024*q} sc1")
            e(f"buffer_store_dwordx4 v[172:175], v168, {SWS}, {T1} offen sc1")
        e.nop(2)
        for u in range(2 * T2_):
            pc, rt = u >> 1, u & 1
            b = 16 * u
            for k in range(8):
                e(f"v_cvt_pk_bf16_f32 v{b+k}, v{b+2*k}, v{b+2*k+1}")
            e(f"s_mov_b32 {T0}, {(4*pc)*8192}\ns_mov_b32 {T1}, {(4*pc+2)*8192}")
            e(f"v_permlane32_swap_b32 v{b}, v{b+2}\nv_permlane32_swap_b32 v{b+1}, v{b+3}")
            e(f"v_permlane32_swap_b32 v{b+4}, v{b+6}\nv_permlane32_swap_b32 v{b+5}, v{b+7}")
            e.vm(f"buffer_store_dwordx4 {vr(b,4)}, v222, {SWS}, {T0} offen offset:{512*rt} sc1", "pst")
            e.vm(f"buffer_store_dwordx4 {vr(b+4,4)}, v222, {SWS}, {T1} offen offset:{512*rt} sc1", "pst")
            if p["PACE"]:
                e(f"s_waitcnt vmcnt({p['PACE']})")

    def ffn(self):
        e, p = self.e, self.p
        if p["W1LATE"] == 4 and p["RESTB"] < 15:
            self.first_loads(p["RESTB"] or p["PRE"], 15, p["RESTB"] or p["PREL"], 15)
        self.stamp(2)
        if p["PRIO_F"]:
            e(f"s_setprio {p['PRIO_F']}")
        e(f"s_cmp_ge_u32 {sW}, 2\ns_cbranch_scc1 L_FFN_L")
        self.ffn_path(5, 4)
        e("s_branch L_FFN_J")
        e.label("L_FFN_L")
        self.ffn_path(4, 5)
        e.label("L_FFN_J")
        e("s_setprio 0")
        self.stamp(7)
        self.ffn_tail()

    def partials_dyn(self):
        e, p = self.e, self.p
        for r in range(20):
            e(f"v_mov_b32 v{r}, 0")
        e(f"s_add_u32 {T3}, {sAR}, {FLAGS + F_P}\ns_mov_b32 {T4}, 0x55")
        e(f"v_and_b32 v231, 7, {vL}\nv_lshlrev_b32 v231, 3, v231\ns_mov_b32 {sSPIN}, 0")
        e.label("L_PD_POLL")
        e(f"buffer_load_dwordx2 v[252:253], v231, {SWS}, {T3} offen sc1\ns_waitcnt vmcnt(0)")
        e(f"v_xor_b32 v252, {sN0}, v252\nv_xor_b32 v253, {sN1}, v253\nv_or_b32 v252, v252, v253\nv_cmp_eq_u32 vcc, 0, v252\ns_add_u32 {sSPIN}, {sSPIN}, 1\ns_nop 1")
        e(f"s_lshr_b32 {T2}, vcc_lo, 1\ns_and_b32 {T2}, {T2}, vcc_lo\ns_cmp_ge_u32 {sSPIN}, {p['SPIN']}\ns_cselect_b32 {T2}, -1, {T2}\ns_and_b32 {T2}, {T2}, {T4}\ns_cbranch_scc1 L_PD_GO\ns_sleep 4\ns_branch L_PD_POLL")
        e.label("L_PD_GO")

        def ploads(b):
            e(f"s_ff1_i32_b32 {T1}, {T2}\ns_bitset0_b32 {T2}, {T1}\ns_bitset0_b32 {T4}, {T1}\ns_lshl_b32 {T1}, {T1}, 10")
            for a in range(5):
                e(f"s_add_u32 {T0}, {T1}, {a*16384}")
                e.vm(f"buffer_load_dwordx4 {vr(20+20*b+4*a,4)}, {'v240' if a < 4 else 'v241'}, {SWS}, {T0} offen sc1", ("pl", b, a))

        def padd(b):
            for a in range(5):
                e.wait(vm=("pl", b, a))
                e(f"v_mfma_f32_16x16x32_bf16 {vr(4*a,4)}, {vr(232 if a < 4 else 236,4)}, {vr(20+20*b+4*a,4)}, {vr(4*a,4)}")
        e.vmq = []
        ploads(0)
        if p["DYNP"] == 2:
            e(f"s_cmp_eq_u32 {T2}, 0\ns_cbranch_scc1 L_PD_ONE")
            q0 = list(e.vmq)
            ploads(1)
            padd(0)
            padd(1)
            e("s_branch L_PD_J")
            e.label("L_PD_ONE")
            e.vmq = q0
        padd(0)
        e.label("L_PD_J")
        e(f"s_cmp_lg_u32 {T2}, 0\ns_cbranch_scc1 L_PD_GO\ns_cmp_lg_u32 {T4}, 0\ns_cbranch_scc1 L_PD_POLL")
        self.stamp(8)

    def ffn_tail(self):
        e, p = self.e, self.p
        e.vmq = ["pst"]
        if p["TADDR"] in (2, 3):
            self.tail_addresses()
        ws = p["WOS"]
        e(f"s_mul_i32 {T2}, {sW}, {ws}\ns_cmp_eq_u32 {sW}, 3\ns_cselect_b32 {T2}, {9 + ws}, {T2}")
        e(f"s_mul_i32 {T3}, {T2}, 5120\ns_mul_i32 {T2}, {T2}, 36864\ns_mul_i32 {T4}, {sJ}, 144\ns_add_u32 {T2}, {T2}, {T4}")
        e("s_waitcnt vmcnt(0)")
        self.arrive(C_P, "v252", "v253", rtn=T4)
        self.get_nonce("v231", 252)
        e(f"s_cmp_lg_u32 {T4}, 3\ns_cbranch_scc1 L_NOPF")
        self.flag_set(F_P, sJ, "v231", 252)
        e.label("L_NOPF")
        self.lds_wait(C_G2, 4, "v252", "v253")
        e(f"s_cmp_ge_u32 {sW}, 2\ns_cselect_b32 {sCNT}, {9 - ws}, {ws}")
        if ws == 9:
            e("s_cbranch_scc1 L_WO_D")
        e.label("L_WO_L")
        for i in range(5):
            e(f"s_add_u32 m0, {T3}, {i*1024}\ns_nop 0")
            e(f"buffer_load_dwordx4 v{225+i}, {SWO}, {T2} offen lds")
        e(f"s_add_u32 {T3}, {T3}, 5120\ns_add_u32 {T2}, {T2}, 36864\ns_waitcnt vmcnt({p['PACE3']})\ns_sub_u32 {sCNT}, {sCNT}, 1\ns_cmp_lg_u32 {sCNT}, 0\ns_cbranch_scc1 L_WO_L")
        e.label("L_WO_D")
        for a in range(5):
            e.vm(f"buffer_load_dwordx4 {vr(60+4*a,4)}, {'v242' if a < 4 else 'v243'}, {SX}, 0 offen offset:{32*a}", ("xr", a))
        e.wait_all(vm=True)
        self.arrive(C_WO, "v252", "v253")
        sG = ("s74", "s75", "s76", "s97")
        vG = ("v225", "v226", "v227", "v228")
        for b in range(4):
            e(f"s_lshr_b32 {T0}, {sJ}, 1\ns_add_u32 {T0}, {T0}, {b+p['OROT']}\ns_and_b32 {T0}, {T0}, 3\ns_lshl_b32 {sG[b]}, {T0}, 14\ns_mul_i32 {T0}, {T0}, 23040\nv_add_u32 {vG[b]}, {T0}, v248")

        def aop(i):
            kk, t = divmod(i, 5)
            r = 92 + 4 * (i % 33)
            if kk < 16:
                va, o, sec = vG[kk >> 2], (kk & 3) * 5760 + 32 * t, 1280
            else:
                va, o, sec = "v251", (kk - 16) * 46080 + 32 * t, 5760
            e.lg(f"ds_read_b64_tr_b16 {vr(r,2)}, {va} offset:{o}", ("a", i))
            e.lg(f"ds_read_b64_tr_b16 {vr(r+2,2)}, {va} offset:{o+sec}", ("a", i))

        def pre_reads():
            self.lds_wait(C_WO, 4, "v252", "v253")
            for i in range(33):
                aop(i)
        if p["PREA"]:
            pre_reads()
        self.partials_dyn()
        e(f"s_mov_b32 {T0}, {f2u(-math.log(2.0)):#x}")
        e.nop(6)
        for r in range(20):
            e(f"v_mul_f32 v{r}, {T0}, v{r}")
        for a in range(5):
            e(f"v_mfma_f32_16x16x32_bf16 {vr(4*a,4)}, {vr(232 if a < 4 else 236,4)}, {vr(60+4*a,4)}, {vr(4*a,4)}")
        if not p["PREA"]:
            pre_reads()
        e.wait_all(lg=True)
        self.stamp(9)

        def oload(kk, track=True):
            if kk < 16:
                e(f"s_add_u32 {T0}, {sG[kk >> 2]}, {(kk & 3)*4096}")
            else:
                e(f"s_mov_b32 {T0}, {(kk - 16)*4096}")
            ins = f"buffer_load_dwordx4 {vr(20+4*kk,4)}, {'v246' if kk < 16 else 'v247'}, {SWS}, {T0} offen sc1"
            e.vm(ins, ("o", kk)) if track else e(ins)

        def ocheck(kk):
            b = 20 + 4 * kk
            return [f"v_max3_u32 v252, v{b}, v{b+1}, v{b+2}", f"v_max_u32 v252, v252, v{b+3}", "v_cmp_eq_u32 vcc, -1, v252"]
        om = p["OMODE"]
        if om in (0, 4):
            self.lds_wait(C_O, 4, "v252", "v253", sleep=2)
            self.flag_wait(F_O, 32, "v241", 252)
        else:
            e(f"v_bfe_u32 v241, {vL}, 2, 3\nv_lshlrev_b32 v241, 10, v241\nv_and_b32 v252, 3, {vL}\nv_lshl_add_u32 v241, v252, 2, v241\ns_add_u32 {T2}, {sAR}, {OX + 1008}")
            self.lds_wait(C_O, 4, "v252", "v253", sleep=2)
            if om == 1:
                e(f"s_mov_b32 {sSPIN}, 0")
                e.label("L_HINT")
                e(f"buffer_load_dword v252, v241, {SWS}, {T2} offen sc1\ns_waitcnt vmcnt(0)\nv_cmp_eq_u32 vcc, -1, v252\ns_add_u32 {sSPIN}, {sSPIN}, 1\ns_nop 3")
                e(f"s_cbranch_vccz L_HINT_D\ns_cmp_lt_u32 {sSPIN}, {p['SPIN']}\ns_cbranch_scc1 L_HINT")
                e.label("L_HINT_D")
        e(f"s_mov_b32 {sSPIN}, 0")
        self.stamp(10)
        e.vmq = []
        for kk in range(18):
            oload(kk)
        e.wait(vm=("o", 0))
        e("\n".join(ocheck(0)) + "\ns_nop 4")
        for i in range(90):
            kk, t = divmod(i, 5)
            if t == 0:
                e(f"s_cbranch_vccnz L_OS_{kk}")
                e.label(f"L_OR_{kk}")
                if p["STAMP"] > 1 and kk in (0, 4, 8, 12, 16):
                    e(f"s_memrealtime s[88:89]\ns_waitcnt lgkmcnt(0)\nv_writelane_b32 v255, s88, {40 + kk // 4}\nv_writelane_b32 v254, {sSPIN}, {40 + kk // 4}")
                    e.lgq = []
            e.wait(vm=("o", kk), lg=("a", i))
            e(f"v_mfma_f32_16x16x32_bf16 {vr(4*t,4)}, {vr(92+4*(i % 33),4)}, {vr(20+4*kk,4)}, {vr(4*t,4)}")
            if i >= 1 and i - 1 + 33 < 90:
                aop(i - 1 + 33)
            if t < 3 and kk < 17:
                e.wait(vm=("o", kk + 1))
                e(ocheck(kk + 1)[t])
        main, e.lines = e.lines, []
        for kk in range(18):
            e.label(f"L_OS_{kk}")
            allk = om == 2
            for k2 in range(kk, (kk | 3) + 1 if kk < 16 and not allk else 18):
                oload(k2, track=False)
            e(f"s_add_u32 {sSPIN}, {sSPIN}, 1\ns_waitcnt vmcnt({17 - kk if allk else 0})")
            e("\n".join(ocheck(kk)) + f"\ns_cmp_ge_u32 {sSPIN}, {p['SPIN']}\ns_nop 3\ns_cbranch_scc1 L_OR_{kk}\ns_cbranch_vccz L_OR_{kk}\ns_sleep {p['OSLEEP']}\ns_branch L_OS_{kk}")
        self.stubs = e.lines
        e.lines = main
        e.nop(8)
        for t in range(5):
            e(f"v_cvt_pk_bf16_f32 v{20+2*t}, v{4*t}, v{4*t+1}\nv_cvt_pk_bf16_f32 v{21+2*t}, v{4*t+2}, v{4*t+3}")
        e("v_permlane16_swap_b32 v20, v22\nv_permlane16_swap_b32 v21, v23\nv_permlane16_swap_b32 v24, v26\nv_permlane16_swap_b32 v25, v27")
        fl = ("", " sc1", " nt", " sc0 sc1")[p["OUTF"]]
        e(f"buffer_store_dwordx4 v[20:23], v244, {SOUT}, 0 offen{fl}")
        e(f"buffer_store_dwordx4 v[24:27], v244, {SOUT}, 0 offen offset:64{fl}")
        e(f"buffer_store_dwordx2 v[28:29], v245, {SOUT}, 0 offen offset:128{fl}")
        self.stamp(11)
        e("s_branch L_FIN")
        e.lines += getattr(self, "stubs", [])

    def att_proj(self):
        e, p = self.e, self.p
        c = f"{f2u(1.0 / (math.log2(math.e) * math.sqrt(18.0))):#x}"
        early = p["KVEARLY"]
        e("s_waitcnt vmcnt(0) lgkmcnt(0)\ns_barrier" if early else "s_waitcnt lgkmcnt(0)\ns_barrier")
        e.vmq, e.lgq = [], []
        self.stamp(2)
        e(f"s_setprio {p['PRIO_P']}")
        e(f"v_mov_b32 v246, 0\nbuffer_load_dwordx2 v[248:249], v246, {SDBG}, 0 offen sc1")
        if early or p["EXTU"] < 0:
            self.pro_att()
        e(f"v_and_b32 v200, 15, {vL}\nv_lshrrev_b32 v201, 4, {vL}\nv_bfe_u32 v202, {vL}, 2, 2\nv_and_b32 v203, 3, {vL}")
        e(f"v_lshl_add_u32 v204, v201, 3, v202\nv_lshlrev_b32 v204, 4, v204\nv_and_b32 v205, 1, v203\nv_lshl_add_u32 v204, v205, 3, v204")
        e(f"v_add_u32 v216, {QE}, v204\nv_add_u32 v204, {KVW}, v204")
        if not early:
            e(f"v_cmp_gt_u32 vcc, 2, v203\ns_nop 1\nv_cndmask_b32 v204, v204, v216, vcc")
        e(f"v_mul_u32_u24 v205, {CH}, v201\nv_lshl_add_u32 v205, v200, 4, v205\nv_add_u32 v206, {9*4*CH}, v205")
        e(f"s_lshl_b32 {T0}, {sA}, 8\nv_add_u32 v207, {T0}, v205\nv_add_u32 v208, {T0}, v206")
        if not early:
            e.wait_all(vm=True, lg=True)
            self.arrive(C_E, "v246", "v247")
            self.lds_wait(C_E, 4, "v246", "v247")
        self.stamp(10)

        def ext_reads(kk):
            r = 8 * kk
            e.lg(f"ds_read_b64_tr_b16 {vr(r,2)}, v204 offset:{512*kk}", ("e", kk))
            e.lg(f"ds_read_b64_tr_b16 {vr(r+2,2)}, v204 offset:{512*kk+64}", ("e", kk))
            e.lg(f"ds_read_b128 {vr(r+4,4)}, {'v207' if kk < 9 else 'v208'} offset:{4*CH*(kk % 9)}", ("e", kk))
        for kk in range(5):
            ext_reads(kk)
        for kk in range(18):
            e.wait(lg=("e", kk))
            r = 8 * kk
            e(f"v_mfma_f32_16x16x32_bf16 v[144:147], {vr(r,4)}, {vr(r+4,4)}, {'0' if kk == 0 else 'v[144:147]'}")
            e(f"v_mfma_f32_16x16x32_bf16 v[148:151], {vr(r+4,4)}, {vr(r,4)}, {'0' if kk == 0 else 'v[148:151]'}")
            if kk + 5 < 18:
                ext_reads(kk + 5)
        if not early:
            self.arrive(C_A, "v246", "v247")
        e(f"s_lshr_b32 {T2}, {sA}, 1\ns_lshl_b32 {T3}, {sRB}, 1\ns_add_u32 {T2}, {T2}, {T3}\ns_and_b32 {T3}, {sA}, 1")
        e(f"s_lshl_b32 {T4}, {T3}, 4\nv_add_u32 v209, {T4}, v200\nv_mov_b32 v210, {OOB}")
        e("v_cvt_pk_bf16_f32 v152, v144, v145\nv_cvt_pk_bf16_f32 v153, v146, v147\nv_cvt_pk_bf16_f32 v154, v148, v149\nv_cvt_pk_bf16_f32 v155, v150, v151")
        e(f"s_cmp_ge_u32 {sJ}, 6\ns_cbranch_scc1 L_KV_D\ns_cmp_ge_u32 {sJ}, 3\ns_cbranch_scc1 L_KV_V\ns_cmp_eq_u32 {sJ}, 2\ns_cbranch_scc1 L_KV_X")
        e(f"s_mul_i32 {T0}, {T2}, {KREC}\ns_lshl_b32 {T1}, {sJ}, 9\ns_add_u32 {T0}, {T0}, {T1}")
        e("v_lshlrev_b32 v211, 4, v209\nv_and_b32 v212, 1, v201\nv_lshl_add_u32 v211, v212, 3, v211\nv_cmp_le_u32 vcc, 2, v201\ns_nop 1\nv_cndmask_b32 v211, v210, v211, vcc")
        e(f"buffer_store_dwordx2 v[152:153], v211, {SWS}, {T0} offen sc1\ns_branch L_KV_D")
        e.label("L_KV_X")
        e(f"s_mul_i32 {T0}, {T2}, {KREC}\ns_add_u32 {T0}, {T0}, {KX}")
        e("v_lshlrev_b32 v211, 2, v209\nv_cmp_eq_u32 vcc, 3, v201\ns_nop 1\nv_cndmask_b32 v211, v210, v211, vcc")
        e(f"buffer_store_dword v153, v211, {SWS}, {T0} offen sc1\ns_branch L_KV_D")
        e.label("L_KV_V")
        e(f"s_sub_u32 {T0}, {sJ}, 3\ns_lshl_b32 {T0}, {T0}, 3\ns_min_u32 {T0}, {T0}, 10\ns_cmp_eq_u32 {sJ}, 5\ns_cselect_b32 {T1}, 14, 8")
        e(f"v_add_u32 v211, {T0}, v200\nv_lshrrev_b32 v212, 1, v201\nv_mul_u32_u24 v212, 18, v212\nv_add_u32 v211, v211, v212\nv_lshlrev_b32 v211, 4, v211")
        e(f"v_and_b32 v212, 1, v201\nv_lshl_add_u32 v211, v212, 3, v211\nv_cmp_le_u32 vcc, {T1}, v200\ns_nop 1\nv_cndmask_b32 v211, v210, v211, vcc")
        e(f"s_mul_i32 {T0}, {T2}, {KREC}\ns_mul_i32 {T1}, {T3}, 576\ns_add_u32 {T0}, {T0}, {T1}\ns_add_u32 {T0}, {T0}, {VT-128}")
        e(f"buffer_store_dwordx2 v[154:155], v211, {SWS}, {T0} offen sc1")
        e.label("L_KV_D")
        e(f"s_mov_b32 {sSPIN}, 0")
        e.label("L_TAG_P")
        e(f"s_waitcnt vmcnt(0)\nv_readfirstlane_b32 {sN0}, v248\nv_readfirstlane_b32 {sN1}, v249\ns_add_u32 {sSPIN}, {sSPIN}, 1")
        e(f"s_sub_u32 {T0}, {sT0}, {sN0}\ns_add_u32 {T0}, {T0}, 100000\ns_cmp_gt_u32 {T0}, 103000\ns_cselect_b32 {T0}, 0, {sN0}\ns_cmp_ge_u32 {sSPIN}, 256\ns_cselect_b32 {T0}, {sN0}, {T0}\ns_cmp_lg_u32 {T0}, 0\ns_cbranch_scc1 L_TAG_Q")
        e(f"v_mov_b32 v246, 0\nbuffer_load_dwordx2 v[248:249], v246, {SDBG}, 0 offen sc1\ns_cmp_lt_u32 {sSPIN}, {p['SPIN']}\ns_cbranch_scc1 L_TAG_P")
        e.label("L_TAG_Q")
        e.vmq = []
        e(f"v_mov_b32 v246, {NONCE}\nds_write_b64 v246, v[248:249]\ns_waitcnt lgkmcnt(0)")
        self.kv_flag()
        if early:
            self.arrive(C_E, "v246", "v247")
        self.arrive(C_XN, "v246", "v247")
        if early:
            self.lds_wait(C_E, 4, "v246", "v247")
            for kk in range(18):
                e.lg(f"ds_read_b64_tr_b16 {vr(8*kk,2)}, v216 offset:{512*kk}", ("e2", kk))
                e.lg(f"ds_read_b64_tr_b16 {vr(8*kk+2,2)}, v216 offset:{512*kk+64}", ("e2", kk))
                if kk >= 6:
                    e.wait(lg=("e2", kk - 6))
                    r = 8 * (kk - 6)
                    e(f"v_mfma_f32_16x16x32_bf16 v[144:147], {vr(r,4)}, {vr(r+4,4)}, {'0' if kk == 6 else 'v[144:147]'}")
            for kk in range(12, 18):
                e.wait(lg=("e2", kk))
                e(f"v_mfma_f32_16x16x32_bf16 v[144:147], {vr(8*kk,4)}, {vr(8*kk+4,4)}, v[144:147]")
            self.arrive(C_A, "v246", "v247")
            e.nop(3)
        e(f"v_mul_f32 v144, {c}, v144\nv_mul_f32 v145, {c}, v145\nv_mul_f32 v146, {c}, v146\nv_mul_f32 v147, {c}, v147")
        e("v_cvt_pk_bf16_f32 v144, v144, v145\nv_cvt_pk_bf16_f32 v145, v146, v147")
        e(f"s_lshr_b32 {T3}, {sA}, 1\ns_mul_i32 {T3}, {T3}, 1536\ns_and_b32 {T4}, {sA}, 1\ns_lshl_b32 {T4}, {T4}, 8\ns_add_u32 {T3}, {T3}, {T4}\ns_add_u32 {T3}, {T3}, {ATT}")
        e(f"v_lshl_add_u32 v214, v200, 4, {T3}\nv_lshlrev_b32 v215, 2, v201")
        self.qaddr("v82", "v215", 64, "v214", "v212", "v213")
        self.qaddr("v83", "v215", 66, "v214", "v212", "v213")
        self.lds_wait(C_A, 4, "v246", "v247")
        e("s_mov_b32 exec_hi, 0")
        e.lg("ds_write_b32 v82, v144")
        e.lg("ds_write_b32 v83, v145")
        e("s_mov_b64 exec, -1")
        self.stamp(3)
        e.wait_all(lg=True)
        self.arrive(C_B, "v246", "v247")
        self.stamp(4)
        for r in range(192, 210):
            e(f"v_mov_b32 v{r}, 0")
        for b in (218, 222):
            e(f"v_mov_b32 v{b+1}, 0x3f803f80\nv_mov_b32 v{b+2}, 0\nv_mov_b32 v{b+3}, 0")
        e(f"v_and_b32 v246, 31, {vL}\nv_mov_b32 v247, 0x3f803f80\nv_cmp_eq_u32 vcc, 18, v246\ns_mov_b32 s82, 0x3ffff\ns_mov_b32 s83, 0x3ffff")
        for r in range(226, 242):
            e(f"v_cndmask_b32 v{r}, 0, v247, vcc")
        e("v_mov_b32 v242, 0xdddddddd")
        d = p["KSPLIT"]
        e(f"s_mul_i32 {T2}, {sA}, {16+d}\ns_cmp_eq_u32 {sA}, 3\ns_cselect_b32 {T2}, {48+d}, {T2}\ns_cmp_ge_u32 {sA}, 2\ns_cselect_b32 {sNT}, {16-d}, {16+d}\ns_lshr_b32 {sNL}, {sNT}, 1")
        e(f"s_mul_i32 {T0}, {T2}, {KREC}\ns_mul_i32 {sKT[1]}, {sNT}, {KREC}\nv_lshl_add_u32 v243, {vL}, 4, {T0}\nv_lshl_add_u32 v244, v246, 2, {T0}")
        e(f"s_nop 0\nv_lshrrev_b32 v245, 5, {vL}\nv_mul_u32_u24 v245, 18, v245\nv_add_u32 v245, v245, v246\nv_lshl_add_u32 v245, v245, 4, {T0}")
        e(f"s_setprio {p['PRIO_A']}")
        self.zero_acc()
        if not p["EARLYKV"]:
            self.q_reads()
            e(f"v_lshrrev_b32 v247, 3, {vL}\nv_mul_u32_u24 v247, {ASZ}, v247\nv_and_b32 v248, 7, {vL}\nv_lshl_add_u32 v247, v248, 3, v247")
            e(f"s_mul_i32 {T2}, {sA}, {8*ASZ}\ns_add_u32 {T2}, {T2}, {ARENA + FLAGS + F_KV}")
            self.flag_poll("v247", T2, 248, sleep=p["G1SLEEP"])
            self.arrive(C_G1, "v247", "v248")
            self.lds_wait(C_G1, 4, "v247", "v248")
            if p["X_SEQ"]:
                self.lds_wait((C_G2, C_H, C_XN)[p["X_SEQ"] - 1], (4, 4, 8)[p["X_SEQ"] - 1], "v247", "v248", sleep=8)
        else:
            e(f"v_min_u32 v247, 53, {vL}\nv_mul_u32_u24 v248, 43, v247\nv_lshrrev_b32 v248, 8, v248\nv_mul_u32_u24 v249, 6, v248\nv_sub_u32 v247, v247, v249")
            e(f"s_lshr_b32 {T2}, {T2}, 1\nv_add_u32 v248, {T2}, v248\nv_min_u32 v248, 31, v248\nv_mul_u32_u24 v248, {ASZ}, v248\nv_lshl_add_u32 v247, v247, 3, v248\ns_mov_b32 {T2}, {ARENA + FLAGS + F_KV}")
            self.flag_poll("v247", T2, 248, sleep=p["G1SLEEP"])
        e(f"s_setprio {p['PRIO_A']}")
        self.stamp(5)

    def q_reads(self):
        e = self.e
        self.lds_wait(C_B, 6, "v252", "v253", sleep=4)
        for i2 in range(4):
            e(f"s_add_u32 {T0}, {sA}, {1+i2}\ns_and_b32 {T0}, {T0}, 3\ns_mul_i32 {T0}, {T0}, 3072\ns_add_u32 {T0}, {T0}, {ATT}")
            e(f"v_lshl_add_u32 v{128+i2}, {vL}, 4, {T0}")
            for rt in range(2):
                e.lg(f"ds_read_b128 {vr(160+4*(2*i2+rt),4)}, v{128+i2} offset:{1536*rt}")
        e("s_mov_b32 exec_hi, 0")
        for i2 in range(4):
            for rt in range(2):
                e.lg(f"ds_read_b32 v{192+2*(2*i2+rt)}, v{128+i2} offset:{1536*rt+1024}")
        e("s_mov_b64 exec, -1")
        e.wait_all(lg=True)

    def kv_flag(self):
        e = self.e
        self.arrive(C_KV, "v246", "v247", rtn=T2)
        e(f"s_cmp_lg_u32 {T2}, 3\ns_cbranch_scc1 L_NOG1")
        self.flag_set(F_KV, sJ, "v246", 248)
        e.label("L_NOG1")

    def send_addr(self):
        e = self.e
        for i2 in range(3):
            e(f"s_add_u32 {T0}, {sA}, {1+i2}\ns_and_b32 {T0}, {T0}, 3\ns_mul_i32 {T0}, {T0}, {6*OSL}\ns_add_u32 {T0}, {T0}, {OXA + 2*i2*OSL}")
            e(f"v_lshl_add_u32 v{246+i2}, {vL}, 4, {T0}")

    def zero_acc(self):
        for r in list(range(128)) + list(range(152, 160)):
            self.e(f"v_mov_b32 v{r}, 0")

    def o_addr(self, vm_, vx, vt):
        e = self.e
        e(f"v_and_b32 {vx}, 31, {vL}\nv_lshrrev_b32 {vt}, 5, {vL}\ns_lshl_b32 {T0}, {sJ}, 2\ns_add_u32 {T0}, {T0}, {sA}\ns_lshl_b32 {T0}, {T0}, 11")
        e(f"s_add_u32 {T0}, {T0}, {sAR}\ns_add_u32 {T0}, {T0}, {OM}\nv_lshl_add_u32 {vm_}, {vx}, 4, {T0}\nv_lshl_add_u32 {vm_}, {vt}, 10, {vm_}")
        e(f"s_lshl_b32 {T1}, {sJ}, 10\ns_add_u32 {T0}, {sAR}, {T1}\ns_lshl_b32 {T1}, {sA}, 2\ns_add_u32 {T0}, {T0}, {T1}\ns_add_u32 {T0}, {T0}, {OX}")
        e(f"v_lshl_add_u32 {vx}, {vx}, 4, {T0}")

    def kvload(self, buf, what, step=True):
        e = self.e
        if what == "k":
            e.vm(f"buffer_load_dwordx4 {vr(210+4*buf,4)}, v243, {SWS}, {sKT[0]} offen sc1", ("k", buf))
            e.vm(f"buffer_load_dword v{218+4*buf}, v244, {SWS}, {sKT[0]} offen offset:{KX} sc1", ("k", buf))
        else:
            e(f"s_mov_b64 exec, {sVM}")
            e.vm(f"buffer_load_dwordx4 {vr(226+8*buf,4)}, v245, {SWS}, {sKT[0]} offen offset:{VT} sc1", ("v", buf))
            e.vm(f"buffer_load_dwordx4 {vr(230+8*buf,4)}, v245, {SWS}, {sKT[0]} offen offset:{VT+576} sc1", ("v", buf))
            e("s_mov_b64 exec, -1")
            if self.p["KROT"]:
                self.wrap_inc(sKT[0], KREC, sKT[1])
            else:
                e(f"s_add_u32 {sKT[0]}, {sKT[0]}, {KREC}")

    def qk(self, i, buf, which, S=None):
        S = vr(128 + 16 * (i & 1), 16) if S is None else S
        if which == 0:
            self.e(f"v_mfma_f32_32x32x16_bf16 {S}, {vr(210+4*buf,4)}, {vr(160+4*i,4)}, 0")
        else:
            self.e(f"v_mfma_f32_32x32x16_bf16 {S}, {vr(218+4*buf,4)}, {vr(192+2*i,4)}, {S}")

    def pv(self, i, buf, s):
        self.e(f"v_smfmac_f32_32x32x32_bf16 {vr(16*i,16)}, {vr(226+8*buf+4*s,4)}, {vr(128+16*(i & 1)+8*s,8)}, v242")

    def att_tile(self, buf, first=False, last=False, sig=False):
        e = self.e

        def send(i):
            for hf in range(2):
                e.lg(f"ds_write_b128 v{246+(i >> 1)}, {vr(16*i+4*hf,4)} offset:{(i & 1)*OSL + 1024*hf}")
        for i in range(8):
            S = 128 + 16 * (i & 1)

            pat = self.p["EXPAT"]
            c1, c2 = ((5, 8), (5, 8), (6, 10), (5, 9))[pat]

            def ex(a, b):
                for k in range(a, b):
                    wide = pat in (1, 3) and (b - a) % 2 == 1 and k == a
                    e(f"v_exp_f32{'_e64' if wide else ''} v{S+k}, v{S+k}")
            ex(0, 2)
            if i > 0:
                self.pv(i - 1, buf, 1)
            else:
                self.pv(7, buf ^ 1, 1)
            if i == 0 and not last:
                self.kvload(buf ^ 1, "v")
                if sig and not self.p["TRIM"]:
                    e(f"s_cmp_lg_u32 {sCNT}, 1\ns_cbranch_scc1 L_NOSIG")
                    self.arrive(C_L, "v246", "v247")
                    e.label("L_NOSIG")
            ex(2, c1)
            nxt = (i + 1, buf) if i < 7 else (0, buf ^ 1)
            do_qk = not (last and i == 7)
            if i == 7 and do_qk:
                e.wait(vm=("k", buf ^ 1))
            if do_qk:
                self.qk(nxt[0], nxt[1], 0)
            ex(c1, c2)
            if do_qk:
                self.qk(nxt[0], nxt[1], 1)
            if i == 7 and not last:
                self.kvload(buf, "k")
            c3 = max(12, c2 + 3) if pat != 2 else 14
            ex(c2, c3)
            if i == 0:
                e.wait(vm=("v", buf))
            self.pv(i, buf, 0)
            ex(c3, 14)
            if last and 1 <= i <= 6:
                send(i - 1)
            ex(14, 16)

    def attention(self):
        e, p = self.e, self.p
        e.label("L_ATT")
        self.att_proj()
        e.label("L_PASS")
        b0 = p["KSPLIT"] & 1
        e(f"s_and_b32 {sTI}, {sRB}, {15*p['KROT']}\ns_cmp_ge_u32 {sTI}, {sNT}\ns_cselect_b32 {sTI}, 0, {sTI}\ns_mul_i32 {sKT[0]}, {sTI}, {KREC}")
        e.vmq = []
        self.kvload(b0, "k")
        self.kvload(b0, "v")
        self.kvload(b0 ^ 1, "k")
        if p["TRIM"]:
            self.o_addr("v249", "v251", "v246")
            self.send_addr()
        if p["EARLYKV"]:
            e(f"s_cmp_lg_u32 {sPASS}, 0\ns_cbranch_scc1 L_NOQR")
            self.q_reads()
            e.label("L_NOQR")
            self.stamp(11)
        e.wait(vm=("k", b0))
        self.qk(0, b0, 0)
        self.qk(0, b0, 1)
        e(f"s_mov_b32 {sCNT}, {sNL}")
        e.nop(11)
        if not b0:
            e("s_branch L_AT_MID")
            e.vmq = [("v", 1), ("v", 1), ("k", 0), ("k", 0)]
        e(".p2align 3")
        e.label("L_AT_LOOP")
        if p["STAMP"]:
            e(f"s_sub_u32 m0, 25, {sCNT}")
            self.stamp("m0")
        if p["AHI"]:
            e(f"s_cmp_lg_u32 {sCNT}, {p['AHI']}\ns_cbranch_scc1 L_NOHI\ns_setprio 2")
            e.label("L_NOHI")
            e(f"s_cmp_lg_u32 {sCNT}, {p['ALO']}\ns_cbranch_scc1 L_NOLO\ns_setprio 0")
            e.label("L_NOLO")
        if p["GATE"]:
            e(f"s_cmp_lg_u32 {sCNT}, {p['GATE']}\ns_cbranch_scc1 L_NOGATE")
            self.lds_wait(C_G2, 4, "v246", "v247", sleep=4)
            e.label("L_NOGATE")
        q0 = list(e.vmq)
        self.att_tile(1)
        e.label("L_AT_MID")
        self.att_tile(0, sig=True)
        assert q0 == e.vmq, (q0, e.vmq)
        e(f"s_sub_u32 {sCNT}, {sCNT}, 1\ns_cmp_lg_u32 {sCNT}, 0\ns_cbranch_scc1 L_AT_LOOP")
        self.stamp(6)
        self.lds_wait(C_G2 if p.get("NEWTAIL") else C_P, 4, *(("v128", "v129")[:0] or (("v252", "v253") if p["TRIM"] else ("v246", "v247"))))
        if not p["TRIM"]:
            self.send_addr()
        self.att_tile(1, last=True)
        e.nop(2)
        self.pv(7, 1, 1)
        e("s_mov_b32 exec_hi, 0")
        for i in range(6):
            e.lg(f"ds_write_b128 v{246+(i >> 1)}, {vr(16*i+8,4)} offset:{(i & 1)*OSL + 2048}")
        e("s_mov_b64 exec, -1")
        e("v_add_f32 v128, v10, v26\nv_add_f32 v129, v42, v58\nv_add_f32 v130, v74, v90\nv_min3_f32 v131, v10, v26, v42\nv_min3_f32 v132, v58, v74, v90")
        e("v_add_f32 v128, v128, v129\nv_add_f32 v130, v130, v106\nv_min3_f32 v131, v131, v132, v106\nv_add_f32 v128, v128, v130")
        e("v_add_f32 v128, v128, v122\nv_min_f32 v131, v131, v122")
        e(f"v_cmp_nge_f32 vcc, {f2u(2.0**40):#x}, v128\nv_mov_b32 v129, {f2u(2.0**-64):#x}\ns_mov_b32 {T2}, vcc_lo\nv_cmp_nge_f32 vcc, v131, v129\ns_nop 1\ns_or_b32 {T2}, {T2}, vcc_lo")
        if p["FORCE_FB"]:
            e(f"s_mov_b32 {T2}, 1")
        e(f"s_cmp_lg_u32 {T2}, 0\ns_cselect_b32 {T2}, 0x10001, 1")
        e.wait_all(lg=True)
        self.arrive(C_R, "v128", "v129", val=T2)
        e(f"s_mul_i32 {T0}, {sA}, {6*OSL}\ns_add_u32 {T0}, {T0}, {OXA}\nv_lshl_add_u32 v246, {vL}, 4, {T0}")
        if not p["TRIM"]:
            self.o_addr("v249", "v251", "v248")
        e(f"s_lshl_b32 {T3}, {sPASS}, 2\ns_add_u32 {T3}, {T3}, 4")
        self.lds_wait(C_R, T3, "v128", "v129", mask="0xffff", out=T2)
        self.stamp(7)
        e(f"s_cmp_lg_u32 {sPASS}, 0\ns_cbranch_scc1 L_SAFE\ns_cmp_ge_u32 {T2}, 0x10000\ns_cbranch_scc1 L_FALLBACK")
        e.label("L_SAFE")
        for tt in range(2):
            for i in range(3):
                for q in range(3):
                    e.lg(f"ds_read_b128 {vr(12*(3*tt+i)+4*q,4)}, v246 offset:{(2*i+tt)*OSL + 1024*q}", ("r", tt, i))
        for tt in range(2):
            O = 96 + 16 * tt
            for i in range(3):
                e.wait(lg=("r", tt, i))
                r0 = 12 * (3 * tt + i)
                if p["TRIM"]:
                    e(f"v_add_f32 v{O+10}, v{O+10}, v{r0+10}")
                    for k in range(0, 10, 2):
                        e(f"v_pk_add_f32 v[{O+k}:{O+k+1}], v[{O+k}:{O+k+1}], v[{r0+k}:{r0+k+1}]")
                else:
                    for k in (10, 0, 1, 2, 3, 4, 5, 6, 7, 8, 9):
                        e(f"v_add_f32 v{O+k}, v{O+k}, v{r0+k}")
            e(f"v_mov_b32 v128, v{O+10}\nv_mov_b32 v129, v{O+10}\ns_nop 1\nv_permlane32_swap_b32 v128, v129\ns_nop 1\nv_mul_f32 v128, {sNL2E}, v128\nv_rcp_f32 v128, v128\ns_nop 0")
            for k in range(0, 10, 2 if p["TRIM"] else 1):
                e(f"v_pk_mul_f32 v[{O+k}:{O+k+1}], v[{O+k}:{O+k+1}], v[128:129] op_sel_hi:[1,0]" if p["TRIM"] else f"v_mul_f32 v{O+k}, v{O+k}, v128")
            for k in range(5):
                e(f"v_cvt_pk_bf16_f32 v{132+8*tt+k}, v{O+2*k}, v{O+2*k+1}")
            if p["SENT"]:
                for k in range(5):
                    e(f"v_min_u32 v{132+8*tt+k}, -2, v{132+8*tt+k}")
            e.vm(f"buffer_store_dwordx4 {vr(132+8*tt,4)}, v249, {SWS}, 0 offen offset:{512*tt} sc1")
            e("s_mov_b32 exec_hi, 0")
            e.vm(f"buffer_store_dword v{136+8*tt}, v251, {SWS}, 0 offen offset:{512*tt} sc1")
            e("s_mov_b64 exec, -1")
        self.stamp(8)
        if p["OMODE"] == 0:
            e.wait_all(vm=True)
        if p["OMODE"] in (0, 4):
            e(f"s_lshl_b32 {T2}, {sJ}, 2\ns_add_u32 {T2}, {T2}, {sA}")
            self.flag_set(F_O, T2, "v128", 130)
        self.arrive(C_O, "v128", "v129")
        self.stamp(9)
        e("s_branch L_FIN")
        self.fallback()

    def fallback(self):
        e = self.e
        e.label("L_FALLBACK")
        e(f"s_mov_b32 {sPASS}, 1\ns_mov_b32 {sKT[0]}, 0\ns_mov_b32 {sCNT}, 0")
        for i in range(8):
            e(f"v_mov_b32 v{i}, 0xff800000")
        e.label("L_FB_LOOP")
        self.kvload(0, "k")
        e(f"s_add_u32 {sKT[0]}, {sKT[0]}, {KREC}")
        e.wait_all(vm=True)
        for i in range(8):
            self.qk(i, 0, 0, S="v[128:143]")
            self.qk(i, 0, 1, S="v[128:143]")
            e.nop(12)
            for k in range(8):
                e(f"v_max3_f32 v{i}, v{i}, v{128+2*k}, v{129+2*k}")
        e(f"s_add_u32 {sCNT}, {sCNT}, 1\ns_cmp_lt_u32 {sCNT}, {sNT}\ns_cbranch_scc1 L_FB_LOOP")
        e(f"v_and_b32 v247, 31, {vL}")
        for i in range(8):
            e(f"v_mov_b32 v8, v{i}\ns_nop 1\nv_permlane32_swap_b32 v{i}, v8\ns_nop 1\nv_max_f32 v{i}, v{i}, v8")
            e(f"s_lshl_b32 {T0}, {sA}, 1\ns_add_u32 {T0}, {T0}, {2+i}\ns_and_b32 {T0}, {T0}, 7\ns_lshl_b32 {T0}, {T0}, 7\ns_add_u32 {T0}, {T0}, {MX}")
            e(f"v_lshl_add_u32 v{16+i}, v247, 2, {T0}\ns_lshl_b32 {T1}, {sA}, 10\nv_add_u32 v9, {T1}, v{16+i}")
            e(f"ds_write_b32 v9, v{i}")
        e.wait_all(lg=True)
        self.arrive(C_M, "v128", "v129")
        self.lds_wait(C_M, 4, "v128", "v129")
        e("s_mov_b32 exec_hi, 0")
        for i in range(8):
            for a in range(4):
                e(f"ds_read_b32 v{8+a}, v{16+i} offset:{1024*a}")
            e.wait_all(lg=True)
            e("v_max3_f32 v8, v8, v9, v10\nv_max_f32 v8, v8, v11\nv_cvt_pk_bf16_f32 v9, v8, v8\nv_and_b32 v9, 0xffff0000, v9\nv_sub_f32 v10, v8, v9")
            e(f"v_cvt_pk_bf16_f32 v{193+2*i}, -v9, -v10")
        e("s_mov_b64 exec, -1")
        self.zero_acc()
        e("s_branch L_PASS")

    def build(self):
        e, p = self.e, self.p
        self.prologue()
        self.ffn()
        self.attention()
        e.label("L_FIN")
        if p["STAMP"]:
            e("s_waitcnt vmcnt(0)")
            self.stamp(12)
            e(f"s_lshl_b32 {T0}, s2, 3\ns_add_u32 {T0}, {T0}, {sW}\ns_lshl_b32 {T0}, {T0}, 8\ns_add_u32 {T0}, {T0}, {STAMPS}\nv_lshlrev_b32 v0, 2, {vL}")
            e(f"buffer_store_dword v255, v0, {SWS}, {T0} offen\ns_add_u32 {T0}, {T0}, 0x80000\nbuffer_store_dword v254, v0, {SWS}, {T0} offen")
            e(f"s_cmp_lg_u32 s2, 100\ns_cbranch_scc1 L_END\ns_cmp_lg_u32 {sW}, 0\ns_cbranch_scc1 L_END")
            e(f"v_readlane_b32 {T0}, v255, 0\ns_nop 1\nv_subrev_u32 v1, {T0}, v255\ns_mov_b64 exec, 0x1ffe\nbuffer_store_dword v1, v0, {SDBG}, 0 offen")
        e.label("L_END")
        e("s_endpgm")
        probs = check_hazards(e.lines)
        head = open("cdna_kernels/" + NAME + ".s.ref").read().split("\n")
        hdr = [l for l in head if l.startswith(";") and "@launch" not in l and "Override" not in l and "grid=ceil" not in l]
        txt = "\n".join(hdr) + f"""
; One persistent workgroup per CU owns 64 rows x (576 FFN columns, 4 heads, 72 output columns); 8 workgroups share a row block.
;   all waves : LayerNorm of the 64 rows -> LDS (bf16, scaled by -log2(e); the scale is undone in q, 1/l and the FFN sum)
;   waves 0-3 : (2,3: Q projection) GEMM1 -> SiLU -> GEMM2 -> bf16 partial sums to d_ws -> sum of the 8 partials + x
;               -> output projection of the row block's attention output -> d_out
;   waves 4-7 : K/V projection (published to d_ws), then softmax(QK^T)V over a quarter of the keys each for all 8 query tiles;
;               P stays fp32 in registers, the sparse MFMA picks its high halves; a ones row of V^T gives the row sums.
; Softmax shift: the first pass uses shift 0 and checks every row sum against [2^-64, 2^40]; if any sum is outside (or NaN)
; the workgroup computes the true row maxima (L_FALLBACK) and runs the pass again with them subtracted.
; Hand-offs between workgroups: write-through stores, then a flag holding this launch's tag (published through d_debug);
; the attention output is checked word by word against an "empty" pattern written earlier in the same launch.
; @launch grid=(256,1,1) block=(512,1,1) lds={LDS_BYTES}
.amdgcn_target "amdgcn-amd-amdhsa--gfx950"
.text
.globl {NAME}_kernel
.p2align 8
.type {NAME}_kernel,@function
{NAME}_kernel:
{e.text()}
.section .rodata,"a"
.p2align 6
.amdhsa_kernel {NAME}_kernel
  .amdhsa_next_free_vgpr 256
  .amdhsa_next_free_sgpr 102
  .amdhsa_accum_offset 256
  .amdhsa_group_segment_fixed_size 0
  .amdhsa_kernarg_size 88
  .amdhsa_user_sgpr_count 2
  .amdhsa_user_sgpr_kernarg_segment_ptr 1
  .amdhsa_system_sgpr_workgroup_id_x 1
.end_amdhsa_kernel
"""
        return txt, probs


if __name__ == "__main__":
    out = sys.argv[1]
    kw = {}
    for a in sys.argv[2:]:
        k, v = a.split("=")
        kw[k] = int(v, 0)
    txt, probs = G(**kw).build()
    for x in probs[:40]:
        print("HAZARD", x)
    open(out, "w").write(txt)
    print("wrote", out, len(txt), "bytes;", len(probs), "hazards")
```

```python
import sys, math, struct
from emit import E, check_hazards

NAME = "parallel_sum__grouped_kv_mqa__dense_activation_silu__prompt"

DEF = dict(NSL=2, STAMP=0, PRIO_F=1, PRIO_A=0, ROT=1, KROT=1, CODEPF=1, PRIO_P=2, WARMQ=0, TLBW=2, OUTF=2, KSPLIT=1, W1LATE=4, PRE=5, PREU=0, ROTG=0, EXPAT=0, SENT=1, OMODE=2, OROT=1, OSLEEP=0, TADDR=2, PRIO_T=1, TRIM=1, TLBU=0, TLB0=0, GATE=0, AHI=0, ALO=0, X_SEQ=0, X_BIAS=0, EXTU=8, PREL=5, QROT=1, KVEARLY=0, KVU=0, PKLN=0, XBAR=1, PACE2=2, PACE3=2, DYNP=1, WARMO=1, PKSILU=1, PACE=4, DEFER=0, G1SLEEP=16, SPIN=1 << 16, FORCE_FB=0)

KREC = 2304
KM, KX, VT = 0, 1024, 1152
ARENA, ASZ = 0x40000, 0xb0000
PART, OM, OX, FLAGS = 0, 589824, 655360, 663552
STAMPS = 0x1710000
WS_BYTES = 0x1820000
CH = 1040
RING, RSZ = 72 * CH, 15360
ATT = RING + 4 * RSZ
QE, KVW = ATT, ATT + 9216 + 64
QRSZ = 6144
OXA, OSL = 92160, 2560
MX = 153600
QX, SYNC = 162560, 163584
LDS_BYTES = 163840
C_A, C_KV, C_B, C_XN, C_H, C_G2, C_P, C_WO, C_R, C_O, C_G1, C_M, C_E, C_Q, C_L = range(15)
SX, SW1, SW2, SWQ, SKV, SWO, SWS, SDBG, SOUT = (f"s[{b}:{b+3}]" for b in range(28, 64, 4))
sRB, sJ, sW, sA = "s64", "s65", "s66", "s67"
sRING, sK, sCNT, sNL2E, sSPIN, sPASS = "s68", "s69", "s70", "s71", "s72", "s73"
sKT = ("s74", "s75", "s76")
T0, T1, T2, T3, T4 = "s77", "s78", "s79", "s80", "s81"
sVM = "s[82:83]"
sIDX = "s84"
sROT, sBO, sTI, sAR = "s92", "s93", "s94", "s95"
sKQ, sN0, sN1, sNT, sNL = "s96", "s98", "s99", "s100", "s101"
sT0 = "s26"
F_P, F_KV, F_O = 0, 128, 256
NONCE = SYNC + 128
vL = "v250"
OOB = 0x40000000


def f2u(x):
    return struct.unpack("<I", struct.pack("<f", x))[0]


def vr(b, n=1):
    return f"v{b}" if n == 1 else f"v[{b}:{b+n-1}]"


class G:
    def __init__(self, **kw):
        self.p = dict(DEF)
        self.p.update(kw)
        self.e = E()
        self.nstamp = 0

    def stamp(self, i):
        if not self.p["STAMP"]:
            return
        e = self.e
        e("s_waitcnt lgkmcnt(0)")
        e.lgq = []
        e("s_memrealtime s[88:89]\ns_memtime s[90:91]")
        e("s_waitcnt lgkmcnt(0)")
        e(f"v_writelane_b32 v255, s88, {i}\nv_writelane_b32 v254, s90, {i}")

    def srd(self, srd, lo, nbytes):
        b = int(srd[2:srd.index(":")])
        self.e(f"s_mov_b32 s{b}, s{lo}\ns_mov_b32 s{b+1}, s{lo+1}\ns_mov_b32 s{b+2}, {nbytes}\ns_mov_b32 s{b+3}, 0x20000")

    def arrive(self, word, va, vb, rtn=None, val="1"):
        e = self.e
        e(f"v_mov_b32 {va}, {SYNC}\nv_mov_b32 {vb}, {val}\ns_mov_b64 exec, 1")
        if rtn is None:
            e.lg(f"ds_add_u32 {va}, {vb} offset:{4*word}")
            e("s_mov_b64 exec, -1")
        else:
            e(f"ds_add_rtn_u32 {vb}, {va}, {vb} offset:{4*word}")
            e.wait_all(lg=True)
            e(f"v_readfirstlane_b32 {rtn}, {vb}\ns_mov_b64 exec, -1\ns_nop 0")

    def lds_wait(self, word, target, va, vb, mask=None, out=None, sleep=1):
        e = self.e
        L, D = e.new("LW"), e.new("LWD")
        out = out or T0
        e(f"v_mov_b32 {va}, {SYNC}\ns_mov_b32 {sSPIN}, 0")
        e.label(L)
        e(f"ds_read_b32 {vb}, {va} offset:{4*word}")
        e.wait_all(lg=True)
        e(f"v_readfirstlane_b32 {out}, {vb}\ns_add_u32 {sSPIN}, {sSPIN}, 1")
        if mask is not None:
            e(f"s_and_b32 {T1}, {out}, {mask}\ns_cmp_ge_u32 {T1}, {target}")
        else:
            e(f"s_cmp_ge_u32 {out}, {target}")
        e(f"s_cbranch_scc1 {D}\ns_sleep {sleep}\ns_cmp_lt_u32 {sSPIN}, {self.p['SPIN']}\ns_cbranch_scc1 {L}")
        e.label(D)

    def flag_poll(self, va, soff, vb, sleep=2):
        e = self.e
        L, D = e.new("FW"), e.new("FWD")
        e(f"s_mov_b32 {sSPIN}, 0")
        e.label(L)
        e(f"buffer_load_dwordx2 v[{vb}:{vb+1}], {va}, {SWS}, {soff} offen sc1")
        e.wait_all(vm=True)
        e(f"v_xor_b32 v{vb}, {sN0}, v{vb}\nv_xor_b32 v{vb+1}, {sN1}, v{vb+1}\nv_or_b32 v{vb}, v{vb}, v{vb+1}")
        e(f"v_cmp_ne_u32 vcc, 0, v{vb}\ns_add_u32 {sSPIN}, {sSPIN}, 1\ns_nop 3")
        e(f"s_cbranch_vccz {D}\ns_sleep {sleep}\ns_cmp_lt_u32 {sSPIN}, {self.p['SPIN']}\ns_cbranch_scc1 {L}")
        e.label(D)

    def flag_wait(self, group, n, va, vb):
        e = self.e
        e(f"v_and_b32 {va}, {n-1}, {vL}\nv_lshlrev_b32 {va}, 3, {va}\ns_add_u32 {T0}, {sAR}, {FLAGS + group}")
        self.flag_poll(va, T0, vb)

    def flag_set(self, group, sidx, va, vb):
        e = self.e
        e(f"s_lshl_b32 {T1}, {sidx}, 3\ns_add_u32 {T0}, {sAR}, {T1}\ns_add_u32 {T0}, {T0}, {FLAGS + group}")
        e(f"v_mov_b32 {va}, 0\nv_mov_b32 v{vb}, {sN0}\nv_mov_b32 v{vb+1}, {sN1}\ns_mov_b64 exec, 1")
        e.vm(f"buffer_store_dwordx2 v[{vb}:{vb+1}], {va}, {SWS}, {T0} offen sc1")
        e("s_mov_b64 exec, -1")

    def get_nonce(self, va, vb):
        e = self.e
        e(f"v_mov_b32 {va}, {NONCE}\nds_read_b64 v[{vb}:{vb+1}], {va}")
        e.wait_all(lg=True)
        e(f"v_readfirstlane_b32 {sN0}, v{vb}\nv_readfirstlane_b32 {sN1}, v{vb+1}\ns_nop 1")

    def prologue(self):
        e, p = self.e, self.p
        nsl = p["NSL"]
        e("s_cmp_ge_u32 s2, 256\ns_cbranch_scc1 L_END")
        e("s_load_dwordx16 s[4:19], s[0:1], 0\ns_load_dwordx4 s[20:23], s[0:1], 64\ns_load_dwordx2 s[24:25], s[0:1], 80\ns_memrealtime s[26:27]")
        if p["STAMP"]:
            e("s_memrealtime s[88:89]\ns_memtime s[90:91]\nv_mov_b32 v255, 0\nv_mov_b32 v254, 0")
        e(f"v_and_b32 {vL}, 63, v0\nv_lshrrev_b32 v1, 6, v0")
        lg = nsl.bit_length() - 1
        e(f"s_and_b32 {T0}, s2, 7\ns_lshr_b32 {sIDX}, s2, 3")
        e(f"s_and_b32 {sJ}, {T0}, {8//nsl - 1}\ns_lshl_b32 {sJ}, {sJ}, {lg}\ns_and_b32 {T1}, {sIDX}, {nsl-1}\ns_add_u32 {sJ}, {sJ}, {T1}")
        e(f"s_lshr_b32 {sRB}, {T0}, {3-lg}\ns_lshl_b32 {sRB}, {sRB}, {5-lg}\ns_lshr_b32 {T1}, {sIDX}, {lg}\ns_add_u32 {sRB}, {sRB}, {T1}")
        e(f"v_readfirstlane_b32 {sW}, v1\ns_mul_i32 {sAR}, {sRB}, {ASZ}\ns_add_u32 {sAR}, {sAR}, {ARENA}")
        e(f"v_lshrrev_b32 v120, 3, v0\nv_and_b32 v121, 7, v0\ns_lshl_b32 {T0}, {sRB}, 6")
        e(f"v_add_u32 v122, {T0}, v120\nv_mul_u32_u24 v122, 1152, v122\nv_lshl_add_u32 v122, v121, 4, v122")
        e(f"v_mul_u32_u24 v123, {CH}, v121\nv_lshl_add_u32 v123, v120, 4, v123\nv_add_u32 v124, {8*CH}, v123")
        e(f"s_and_b32 {sA}, {sW}, 3\nv_mov_b32 v216, 0\nv_mov_b32 v217, 0\nv_mov_b32 v222, 0\nv_mov_b32 v224, 0")
        for r in list(range(212, 216)) + list(range(225, 230)) + list(range(240, 248)):
            e(f"v_mov_b32 v{r}, 0")
        e("s_waitcnt lgkmcnt(0)")
        if p["STAMP"]:
            e("v_writelane_b32 v255, s88, 0\nv_writelane_b32 v254, s90, 0")
        self.srd(SX, 4, 2359296)
        for u in range(9):
            e.vm(f"buffer_load_dwordx4 v[{4*u}:{4*u+3}], v122, {SX}, 0 offen offset:{128*u}", ("x", u))
        if p["XBAR"]:
            e("s_barrier")
        self.srd(SW1, 16, 5308416)
        self.srd(SW2, 18, 5308416)
        self.srd(SWQ, 6, 663552)
        self.srd(SWO, 12, 663552)
        self.srd(SWS, 24, WS_BYTES)
        self.srd(SDBG, 22, 256)
        self.srd(SOUT, 20, 2359296)
        e(f"s_cmp_ge_u32 {sJ}, 3\ns_cselect_b32 s44, s10, s8\ns_cselect_b32 s45, s11, s9\ns_mov_b32 s46, 20736\ns_mov_b32 s47, 0x20000")
        e(f"s_mov_b32 {sNL2E}, {f2u(-math.log2(math.e)):#x}\ns_mov_b32 {sPASS}, 0")
        e(f"s_cmp_ge_u32 {sW}, 4\ns_cbranch_scc1 L_PRO_A")
        q0 = list(e.vmq)
        self.pro_ffn()
        if p["TLB0"]:
            e(f"s_mov_b64 exec, 1\ns_cmp_ge_u32 {sW}, 2\ns_cbranch_scc1 L_T0Q\nbuffer_load_dword v253, v216, {SW1}, {sK} offen\ns_branch L_T0J")
            e.label("L_T0Q")
            e.vm(f"buffer_load_dword v253, v224, {SWQ}, 0 offen")
            e.label("L_T0J")
            e("s_mov_b64 exec, -1")
        if p["TADDR"] == 0:
            self.q_addresses()
            self.tail_addresses()
        self.ln_stats(ffn=True)
        e("s_branch L_PRO_J")
        e.vmq = list(q0)
        e.label("L_PRO_A")
        if p["CODEPF"]:
            e(f"s_getpc_b64 s[86:87]")
            e.label("L_PC")
            e(f"s_and_b32 {T0}, {sIDX}, 3\ns_lshl_b32 {T0}, {T0}, 2\ns_add_u32 {T0}, {T0}, {sA}\ns_lshl_b32 {T0}, {T0}, 12")
            e(f"v_lshl_add_u32 v126, {vL}, 6, {T0}\nv_min_u32 v126, L_END-L_PC, v126\nv_mov_b32 v127, s87")
            e("v_add_co_u32 v126, vcc, s86, v126\ns_nop 1\nv_addc_co_u32 v127, vcc, 0, v127, vcc")
            e.vm("global_load_dword v251, v[126:127], off")
        if p["TLB0"]:
            e(f"s_mov_b64 exec, 1\nv_mov_b32 v126, 0")
            e.vm(f"buffer_load_dword v252, v126, {SKV}, 0 offen")
            e("s_mov_b64 exec, -1")
            if p["TLBU"] == -2:
                self.tlb_touch()
        self.ln_stats()
        e(f"s_or_b32 {T0}, s2, {sA}\ns_cmp_lg_u32 {T0}, 0\ns_cbranch_scc1 L_NOTAG\ns_or_b32 {T0}, s26, 1")
        e(f"v_mov_b32 v126, {T0}\nv_mov_b32 v127, s27\nv_mov_b32 v128, 0\ns_mov_b64 exec, 1\nbuffer_store_dwordx2 v[126:127], v128, {SDBG}, 0 offen sc1\ns_mov_b64 exec, -1")
        e.label("L_NOTAG")
        e(f"v_lshlrev_b32 v127, 2, {vL}\nv_add_u32 v127, {SYNC}, v127\nv_mov_b32 v128, 0\nds_write_b32 v127, v128")
        e.label("L_PRO_J")
        self.layernorm()

    def wrap_inc(self, reg, inc, mod):
        self.e(f"s_add_u32 {reg}, {reg}, {inc}\ns_cmp_eq_u32 {reg}, {mod}\ns_cselect_b32 {reg}, 0, {reg}")

    def pro_ffn(self):
        e = self.e
        e(f"s_mul_i32 {T2}, {sW}, 5\ns_lshl_b32 {T3}, {sW}, 2\ns_cmp_eq_u32 {sW}, 3\ns_cselect_b32 {T2}, 14, {T2}\ns_cselect_b32 {T3}, 13, {T3}")
        e(f"s_mul_i32 {sRING}, {sW}, {RSZ}\ns_add_u32 {sRING}, {sRING}, {RING}")
        e(f"v_lshrrev_b32 v125, 2, {vL}\nv_and_b32 v126, 3, {vL}")
        e(f"s_mul_i32 {T0}, {sJ}, 1152\ns_lshl_b32 {T1}, {T2}, 6\ns_add_u32 {T0}, {T0}, {T1}")
        e(f"v_mul_u32_u24 v216, 9216, v125\nv_lshl_add_u32 v216, v126, 4, v216\nv_add_u32 v216, {T0}, v216")
        nsl = self.p["NSL"]
        e(f"s_and_b32 {sROT}, {sRB}, {32//nsl - 1}\ns_mul_i32 {sROT}, {sROT}, {36*nsl*self.p['ROT']}\ns_lshr_b32 {sROT}, {sROT}, 5")
        G_ = self.p["ROTG"]
        if G_:
            e(f"s_and_b32 {sROT}, {sRB}, {32//nsl - 1}\ns_mul_i32 {sROT}, {sROT}, {G_*nsl}\ns_lshr_b32 {sROT}, {sROT}, 5\ns_mul_i32 {sROT}, {sROT}, {36//G_}")
        e(f"s_mul_i32 {sK}, {sROT}, 147456")
        e(f"s_mul_i32 {T0}, {sJ}, 144\ns_lshl_b32 {T1}, {sW}, 6\ns_add_u32 {T0}, {T0}, {T1}\ns_sub_u32 {T0}, {T0}, 128")
        e(f"v_mul_u32_u24 v224, 1152, v125\nv_lshl_add_u32 v224, v126, 4, v224\nv_add_u32 v224, {T0}, v224\ns_mul_i32 {sKQ}, {sROT}, {18432*self.p['QROT']}")
        if not self.p["W1LATE"]:
            self.first_loads()
        e(f"s_mul_i32 {T0}, {sJ}, 663552\ns_lshl_b32 {T1}, {T3}, 6\ns_add_u32 {T0}, {T0}, {T1}")
        e(f"v_mul_u32_u24 v217, 1152, v125\nv_lshl_add_u32 v217, v126, 4, v217\nv_add_u32 v217, {T0}, v217")
        e(f"v_lshrrev_b32 v127, 5, {vL}\nv_bfe_u32 v128, {vL}, 2, 2\nv_bfe_u32 v129, {vL}, 4, 1")
        e(f"v_lshlrev_b32 v129, 5, v129\nv_lshl_add_u32 v129, v126, 3, v129\nv_lshl_add_u32 v129, v128, 6, v129\nv_add_u32 v129, {sRING}, v129")
        e("v_lshl_add_u32 v218, v127, 9, v129\nv_lshl_add_u32 v219, v127, 8, v129")
        e(f"v_and_b32 v128, 31, {vL}\nv_lshlrev_b32 v128, 4, v128\nv_mul_u32_u24 v223, {CH}, v127\nv_add_u32 v223, v223, v128")
        e(f"s_mul_i32 {T0}, {T2}, {4*CH}\nv_add_u32 v221, {T0}, v223")
        e(f"s_lshl_b32 {T0}, {T3}, 15\ns_lshl_b32 {T1}, {sJ}, 10\ns_add_u32 {T0}, {T0}, {T1}\ns_add_u32 {T0}, {T0}, {sAR}")
        e(f"v_lshl_add_u32 v222, v127, 13, v128\nv_add_u32 v222, {T0}, v222")

    def q_addresses(self):
        e = self.e
        e(f"s_lshl_b32 {T2}, {sW}, 5\ns_sub_u32 {T2}, {T2}, 64\nv_lshrrev_b32 v170, 5, {vL}\nv_lshl_add_u32 v170, v170, 2, {T2}")
        e(f"v_and_b32 v171, 31, {vL}\nv_lshlrev_b32 v171, 4, v171\nv_add_u32 v171, {ATT}, v171")
        for pp in range(8):
            self.qaddr(f"v{196+pp}", "v170", 8 * (pp >> 1) + 2 * (pp & 1), "v171", "v172", "v173")

    def wo_addresses(self, base):
        e = self.e
        for i in range(5):
            e(f"v_add_u32 v160, {64*i}, {vL}\nv_mul_u32_u24 v161, 6554, v160\nv_lshrrev_b32 v161, 16, v161")
            e(f"v_mul_u32_u24 v162, 10, v161\nv_sub_u32 v162, v160, v162\nv_mul_u32_u24 v161, 1152, v161\nv_lshl_add_u32 v{base+i}, v162, 4, v161")

    def tail_addresses(self, wo=True):
        e = self.e
        if wo:
            self.wo_addresses(225)
        e(f"v_and_b32 v160, 15, {vL}\nv_lshrrev_b32 v161, 4, {vL}\ns_lshl_b32 {T0}, {sW}, 4\nv_add_u32 v162, {T0}, v160")
        e(f"v_and_b32 v163, 1, v161\nv_lshrrev_b32 v164, 1, v161")
        e(f"s_mul_i32 {T1}, {sJ}, 73728\ns_add_u32 {T0}, {sAR}, {T1}")
        e(f"v_lshl_add_u32 v165, v162, 4, {T0}\nv_lshl_add_u32 v240, v163, 13, v165\nv_lshl_add_u32 v240, v164, 10, v240\nv_lshl_add_u32 v241, v161, 10, v165")
        e(f"s_lshl_b32 {T0}, {sRB}, 6\nv_add_u32 v165, {T0}, v162\nv_mul_u32_u24 v165, 1152, v165\ns_mul_i32 {T0}, {sJ}, 144\nv_add_u32 v165, {T0}, v165")
        e(f"v_lshl_add_u32 v242, v161, 4, v165\nv_mov_b32 v166, {OOB}\nv_cmp_gt_u32 vcc, 2, v161\ns_nop 1\nv_cndmask_b32 v242, v166, v242, vcc")
        e(f"v_cmp_eq_u32 vcc, 0, v161\ns_nop 1\nv_cndmask_b32 v243, v166, v165, vcc")
        e(f"v_lshl_add_u32 v244, v163, 5, v165\nv_lshl_add_u32 v244, v164, 4, v244")
        e(f"v_lshl_add_u32 v245, v161, 3, v165\nv_cmp_gt_u32 vcc, 2, v161\ns_nop 1\nv_cndmask_b32 v245, v166, v245, vcc")
        e("v_lshlrev_b32 v166, 3, v163\nv_sub_u32 v166, v160, v166\nv_mov_b32 v167, 0x3f80\nv_mov_b32 v168, 0x3f800000")
        for base, src in ((232, "v166"), (236, "v160")):
            for r in range(4):
                e(f"v_cmp_eq_u32 vcc, {2*r}, {src}\nv_cmp_eq_u32 s[86:87], {2*r+1}, {src}\ns_nop 0\nv_cndmask_b32 v{base+r}, 0, v167, vcc")
                e(f"v_cndmask_b32 v{base+r}, v{base+r}, v168, s[86:87]")
        e(f"s_add_u32 {T0}, {sAR}, {OM}\nv_lshl_add_u32 v246, v162, 4, {T0}\nv_lshl_add_u32 v246, v161, 10, v246")
        e(f"s_add_u32 {T0}, {sAR}, {OX}\nv_lshl_add_u32 v247, v162, 4, {T0}\nv_lshl_add_u32 v247, v161, 10, v247")
        e(f"v_bfe_u32 v166, {vL}, 2, 2\nv_and_b32 v167, 3, {vL}\nv_mul_u32_u24 v168, 18, v164\nv_lshl_add_u32 v168, v163, 2, v168\nv_add_u32 v168, v168, v166")
        e("v_mul_u32_u24 v168, 160, v168\nv_lshl_add_u32 v248, v167, 3, v168")
        e("v_mul_u32_u24 v168, 72, v161\nv_lshrrev_b32 v169, 1, v166\nv_mul_u32_u24 v169, 18, v169\nv_and_b32 v166, 1, v166\nv_add3_u32 v168, v168, v169, v166")
        e("v_add_u32 v168, 16, v168\nv_mul_u32_u24 v168, 160, v168\nv_lshl_add_u32 v251, v167, 3, v168")
        e(f"v_mov_b32 v166, {OOB}\nv_cmp_gt_u32 vcc, 32, {vL}\ns_nop 1\nv_cndmask_b32 v241, v166, v241, vcc")

    def first_loads(self, lo=0, hi=15, lo2=None, hi2=None):
        e = self.e
        lo2, hi2 = lo if lo2 is None else lo2, hi if hi2 is None else hi2
        L, J = e.new("PFL"), e.new("PFJ")
        e(f"s_cmp_ge_u32 {sW}, 2\ns_cbranch_scc1 {L}")
        q0 = list(e.vmq)
        for i in range(lo, hi):
            s, pc = divmod(i, 5)
            e(f"s_add_u32 m0, {sRING}, {s*5120 + 960*pc}\ns_nop 0")
            e.vm(f"buffer_load_dwordx4 v216, {SW1}, {sK} offen offset:{64*pc} lds")
            if pc == 4:
                self.wrap_inc(sK, 147456, 36 * 147456)
        e(f"s_branch {J}")
        e.label(L)
        qa = e.vmq
        e.vmq = list(q0)
        for i in range(lo2, hi2):
            e(f"s_add_u32 m0, {sRING}, {1024*((i + 9) % 15)}\ns_nop 0")
            e.vm(f"buffer_load_dwordx4 v224, {SWQ}, {sKQ} offen lds")
            self.q_inc()
        e.label(J)
        if len(qa) < len(e.vmq):
            e.vmq = qa

    def q_inc(self):
        if self.p["QROT"]:
            self.wrap_inc(sKQ, 18432, 36 * 18432)
        else:
            self.e(f"s_add_u32 {sKQ}, {sKQ}, 18432")

    def q_gemm(self):
        e = self.e
        e.vmq = [("q", i) for i in range(15)]
        e.lgq = []
        rot = self.p["QROT"]
        e(f"s_mul_i32 {sBO}, {sROT}, 2080" if rot else f"v_add_u32 v220, {18*2080}, v223")

        def reads(i):
            r = 160 + 12 * (i % 3)
            vb, ob = ("v220", 0) if rot else (("v223", 2080 * i) if i < 18 else ("v220", 2080 * (i - 18)))
            if rot:
                e(f"v_add_u32 v220, {sBO}, v223")
            e.wait(vm=("q", i))
            o = 1024 * ((i + 9) % 15)
            e.lg(f"ds_read_b64_tr_b16 {vr(r,2)}, v218 offset:{o}", ("r", i))
            e.lg(f"ds_read_b64_tr_b16 {vr(r+2,2)}, v218 offset:{o+256}", ("r", i))
            e.lg(f"ds_read_b128 {vr(r+4,4)}, {vb} offset:{ob}", ("r", i))
            e.lg(f"ds_read_b128 {vr(r+8,4)}, {vb} offset:{ob+512}", ("r", i))
            if rot:
                self.wrap_inc(sBO, 2080, 36 * 2080)
        reads(0)
        reads(1)
        for i in range(36):
            r = 160 + 12 * (i % 3)
            sl = (i + 9) % 15
            e.wait(lg=("r", i))
            w1 = i >= 21 and sl % 5 < 4
            if i < 21 or w1:
                e(f"s_add_u32 m0, {sRING}, {1024*sl - (64*(sl % 5) if w1 else 0)}")
            e(f"v_mfma_f32_32x32x16_bf16 v[128:143], {vr(r,4)}, {vr(r+4,4)}, {'0' if i == 0 else 'v[128:143]'}")
            if i < 21:
                e.vm(f"buffer_load_dwordx4 v224, {SWQ}, {sKQ} offen lds", ("q", i + 15))
                self.q_inc()
            elif w1:
                e.vm(f"buffer_load_dwordx4 v216, {SW1}, {sK} offen offset:{64*(sl % 5)} lds")
                if sl % 5 == 3:
                    self.wrap_inc(sK, 147456, 36 * 147456)
            e(f"v_mfma_f32_32x32x16_bf16 v[144:159], {vr(r,4)}, {vr(r+8,4)}, {'0' if i == 0 else 'v[144:159]'}")
            if i + 2 < 36:
                reads(i + 2)
            if self.p["STAMP"] > 1 and i in (0, 6, 12, 18, 24, 30, 35):
                self.stamp(32 + (i + 1) // 6)

    def kv_loads(self):
        e = self.e
        e(f"s_cmp_ge_u32 {sJ}, 3\ns_cselect_b32 {T0}, 3, 0\ns_sub_u32 {T0}, {sJ}, {T0}\ns_cmp_ge_u32 {T0}, 3\ns_cselect_b32 {T0}, 0, {T0}")
        e(f"s_lshl_b32 {T1}, {T0}, 4\ns_min_u32 {T1}, {T1}, 20\nv_mul_u32_u24 v126, 36, {vL}\nv_add_u32 v126, {T1}, v126")
        e(f"s_mul_i32 {T2}, {sA}, 2304\ns_lshl_b32 {T3}, {sA}, 10\ns_add_u32 {T3}, {T3}, {KVW}")
        for i in range(2):
            e(f"s_add_u32 m0, {T3}, {4096*i}\ns_add_u32 {T0}, {T2}, {9216*i}")
            e.vm(f"buffer_load_dwordx4 v126, {SKV}, {T0} offen lds", "kvw")
        e(f"s_mov_b32 m0, {KVW + 8192}\ns_mov_b32 {T0}, {8*2304}")
        e.vm(f"buffer_load_dwordx4 v126, {SKV}, {T0} offen lds", "kvw")

    def pro_att(self):
        e, p = self.e, self.p
        if not p["KVEARLY"]:
            self.kv_loads()
        e(f"v_mul_u32_u24 v125, 1152, {vL}\ns_mul_i32 {T0}, {sJ}, 144\ns_add_u32 {T0}, {T0}, 128\nv_add_u32 v125, {T0}, v125")
        e(f"s_mul_i32 {T2}, {sA}, 73728\ns_lshl_b32 {T3}, {sA}, 10\ns_add_u32 {T3}, {T3}, {QE}")
        for i in range(2):
            e(f"s_add_u32 m0, {T3}, {4096*i}\ns_add_u32 {T0}, {T2}, {4*73728*i}")
            e.vm(f"buffer_load_dwordx4 v125, {SWQ}, {T0} offen lds", "ext")
        e(f"s_cmp_lg_u32 {sA}, 1\ns_cbranch_scc1 L_PA_2\ns_mov_b32 m0, {QE + 8192}\ns_mov_b32 {T0}, {8*73728}")
        e(f"buffer_load_dwordx4 v125, {SWQ}, {T0} offen lds")
        e.label("L_PA_2")
        nsl = p['NSL']
        if p["TLBW"] and p["TLBU"] == -1:
            self.tlb_touch()
        if p["WARMQ"]:
            rows = 18 * nsl
            e(f"s_lshl_b32 {T0}, {sA}, 6\nv_add_u32 v126, {T0}, {vL}\nv_lshrrev_b32 v127, 2, v126\nv_and_b32 v128, 3, v126\nv_mul_u32_u24 v127, 1152, v127")
            e(f"v_cmp_gt_u32 vcc, {4*rows}, v126\nv_mul_u32_u24 v128, 52, v128\nv_add_u32 v127, v127, v128\nv_mov_b32 v128, {OOB}\nv_cndmask_b32 v127, v128, v127, vcc")
            e(f"s_and_b32 {T1}, {sRB}, {32//nsl - 1}\ns_mul_i32 {T1}, {T1}, {rows*1152}\ns_mul_i32 {T0}, {sJ}, 144\ns_add_u32 {T1}, {T1}, {T0}")
            e.vm(f"buffer_load_dword v252, v127, {SWQ}, {T1} offen")
            e.vm(f"buffer_load_dword v253, v127, {SWO}, {T1} offen")

    def tlb_touch(self):
        e, p = self.e, self.p
        e(f"s_mov_b64 exec, 7\ns_cmp_eq_u32 {sA}, 1\ns_cbranch_scc1 L_TLB1\ns_cmp_eq_u32 {sA}, 2\ns_cbranch_scc1 L_TLB2\ns_cmp_eq_u32 {sA}, 3\ns_cbranch_scc1 L_TLB3")
        if p["TLBW"] == 1:
            e(f"v_mul_u32_u24 v126, {ASZ - 64}, {vL}\nv_cmp_eq_u32 vcc, 2, {vL}\nv_add_u32 v126, {sAR}, v126\ns_nop 0\nv_cndmask_b32 v126, v126, 0, vcc")
        else:
            e(f"s_mov_b64 exec, 0xfff\nv_lshlrev_b32 v126, 21, {vL}\nv_add_u32 v126, 0x30000, v126")
        e(f"buffer_load_dword v253, v126, {SWS}, 0 offen\ns_branch L_TLBD")
        e.label("L_TLB1")
        e(f"s_mul_i32 {T1}, {sJ}, 663552\nv_mul_u32_u24 v126, 331000, {vL}\nbuffer_load_dword v253, v126, {SW2}, {T1} offen\ns_branch L_TLBD")
        e.label("L_TLB2")
        e(f"s_mul_i32 {T0}, {sRB}, 73728\nv_mul_u32_u24 v126, 36000, {vL}\nbuffer_load_dword v253, v126, {SOUT}, {T0} offen\ns_branch L_TLBD")
        e.label("L_TLB3")
        e(f"v_mov_b32 v126, 0")
        e.vm(f"buffer_load_dword v253, v126, {SDBG if p['TLBW'] == 1 else SWO}, 0 offen offset:128")
        e.label("L_TLBD")
        e("s_mov_b64 exec, -1")

    def ln_stats(self, ffn=False):
        e = self.e
        e("v_mov_b32 v112, 0\nv_mov_b32 v113, 0\nv_mov_b32 v114, 0\nv_mov_b32 v115, 0\ns_mov_b32 s85, 0x3f803f80\ns_mov_b32 s86, 0xffff0000")
        for u in range(9):
            e.wait(vm=("x", u))
            if u == 0:
                self.stamp(1)
                if ffn and self.p["W1LATE"] == 1:
                    self.first_loads()
            if ffn and self.p["W1LATE"] == 2 and u in (1, 3, 5, 7, 8):
                n = (1, 3, 5, 7, 8).index(u)
                self.first_loads(3 * n, 3 * n + 3)
            if not ffn and self.p["TLBW"] and u == self.p["TLBU"]:
                self.tlb_touch()
            if not ffn and self.p["KVEARLY"] and u == self.p["KVU"]:
                self.kv_loads()
            if not ffn and u == self.p["EXTU"] and not self.p["KVEARLY"]:
                self.pro_att()
            if u == 8:
                self.stamp(30)
            if ffn and self.p["W1LATE"] == 3 and u == 8:
                self.first_loads()
            if ffn and self.p["W1LATE"] == 4 and u == self.p.get("PREU", 8) and self.p["PRE"]:
                self.first_loads(0, self.p["PRE"], 0, self.p["PREL"])
            for k in range(4):
                r = 4 * u + k
                e(f"v_dot2_f32_bf16 v{112+(k&1)}, v{r}, s85, v{112+(k&1)}")
                e(f"v_lshlrev_b32 v{40+2*r}, 16, v{r}")
                e(f"v_dot2_f32_bf16 v{114+(k&1)}, v{r}, v{r}, v{114+(k&1)}")
                e(f"v_and_b32 v{41+2*r}, s86, v{r}")

    def layernorm(self):
        e = self.e
        self.stamp(14)
        e("s_nop 2\nv_add_f32 v112, v112, v113\nv_add_f32 v114, v114, v115\ns_nop 1")
        for m in ("quad_perm:[1,0,3,2]", "quad_perm:[2,3,0,1]", "row_half_mirror"):
            e(f"v_add_f32_dpp v112, v112, v112 {m} row_mask:0xf bank_mask:0xf")
            e(f"v_add_f32_dpp v114, v114, v114 {m} row_mask:0xf bank_mask:0xf\ns_nop 1")
        inv = f"{f2u(1.0/576):#x}"
        e(f"v_mul_f32 v112, {inv}, v112\nv_mul_f32 v114, {inv}, v114\nv_fma_f32 v114, -v112, v112, v114\nv_max_f32 v114, 0, v114")
        e(f"v_add_f32 v114, {f2u(1e-5):#x}, v114\nv_rsq_f32 v114, v114\ns_nop 0\nv_mul_f32 v114, {sNL2E}, v114\nv_mul_f32 v112, v112, v114")
        for u in range(9):
            for k in range(0, 8, 2 if self.p["PKLN"] else 1):
                r = 40 + 8 * u + k
                if self.p["PKLN"]:
                    e(f"v_pk_fma_f32 v[{r}:{r+1}], v[{r}:{r+1}], v[114:115], v[112:113] op_sel_hi:[1,0,0] neg_lo:[0,0,1] neg_hi:[0,0,1]")
                else:
                    e(f"v_fma_f32 v{r}, v{r}, v114, -v112")
            for k in range(4):
                e(f"v_cvt_pk_bf16_f32 v{4*u+k}, v{40+8*u+2*k}, v{41+8*u+2*k}")
            if u < 8:
                e(f"ds_write_b128 v123, v[{4*u}:{4*u+3}] offset:{8*CH*u}")
            else:
                e(f"ds_write_b128 v124, v[{4*u}:{4*u+3}] offset:{8*CH*7}")
        self.stamp(15)
        e(f"s_cmp_ge_u32 {sW}, 4\ns_cbranch_scc1 L_ATT")
        if self.p["TADDR"] in (1, 3):
            self.q_addresses()
        if self.p["TADDR"] == 1:
            self.tail_addresses()
        e("s_waitcnt lgkmcnt(0)\ns_barrier")

    def gemm(self, T, which, Tn):
        e = self.e
        vT = "v218" if which == 1 else "v219"
        sec = 256 if which == 1 else 512
        vD, SW, kstride = ("v216", SW1, 147456) if which == 1 else ("v217", SW2, 18432)

        def areg(buf, pc):
            return 160 + 20 * buf + 4 * pc

        def breg(buf, rt):
            return 200 + 8 * buf + 4 * rt

        def reads(s, pc):
            if pc < 2:
                e.lg(f"ds_read_b128 {vr(breg(s&1,pc),4)}, v220 offset:{512*pc}", ("B", s, pc))
            o = (s % 3) * 5120 + 1024 * pc
            e.lg(f"ds_read_b64_tr_b16 {vr(areg(s&1,pc),2)}, {vT} offset:{o}", ("A", s, pc))
            e.lg(f"ds_read_b64_tr_b16 {vr(areg(s&1,pc)+2,2)}, {vT} offset:{o+sec}", ("A", s, pc))

        def dma_list(s):
            sn = s + 3
            if sn < 36:
                return [(vD, SW, pc, ("d", sn, pc)) for pc in range(T)]
            if which == 1:
                return [("v217", SW2, pc, ("d2", sn - 36, pc)) for pc in range(Tn)]
            return []

        def step(s, first=False):
            dl = dma_list(s)
            if which == 1 and s == 33:
                e(f"s_mul_i32 {sK}, {sROT}, 18432")
            for gi in range(2 * T):
                pc, rt = gi >> 1, gi & 1
                mine = []
                if rt == 0:
                    mine = [d for d in dl if d[2] == pc or (pc == T - 1 and d[2] > pc)]
                e.wait(lg=[("A", s, pc), ("B", s, 0)] if gi == 0 else ([("B", s, 1)] if gi == 1 else [("A", s, pc)]))
                if mine:
                    e(f"s_add_u32 m0, {sRING}, {(s % 3)*5120 + 960*mine[0][2]}")
                acc = vr(16 * gi, 16)
                e(f"v_mfma_f32_32x32x16_bf16 {acc}, {vr(areg(s&1,pc),4)}, {vr(breg(s&1,rt),4)}, {'0' if first else acc}")
                for n, d in enumerate(mine):
                    if n:
                        e(f"s_add_u32 m0, {sRING}, {(s % 3)*5120 + 960*d[2]}\ns_nop 0")
                    e.vm(f"buffer_load_dwordx4 {d[0]}, {d[1]}, {sK} offen offset:{64*d[2]} lds", d[3])
                if rt == 1 and s + 1 < 36:
                    if pc == 0:
                        e(f"v_add_u32 v220, {sBO}, v223")
                    e.wait(vm=("d", s + 1, pc))
                    reads(s + 1, pc)
                if gi == 2 * T - 3 and s + 2 < 36:
                    self.wrap_inc(sBO, 2080, 36 * 2080)
            if s <= 32:
                self.wrap_inc(sK, kstride, 36 * kstride)
            elif which == 1:
                self.wrap_inc(sK, 18432, 36 * 18432)

        e.vmq = [("d", s, pc) for s in range(3) for pc in range(T)]
        e(f"s_mul_i32 {sBO}, {sROT}, 2080\nv_add_u32 v220, {sBO}, v223")
        self.wrap_inc(sBO, 2080, 36 * 2080)
        e.wait(vm=("d", 0, T - 1))
        e.lgq = []
        for pc in range(T):
            reads(0, pc)
        main = e.lines
        texts = []
        for s in range(36):
            e.lines = []
            step(s, first=(s == 0))
            texts.append(e.lines)
        e.lines = main
        for s in range(1, 27):
            assert texts[s] == texts[s + 6], (s, texts[s], texts[s + 6])
        tag = f"G{which}T{T}"
        e.lines += texts[0]
        e(f"s_mov_b32 {sCNT}, 0\ns_branch L_{tag}_1")
        e(".p2align 3")
        e.label(f"L_{tag}_3")
        if self.p["STAMP"] > 1:
            e(f"s_memrealtime s[88:89]\ns_memtime s[90:91]\ns_add_u32 m0, {sCNT}, {8*which+8}\ns_waitcnt lgkmcnt(0)\nv_writelane_b32 v255, s88, m0\nv_writelane_b32 v254, s90, m0")
        for s in (3, 4, 5, 6):
            e.lines += texts[s]
        e.label(f"L_{tag}_1")
        e.lines += texts[7] + texts[8]
        e(f"s_add_u32 {sCNT}, {sCNT}, 1\ns_cmp_lt_u32 {sCNT}, 6\ns_cbranch_scc1 L_{tag}_3")
        for s in (33, 34, 35):
            e.lines += texts[s]

    def silu(self, T):
        e = self.e
        for g in range(4 * T):
            b = 8 * g
            t = 160 + 8 * (g & 1)
            for k in range(8):
                e(f"v_exp_f32 v{t+k}, v{b+k}")
            pk = self.p["PKSILU"]
            for k in range(0, 8, 2 if pk else 1):
                e(f"v_pk_add_f32 v[{t+k}:{t+k+1}], v[{t+k}:{t+k+1}], 1.0 op_sel_hi:[1,0]" if pk else f"v_add_f32 v{t+k}, 1.0, v{t+k}")
            for k in range(8):
                e(f"v_rcp_f32 v{t+k}, v{t+k}")
            for k in range(0, 8, 2 if pk else 1):
                e(f"v_pk_mul_f32 v[{t+k}:{t+k+1}], v[{b+k}:{b+k+1}], v[{t+k}:{t+k+1}]" if pk else f"v_mul_f32 v{t+k}, v{b+k}, v{t+k}")
            for k in range(4):
                e(f"v_cvt_pk_bf16_f32 v{b+k}, v{t+2*k}, v{t+2*k+1}")

    def q_out(self):
        e = self.e
        c = f"{f2u(1.0 / (math.log2(math.e) * math.sqrt(18.0))):#x}"
        if self.p["TADDR"] == 2:
            self.q_addresses()
        e(f"s_mov_b32 {T3}, {c}")
        self.lds_wait(C_A, 4, "v252", "v253")
        e.nop(5)
        e(f"v_mov_b32 v174, {T3}")
        for r in range(128, 160, 2):
            e(f"v_pk_mul_f32 v[{r}:{r+1}], v[{r}:{r+1}], v[174:175] op_sel_hi:[1,0]")
        for k in range(16):
            e(f"v_cvt_pk_bf16_f32 v{128+k}, v{128+2*k}, v{129+2*k}")
        for rt in range(2):
            for pp in range(8):
                e.lg(f"ds_write_b32 v{196+pp}, v{128+8*rt+pp} offset:{1536*rt}")
        e.wait_all(lg=True)
        self.arrive(C_B, "v252", "v253")

    def qaddr(self, dst, vc, cadd, vbase, t0, t1):
        e = self.e
        e(f"v_add_u32 {t0}, {cadd}, {vc}\nv_mul_u32_u24 {t1}, 3641, {t0}\nv_lshrrev_b32 {t1}, 16, {t1}")
        e(f"v_mul_u32_u24 {dst}, 18, {t1}\nv_sub_u32 {t0}, {t0}, {dst}\nv_mul_u32_u24 {dst}, 3072, {t1}\nv_lshrrev_b32 {t1}, 3, {t0}\nv_lshl_add_u32 {dst}, {t1}, 9, {dst}")
        e(f"v_and_b32 {t0}, 7, {t0}\nv_lshl_add_u32 {dst}, {t0}, 1, {dst}\nv_add_u32 {dst}, {vbase}, {dst}")

    def ffn_path(self, T1_, T2_):
        e, p = self.e, self.p
        if T1_ == 4:
            self.q_gemm()
            self.q_out()
            self.stamp(13)
        self.gemm(T1_, 1, T2_)
        self.arrive(C_XN, "v252", "v253")
        self.stamp(3)
        if p["WARMO"]:
            nsl = p["NSL"]
            rows = 18 * nsl
            e(f"s_lshl_b32 {T0}, {sW}, 6\nv_add_u32 v176, {T0}, {vL}\nv_lshrrev_b32 v177, 2, v176\nv_and_b32 v178, 3, v176\nv_mul_u32_u24 v177, 1152, v177")
            e(f"v_cmp_gt_u32 vcc, {4*rows}, v176\nv_mul_u32_u24 v178, 52, v178\nv_add_u32 v177, v177, v178\nv_mov_b32 v178, {OOB}\nv_cndmask_b32 v177, v178, v177, vcc")
            e(f"s_and_b32 {T1}, {sRB}, {32//nsl - 1}\ns_mul_i32 {T1}, {T1}, {rows*1152}\ns_mul_i32 {T0}, {sJ}, 144\ns_add_u32 {T1}, {T1}, {T0}")
            e(f"buffer_load_dword v230, v177, {SWO}, {T1} offen")
        e.nop(2)
        self.silu(T1_)
        self.stamp(4)
        self.lds_wait(C_XN, 8, "v252", "v253")
        for u in range(2 * T1_):
            pc, rt = u >> 1, u & 1
            for hf in range(2):
                e.lg(f"ds_write_b128 v221, {vr(16*u+8*hf,4)} offset:{(4*pc+2*hf)*CH + 512*rt}")
        e.wait_all(lg=True)
        self.arrive(C_H, "v252", "v253")
        self.lds_wait(C_H, 4, "v252", "v253")
        self.stamp(5)
        self.gemm(T2_, 2, 0)
        self.arrive(C_G2, "v252", "v253")
        if p["PRIO_T"] != p["PRIO_F"]:
            e(f"s_setprio {p['PRIO_T']}")
        self.stamp(6)
        if p["SENT"] and T2_ == 4:
            e(f"s_lshl_b32 {T0}, {sJ}, 13\ns_lshl_b32 {T1}, {sW}, 12\ns_add_u32 {T0}, {T0}, {T1}\ns_add_u32 {T0}, {T0}, {sAR}\ns_add_u32 {T0}, {T0}, {OM}")
            e(f"s_lshl_b32 {T1}, {sJ}, 10\ns_add_u32 {T1}, {T1}, {sAR}\ns_add_u32 {T1}, {T1}, {OX}\nv_lshlrev_b32 v168, 4, {vL}")
            e("v_mov_b32 v172, -1\nv_mov_b32 v173, -1\nv_mov_b32 v174, -1\nv_mov_b32 v175, -1")
            for q in range(4):
                e(f"buffer_store_dwordx4 v[172:175], v168, {SWS}, {T0} offen offset:{1024*q} sc1")
            e(f"buffer_store_dwordx4 v[172:175], v168, {SWS}, {T1} offen sc1")
        e.nop(2)
        for u in range(2 * T2_):
            pc, rt = u >> 1, u & 1
            b = 16 * u
            for k in range(8):
                e(f"v_cvt_pk_bf16_f32 v{b+k}, v{b+2*k}, v{b+2*k+1}")
            e(f"s_mov_b32 {T0}, {(4*pc)*8192}\ns_mov_b32 {T1}, {(4*pc+2)*8192}")
            e(f"v_permlane32_swap_b32 v{b}, v{b+2}\nv_permlane32_swap_b32 v{b+1}, v{b+3}")
            e(f"v_permlane32_swap_b32 v{b+4}, v{b+6}\nv_permlane32_swap_b32 v{b+5}, v{b+7}")
            e.vm(f"buffer_store_dwordx4 {vr(b,4)}, v222, {SWS}, {T0} offen offset:{512*rt} sc1", "pst")
            e.vm(f"buffer_store_dwordx4 {vr(b+4,4)}, v222, {SWS}, {T1} offen offset:{512*rt} sc1", "pst")
            if p["PACE"]:
                e(f"s_waitcnt vmcnt({p['PACE']})")

    def ffn(self):
        e, p = self.e, self.p
        if p["W1LATE"] == 4:
            self.first_loads(p["PRE"], 15, p["PREL"], 15)
        self.stamp(2)
        if p["PRIO_F"]:
            e(f"s_setprio {p['PRIO_F']}")
        e(f"s_cmp_ge_u32 {sW}, 2\ns_cbranch_scc1 L_FFN_L")
        self.ffn_path(5, 4)
        e("s_branch L_FFN_J")
        e.label("L_FFN_L")
        self.ffn_path(4, 5)
        e.label("L_FFN_J")
        e("s_setprio 0")
        self.stamp(7)
        self.ffn_tail()

    def partials_dyn(self):
        e, p = self.e, self.p
        for r in range(20):
            e(f"v_mov_b32 v{r}, 0")
        e(f"s_add_u32 {T3}, {sAR}, {FLAGS + F_P}\ns_mov_b32 {T4}, 0x55")
        e(f"v_and_b32 v231, 7, {vL}\nv_lshlrev_b32 v231, 3, v231\ns_mov_b32 {sSPIN}, 0")
        e.label("L_PD_POLL")
        e(f"buffer_load_dwordx2 v[252:253], v231, {SWS}, {T3} offen sc1\ns_waitcnt vmcnt(0)")
        e(f"v_xor_b32 v252, {sN0}, v252\nv_xor_b32 v253, {sN1}, v253\nv_or_b32 v252, v252, v253\nv_cmp_eq_u32 vcc, 0, v252\ns_add_u32 {sSPIN}, {sSPIN}, 1\ns_nop 1")
        e(f"s_lshr_b32 {T2}, vcc_lo, 1\ns_and_b32 {T2}, {T2}, vcc_lo\ns_cmp_ge_u32 {sSPIN}, {p['SPIN']}\ns_cselect_b32 {T2}, -1, {T2}\ns_and_b32 {T2}, {T2}, {T4}\ns_cbranch_scc1 L_PD_GO\ns_sleep 4\ns_branch L_PD_POLL")
        e.label("L_PD_GO")
        e(f"s_ff1_i32_b32 {T1}, {T2}\ns_bitset0_b32 {T2}, {T1}\ns_bitset0_b32 {T4}, {T1}\ns_lshl_b32 {T1}, {T1}, 10")
        e.vmq = []
        for a in range(5):
            e(f"s_add_u32 {T0}, {T1}, {a*16384}")
            e.vm(f"buffer_load_dwordx4 {vr(20+4*a,4)}, {'v240' if a < 4 else 'v241'}, {SWS}, {T0} offen sc1", ("pl", a))
        for a in range(5):
            e.wait(vm=("pl", a))
            e(f"v_mfma_f32_16x16x32_bf16 {vr(4*a,4)}, {vr(232 if a < 4 else 236,4)}, {vr(20+4*a,4)}, {vr(4*a,4)}")
        e(f"s_cmp_lg_u32 {T2}, 0\ns_cbranch_scc1 L_PD_GO\ns_cmp_lg_u32 {T4}, 0\ns_cbranch_scc1 L_PD_POLL")
        self.stamp(8)

    def ffn_tail(self):
        e, p = self.e, self.p
        e.vmq = ["pst"]
        if p["TADDR"] >= 2:
            self.tail_addresses()
        e(f"s_mul_i32 {T2}, {sW}, 5\ns_cmp_eq_u32 {sW}, 3\ns_cselect_b32 {T2}, 14, {T2}")
        e(f"s_mul_i32 {T3}, {T2}, 5120\ns_mul_i32 {T2}, {T2}, 36864\ns_mul_i32 {T4}, {sJ}, 144\ns_add_u32 {T2}, {T2}, {T4}")
        e("s_waitcnt vmcnt(0)")
        self.arrive(C_P, "v252", "v253", rtn=T4)
        self.get_nonce("v231", 252)
        e(f"s_cmp_lg_u32 {T4}, 3\ns_cbranch_scc1 L_NOPF")
        self.flag_set(F_P, sJ, "v231", 252)
        e.label("L_NOPF")
        self.lds_wait(C_G2, 4, "v252", "v253")
        e(f"s_lshr_b32 {sCNT}, {sW}, 1")
        e.label("L_WO_L")
        for i in range(5):
            e(f"s_add_u32 m0, {T3}, {i*1024}\ns_nop 0")
            e(f"buffer_load_dwordx4 v{225+i}, {SWO}, {T2} offen lds")
        e(f"s_add_u32 {T3}, {T3}, 5120\ns_add_u32 {T2}, {T2}, 36864\ns_add_u32 {sCNT}, {sCNT}, 1\ns_waitcnt vmcnt({p['PACE3']})\ns_cmp_lt_u32 {sCNT}, 5\ns_cbranch_scc1 L_WO_L")
        e.label("L_WO_D")
        for a in range(5):
            e.vm(f"buffer_load_dwordx4 {vr(92+4*a,4)}, {'v242' if a < 4 else 'v243'}, {SX}, 0 offen offset:{32*a}", ("xr", a))
        e.wait_all(vm=True)
        self.arrive(C_WO, "v252", "v253")
        self.partials_dyn()
        self.lds_wait(C_WO, 4, "v252", "v253")
        e(f"s_mov_b32 {T0}, {f2u(-math.log(2.0)):#x}")
        for r in range(20):
            e(f"v_mul_f32 v{r}, {T0}, v{r}")
            if p["X_BIAS"]:
                e(f"v_add_f32 v{r}, {f2u(p['X_BIAS']*1e-4):#x}, v{r}")
        for a in range(5):
            e(f"v_mfma_f32_16x16x32_bf16 {vr(4*a,4)}, {vr(232 if a < 4 else 236,4)}, {vr(92+4*a,4)}, {vr(4*a,4)}")

        sG = ("s74", "s75", "s76", "s97")
        vG = ("v225", "v226", "v227", "v228")
        for b in range(4):
            e(f"s_lshr_b32 {T0}, {sJ}, 1\ns_add_u32 {T0}, {T0}, {b+p['OROT']}\ns_and_b32 {T0}, {T0}, 3\ns_lshl_b32 {sG[b]}, {T0}, 14\ns_mul_i32 {T0}, {T0}, 23040\nv_add_u32 {vG[b]}, {T0}, v248")

        def aop(i):
            kk, t = divmod(i, 5)
            r = 92 + 4 * (i % 33)
            if kk < 16:
                va, o, sec = vG[kk >> 2], (kk & 3) * 5760 + 32 * t, 1280
            else:
                va, o, sec = "v251", (kk - 16) * 46080 + 32 * t, 5760
            e.lg(f"ds_read_b64_tr_b16 {vr(r,2)}, {va} offset:{o}", ("a", i))
            e.lg(f"ds_read_b64_tr_b16 {vr(r+2,2)}, {va} offset:{o+sec}", ("a", i))
        e.nop(4)
        for i in range(33):
            aop(i)
        e.wait_all(lg=True)
        self.stamp(9)

        def oload(kk, track=True):
            if kk < 16:
                e(f"s_add_u32 {T0}, {sG[kk >> 2]}, {(kk & 3)*4096}")
            else:
                e(f"s_mov_b32 {T0}, {(kk - 16)*4096}")
            ins = f"buffer_load_dwordx4 {vr(20+4*kk,4)}, {'v246' if kk < 16 else 'v247'}, {SWS}, {T0} offen sc1"
            e.vm(ins, ("o", kk)) if track else e(ins)

        def ocheck(kk):
            b = 20 + 4 * kk
            return [f"v_max3_u32 v252, v{b}, v{b+1}, v{b+2}", f"v_max_u32 v252, v252, v{b+3}", "v_cmp_eq_u32 vcc, -1, v252"]
        om = p["OMODE"]
        if om in (0, 4):
            self.lds_wait(C_O, 4, "v252", "v253", sleep=2)
            self.flag_wait(F_O, 32, "v241", 252)
        else:
            e(f"v_bfe_u32 v241, {vL}, 2, 3\nv_lshlrev_b32 v241, 10, v241\nv_and_b32 v252, 3, {vL}\nv_lshl_add_u32 v241, v252, 2, v241\ns_add_u32 {T2}, {sAR}, {OX + 1008}")
            self.lds_wait(C_O, 4, "v252", "v253", sleep=2)
            if om == 1:
                e(f"s_mov_b32 {sSPIN}, 0")
                e.label("L_HINT")
                e(f"buffer_load_dword v252, v241, {SWS}, {T2} offen sc1\ns_waitcnt vmcnt(0)\nv_cmp_eq_u32 vcc, -1, v252\ns_add_u32 {sSPIN}, {sSPIN}, 1\ns_nop 3")
                e(f"s_cbranch_vccz L_HINT_D\ns_cmp_lt_u32 {sSPIN}, {p['SPIN']}\ns_cbranch_scc1 L_HINT")
                e.label("L_HINT_D")
        e(f"s_mov_b32 {sSPIN}, 0")
        self.stamp(10)
        e.vmq = []
        for kk in range(18):
            oload(kk)
        e.wait(vm=("o", 0))
        e("\n".join(ocheck(0)) + "\ns_nop 4")
        for i in range(90):
            kk, t = divmod(i, 5)
            if t == 0:
                e(f"s_cbranch_vccnz L_OS_{kk}")
                e.label(f"L_OR_{kk}")
                if p["STAMP"] > 1 and kk in (0, 4, 8, 12, 16):
                    e(f"s_memrealtime s[88:89]\ns_waitcnt lgkmcnt(0)\nv_writelane_b32 v255, s88, {40 + kk // 4}\nv_writelane_b32 v254, {sSPIN}, {40 + kk // 4}")
                    e.lgq = []
            e.wait(vm=("o", kk), lg=("a", i))
            e(f"v_mfma_f32_16x16x32_bf16 {vr(4*t,4)}, {vr(92+4*(i % 33),4)}, {vr(20+4*kk,4)}, {vr(4*t,4)}")
            if i >= 1 and i - 1 + 33 < 90:
                aop(i - 1 + 33)
            if t < 3 and kk < 17:
                e.wait(vm=("o", kk + 1))
                e(ocheck(kk + 1)[t])
        main, e.lines = e.lines, []
        for kk in range(18):
            e.label(f"L_OS_{kk}")
            allk = om == 2
            for k2 in range(kk, (kk | 3) + 1 if kk < 16 and not allk else 18):
                oload(k2, track=False)
            e(f"s_add_u32 {sSPIN}, {sSPIN}, 1\ns_waitcnt vmcnt({17 - kk if allk else 0})")
            e("\n".join(ocheck(kk)) + f"\ns_cmp_ge_u32 {sSPIN}, {p['SPIN']}\ns_nop 3\ns_cbranch_scc1 L_OR_{kk}\ns_cbranch_vccz L_OR_{kk}\ns_sleep {p['OSLEEP']}\ns_branch L_OS_{kk}")
        self.stubs = e.lines
        e.lines = main
        e.nop(8)
        for t in range(5):
            e(f"v_cvt_pk_bf16_f32 v{20+2*t}, v{4*t}, v{4*t+1}\nv_cvt_pk_bf16_f32 v{21+2*t}, v{4*t+2}, v{4*t+3}")
        e("v_permlane16_swap_b32 v20, v22\nv_permlane16_swap_b32 v21, v23\nv_permlane16_swap_b32 v24, v26\nv_permlane16_swap_b32 v25, v27")
        fl = ("", " sc1", " nt", " sc0 sc1")[p["OUTF"]]
        e(f"buffer_store_dwordx4 v[20:23], v244, {SOUT}, 0 offen{fl}")
        e(f"buffer_store_dwordx4 v[24:27], v244, {SOUT}, 0 offen offset:64{fl}")
        e(f"buffer_store_dwordx2 v[28:29], v245, {SOUT}, 0 offen offset:128{fl}")
        self.stamp(11)
        e("s_branch L_FIN")
        e.lines += getattr(self, "stubs", [])

    def att_proj(self):
        e, p = self.e, self.p
        c = f"{f2u(1.0 / (math.log2(math.e) * math.sqrt(18.0))):#x}"
        early = p["KVEARLY"]
        e("s_waitcnt vmcnt(0) lgkmcnt(0)\ns_barrier" if early else "s_waitcnt lgkmcnt(0)\ns_barrier")
        e.vmq, e.lgq = [], []
        self.stamp(2)
        e(f"s_setprio {p['PRIO_P']}")
        e(f"v_mov_b32 v246, 0\nbuffer_load_dwordx2 v[248:249], v246, {SDBG}, 0 offen sc1")
        if early or p["EXTU"] < 0:
            self.pro_att()
        e(f"v_and_b32 v200, 15, {vL}\nv_lshrrev_b32 v201, 4, {vL}\nv_bfe_u32 v202, {vL}, 2, 2\nv_and_b32 v203, 3, {vL}")
        e(f"v_lshl_add_u32 v204, v201, 3, v202\nv_lshlrev_b32 v204, 4, v204\nv_and_b32 v205, 1, v203\nv_lshl_add_u32 v204, v205, 3, v204")
        e(f"v_add_u32 v216, {QE}, v204\nv_add_u32 v204, {KVW}, v204")
        if not early:
            e(f"v_cmp_gt_u32 vcc, 2, v203\ns_nop 1\nv_cndmask_b32 v204, v204, v216, vcc")
        e(f"v_mul_u32_u24 v205, {CH}, v201\nv_lshl_add_u32 v205, v200, 4, v205\nv_add_u32 v206, {9*4*CH}, v205")
        e(f"s_lshl_b32 {T0}, {sA}, 8\nv_add_u32 v207, {T0}, v205\nv_add_u32 v208, {T0}, v206")
        if not early:
            e.wait_all(vm=True, lg=True)
            self.arrive(C_E, "v246", "v247")
            self.lds_wait(C_E, 4, "v246", "v247")
        self.stamp(10)

        def ext_reads(kk):
            r = 8 * kk
            e.lg(f"ds_read_b64_tr_b16 {vr(r,2)}, v204 offset:{512*kk}", ("e", kk))
            e.lg(f"ds_read_b64_tr_b16 {vr(r+2,2)}, v204 offset:{512*kk+64}", ("e", kk))
            e.lg(f"ds_read_b128 {vr(r+4,4)}, {'v207' if kk < 9 else 'v208'} offset:{4*CH*(kk % 9)}", ("e", kk))
        for kk in range(5):
            ext_reads(kk)
        for kk in range(18):
            e.wait(lg=("e", kk))
            r = 8 * kk
            e(f"v_mfma_f32_16x16x32_bf16 v[144:147], {vr(r,4)}, {vr(r+4,4)}, {'0' if kk == 0 else 'v[144:147]'}")
            e(f"v_mfma_f32_16x16x32_bf16 v[148:151], {vr(r+4,4)}, {vr(r,4)}, {'0' if kk == 0 else 'v[148:151]'}")
            if kk + 5 < 18:
                ext_reads(kk + 5)
        if not early:
            self.arrive(C_A, "v246", "v247")
        e(f"s_lshr_b32 {T2}, {sA}, 1\ns_lshl_b32 {T3}, {sRB}, 1\ns_add_u32 {T2}, {T2}, {T3}\ns_and_b32 {T3}, {sA}, 1")
        e(f"s_lshl_b32 {T4}, {T3}, 4\nv_add_u32 v209, {T4}, v200\nv_mov_b32 v210, {OOB}")
        e("v_cvt_pk_bf16_f32 v152, v144, v145\nv_cvt_pk_bf16_f32 v153, v146, v147\nv_cvt_pk_bf16_f32 v154, v148, v149\nv_cvt_pk_bf16_f32 v155, v150, v151")
        e(f"s_cmp_ge_u32 {sJ}, 6\ns_cbranch_scc1 L_KV_D\ns_cmp_ge_u32 {sJ}, 3\ns_cbranch_scc1 L_KV_V\ns_cmp_eq_u32 {sJ}, 2\ns_cbranch_scc1 L_KV_X")
        e(f"s_mul_i32 {T0}, {T2}, {KREC}\ns_lshl_b32 {T1}, {sJ}, 9\ns_add_u32 {T0}, {T0}, {T1}")
        e("v_lshlrev_b32 v211, 4, v209\nv_and_b32 v212, 1, v201\nv_lshl_add_u32 v211, v212, 3, v211\nv_cmp_le_u32 vcc, 2, v201\ns_nop 1\nv_cndmask_b32 v211, v210, v211, vcc")
        e(f"buffer_store_dwordx2 v[152:153], v211, {SWS}, {T0} offen sc1\ns_branch L_KV_D")
        e.label("L_KV_X")
        e(f"s_mul_i32 {T0}, {T2}, {KREC}\ns_add_u32 {T0}, {T0}, {KX}")
        e("v_lshlrev_b32 v211, 2, v209\nv_cmp_eq_u32 vcc, 3, v201\ns_nop 1\nv_cndmask_b32 v211, v210, v211, vcc")
        e(f"buffer_store_dword v153, v211, {SWS}, {T0} offen sc1\ns_branch L_KV_D")
        e.label("L_KV_V")
        e(f"s_sub_u32 {T0}, {sJ}, 3\ns_lshl_b32 {T0}, {T0}, 3\ns_min_u32 {T0}, {T0}, 10\ns_cmp_eq_u32 {sJ}, 5\ns_cselect_b32 {T1}, 14, 8")
        e(f"v_add_u32 v211, {T0}, v200\nv_lshrrev_b32 v212, 1, v201\nv_mul_u32_u24 v212, 18, v212\nv_add_u32 v211, v211, v212\nv_lshlrev_b32 v211, 4, v211")
        e(f"v_and_b32 v212, 1, v201\nv_lshl_add_u32 v211, v212, 3, v211\nv_cmp_le_u32 vcc, {T1}, v200\ns_nop 1\nv_cndmask_b32 v211, v210, v211, vcc")
        e(f"s_mul_i32 {T0}, {T2}, {KREC}\ns_mul_i32 {T1}, {T3}, 576\ns_add_u32 {T0}, {T0}, {T1}\ns_add_u32 {T0}, {T0}, {VT-128}")
        e(f"buffer_store_dwordx2 v[154:155], v211, {SWS}, {T0} offen sc1")
        e.label("L_KV_D")
        e(f"s_mov_b32 {sSPIN}, 0")
        e.label("L_TAG_P")
        e(f"s_waitcnt vmcnt(0)\nv_readfirstlane_b32 {sN0}, v248\nv_readfirstlane_b32 {sN1}, v249\ns_add_u32 {sSPIN}, {sSPIN}, 1")
        e(f"s_sub_u32 {T0}, {sT0}, {sN0}\ns_add_u32 {T0}, {T0}, 100000\ns_cmp_gt_u32 {T0}, 103000\ns_cselect_b32 {T0}, 0, {sN0}\ns_cmp_ge_u32 {sSPIN}, 256\ns_cselect_b32 {T0}, {sN0}, {T0}\ns_cmp_lg_u32 {T0}, 0\ns_cbranch_scc1 L_TAG_Q")
        e(f"v_mov_b32 v246, 0\nbuffer_load_dwordx2 v[248:249], v246, {SDBG}, 0 offen sc1\ns_cmp_lt_u32 {sSPIN}, {p['SPIN']}\ns_cbranch_scc1 L_TAG_P")
        e.label("L_TAG_Q")
        e.vmq = []
        e(f"v_mov_b32 v246, {NONCE}\nds_write_b64 v246, v[248:249]\ns_waitcnt lgkmcnt(0)")
        self.kv_flag()
        if early:
            self.arrive(C_E, "v246", "v247")
        self.arrive(C_XN, "v246", "v247")
        if early:
            self.lds_wait(C_E, 4, "v246", "v247")
            for kk in range(18):
                e.lg(f"ds_read_b64_tr_b16 {vr(8*kk,2)}, v216 offset:{512*kk}", ("e2", kk))
                e.lg(f"ds_read_b64_tr_b16 {vr(8*kk+2,2)}, v216 offset:{512*kk+64}", ("e2", kk))
                if kk >= 6:
                    e.wait(lg=("e2", kk - 6))
                    r = 8 * (kk - 6)
                    e(f"v_mfma_f32_16x16x32_bf16 v[144:147], {vr(r,4)}, {vr(r+4,4)}, {'0' if kk == 6 else 'v[144:147]'}")
            for kk in range(12, 18):
                e.wait(lg=("e2", kk))
                e(f"v_mfma_f32_16x16x32_bf16 v[144:147], {vr(8*kk,4)}, {vr(8*kk+4,4)}, v[144:147]")
            self.arrive(C_A, "v246", "v247")
            e.nop(3)
        e(f"v_mul_f32 v144, {c}, v144\nv_mul_f32 v145, {c}, v145\nv_mul_f32 v146, {c}, v146\nv_mul_f32 v147, {c}, v147")
        e("v_cvt_pk_bf16_f32 v144, v144, v145\nv_cvt_pk_bf16_f32 v145, v146, v147")
        e(f"s_lshr_b32 {T3}, {sA}, 1\ns_mul_i32 {T3}, {T3}, 1536\ns_and_b32 {T4}, {sA}, 1\ns_lshl_b32 {T4}, {T4}, 8\ns_add_u32 {T3}, {T3}, {T4}\ns_add_u32 {T3}, {T3}, {ATT}")
        e(f"v_lshl_add_u32 v214, v200, 4, {T3}\nv_lshlrev_b32 v215, 2, v201")
        self.qaddr("v82", "v215", 64, "v214", "v212", "v213")
        self.qaddr("v83", "v215", 66, "v214", "v212", "v213")
        self.lds_wait(C_A, 4, "v246", "v247")
        e("s_mov_b32 exec_hi, 0")
        e.lg("ds_write_b32 v82, v144")
        e.lg("ds_write_b32 v83, v145")
        e("s_mov_b64 exec, -1")
        self.stamp(3)
        e.wait_all(lg=True)
        self.arrive(C_B, "v246", "v247")
        self.stamp(4)
        for r in range(192, 210):
            e(f"v_mov_b32 v{r}, 0")
        for b in (218, 222):
            e(f"v_mov_b32 v{b+1}, 0x3f803f80\nv_mov_b32 v{b+2}, 0\nv_mov_b32 v{b+3}, 0")
        e(f"v_and_b32 v246, 31, {vL}\nv_mov_b32 v247, 0x3f803f80\nv_cmp_eq_u32 vcc, 18, v246\ns_mov_b32 s82, 0x3ffff\ns_mov_b32 s83, 0x3ffff")
        for r in range(226, 242):
            e(f"v_cndmask_b32 v{r}, 0, v247, vcc")
        e("v_mov_b32 v242, 0xdddddddd")
        d = p["KSPLIT"]
        e(f"s_mul_i32 {T2}, {sA}, {16+d}\ns_cmp_eq_u32 {sA}, 3\ns_cselect_b32 {T2}, {48+d}, {T2}\ns_cmp_ge_u32 {sA}, 2\ns_cselect_b32 {sNT}, {16-d}, {16+d}\ns_lshr_b32 {sNL}, {sNT}, 1")
        e(f"s_mul_i32 {T0}, {T2}, {KREC}\ns_mul_i32 {sKT[1]}, {sNT}, {KREC}\nv_lshl_add_u32 v243, {vL}, 4, {T0}\nv_lshl_add_u32 v244, v246, 2, {T0}")
        e(f"s_nop 0\nv_lshrrev_b32 v245, 5, {vL}\nv_mul_u32_u24 v245, 18, v245\nv_add_u32 v245, v245, v246\nv_lshl_add_u32 v245, v245, 4, {T0}")
        e(f"s_setprio {p['PRIO_A']}")
        self.zero_acc()
        self.lds_wait(C_B, 6, "v247", "v248", sleep=4)
        for i2 in range(4):
            e(f"s_add_u32 {T0}, {sA}, {1+i2}\ns_and_b32 {T0}, {T0}, 3\ns_mul_i32 {T0}, {T0}, 3072\ns_add_u32 {T0}, {T0}, {ATT}")
            e(f"v_lshl_add_u32 v{128+i2}, {vL}, 4, {T0}")
            for rt in range(2):
                e.lg(f"ds_read_b128 {vr(160+4*(2*i2+rt),4)}, v{128+i2} offset:{1536*rt}")
        e("s_mov_b32 exec_hi, 0")
        for i2 in range(4):
            for rt in range(2):
                e.lg(f"ds_read_b32 v{192+2*(2*i2+rt)}, v{128+i2} offset:{1536*rt+1024}")
        e("s_mov_b64 exec, -1")
        e.wait_all(lg=True)
        e(f"v_lshrrev_b32 v247, 3, {vL}\nv_mul_u32_u24 v247, {ASZ}, v247\nv_and_b32 v248, 7, {vL}\nv_lshl_add_u32 v247, v248, 3, v247")
        e(f"s_mul_i32 {T2}, {sA}, {8*ASZ}\ns_add_u32 {T2}, {T2}, {ARENA + FLAGS + F_KV}")
        self.flag_poll("v247", T2, 248, sleep=p["G1SLEEP"])
        self.arrive(C_G1, "v247", "v248")
        self.lds_wait(C_G1, 4, "v247", "v248")
        if p["X_SEQ"]:
            self.lds_wait((C_G2, C_H, C_XN)[p["X_SEQ"] - 1], (4, 4, 8)[p["X_SEQ"] - 1], "v247", "v248", sleep=8)
        e(f"s_setprio {p['PRIO_A']}")
        self.stamp(5)

    def kv_flag(self):
        e = self.e
        self.arrive(C_KV, "v246", "v247", rtn=T2)
        e(f"s_cmp_lg_u32 {T2}, 3\ns_cbranch_scc1 L_NOG1")
        self.flag_set(F_KV, sJ, "v246", 248)
        e.label("L_NOG1")

    def send_addr(self):
        e = self.e
        for i2 in range(3):
            e(f"s_add_u32 {T0}, {sA}, {1+i2}\ns_and_b32 {T0}, {T0}, 3\ns_mul_i32 {T0}, {T0}, {6*OSL}\ns_add_u32 {T0}, {T0}, {OXA + 2*i2*OSL}")
            e(f"v_lshl_add_u32 v{246+i2}, {vL}, 4, {T0}")

    def zero_acc(self):
        for r in list(range(128)) + list(range(152, 160)):
            self.e(f"v_mov_b32 v{r}, 0")

    def o_addr(self, vm_, vx, vt):
        e = self.e
        e(f"v_and_b32 {vx}, 31, {vL}\nv_lshrrev_b32 {vt}, 5, {vL}\ns_lshl_b32 {T0}, {sJ}, 2\ns_add_u32 {T0}, {T0}, {sA}\ns_lshl_b32 {T0}, {T0}, 11")
        e(f"s_add_u32 {T0}, {T0}, {sAR}\ns_add_u32 {T0}, {T0}, {OM}\nv_lshl_add_u32 {vm_}, {vx}, 4, {T0}\nv_lshl_add_u32 {vm_}, {vt}, 10, {vm_}")
        e(f"s_lshl_b32 {T1}, {sJ}, 10\ns_add_u32 {T0}, {sAR}, {T1}\ns_lshl_b32 {T1}, {sA}, 2\ns_add_u32 {T0}, {T0}, {T1}\ns_add_u32 {T0}, {T0}, {OX}")
        e(f"v_lshl_add_u32 {vx}, {vx}, 4, {T0}")

    def kvload(self, buf, what, step=True):
        e = self.e
        if what == "k":
            e.vm(f"buffer_load_dwordx4 {vr(210+4*buf,4)}, v243, {SWS}, {sKT[0]} offen sc1", ("k", buf))
            e.vm(f"buffer_load_dword v{218+4*buf}, v244, {SWS}, {sKT[0]} offen offset:{KX} sc1", ("k", buf))
        else:
            e(f"s_mov_b64 exec, {sVM}")
            e.vm(f"buffer_load_dwordx4 {vr(226+8*buf,4)}, v245, {SWS}, {sKT[0]} offen offset:{VT} sc1", ("v", buf))
            e.vm(f"buffer_load_dwordx4 {vr(230+8*buf,4)}, v245, {SWS}, {sKT[0]} offen offset:{VT+576} sc1", ("v", buf))
            e("s_mov_b64 exec, -1")
            self.wrap_inc(sKT[0], KREC, sKT[1])

    def qk(self, i, buf, which, S=None):
        S = vr(128 + 16 * (i & 1), 16) if S is None else S
        if which == 0:
            self.e(f"v_mfma_f32_32x32x16_bf16 {S}, {vr(210+4*buf,4)}, {vr(160+4*i,4)}, 0")
        else:
            self.e(f"v_mfma_f32_32x32x16_bf16 {S}, {vr(218+4*buf,4)}, {vr(192+2*i,4)}, {S}")

    def pv(self, i, buf, s):
        self.e(f"v_smfmac_f32_32x32x32_bf16 {vr(16*i,16)}, {vr(226+8*buf+4*s,4)}, {vr(128+16*(i & 1)+8*s,8)}, v242")

    def att_tile(self, buf, first=False, last=False, sig=False):
        e = self.e

        def send(i):
            for hf in range(2):
                e.lg(f"ds_write_b128 v{246+(i >> 1)}, {vr(16*i+4*hf,4)} offset:{(i & 1)*OSL + 1024*hf}")
        for i in range(8):
            S = 128 + 16 * (i & 1)

            pat = self.p["EXPAT"]
            c1, c2 = ((5, 8), (5, 8), (6, 10), (5, 9))[pat]

            def ex(a, b):
                for k in range(a, b):
                    wide = pat in (1, 3) and (b - a) % 2 == 1 and k == a
                    e(f"v_exp_f32{'_e64' if wide else ''} v{S+k}, v{S+k}")
            ex(0, 2)
            if i > 0:
                self.pv(i - 1, buf, 1)
            else:
                self.pv(7, buf ^ 1, 1)
            if i == 0 and not last:
                self.kvload(buf ^ 1, "v")
                if sig and not self.p["TRIM"]:
                    e(f"s_cmp_lg_u32 {sCNT}, 1\ns_cbranch_scc1 L_NOSIG")
                    self.arrive(C_L, "v246", "v247")
                    e.label("L_NOSIG")
            ex(2, c1)
            nxt = (i + 1, buf) if i < 7 else (0, buf ^ 1)
            do_qk = not (last and i == 7)
            if i == 7 and do_qk:
                e.wait(vm=("k", buf ^ 1))
            if do_qk:
                self.qk(nxt[0], nxt[1], 0)
            ex(c1, c2)
            if do_qk:
                self.qk(nxt[0], nxt[1], 1)
            if i == 7 and not last:
                self.kvload(buf, "k")
            c3 = max(12, c2 + 3) if pat != 2 else 14
            ex(c2, c3)
            if i == 0:
                e.wait(vm=("v", buf))
            self.pv(i, buf, 0)
            ex(c3, 14)
            if last and 1 <= i <= 6:
                send(i - 1)
            ex(14, 16)

    def attention(self):
        e, p = self.e, self.p
        e.label("L_ATT")
        self.att_proj()
        e.label("L_PASS")
        b0 = p["KSPLIT"] & 1
        e(f"s_and_b32 {sTI}, {sRB}, {15*p['KROT']}\ns_cmp_ge_u32 {sTI}, {sNT}\ns_cselect_b32 {sTI}, 0, {sTI}\ns_mul_i32 {sKT[0]}, {sTI}, {KREC}")
        e.vmq = []
        self.kvload(b0, "k")
        self.kvload(b0, "v")
        self.kvload(b0 ^ 1, "k")
        if p["TRIM"]:
            self.o_addr("v249", "v251", "v246")
            self.send_addr()
        e.wait(vm=("k", b0))
        self.qk(0, b0, 0)
        self.qk(0, b0, 1)
        e(f"s_mov_b32 {sCNT}, {sNL}")
        e.nop(11)
        if not b0:
            e("s_branch L_AT_MID")
            e.vmq = [("v", 1), ("v", 1), ("k", 0), ("k", 0)]
        e(".p2align 3")
        e.label("L_AT_LOOP")
        if p["STAMP"]:
            e(f"s_sub_u32 m0, 25, {sCNT}")
            self.stamp("m0")
        if p["AHI"]:
            e(f"s_cmp_lg_u32 {sCNT}, {p['AHI']}\ns_cbranch_scc1 L_NOHI\ns_setprio 2")
            e.label("L_NOHI")
            e(f"s_cmp_lg_u32 {sCNT}, {p['ALO']}\ns_cbranch_scc1 L_NOLO\ns_setprio 0")
            e.label("L_NOLO")
        if p["GATE"]:
            e(f"s_cmp_lg_u32 {sCNT}, {p['GATE']}\ns_cbranch_scc1 L_NOGATE")
            self.lds_wait(C_G2, 4, "v246", "v247", sleep=4)
            e.label("L_NOGATE")
        q0 = list(e.vmq)
        self.att_tile(1)
        e.label("L_AT_MID")
        self.att_tile(0, sig=True)
        assert q0 == e.vmq, (q0, e.vmq)
        e(f"s_sub_u32 {sCNT}, {sCNT}, 1\ns_cmp_lg_u32 {sCNT}, 0\ns_cbranch_scc1 L_AT_LOOP")
        self.stamp(6)
        self.lds_wait(C_G2 if p.get("NEWTAIL") else C_P, 4, *(("v128", "v129")[:0] or (("v252", "v253") if p["TRIM"] else ("v246", "v247"))))
        if not p["TRIM"]:
            self.send_addr()
        self.att_tile(1, last=True)
        e.nop(2)
        self.pv(7, 1, 1)
        e("s_mov_b32 exec_hi, 0")
        for i in range(6):
            e.lg(f"ds_write_b128 v{246+(i >> 1)}, {vr(16*i+8,4)} offset:{(i & 1)*OSL + 2048}")
        e("s_mov_b64 exec, -1")
        e("v_add_f32 v128, v10, v26\nv_add_f32 v129, v42, v58\nv_add_f32 v130, v74, v90\nv_min3_f32 v131, v10, v26, v42\nv_min3_f32 v132, v58, v74, v90")
        e("v_add_f32 v128, v128, v129\nv_add_f32 v130, v130, v106\nv_min3_f32 v131, v131, v132, v106\nv_add_f32 v128, v128, v130")
        e("v_add_f32 v128, v128, v122\nv_min_f32 v131, v131, v122")
        e(f"v_cmp_nge_f32 vcc, {f2u(2.0**40):#x}, v128\nv_mov_b32 v129, {f2u(2.0**-64):#x}\ns_mov_b32 {T2}, vcc_lo\nv_cmp_nge_f32 vcc, v131, v129\ns_nop 1\ns_or_b32 {T2}, {T2}, vcc_lo")
        if p["FORCE_FB"]:
            e(f"s_mov_b32 {T2}, 1")
        e(f"s_cmp_lg_u32 {T2}, 0\ns_cselect_b32 {T2}, 0x10001, 1")
        e.wait_all(lg=True)
        self.arrive(C_R, "v128", "v129", val=T2)
        e(f"s_mul_i32 {T0}, {sA}, {6*OSL}\ns_add_u32 {T0}, {T0}, {OXA}\nv_lshl_add_u32 v246, {vL}, 4, {T0}")
        if not p["TRIM"]:
            self.o_addr("v249", "v251", "v248")
        e(f"s_lshl_b32 {T3}, {sPASS}, 2\ns_add_u32 {T3}, {T3}, 4")
        self.lds_wait(C_R, T3, "v128", "v129", mask="0xffff", out=T2)
        self.stamp(7)
        e(f"s_cmp_lg_u32 {sPASS}, 0\ns_cbranch_scc1 L_SAFE\ns_cmp_ge_u32 {T2}, 0x10000\ns_cbranch_scc1 L_FALLBACK")
        e.label("L_SAFE")
        for tt in range(2):
            for i in range(3):
                for q in range(3):
                    e.lg(f"ds_read_b128 {vr(12*(3*tt+i)+4*q,4)}, v246 offset:{(2*i+tt)*OSL + 1024*q}", ("r", tt, i))
        for tt in range(2):
            O = 96 + 16 * tt
            for i in range(3):
                e.wait(lg=("r", tt, i))
                r0 = 12 * (3 * tt + i)
                if p["TRIM"]:
                    e(f"v_add_f32 v{O+10}, v{O+10}, v{r0+10}")
                    for k in range(0, 10, 2):
                        e(f"v_pk_add_f32 v[{O+k}:{O+k+1}], v[{O+k}:{O+k+1}], v[{r0+k}:{r0+k+1}]")
                else:
                    for k in (10, 0, 1, 2, 3, 4, 5, 6, 7, 8, 9):
                        e(f"v_add_f32 v{O+k}, v{O+k}, v{r0+k}")
            e(f"v_mov_b32 v128, v{O+10}\nv_mov_b32 v129, v{O+10}\ns_nop 1\nv_permlane32_swap_b32 v128, v129\ns_nop 1\nv_mul_f32 v128, {sNL2E}, v128\nv_rcp_f32 v128, v128\ns_nop 0")
            for k in range(0, 10, 2 if p["TRIM"] else 1):
                e(f"v_pk_mul_f32 v[{O+k}:{O+k+1}], v[{O+k}:{O+k+1}], v[128:129] op_sel_hi:[1,0]" if p["TRIM"] else f"v_mul_f32 v{O+k}, v{O+k}, v128")
            for k in range(5):
                e(f"v_cvt_pk_bf16_f32 v{132+8*tt+k}, v{O+2*k}, v{O+2*k+1}")
            if p["SENT"]:
                for k in range(5):
                    e(f"v_min_u32 v{132+8*tt+k}, -2, v{132+8*tt+k}")
            e.vm(f"buffer_store_dwordx4 {vr(132+8*tt,4)}, v249, {SWS}, 0 offen offset:{512*tt} sc1")
            e("s_mov_b32 exec_hi, 0")
            e.vm(f"buffer_store_dword v{136+8*tt}, v251, {SWS}, 0 offen offset:{512*tt} sc1")
            e("s_mov_b64 exec, -1")
        self.stamp(8)
        if p["OMODE"] == 0:
            e.wait_all(vm=True)
        if p["OMODE"] in (0, 4):
            e(f"s_lshl_b32 {T2}, {sJ}, 2\ns_add_u32 {T2}, {T2}, {sA}")
            self.flag_set(F_O, T2, "v128", 130)
        self.arrive(C_O, "v128", "v129")
        self.stamp(9)
        e("s_branch L_FIN")
        self.fallback()

    def fallback(self):
        e = self.e
        e.label("L_FALLBACK")
        e(f"s_mov_b32 {sPASS}, 1\ns_mov_b32 {sKT[0]}, 0\ns_mov_b32 {sCNT}, 0")
        for i in range(8):
            e(f"v_mov_b32 v{i}, 0xff800000")
        e.label("L_FB_LOOP")
        self.kvload(0, "k")
        e(f"s_add_u32 {sKT[0]}, {sKT[0]}, {KREC}")
        e.wait_all(vm=True)
        for i in range(8):
            self.qk(i, 0, 0, S="v[128:143]")
            self.qk(i, 0, 1, S="v[128:143]")
            e.nop(12)
            for k in range(8):
                e(f"v_max3_f32 v{i}, v{i}, v{128+2*k}, v{129+2*k}")
        e(f"s_add_u32 {sCNT}, {sCNT}, 1\ns_cmp_lt_u32 {sCNT}, {sNT}\ns_cbranch_scc1 L_FB_LOOP")
        e(f"v_and_b32 v247, 31, {vL}")
        for i in range(8):
            e(f"v_mov_b32 v8, v{i}\ns_nop 1\nv_permlane32_swap_b32 v{i}, v8\ns_nop 1\nv_max_f32 v{i}, v{i}, v8")
            e(f"s_lshl_b32 {T0}, {sA}, 1\ns_add_u32 {T0}, {T0}, {2+i}\ns_and_b32 {T0}, {T0}, 7\ns_lshl_b32 {T0}, {T0}, 7\ns_add_u32 {T0}, {T0}, {MX}")
            e(f"v_lshl_add_u32 v{16+i}, v247, 2, {T0}\ns_lshl_b32 {T1}, {sA}, 10\nv_add_u32 v9, {T1}, v{16+i}")
            e(f"ds_write_b32 v9, v{i}")
        e.wait_all(lg=True)
        self.arrive(C_M, "v128", "v129")
        self.lds_wait(C_M, 4, "v128", "v129")
        e("s_mov_b32 exec_hi, 0")
        for i in range(8):
            for a in range(4):
                e(f"ds_read_b32 v{8+a}, v{16+i} offset:{1024*a}")
            e.wait_all(lg=True)
            e("v_max3_f32 v8, v8, v9, v10\nv_max_f32 v8, v8, v11\nv_cvt_pk_bf16_f32 v9, v8, v8\nv_and_b32 v9, 0xffff0000, v9\nv_sub_f32 v10, v8, v9")
            e(f"v_cvt_pk_bf16_f32 v{193+2*i}, -v9, -v10")
        e("s_mov_b64 exec, -1")
        self.zero_acc()
        e("s_branch L_PASS")

    def build(self):
        e, p = self.e, self.p
        self.prologue()
        self.ffn()
        self.attention()
        e.label("L_FIN")
        if p["STAMP"]:
            e("s_waitcnt vmcnt(0)")
            self.stamp(12)
            e(f"s_lshl_b32 {T0}, s2, 3\ns_add_u32 {T0}, {T0}, {sW}\ns_lshl_b32 {T0}, {T0}, 8\ns_add_u32 {T0}, {T0}, {STAMPS}\nv_lshlrev_b32 v0, 2, {vL}")
            e(f"buffer_store_dword v255, v0, {SWS}, {T0} offen\ns_add_u32 {T0}, {T0}, 0x80000\nbuffer_store_dword v254, v0, {SWS}, {T0} offen")
            e(f"s_cmp_lg_u32 s2, 100\ns_cbranch_scc1 L_END\ns_cmp_lg_u32 {sW}, 0\ns_cbranch_scc1 L_END")
            e(f"v_readlane_b32 {T0}, v255, 0\ns_nop 1\nv_subrev_u32 v1, {T0}, v255\ns_mov_b64 exec, 0x1ffe\nbuffer_store_dword v1, v0, {SDBG}, 0 offen")
        e.label("L_END")
        e("s_endpgm")
        probs = check_hazards(e.lines)
        head = open("cdna_kernels/" + NAME + ".s.ref").read().split("\n")
        hdr = [l for l in head if l.startswith(";") and "@launch" not in l and "Override" not in l and "grid=ceil" not in l]
        txt = "\n".join(hdr) + f"""
; One persistent workgroup per CU owns 64 rows x (576 FFN columns, 4 heads, 72 output columns); 8 workgroups share a row block.
;   all waves : LayerNorm of the 64 rows -> LDS (bf16, scaled by -log2(e); the scale is undone in q, 1/l and the FFN sum)
;   waves 0-3 : (2,3: Q projection) GEMM1 -> SiLU -> GEMM2 -> bf16 partial sums to d_ws -> sum of the 8 partials + x
;               -> output projection of the row block's attention output -> d_out
;   waves 4-7 : K/V projection (published to d_ws), then softmax(QK^T)V over a quarter of the keys each for all 8 query tiles;
;               P stays fp32 in registers, the sparse MFMA picks its high halves; a ones row of V^T gives the row sums.
; Softmax shift: the first pass uses shift 0 and checks every row sum against [2^-64, 2^40]; if any sum is outside (or NaN)
; the workgroup computes the true row maxima (L_FALLBACK) and runs the pass again with them subtracted.
; Hand-offs between workgroups: write-through stores, then a flag holding this launch's tag (published through d_debug);
; the attention output is checked word by word against an "empty" pattern written earlier in the same launch.
; @launch grid=(256,1,1) block=(512,1,1) lds={LDS_BYTES}
.amdgcn_target "amdgcn-amd-amdhsa--gfx950"
.text
.globl {NAME}_kernel
.p2align 8
.type {NAME}_kernel,@function
{NAME}_kernel:
{e.text()}
.section .rodata,"a"
.p2align 6
.amdhsa_kernel {NAME}_kernel
  .amdhsa_next_free_vgpr 256
  .amdhsa_next_free_sgpr 102
  .amdhsa_accum_offset 256
  .amdhsa_group_segment_fixed_size 0
  .amdhsa_kernarg_size 88
  .amdhsa_user_sgpr_count 2
  .amdhsa_user_sgpr_kernarg_segment_ptr 1
  .amdhsa_system_sgpr_workgroup_id_x 1
.end_amdhsa_kernel
"""
        return txt, probs


if __name__ == "__main__":
    out = sys.argv[1]
    kw = {}
    for a in sys.argv[2:]:
        k, v = a.split("=")
        kw[k] = int(v, 0)
    txt, probs = G(**kw).build()
    for x in probs[:40]:
        print("HAZARD", x)
    open(out, "w").write(txt)
    print("wrote", out, len(txt), "bytes;", len(probs), "hazards")
```

```python
import sys, math, struct
from emit import E, check_hazards

NAME = "parallel_sum__grouped_kv_mqa__dense_activation_silu__prompt"

DEF = dict(NSL=2, STAMP=0, PRIO_F=1, PRIO_A=0, ROT=1, KROT=0, CODEPF=1, PRIO_P=2, WARMQ=0, TLBW=2, OUTF=2, KSPLIT=1, W1LATE=4, PRE=5, PREU=0, ROTG=0, EXPAT=0, SENT=1, OMODE=2, OROT=1, OSLEEP=0, TADDR=2, PRIO_T=1, TRIM=1, OORD=0, OEARLY=0, WOS=7, PREA=1, EARLYKV=0, RESTB=0, TLBU=0, TLB0=0, GATE=0, AHI=0, ALO=0, X_SEQ=0, X_BIAS=0, EXTU=8, PREL=5, QROT=1, KVEARLY=0, KVU=0, PKLN=0, XBAR=1, PACE2=2, PACE3=2, DYNP=2, WARMO=1, PKSILU=1, PACE=4, DEFER=0, G1SLEEP=16, SPIN=1 << 16, FORCE_FB=0)

KREC = 2304
KM, KX, VT = 0, 1024, 1152
ARENA, ASZ = 0x40000, 0xb0000
PART, OM, OX, FLAGS = 0, 589824, 655360, 663552
STAMPS = 0x1710000
WS_BYTES = 0x1820000
CH = 1040
RING, RSZ = 72 * CH, 15360
ATT = RING + 4 * RSZ
QE, KVW = ATT, ATT + 9216 + 64
QRSZ = 6144
OXA, OSL = 92160, 2560
MX = 153600
QX, SYNC = 162560, 163584
LDS_BYTES = 163840
C_A, C_KV, C_B, C_XN, C_H, C_G2, C_P, C_WO, C_R, C_O, C_G1, C_M, C_E, C_Q, C_L = range(15)
SX, SW1, SW2, SWQ, SKV, SWO, SWS, SDBG, SOUT = (f"s[{b}:{b+3}]" for b in range(28, 64, 4))
sRB, sJ, sW, sA = "s64", "s65", "s66", "s67"
sRING, sK, sCNT, sNL2E, sSPIN, sPASS = "s68", "s69", "s70", "s71", "s72", "s73"
sKT = ("s74", "s75", "s76")
T0, T1, T2, T3, T4 = "s77", "s78", "s79", "s80", "s81"
sVM = "s[82:83]"
sIDX = "s84"
sROT, sBO, sTI, sAR = "s92", "s93", "s94", "s95"
sKQ, sN0, sN1, sNT, sNL = "s96", "s98", "s99", "s100", "s101"
sREC, sEARLY = "s4", "s5"
sT0 = "s26"
F_P, F_KV, F_O = 0, 128, 256
NONCE = SYNC + 128
vL = "v250"
OOB = 0x40000000


def f2u(x):
    return struct.unpack("<I", struct.pack("<f", x))[0]


def vr(b, n=1):
    return f"v{b}" if n == 1 else f"v[{b}:{b+n-1}]"


class G:
    def __init__(self, **kw):
        self.p = dict(DEF)
        self.p.update(kw)
        self.e = E()
        self.nstamp = 0

    def stamp(self, i):
        if not self.p["STAMP"]:
            return
        e = self.e
        e("s_waitcnt lgkmcnt(0)")
        e.lgq = []
        e("s_memrealtime s[88:89]\ns_memtime s[90:91]")
        e("s_waitcnt lgkmcnt(0)")
        e(f"v_writelane_b32 v255, s88, {i}\nv_writelane_b32 v254, s90, {i}")

    def srd(self, srd, lo, nbytes):
        b = int(srd[2:srd.index(":")])
        self.e(f"s_mov_b32 s{b}, s{lo}\ns_mov_b32 s{b+1}, s{lo+1}\ns_mov_b32 s{b+2}, {nbytes}\ns_mov_b32 s{b+3}, 0x20000")

    def arrive(self, word, va, vb, rtn=None, val="1"):
        e = self.e
        e(f"v_mov_b32 {va}, {SYNC}\nv_mov_b32 {vb}, {val}\ns_mov_b64 exec, 1")
        if rtn is None:
            e.lg(f"ds_add_u32 {va}, {vb} offset:{4*word}")
            e("s_mov_b64 exec, -1")
        else:
            e(f"ds_add_rtn_u32 {vb}, {va}, {vb} offset:{4*word}")
            e.wait_all(lg=True)
            e(f"v_readfirstlane_b32 {rtn}, {vb}\ns_mov_b64 exec, -1\ns_nop 0")

    def lds_wait(self, word, target, va, vb, mask=None, out=None, sleep=1):
        e = self.e
        L, D = e.new("LW"), e.new("LWD")
        out = out or T0
        e(f"v_mov_b32 {va}, {SYNC}\ns_mov_b32 {sSPIN}, 0")
        e.label(L)
        e(f"ds_read_b32 {vb}, {va} offset:{4*word}")
        e.wait_all(lg=True)
        e(f"v_readfirstlane_b32 {out}, {vb}\ns_add_u32 {sSPIN}, {sSPIN}, 1")
        if mask is not None:
            e(f"s_and_b32 {T1}, {out}, {mask}\ns_cmp_ge_u32 {T1}, {target}")
        else:
            e(f"s_cmp_ge_u32 {out}, {target}")
        e(f"s_cbranch_scc1 {D}\ns_sleep {sleep}\ns_cmp_lt_u32 {sSPIN}, {self.p['SPIN']}\ns_cbranch_scc1 {L}")
        e.label(D)

    def flag_poll(self, va, soff, vb, sleep=2):
        e = self.e
        L, D = e.new("FW"), e.new("FWD")
        e(f"s_mov_b32 {sSPIN}, 0")
        e.label(L)
        e(f"buffer_load_dwordx2 v[{vb}:{vb+1}], {va}, {SWS}, {soff} offen sc1")
        e.wait_all(vm=True)
        e(f"v_xor_b32 v{vb}, {sN0}, v{vb}\nv_xor_b32 v{vb+1}, {sN1}, v{vb+1}\nv_or_b32 v{vb}, v{vb}, v{vb+1}")
        e(f"v_cmp_ne_u32 vcc, 0, v{vb}\ns_add_u32 {sSPIN}, {sSPIN}, 1\ns_nop 3")
        e(f"s_cbranch_vccz {D}\ns_sleep {sleep}\ns_cmp_lt_u32 {sSPIN}, {self.p['SPIN']}\ns_cbranch_scc1 {L}")
        e.label(D)

    def flag_wait(self, group, n, va, vb):
        e = self.e
        e(f"v_and_b32 {va}, {n-1}, {vL}\nv_lshlrev_b32 {va}, 3, {va}\ns_add_u32 {T0}, {sAR}, {FLAGS + group}")
        self.flag_poll(va, T0, vb)

    def flag_set(self, group, sidx, va, vb):
        e = self.e
        e(f"s_lshl_b32 {T1}, {sidx}, 3\ns_add_u32 {T0}, {sAR}, {T1}\ns_add_u32 {T0}, {T0}, {FLAGS + group}")
        e(f"v_mov_b32 {va}, 0\nv_mov_b32 v{vb}, {sN0}\nv_mov_b32 v{vb+1}, {sN1}\ns_mov_b64 exec, 1")
        e.vm(f"buffer_store_dwordx2 v[{vb}:{vb+1}], {va}, {SWS}, {T0} offen sc1")
        e("s_mov_b64 exec, -1")

    def get_nonce(self, va, vb):
        e = self.e
        e(f"v_mov_b32 {va}, {NONCE}\nds_read_b64 v[{vb}:{vb+1}], {va}")
        e.wait_all(lg=True)
        e(f"v_readfirstlane_b32 {sN0}, v{vb}\nv_readfirstlane_b32 {sN1}, v{vb+1}\ns_nop 1")

    def prologue(self):
        e, p = self.e, self.p
        nsl = p["NSL"]
        e("s_cmp_ge_u32 s2, 256\ns_cbranch_scc1 L_END")
        e("s_load_dwordx16 s[4:19], s[0:1], 0\ns_load_dwordx4 s[20:23], s[0:1], 64\ns_load_dwordx2 s[24:25], s[0:1], 80\ns_memrealtime s[26:27]")
        if p["CODEPF"] >= 2:
            e(f"s_getpc_b64 s[86:87]")
            e.label("L_PC")
            if p["CODEPF"] == 2:
                e(f"s_bfe_u32 {T0}, s2, {(1 << 16) | 3}\ns_lshl_b32 {T0}, {T0}, 15\nv_lshl_add_u32 v126, v0, 6, {T0}")
            else:
                e(f"s_bfe_u32 {T0}, s2, {(2 << 16) | 3}\ns_lshl_b32 {T0}, {T0}, 14\nv_lshrrev_b32 v126, 1, v0\nv_lshl_add_u32 v126, v126, 6, {T0}")
            e(f"v_min_u32 v126, L_END-L_PC, v126\nv_mov_b32 v127, s87")
            e("v_add_co_u32 v126, vcc, s86, v126\ns_nop 1\nv_addc_co_u32 v127, vcc, 0, v127, vcc")
            e.vm("global_load_dword v251, v[126:127], off")
        if p["STAMP"]:
            e("s_memrealtime s[88:89]\ns_memtime s[90:91]\nv_mov_b32 v255, 0\nv_mov_b32 v254, 0")
        e(f"v_and_b32 {vL}, 63, v0\nv_lshrrev_b32 v1, 6, v0")
        lg = nsl.bit_length() - 1
        e(f"s_and_b32 {T0}, s2, 7\ns_lshr_b32 {sIDX}, s2, 3")
        e(f"s_and_b32 {sJ}, {T0}, {8//nsl - 1}\ns_lshl_b32 {sJ}, {sJ}, {lg}\ns_and_b32 {T1}, {sIDX}, {nsl-1}\ns_add_u32 {sJ}, {sJ}, {T1}")
        e(f"s_lshr_b32 {sRB}, {T0}, {3-lg}\ns_lshl_b32 {sRB}, {sRB}, {5-lg}\ns_lshr_b32 {T1}, {sIDX}, {lg}\ns_add_u32 {sRB}, {sRB}, {T1}")
        e(f"v_readfirstlane_b32 {sW}, v1\ns_mul_i32 {sAR}, {sRB}, {ASZ}\ns_add_u32 {sAR}, {sAR}, {ARENA}")
        e(f"v_lshrrev_b32 v120, 3, v0\nv_and_b32 v121, 7, v0\ns_lshl_b32 {T0}, {sRB}, 6")
        e(f"v_add_u32 v122, {T0}, v120\nv_mul_u32_u24 v122, 1152, v122\nv_lshl_add_u32 v122, v121, 4, v122")
        e(f"v_mul_u32_u24 v123, {CH}, v121\nv_lshl_add_u32 v123, v120, 4, v123\nv_add_u32 v124, {8*CH}, v123")
        e(f"s_and_b32 {sA}, {sW}, 3\nv_mov_b32 v216, 0\nv_mov_b32 v217, 0\nv_mov_b32 v222, 0\nv_mov_b32 v224, 0")
        for r in list(range(212, 216)) + list(range(225, 230)) + list(range(240, 248)):
            e(f"v_mov_b32 v{r}, 0")
        e("s_waitcnt lgkmcnt(0)")
        if p["STAMP"]:
            e("v_writelane_b32 v255, s88, 0\nv_writelane_b32 v254, s90, 0")
        self.srd(SX, 4, 2359296)
        for u in range(9):
            e.vm(f"buffer_load_dwordx4 v[{4*u}:{4*u+3}], v122, {SX}, 0 offen offset:{128*u}", ("x", u))
        if p["XBAR"]:
            e("s_barrier")
        self.srd(SW1, 16, 5308416)
        self.srd(SW2, 18, 5308416)
        self.srd(SWQ, 6, 663552)
        self.srd(SWO, 12, 663552)
        self.srd(SWS, 24, WS_BYTES)
        self.srd(SDBG, 22, 256)
        self.srd(SOUT, 20, 2359296)
        e(f"s_cmp_ge_u32 {sJ}, 3\ns_cselect_b32 s44, s10, s8\ns_cselect_b32 s45, s11, s9\ns_mov_b32 s46, 20736\ns_mov_b32 s47, 0x20000")
        e(f"s_mov_b32 {sNL2E}, {f2u(-math.log2(math.e)):#x}\ns_mov_b32 {sPASS}, 0")
        e(f"s_cmp_ge_u32 {sW}, 4\ns_cbranch_scc1 L_PRO_A")
        q0 = list(e.vmq)
        self.pro_ffn()
        if p["TLB0"]:
            e(f"s_mov_b64 exec, 1\ns_cmp_ge_u32 {sW}, 2\ns_cbranch_scc1 L_T0Q\nbuffer_load_dword v253, v216, {SW1}, {sK} offen\ns_branch L_T0J")
            e.label("L_T0Q")
            e.vm(f"buffer_load_dword v253, v224, {SWQ}, 0 offen")
            e.label("L_T0J")
            e("s_mov_b64 exec, -1")
        if p["TADDR"] == 0:
            self.q_addresses()
            self.tail_addresses()
        self.ln_stats(ffn=True)
        e("s_branch L_PRO_J")
        e.vmq = list(q0)
        e.label("L_PRO_A")
        if p["CODEPF"] == 1:
            e(f"s_getpc_b64 s[86:87]")
            e.label("L_PC")
            e(f"s_and_b32 {T0}, {sIDX}, 3\ns_lshl_b32 {T0}, {T0}, 2\ns_add_u32 {T0}, {T0}, {sA}\ns_lshl_b32 {T0}, {T0}, 12")
            e(f"v_lshl_add_u32 v126, {vL}, 6, {T0}\nv_min_u32 v126, L_END-L_PC, v126\nv_mov_b32 v127, s87")
            e("v_add_co_u32 v126, vcc, s86, v126\ns_nop 1\nv_addc_co_u32 v127, vcc, 0, v127, vcc")
            e.vm("global_load_dword v251, v[126:127], off")
        if p["TLB0"]:
            e(f"s_mov_b64 exec, 1\nv_mov_b32 v126, 0")
            e.vm(f"buffer_load_dword v252, v126, {SKV}, 0 offen")
            e("s_mov_b64 exec, -1")
            if p["TLBU"] == -2:
                self.tlb_touch()
        self.ln_stats()
        e(f"s_or_b32 {T0}, s2, {sA}\ns_cmp_lg_u32 {T0}, 0\ns_cbranch_scc1 L_NOTAG\ns_or_b32 {T0}, s26, 1")
        e(f"v_mov_b32 v126, {T0}\nv_mov_b32 v127, s27\nv_mov_b32 v128, 0\ns_mov_b64 exec, 1\nbuffer_store_dwordx2 v[126:127], v128, {SDBG}, 0 offen sc1\ns_mov_b64 exec, -1")
        e.label("L_NOTAG")
        e(f"v_lshlrev_b32 v127, 2, {vL}\nv_add_u32 v127, {SYNC}, v127\nv_mov_b32 v128, 0\nds_write_b32 v127, v128")
        e.label("L_PRO_J")
        self.layernorm()

    def wrap_inc(self, reg, inc, mod):
        self.e(f"s_add_u32 {reg}, {reg}, {inc}\ns_cmp_eq_u32 {reg}, {mod}\ns_cselect_b32 {reg}, 0, {reg}")

    def pro_ffn(self):
        e = self.e
        e(f"s_mul_i32 {T2}, {sW}, 5\ns_lshl_b32 {T3}, {sW}, 2\ns_cmp_eq_u32 {sW}, 3\ns_cselect_b32 {T2}, 14, {T2}\ns_cselect_b32 {T3}, 13, {T3}")
        e(f"s_mul_i32 {sRING}, {sW}, {RSZ}\ns_add_u32 {sRING}, {sRING}, {RING}")
        e(f"v_lshrrev_b32 v125, 2, {vL}\nv_and_b32 v126, 3, {vL}")
        e(f"s_mul_i32 {T0}, {sJ}, 1152\ns_lshl_b32 {T1}, {T2}, 6\ns_add_u32 {T0}, {T0}, {T1}")
        e(f"v_mul_u32_u24 v216, 9216, v125\nv_lshl_add_u32 v216, v126, 4, v216\nv_add_u32 v216, {T0}, v216")
        nsl = self.p["NSL"]
        e(f"s_and_b32 {sROT}, {sRB}, {32//nsl - 1}\ns_mul_i32 {sROT}, {sROT}, {36*nsl*self.p['ROT']}\ns_lshr_b32 {sROT}, {sROT}, 5")
        G_ = self.p["ROTG"]
        if G_:
            e(f"s_and_b32 {sROT}, {sRB}, {32//nsl - 1}\ns_mul_i32 {sROT}, {sROT}, {G_*nsl}\ns_lshr_b32 {sROT}, {sROT}, 5\ns_mul_i32 {sROT}, {sROT}, {36//G_}")
        e(f"s_mul_i32 {sK}, {sROT}, 147456")
        e(f"s_mul_i32 {T0}, {sJ}, 144\ns_lshl_b32 {T1}, {sW}, 6\ns_add_u32 {T0}, {T0}, {T1}\ns_sub_u32 {T0}, {T0}, 128")
        e(f"v_mul_u32_u24 v224, 1152, v125\nv_lshl_add_u32 v224, v126, 4, v224\nv_add_u32 v224, {T0}, v224\ns_mul_i32 {sKQ}, {sROT}, {18432*self.p['QROT']}")
        if not self.p["W1LATE"]:
            self.first_loads()
        e(f"s_mul_i32 {T0}, {sJ}, 663552\ns_lshl_b32 {T1}, {T3}, 6\ns_add_u32 {T0}, {T0}, {T1}")
        e(f"v_mul_u32_u24 v217, 1152, v125\nv_lshl_add_u32 v217, v126, 4, v217\nv_add_u32 v217, {T0}, v217")
        e(f"v_lshrrev_b32 v127, 5, {vL}\nv_bfe_u32 v128, {vL}, 2, 2\nv_bfe_u32 v129, {vL}, 4, 1")
        e(f"v_lshlrev_b32 v129, 5, v129\nv_lshl_add_u32 v129, v126, 3, v129\nv_lshl_add_u32 v129, v128, 6, v129\nv_add_u32 v129, {sRING}, v129")
        e("v_lshl_add_u32 v218, v127, 9, v129\nv_lshl_add_u32 v219, v127, 8, v129")
        e(f"v_and_b32 v128, 31, {vL}\nv_lshlrev_b32 v128, 4, v128\nv_mul_u32_u24 v223, {CH}, v127\nv_add_u32 v223, v223, v128")
        e(f"s_mul_i32 {T0}, {T2}, {4*CH}\nv_add_u32 v221, {T0}, v223")
        e(f"s_lshl_b32 {T0}, {T3}, 15\ns_lshl_b32 {T1}, {sJ}, 10\ns_add_u32 {T0}, {T0}, {T1}\ns_add_u32 {T0}, {T0}, {sAR}")
        e(f"v_lshl_add_u32 v222, v127, 13, v128\nv_add_u32 v222, {T0}, v222")

    def q_addresses(self):
        e = self.e
        e(f"s_lshl_b32 {T2}, {sW}, 5\ns_sub_u32 {T2}, {T2}, 64\nv_lshrrev_b32 v170, 5, {vL}\nv_lshl_add_u32 v170, v170, 2, {T2}")
        e(f"v_and_b32 v171, 31, {vL}\nv_lshlrev_b32 v171, 4, v171\nv_add_u32 v171, {ATT}, v171")
        for pp in range(8):
            self.qaddr(f"v{196+pp}", "v170", 8 * (pp >> 1) + 2 * (pp & 1), "v171", "v172", "v173")

    def wo_addresses(self, base):
        e = self.e
        for i in range(5):
            e(f"v_add_u32 v160, {64*i}, {vL}\nv_mul_u32_u24 v161, 6554, v160\nv_lshrrev_b32 v161, 16, v161")
            e(f"v_mul_u32_u24 v162, 10, v161\nv_sub_u32 v162, v160, v162\nv_mul_u32_u24 v161, 1152, v161\nv_lshl_add_u32 v{base+i}, v162, 4, v161")

    def tail_addresses(self, wo=True):
        e = self.e
        if wo:
            self.wo_addresses(225)
        e(f"v_and_b32 v160, 15, {vL}\nv_lshrrev_b32 v161, 4, {vL}\ns_lshl_b32 {T0}, {sW}, 4\nv_add_u32 v162, {T0}, v160")
        e(f"v_and_b32 v163, 1, v161\nv_lshrrev_b32 v164, 1, v161")
        e(f"s_mul_i32 {T1}, {sJ}, 73728\ns_add_u32 {T0}, {sAR}, {T1}")
        e(f"v_lshl_add_u32 v165, v162, 4, {T0}\nv_lshl_add_u32 v240, v163, 13, v165\nv_lshl_add_u32 v240, v164, 10, v240\nv_lshl_add_u32 v241, v161, 10, v165")
        e(f"s_lshl_b32 {T0}, {sRB}, 6\nv_add_u32 v165, {T0}, v162\nv_mul_u32_u24 v165, 1152, v165\ns_mul_i32 {T0}, {sJ}, 144\nv_add_u32 v165, {T0}, v165")
        e(f"v_lshl_add_u32 v242, v161, 4, v165\nv_mov_b32 v166, {OOB}\nv_cmp_gt_u32 vcc, 2, v161\ns_nop 1\nv_cndmask_b32 v242, v166, v242, vcc")
        e(f"v_cmp_eq_u32 vcc, 0, v161\ns_nop 1\nv_cndmask_b32 v243, v166, v165, vcc")
        e(f"v_lshl_add_u32 v244, v163, 5, v165\nv_lshl_add_u32 v244, v164, 4, v244")
        e(f"v_lshl_add_u32 v245, v161, 3, v165\nv_cmp_gt_u32 vcc, 2, v161\ns_nop 1\nv_cndmask_b32 v245, v166, v245, vcc")
        e("v_lshlrev_b32 v166, 3, v163\nv_sub_u32 v166, v160, v166\nv_mov_b32 v167, 0x3f80\nv_mov_b32 v168, 0x3f800000")
        for base, src in ((232, "v166"), (236, "v160")):
            for r in range(4):
                e(f"v_cmp_eq_u32 vcc, {2*r}, {src}\nv_cmp_eq_u32 s[86:87], {2*r+1}, {src}\ns_nop 0\nv_cndmask_b32 v{base+r}, 0, v167, vcc")
                e(f"v_cndmask_b32 v{base+r}, v{base+r}, v168, s[86:87]")
        e(f"s_add_u32 {T0}, {sAR}, {OM}\nv_lshl_add_u32 v246, v162, 4, {T0}\nv_lshl_add_u32 v246, v161, 10, v246")
        e(f"s_add_u32 {T0}, {sAR}, {OX}\nv_lshl_add_u32 v247, v162, 4, {T0}\nv_lshl_add_u32 v247, v161, 10, v247")
        e(f"v_bfe_u32 v166, {vL}, 2, 2\nv_and_b32 v167, 3, {vL}\nv_mul_u32_u24 v168, 18, v164\nv_lshl_add_u32 v168, v163, 2, v168\nv_add_u32 v168, v168, v166")
        e("v_mul_u32_u24 v168, 160, v168\nv_lshl_add_u32 v248, v167, 3, v168")
        e("v_mul_u32_u24 v168, 72, v161\nv_lshrrev_b32 v169, 1, v166\nv_mul_u32_u24 v169, 18, v169\nv_and_b32 v166, 1, v166\nv_add3_u32 v168, v168, v169, v166")
        e("v_add_u32 v168, 16, v168\nv_mul_u32_u24 v168, 160, v168\nv_lshl_add_u32 v251, v167, 3, v168")
        e(f"v_mov_b32 v166, {OOB}\nv_cmp_gt_u32 vcc, 32, {vL}\ns_nop 1\nv_cndmask_b32 v241, v166, v241, vcc")

    def first_loads(self, lo=0, hi=15, lo2=None, hi2=None):
        e = self.e
        lo2, hi2 = lo if lo2 is None else lo2, hi if hi2 is None else hi2
        L, J = e.new("PFL"), e.new("PFJ")
        e(f"s_cmp_ge_u32 {sW}, 2\ns_cbranch_scc1 {L}")
        q0 = list(e.vmq)
        for i in range(lo, hi):
            s, pc = divmod(i, 5)
            e(f"s_add_u32 m0, {sRING}, {s*5120 + 960*pc}\ns_nop 0")
            e.vm(f"buffer_load_dwordx4 v216, {SW1}, {sK} offen offset:{64*pc} lds")
            if pc == 4:
                self.wrap_inc(sK, 147456, 36 * 147456)
        e(f"s_branch {J}")
        e.label(L)
        qa = e.vmq
        e.vmq = list(q0)
        for i in range(lo2, hi2):
            e(f"s_add_u32 m0, {sRING}, {1024*((i + 9) % 15)}\ns_nop 0")
            e.vm(f"buffer_load_dwordx4 v224, {SWQ}, {sKQ} offen lds")
            self.q_inc()
        e.label(J)
        if len(qa) < len(e.vmq):
            e.vmq = qa

    def q_inc(self):
        if self.p["QROT"]:
            self.wrap_inc(sKQ, 18432, 36 * 18432)
        else:
            self.e(f"s_add_u32 {sKQ}, {sKQ}, 18432")

    def q_gemm(self):
        e = self.e
        e.vmq = [("q", i) for i in range(15)]
        e.lgq = []
        rot = self.p["QROT"]
        e(f"s_mul_i32 {sBO}, {sROT}, 2080" if rot else f"v_add_u32 v220, {18*2080}, v223")

        def reads(i):
            r = 160 + 12 * (i % 3)
            vb, ob = ("v220", 0) if rot else (("v223", 2080 * i) if i < 18 else ("v220", 2080 * (i - 18)))
            if rot:
                e(f"v_add_u32 v220, {sBO}, v223")
            e.wait(vm=("q", i))
            o = 1024 * ((i + 9) % 15)
            e.lg(f"ds_read_b64_tr_b16 {vr(r,2)}, v218 offset:{o}", ("r", i))
            e.lg(f"ds_read_b64_tr_b16 {vr(r+2,2)}, v218 offset:{o+256}", ("r", i))
            e.lg(f"ds_read_b128 {vr(r+4,4)}, {vb} offset:{ob}", ("r", i))
            e.lg(f"ds_read_b128 {vr(r+8,4)}, {vb} offset:{ob+512}", ("r", i))
            if rot:
                self.wrap_inc(sBO, 2080, 36 * 2080)
        reads(0)
        reads(1)
        for i in range(36):
            r = 160 + 12 * (i % 3)
            sl = (i + 9) % 15
            e.wait(lg=("r", i))
            w1 = i >= 21 and sl % 5 < 4
            if i < 21 or w1:
                e(f"s_add_u32 m0, {sRING}, {1024*sl - (64*(sl % 5) if w1 else 0)}")
            e(f"v_mfma_f32_32x32x16_bf16 v[128:143], {vr(r,4)}, {vr(r+4,4)}, {'0' if i == 0 else 'v[128:143]'}")
            if i < 21:
                e.vm(f"buffer_load_dwordx4 v224, {SWQ}, {sKQ} offen lds", ("q", i + 15))
                self.q_inc()
            elif w1:
                e.vm(f"buffer_load_dwordx4 v216, {SW1}, {sK} offen offset:{64*(sl % 5)} lds")
                if sl % 5 == 3:
                    self.wrap_inc(sK, 147456, 36 * 147456)
            e(f"v_mfma_f32_32x32x16_bf16 v[144:159], {vr(r,4)}, {vr(r+8,4)}, {'0' if i == 0 else 'v[144:159]'}")
            if i + 2 < 36:
                reads(i + 2)
            if self.p["STAMP"] > 1 and i in (0, 6, 12, 18, 24, 30, 35):
                self.stamp(32 + (i + 1) // 6)

    def kv_loads(self):
        e = self.e
        e(f"s_cmp_ge_u32 {sJ}, 3\ns_cselect_b32 {T0}, 3, 0\ns_sub_u32 {T0}, {sJ}, {T0}\ns_cmp_ge_u32 {T0}, 3\ns_cselect_b32 {T0}, 0, {T0}")
        e(f"s_lshl_b32 {T1}, {T0}, 4\ns_min_u32 {T1}, {T1}, 20\nv_mul_u32_u24 v126, 36, {vL}\nv_add_u32 v126, {T1}, v126")
        e(f"s_mul_i32 {T2}, {sA}, 2304\ns_lshl_b32 {T3}, {sA}, 10\ns_add_u32 {T3}, {T3}, {KVW}")
        for i in range(2):
            e(f"s_add_u32 m0, {T3}, {4096*i}\ns_add_u32 {T0}, {T2}, {9216*i}")
            e.vm(f"buffer_load_dwordx4 v126, {SKV}, {T0} offen lds", "kvw")
        e(f"s_mov_b32 m0, {KVW + 8192}\ns_mov_b32 {T0}, {8*2304}")
        e.vm(f"buffer_load_dwordx4 v126, {SKV}, {T0} offen lds", "kvw")

    def pro_att(self):
        e, p = self.e, self.p
        if not p["KVEARLY"]:
            self.kv_loads()
        e(f"v_mul_u32_u24 v125, 1152, {vL}\ns_mul_i32 {T0}, {sJ}, 144\ns_add_u32 {T0}, {T0}, 128\nv_add_u32 v125, {T0}, v125")
        e(f"s_mul_i32 {T2}, {sA}, 73728\ns_lshl_b32 {T3}, {sA}, 10\ns_add_u32 {T3}, {T3}, {QE}")
        for i in range(2):
            e(f"s_add_u32 m0, {T3}, {4096*i}\ns_add_u32 {T0}, {T2}, {4*73728*i}")
            e.vm(f"buffer_load_dwordx4 v125, {SWQ}, {T0} offen lds", "ext")
        e(f"s_cmp_lg_u32 {sA}, 1\ns_cbranch_scc1 L_PA_2\ns_mov_b32 m0, {QE + 8192}\ns_mov_b32 {T0}, {8*73728}")
        e(f"buffer_load_dwordx4 v125, {SWQ}, {T0} offen lds")
        e.label("L_PA_2")
        nsl = p['NSL']
        if p["TLBW"] and p["TLBU"] == -1:
            self.tlb_touch()
        if p["WARMQ"]:
            rows = 18 * nsl
            e(f"s_lshl_b32 {T0}, {sA}, 6\nv_add_u32 v126, {T0}, {vL}\nv_lshrrev_b32 v127, 2, v126\nv_and_b32 v128, 3, v126\nv_mul_u32_u24 v127, 1152, v127")
            e(f"v_cmp_gt_u32 vcc, {4*rows}, v126\nv_mul_u32_u24 v128, 52, v128\nv_add_u32 v127, v127, v128\nv_mov_b32 v128, {OOB}\nv_cndmask_b32 v127, v128, v127, vcc")
            e(f"s_and_b32 {T1}, {sRB}, {32//nsl - 1}\ns_mul_i32 {T1}, {T1}, {rows*1152}\ns_mul_i32 {T0}, {sJ}, 144\ns_add_u32 {T1}, {T1}, {T0}")
            e.vm(f"buffer_load_dword v252, v127, {SWQ}, {T1} offen")
            e.vm(f"buffer_load_dword v253, v127, {SWO}, {T1} offen")

    def tlb_touch(self):
        e, p = self.e, self.p
        e(f"s_mov_b64 exec, 7\ns_cmp_eq_u32 {sA}, 1\ns_cbranch_scc1 L_TLB1\ns_cmp_eq_u32 {sA}, 2\ns_cbranch_scc1 L_TLB2\ns_cmp_eq_u32 {sA}, 3\ns_cbranch_scc1 L_TLB3")
        if p["TLBW"] == 1:
            e(f"v_mul_u32_u24 v126, {ASZ - 64}, {vL}\nv_cmp_eq_u32 vcc, 2, {vL}\nv_add_u32 v126, {sAR}, v126\ns_nop 0\nv_cndmask_b32 v126, v126, 0, vcc")
        else:
            e(f"s_mov_b64 exec, 0xfff\nv_lshlrev_b32 v126, 21, {vL}\nv_add_u32 v126, 0x30000, v126")
        e(f"buffer_load_dword v253, v126, {SWS}, 0 offen\ns_branch L_TLBD")
        e.label("L_TLB1")
        e(f"s_mul_i32 {T1}, {sJ}, 663552\nv_mul_u32_u24 v126, 331000, {vL}\nbuffer_load_dword v253, v126, {SW2}, {T1} offen\ns_branch L_TLBD")
        e.label("L_TLB2")
        e(f"s_mul_i32 {T0}, {sRB}, 73728\nv_mul_u32_u24 v126, 36000, {vL}\nbuffer_load_dword v253, v126, {SOUT}, {T0} offen\ns_branch L_TLBD")
        e.label("L_TLB3")
        e(f"v_mov_b32 v126, 0")
        e.vm(f"buffer_load_dword v253, v126, {SDBG if p['TLBW'] == 1 else SWO}, 0 offen offset:128")
        e.label("L_TLBD")
        e("s_mov_b64 exec, -1")

    def ln_stats(self, ffn=False):
        e = self.e
        e("v_mov_b32 v112, 0\nv_mov_b32 v113, 0\nv_mov_b32 v114, 0\nv_mov_b32 v115, 0\ns_mov_b32 s85, 0x3f803f80\ns_mov_b32 s86, 0xffff0000")
        for u in range(9):
            e.wait(vm=("x", u))
            if u == 0:
                self.stamp(1)
                if ffn and self.p["W1LATE"] == 1:
                    self.first_loads()
            if ffn and self.p["W1LATE"] == 2 and u in (1, 3, 5, 7, 8):
                n = (1, 3, 5, 7, 8).index(u)
                self.first_loads(3 * n, 3 * n + 3)
            if not ffn and self.p["TLBW"] and u == self.p["TLBU"]:
                self.tlb_touch()
            if not ffn and self.p["KVEARLY"] and u == self.p["KVU"]:
                self.kv_loads()
            if not ffn and u == self.p["EXTU"] and not self.p["KVEARLY"]:
                self.pro_att()
            if u == 8:
                self.stamp(30)
            if ffn and self.p["W1LATE"] == 3 and u == 8:
                self.first_loads()
            if ffn and self.p["W1LATE"] == 4 and u == self.p.get("PREU", 8) and self.p["PRE"]:
                self.first_loads(0, self.p["PRE"], 0, self.p["PREL"])
            for k in range(4):
                r = 4 * u + k
                e(f"v_dot2_f32_bf16 v{112+(k&1)}, v{r}, s85, v{112+(k&1)}")
                e(f"v_lshlrev_b32 v{40+2*r}, 16, v{r}")
                e(f"v_dot2_f32_bf16 v{114+(k&1)}, v{r}, v{r}, v{114+(k&1)}")
                e(f"v_and_b32 v{41+2*r}, s86, v{r}")

    def layernorm(self):
        e = self.e
        self.stamp(14)
        e("s_nop 2\nv_add_f32 v112, v112, v113\nv_add_f32 v114, v114, v115\ns_nop 1")
        for m in ("quad_perm:[1,0,3,2]", "quad_perm:[2,3,0,1]", "row_half_mirror"):
            e(f"v_add_f32_dpp v112, v112, v112 {m} row_mask:0xf bank_mask:0xf")
            e(f"v_add_f32_dpp v114, v114, v114 {m} row_mask:0xf bank_mask:0xf\ns_nop 1")
        inv = f"{f2u(1.0/576):#x}"
        e(f"v_mul_f32 v112, {inv}, v112\nv_mul_f32 v114, {inv}, v114\nv_fma_f32 v114, -v112, v112, v114\nv_max_f32 v114, 0, v114")
        e(f"v_add_f32 v114, {f2u(1e-5):#x}, v114\nv_rsq_f32 v114, v114\ns_nop 0\nv_mul_f32 v114, {sNL2E}, v114\nv_mul_f32 v112, v112, v114")
        for u in range(9):
            for k in range(0, 8, 2 if self.p["PKLN"] else 1):
                r = 40 + 8 * u + k
                if self.p["PKLN"]:
                    e(f"v_pk_fma_f32 v[{r}:{r+1}], v[{r}:{r+1}], v[114:115], v[112:113] op_sel_hi:[1,0,0] neg_lo:[0,0,1] neg_hi:[0,0,1]")
                else:
                    e(f"v_fma_f32 v{r}, v{r}, v114, -v112")
            for k in range(4):
                e(f"v_cvt_pk_bf16_f32 v{4*u+k}, v{40+8*u+2*k}, v{41+8*u+2*k}")
            if u < 8:
                e(f"ds_write_b128 v123, v[{4*u}:{4*u+3}] offset:{8*CH*u}")
            else:
                e(f"ds_write_b128 v124, v[{4*u}:{4*u+3}] offset:{8*CH*7}")
        self.stamp(15)
        e(f"s_cmp_ge_u32 {sW}, 4\ns_cbranch_scc1 L_ATT")
        if self.p["RESTB"]:
            self.first_loads(self.p["PRE"], self.p["RESTB"], self.p["PREL"], self.p["RESTB"])
        if self.p["TADDR"] in (1, 3):
            self.q_addresses()
        if self.p["TADDR"] == 1:
            self.tail_addresses()
        e("s_waitcnt lgkmcnt(0)\ns_barrier")

    def gemm(self, T, which, Tn):
        e = self.e
        vT = "v218" if which == 1 else "v219"
        sec = 256 if which == 1 else 512
        vD, SW, kstride = ("v216", SW1, 147456) if which == 1 else ("v217", SW2, 18432)

        def areg(buf, pc):
            return 160 + 20 * buf + 4 * pc

        def breg(buf, rt):
            return 200 + 8 * buf + 4 * rt

        def reads(s, pc):
            if pc < 2:
                e.lg(f"ds_read_b128 {vr(breg(s&1,pc),4)}, v220 offset:{512*pc}", ("B", s, pc))
            o = (s % 3) * 5120 + 1024 * pc
            e.lg(f"ds_read_b64_tr_b16 {vr(areg(s&1,pc),2)}, {vT} offset:{o}", ("A", s, pc))
            e.lg(f"ds_read_b64_tr_b16 {vr(areg(s&1,pc)+2,2)}, {vT} offset:{o+sec}", ("A", s, pc))

        def dma_list(s):
            sn = s + 3
            if sn < 36:
                return [(vD, SW, pc, ("d", sn, pc)) for pc in range(T)]
            if which == 1:
                return [("v217", SW2, pc, ("d2", sn - 36, pc)) for pc in range(Tn)]
            return []

        def step(s, first=False):
            dl = dma_list(s)
            if which == 1 and s == 33:
                e(f"s_mul_i32 {sK}, {sROT}, 18432")
            for gi in range(2 * T):
                pc, rt = gi >> 1, gi & 1
                mine = []
                if rt == 0:
                    mine = [d for d in dl if d[2] == pc or (pc == T - 1 and d[2] > pc)]
                e.wait(lg=[("A", s, pc), ("B", s, 0)] if gi == 0 else ([("B", s, 1)] if gi == 1 else [("A", s, pc)]))
                if mine:
                    e(f"s_add_u32 m0, {sRING}, {(s % 3)*5120 + 960*mine[0][2]}")
                acc = vr(16 * gi, 16)
                e(f"v_mfma_f32_32x32x16_bf16 {acc}, {vr(areg(s&1,pc),4)}, {vr(breg(s&1,rt),4)}, {'0' if first else acc}")
                for n, d in enumerate(mine):
                    if n:
                        e(f"s_add_u32 m0, {sRING}, {(s % 3)*5120 + 960*d[2]}\ns_nop 0")
                    e.vm(f"buffer_load_dwordx4 {d[0]}, {d[1]}, {sK} offen offset:{64*d[2]} lds", d[3])
                if rt == 1 and s + 1 < 36:
                    if pc == 0:
                        e(f"v_add_u32 v220, {sBO}, v223")
                    e.wait(vm=("d", s + 1, pc))
                    reads(s + 1, pc)
                if gi == 2 * T - 3 and s + 2 < 36:
                    self.wrap_inc(sBO, 2080, 36 * 2080)
            if s <= 32:
                self.wrap_inc(sK, kstride, 36 * kstride)
            elif which == 1:
                self.wrap_inc(sK, 18432, 36 * 18432)

        e.vmq = [("d", s, pc) for s in range(3) for pc in range(T)]
        e(f"s_mul_i32 {sBO}, {sROT}, 2080\nv_add_u32 v220, {sBO}, v223")
        self.wrap_inc(sBO, 2080, 36 * 2080)
        e.wait(vm=("d", 0, T - 1))
        e.lgq = []
        for pc in range(T):
            reads(0, pc)
        main = e.lines
        texts = []
        for s in range(36):
            e.lines = []
            step(s, first=(s == 0))
            texts.append(e.lines)
        e.lines = main
        for s in range(1, 27):
            assert texts[s] == texts[s + 6], (s, texts[s], texts[s + 6])
        tag = f"G{which}T{T}"
        e.lines += texts[0]
        e(f"s_mov_b32 {sCNT}, 0\ns_branch L_{tag}_1")
        e(".p2align 3")
        e.label(f"L_{tag}_3")
        if self.p["STAMP"] > 1:
            e(f"s_memrealtime s[88:89]\ns_memtime s[90:91]\ns_add_u32 m0, {sCNT}, {8*which+8}\ns_waitcnt lgkmcnt(0)\nv_writelane_b32 v255, s88, m0\nv_writelane_b32 v254, s90, m0")
        for s in (3, 4, 5, 6):
            e.lines += texts[s]
        e.label(f"L_{tag}_1")
        e.lines += texts[7] + texts[8]
        e(f"s_add_u32 {sCNT}, {sCNT}, 1\ns_cmp_lt_u32 {sCNT}, 6\ns_cbranch_scc1 L_{tag}_3")
        for s in (33, 34, 35):
            e.lines += texts[s]

    def silu(self, T):
        e = self.e
        for g in range(4 * T):
            b = 8 * g
            t = 160 + 8 * (g & 1)
            if self.p.get("X_NOSILU"):
                for k in range(4):
                    e(f"v_cvt_pk_bf16_f32 v{b+k}, v{b+2*k}, v{b+2*k+1}")
                continue
            for k in range(8):
                e(f"v_exp_f32 v{t+k}, v{b+k}")
            pk = self.p["PKSILU"]
            for k in range(0, 8, 2 if pk else 1):
                e(f"v_pk_add_f32 v[{t+k}:{t+k+1}], v[{t+k}:{t+k+1}], 1.0 op_sel_hi:[1,0]" if pk else f"v_add_f32 v{t+k}, 1.0, v{t+k}")
            for k in range(8):
                e(f"v_rcp_f32 v{t+k}, v{t+k}")
            for k in range(0, 8, 2 if pk else 1):
                e(f"v_pk_mul_f32 v[{t+k}:{t+k+1}], v[{b+k}:{b+k+1}], v[{t+k}:{t+k+1}]" if pk else f"v_mul_f32 v{t+k}, v{b+k}, v{t+k}")
            for k in range(4):
                e(f"v_cvt_pk_bf16_f32 v{b+k}, v{t+2*k}, v{t+2*k+1}")

    def q_out(self):
        e = self.e
        c = f"{f2u(1.0 / (math.log2(math.e) * math.sqrt(18.0))):#x}"
        if self.p["TADDR"] in (2, 4):
            self.q_addresses()
        e(f"s_mov_b32 {T3}, {c}")
        self.lds_wait(C_A, 4, "v252", "v253")
        e.nop(5)
        e(f"v_mov_b32 v174, {T3}")
        for r in range(128, 160, 2):
            e(f"v_pk_mul_f32 v[{r}:{r+1}], v[{r}:{r+1}], v[174:175] op_sel_hi:[1,0]")
        for k in range(16):
            e(f"v_cvt_pk_bf16_f32 v{128+k}, v{128+2*k}, v{129+2*k}")
        for rt in range(2):
            for pp in range(8):
                e.lg(f"ds_write_b32 v{196+pp}, v{128+8*rt+pp} offset:{1536*rt}")
        e.wait_all(lg=True)
        self.arrive(C_B, "v252", "v253")

    def qaddr(self, dst, vc, cadd, vbase, t0, t1):
        e = self.e
        e(f"v_add_u32 {t0}, {cadd}, {vc}\nv_mul_u32_u24 {t1}, 3641, {t0}\nv_lshrrev_b32 {t1}, 16, {t1}")
        e(f"v_mul_u32_u24 {dst}, 18, {t1}\nv_sub_u32 {t0}, {t0}, {dst}\nv_mul_u32_u24 {dst}, 3072, {t1}\nv_lshrrev_b32 {t1}, 3, {t0}\nv_lshl_add_u32 {dst}, {t1}, 9, {dst}")
        e(f"v_and_b32 {t0}, 7, {t0}\nv_lshl_add_u32 {dst}, {t0}, 1, {dst}\nv_add_u32 {dst}, {vbase}, {dst}")

    def ffn_path(self, T1_, T2_):
        e, p = self.e, self.p
        if T1_ == 4:
            self.q_gemm()
            self.q_out()
            self.stamp(13)
        self.gemm(T1_, 1, T2_)
        self.arrive(C_XN, "v252", "v253")
        self.stamp(3)
        if p["WARMO"]:
            nsl = p["NSL"]
            rows = 18 * nsl
            e(f"s_lshl_b32 {T0}, {sW}, 6\nv_add_u32 v176, {T0}, {vL}\nv_lshrrev_b32 v177, 2, v176\nv_and_b32 v178, 3, v176\nv_mul_u32_u24 v177, 1152, v177")
            e(f"v_cmp_gt_u32 vcc, {4*rows}, v176\nv_mul_u32_u24 v178, 52, v178\nv_add_u32 v177, v177, v178\nv_mov_b32 v178, {OOB}\nv_cndmask_b32 v177, v178, v177, vcc")
            e(f"s_and_b32 {T1}, {sRB}, {32//nsl - 1}\ns_mul_i32 {T1}, {T1}, {rows*1152}\ns_mul_i32 {T0}, {sJ}, 144\ns_add_u32 {T1}, {T1}, {T0}")
            e(f"buffer_load_dword v230, v177, {SWO}, {T1} offen")
        e.nop(2)
        self.silu(T1_)
        self.stamp(4)
        if p["TADDR"] == 4:
            self.tail_addresses()
        self.lds_wait(C_XN, 8, "v252", "v253")
        for u in range(2 * T1_):
            pc, rt = u >> 1, u & 1
            for hf in range(2):
                e.lg(f"ds_write_b128 v221, {vr(16*u+8*hf,4)} offset:{(4*pc+2*hf)*CH + 512*rt}")
        e.wait_all(lg=True)
        self.arrive(C_H, "v252", "v253")
        self.lds_wait(C_H, 4, "v252", "v253")
        self.stamp(5)
        self.gemm(T2_, 2, 0)
        self.arrive(C_G2, "v252", "v253")
        if p["PRIO_T"] != p["PRIO_F"]:
            e(f"s_setprio {p['PRIO_T']}")
        self.stamp(6)
        if p["SENT"] and T2_ == 4:
            e(f"s_lshl_b32 {T0}, {sJ}, 13\ns_lshl_b32 {T1}, {sW}, 12\ns_add_u32 {T0}, {T0}, {T1}\ns_add_u32 {T0}, {T0}, {sAR}\ns_add_u32 {T0}, {T0}, {OM}")
            e(f"s_lshl_b32 {T1}, {sJ}, 10\ns_add_u32 {T1}, {T1}, {sAR}\ns_add_u32 {T1}, {T1}, {OX}\nv_lshlrev_b32 v168, 4, {vL}")
            e("v_mov_b32 v172, -1\nv_mov_b32 v173, -1\nv_mov_b32 v174, -1\nv_mov_b32 v175, -1")
            for q in range(4):
                e(f"buffer_store_dwordx4 v[172:175], v168, {SWS}, {T0} offen offset:{1024*q} sc1")
            e(f"buffer_store_dwordx4 v[172:175], v168, {SWS}, {T1} offen sc1")
        e.nop(2)
        for u in range(2 * T2_):
            pc, rt = u >> 1, u & 1
            b = 16 * u
            for k in range(8):
                e(f"v_cvt_pk_bf16_f32 v{b+k}, v{b+2*k}, v{b+2*k+1}")
            e(f"s_mov_b32 {T0}, {(4*pc)*8192}\ns_mov_b32 {T1}, {(4*pc+2)*8192}")
            e(f"v_permlane32_swap_b32 v{b}, v{b+2}\nv_permlane32_swap_b32 v{b+1}, v{b+3}")
            e(f"v_permlane32_swap_b32 v{b+4}, v{b+6}\nv_permlane32_swap_b32 v{b+5}, v{b+7}")
            e.vm(f"buffer_store_dwordx4 {vr(b,4)}, v222, {SWS}, {T0} offen offset:{512*rt} sc1", "pst")
            e.vm(f"buffer_store_dwordx4 {vr(b+4,4)}, v222, {SWS}, {T1} offen offset:{512*rt} sc1", "pst")
            if p["PACE"]:
                e(f"s_waitcnt vmcnt({p['PACE']})")

    def ffn(self):
        e, p = self.e, self.p
        if p["W1LATE"] == 4 and p["RESTB"] < 15:
            self.first_loads(p["RESTB"] or p["PRE"], 15, p["RESTB"] or p["PREL"], 15)
        self.stamp(2)
        if p["PRIO_F"]:
            e(f"s_setprio {p['PRIO_F']}")
        e(f"s_cmp_ge_u32 {sW}, 2\ns_cbranch_scc1 L_FFN_L")
        self.ffn_path(5, 4)
        e("s_branch L_FFN_J")
        e.label("L_FFN_L")
        self.ffn_path(4, 5)
        e.label("L_FFN_J")
        e("s_setprio 0")
        self.stamp(7)
        self.ffn_tail()

    def partials_dyn(self):
        e, p = self.e, self.p
        for r in range(20):
            e(f"v_mov_b32 v{r}, 0")
        e(f"s_add_u32 {T3}, {sAR}, {FLAGS + F_P}\ns_mov_b32 {T4}, 0x55")
        oo = p["OORD"]
        if oo == 1:
            e(f"s_or_b32 {sNT}, {sJ}, 1\ns_add_u32 {sNT}, {sNT}, 1\ns_mov_b32 {sNL}, 0")
        e(f"v_and_b32 v231, 7, {vL}\nv_lshlrev_b32 v231, 3, v231\ns_mov_b32 {sSPIN}, 0")
        e.label("L_PD_POLL")
        e(f"buffer_load_dwordx2 v[252:253], v231, {SWS}, {T3} offen sc1\ns_waitcnt vmcnt(0)")
        e(f"v_xor_b32 v252, {sN0}, v252\nv_xor_b32 v253, {sN1}, v253\nv_or_b32 v252, v252, v253\nv_cmp_eq_u32 vcc, 0, v252\ns_add_u32 {sSPIN}, {sSPIN}, 1\ns_nop 1")
        e(f"s_lshr_b32 {T2}, vcc_lo, 1\ns_and_b32 {T2}, {T2}, vcc_lo")
        if oo:
            e(f"s_lshr_b32 {T2}, {T2}, {sNT}")
        e(f"s_cmp_ge_u32 {sSPIN}, {p['SPIN']}\ns_cselect_b32 {T2}, -1, {T2}\ns_and_b32 {T2}, {T2}, {T4}\ns_cbranch_scc1 L_PD_GO\ns_sleep 4\ns_branch L_PD_POLL")
        e.label("L_PD_GO")

        def ploads(b):
            e(f"s_ff1_i32_b32 {T1}, {T2}\ns_bitset0_b32 {T2}, {T1}\ns_bitset0_b32 {T4}, {T1}")
            if oo == 1:
                e(f"s_add_u32 {T1}, {T1}, {sNT}\ns_and_b32 {T1}, {T1}, 7\ns_lshl_b32 {sNL}, {sNL}, 3\ns_or_b32 {sNL}, {sNL}, {T1}")
            if oo == 2:
                e(f"s_add_u32 {T0}, {T1}, {sNT}\ns_and_b32 {T0}, {T0}, 7\ns_lshl_b32 {sCNT}, {sNL}, 3\ns_or_b32 {sCNT}, {sCNT}, {T0}")
                e(f"s_bitcmp1_b32 {sREC}, {T1}\ns_cselect_b32 {sNL}, {sNL}, {sCNT}\ns_mov_b32 {T1}, {T0}")
            e(f"s_lshl_b32 {T1}, {T1}, 10")
            for a in range(5):
                e(f"s_add_u32 {T0}, {T1}, {a*16384}")
                e.vm(f"buffer_load_dwordx4 {vr(20+20*b+4*a,4)}, {'v240' if a < 4 else 'v241'}, {SWS}, {T0} offen sc1", ("pl", b, a))

        def padd(b):
            for a in range(5):
                e.wait(vm=("pl", b, a))
                e(f"v_mfma_f32_16x16x32_bf16 {vr(4*a,4)}, {vr(232 if a < 4 else 236,4)}, {vr(20+20*b+4*a,4)}, {vr(4*a,4)}")
        e.vmq = []
        ploads(0)
        if p["DYNP"] == 2:
            e(f"s_cmp_eq_u32 {T2}, 0\ns_cbranch_scc1 L_PD_ONE")
            q0 = list(e.vmq)
            ploads(1)
            padd(0)
            padd(1)
            e("s_branch L_PD_J")
            e.label("L_PD_ONE")
            e.vmq = q0
        padd(0)
        e.label("L_PD_J")
        e(f"s_cmp_lg_u32 {T2}, 0\ns_cbranch_scc1 L_PD_GO\ns_cmp_lg_u32 {T4}, 0\ns_cbranch_scc1 L_PD_POLL")
        self.stamp(8)

    def ffn_tail(self):
        e, p = self.e, self.p
        e.vmq = ["pst"]
        if p["TADDR"] in (2, 3):
            self.tail_addresses()
        ws = p["WOS"]
        e(f"s_mul_i32 {T2}, {sW}, {ws}\ns_cmp_eq_u32 {sW}, 3\ns_cselect_b32 {T2}, {9 + ws}, {T2}")
        e(f"s_mul_i32 {T3}, {T2}, 5120\ns_mul_i32 {T2}, {T2}, 36864\ns_mul_i32 {T4}, {sJ}, 144\ns_add_u32 {T2}, {T2}, {T4}")
        e("s_waitcnt vmcnt(0)")
        self.arrive(C_P, "v252", "v253", rtn=T4)
        self.get_nonce("v231", 252)
        e(f"s_cmp_lg_u32 {T4}, 3\ns_cbranch_scc1 L_NOPF")
        self.flag_set(F_P, sJ, "v231", 252)
        e.label("L_NOPF")
        if p["OORD"] == 2:
            e(f"s_or_b32 {sNT}, {sJ}, 1\ns_add_u32 {sNT}, {sNT}, 1\ns_mov_b32 {sNL}, 0\ns_add_u32 {T0}, {sAR}, {FLAGS + F_P}")
            e(f"v_and_b32 v231, 7, {vL}\nv_lshlrev_b32 v231, 3, v231\nbuffer_load_dwordx2 v[252:253], v231, {SWS}, {T0} offen sc1\ns_waitcnt vmcnt(0)")
            e(f"v_xor_b32 v252, {sN0}, v252\nv_xor_b32 v253, {sN1}, v253\nv_or_b32 v252, v252, v253\nv_cmp_eq_u32 vcc, 0, v252\ns_nop 1")
            e(f"s_lshr_b32 {T4}, vcc_lo, 1\ns_and_b32 {T4}, {T4}, vcc_lo\ns_lshr_b32 {T4}, {T4}, {sNT}\ns_and_b32 {T4}, {T4}, 0x15\ns_or_b32 {T4}, {T4}, 0x40")
            e(f"s_mov_b32 {sREC}, {T4}\ns_cmp_eq_u32 {T4}, 0x55\ns_cselect_b32 {sEARLY}, {p['OEARLY']}, 0")
            e.label("L_ORD")
            e(f"s_ff1_i32_b32 {T1}, {T4}\ns_bitset0_b32 {T4}, {T1}\ns_add_u32 {T1}, {T1}, {sNT}\ns_and_b32 {T1}, {T1}, 7\ns_lshl_b32 {sNL}, {sNL}, 3\ns_or_b32 {sNL}, {sNL}, {T1}\ns_cmp_lg_u32 {T4}, 0\ns_cbranch_scc1 L_ORD")
        self.lds_wait(C_G2, 4, "v252", "v253")
        e(f"s_cmp_ge_u32 {sW}, 2\ns_cselect_b32 {sCNT}, {9 - ws}, {ws}")
        if ws == 9:
            e("s_cbranch_scc1 L_WO_D")
        e.label("L_WO_L")
        for i in range(5):
            e(f"s_add_u32 m0, {T3}, {i*1024}\ns_nop 0")
            e(f"buffer_load_dwordx4 v{225+i}, {SWO}, {T2} offen lds")
        e(f"s_add_u32 {T3}, {T3}, 5120\ns_add_u32 {T2}, {T2}, 36864\ns_waitcnt vmcnt({p['PACE3']})\ns_sub_u32 {sCNT}, {sCNT}, 1\ns_cmp_lg_u32 {sCNT}, 0\ns_cbranch_scc1 L_WO_L")
        e.label("L_WO_D")
        for a in range(5):
            e.vm(f"buffer_load_dwordx4 {vr(60+4*a,4)}, {'v242' if a < 4 else 'v243'}, {SX}, 0 offen offset:{32*a}", ("xr", a))
        e.wait_all(vm=True)
        self.arrive(C_WO, "v252", "v253")
        sG = ("s74", "s75", "s76", "s97")
        vG = ("v225", "v226", "v227", "v228")

        def group_addr():
            for b in range(4):
                if p["OORD"]:
                    e(f"s_bfe_u32 {T0}, {sNL}, {(2 << 16) | (3*(3-b) + 1)}")
                else:
                    e(f"s_lshr_b32 {T0}, {sJ}, 1\ns_add_u32 {T0}, {T0}, {b+p['OROT']}\ns_and_b32 {T0}, {T0}, 3")
                e(f"s_lshl_b32 {sG[b]}, {T0}, 14\ns_mul_i32 {T0}, {T0}, 23040\nv_add_u32 {vG[b]}, {T0}, v248")

        det = p["OORD"] == 2
        NA, AB, OB = (13, 172, 100) if det else (33, 92, 20)

        def aop(i):
            kk, t = divmod(i, 5)
            r = AB + 4 * (i % NA)
            if kk < 16:
                va, o, sec = vG[kk >> 2], (kk & 3) * 5760 + 32 * t, 1280
            else:
                va, o, sec = "v251", (kk - 16) * 46080 + 32 * t, 5760
            e.lg(f"ds_read_b64_tr_b16 {vr(r,2)}, {va} offset:{o}", ("a", i))
            e.lg(f"ds_read_b64_tr_b16 {vr(r+2,2)}, {va} offset:{o+sec}", ("a", i))

        def pre_reads():
            group_addr()
            self.lds_wait(C_WO, 4, "v252", "v253")
            for i in range(NA):
                aop(i)
        prea = p["PREA"] and not p["OORD"]
        if prea:
            pre_reads()
        self.partials_dyn()
        e(f"s_mov_b32 {T0}, {f2u(-math.log(2.0)):#x}")
        e.nop(6)
        for r in range(20):
            e(f"v_mul_f32 v{r}, {T0}, v{r}")
        for a in range(5):
            e(f"v_mfma_f32_16x16x32_bf16 {vr(4*a,4)}, {vr(232 if a < 4 else 236,4)}, {vr(60+4*a,4)}, {vr(4*a,4)}")
        if not prea:
            pre_reads()
        e.wait_all(lg=True)
        self.stamp(9)

        def oload(kk, track=True):
            if kk < 16:
                e(f"s_add_u32 {T0}, {sG[kk >> 2]}, {(kk & 3)*4096}")
            else:
                e(f"s_mov_b32 {T0}, {(kk - 16)*4096}")
            va = ("v246" if kk < 16 else "v247") if not det or kk < 12 else ("v229" if kk < 16 else "v230")
            ins = f"buffer_load_dwordx4 {vr(OB+4*kk,4)}, {va}, {SWS}, {T0} offen sc1"
            e.vm(ins, ("o", kk)) if track else e(ins)

        def ocheck(kk):
            b = OB + 4 * kk
            return [f"v_max3_u32 v252, v{b}, v{b+1}, v{b+2}", f"v_max_u32 v252, v252, v{b+3}", "v_cmp_eq_u32 vcc, -1, v252"]
        om = p["OMODE"]
        if det:
            e(f"s_cmp_lg_u32 {sEARLY}, 0\ns_cbranch_scc1 L_OE")
            self.lds_wait(C_O, 4, "v252", "v253", sleep=2)
            e("v_mov_b32 v229, v246\nv_mov_b32 v230, v247\ns_branch L_OE_J")
            e.label("L_OE")
            self.lds_wait(C_L, 4, "v252", "v253", sleep=2)
            e(f"v_mov_b32 v229, {OOB}\nv_mov_b32 v230, {OOB}")
            e.label("L_OE_J")
        elif om in (0, 4):
            self.lds_wait(C_O, 4, "v252", "v253", sleep=2)
            self.flag_wait(F_O, 32, "v241", 252)
        else:
            e(f"v_bfe_u32 v241, {vL}, 2, 3\nv_lshlrev_b32 v241, 10, v241\nv_and_b32 v252, 3, {vL}\nv_lshl_add_u32 v241, v252, 2, v241\ns_add_u32 {T2}, {sAR}, {OX + 1008}")
            self.lds_wait(C_O, 4, "v252", "v253", sleep=2)
            if om == 1:
                e(f"s_mov_b32 {sSPIN}, 0")
                e.label("L_HINT")
                e(f"buffer_load_dword v252, v241, {SWS}, {T2} offen sc1\ns_waitcnt vmcnt(0)\nv_cmp_eq_u32 vcc, -1, v252\ns_add_u32 {sSPIN}, {sSPIN}, 1\ns_nop 3")
                e(f"s_cbranch_vccz L_HINT_D\ns_cmp_lt_u32 {sSPIN}, {p['SPIN']}\ns_cbranch_scc1 L_HINT")
                e.label("L_HINT_D")
        e(f"s_mov_b32 {sSPIN}, 0")
        self.stamp(10)
        e.vmq = []
        for kk in range(18):
            oload(kk)
        e.wait(vm=("o", 0))
        e("\n".join(ocheck(0)) + "\ns_nop 4")
        for i in range(90):
            kk, t = divmod(i, 5)
            if t == 0:
                if det and kk == 12:
                    e(f"s_cmp_lg_u32 {sEARLY}, 0\ns_cbranch_scc1 L_OE12")
                e(f"s_cbranch_vccnz L_OS_{kk}")
                e.label(f"L_OR_{kk}")
                if p["STAMP"] > 1 and kk in (0, 4, 8, 12, 16):
                    e(f"s_memrealtime s[88:89]\ns_waitcnt lgkmcnt(0)\nv_writelane_b32 v255, s88, {40 + kk // 4}\nv_writelane_b32 v254, {sSPIN}, {40 + kk // 4}")
                    e.lgq = []
            e.wait(vm=("o", kk), lg=("a", i))
            acc = vr(20 + 20 * (kk >> 2) + 4 * t, 4) if det and kk < 16 else vr(4 * t, 4)
            e(f"v_mfma_f32_16x16x32_bf16 {acc}, {vr(AB+4*(i % NA),4)}, {vr(OB+4*kk,4)}, {'0' if det and kk < 16 and kk % 4 == 0 else acc}")
            if i >= 1 and i - 1 + NA < 90:
                aop(i - 1 + NA)
            if t < 3 and kk < 17:
                e.wait(vm=("o", kk + 1))
                e(ocheck(kk + 1)[t])
        main, e.lines = e.lines, []
        if det:
            e.label("L_OE12")
            lq = list(e.lgq)
            self.lds_wait(C_O, 4, "v252", "v253")
            e.lgq = lq
            e(f"s_mov_b32 {sSPIN}, 0\nv_mov_b32 v229, v246\nv_mov_b32 v230, v247\ns_branch L_OS_12")
        for kk in range(18):
            e.label(f"L_OS_{kk}")
            allk = om == 2
            for k2 in range(kk, (kk | 3) + 1 if kk < 16 and not allk else 18):
                oload(k2, track=False)
            e(f"s_add_u32 {sSPIN}, {sSPIN}, 1\ns_waitcnt vmcnt({17 - kk if allk else 0})")
            e("\n".join(ocheck(kk)) + f"\ns_cmp_ge_u32 {sSPIN}, {p['SPIN']}\ns_nop 3\ns_cbranch_scc1 L_OR_{kk}\ns_cbranch_vccnz L_OS_{kk}\ns_branch L_OR_{kk}")
        self.stubs = e.lines
        e.lines = main
        if det:
            def padd2(a, b):
                for r in range(0, 20, 2):
                    e(f"v_pk_add_f32 v[{a+r}:{a+r+1}], v[{a+r}:{a+r+1}], v[{b+r}:{b+r+1}]")
            e(f"s_bfe_u32 {T0}, {sNL}, {(2 << 16) | 10}\ns_xor_b32 {T0}, {T0}, 1\ns_bfe_u32 {T1}, {sNL}, {(2 << 16) | 7}\ns_cmp_eq_u32 {T0}, {T1}\ns_cbranch_scc1 L_CB1")
            e(f"s_bfe_u32 {T1}, {sNL}, {(2 << 16) | 4}\ns_cmp_eq_u32 {T0}, {T1}\ns_cbranch_scc1 L_CB2")
            padd2(20, 80)
            padd2(40, 60)
            e("s_branch L_CB3")
            e.label("L_CB1")
            padd2(20, 40)
            padd2(60, 80)
            padd2(20, 60)
            e("s_branch L_CB4")
            e.label("L_CB2")
            padd2(20, 60)
            padd2(40, 80)
            e.label("L_CB3")
            padd2(20, 40)
            e.label("L_CB4")
            padd2(0, 20)
        else:
            e.nop(8)
        for t in range(5):
            e(f"v_cvt_pk_bf16_f32 v{20+2*t}, v{4*t}, v{4*t+1}\nv_cvt_pk_bf16_f32 v{21+2*t}, v{4*t+2}, v{4*t+3}")
        e("v_permlane16_swap_b32 v20, v22\nv_permlane16_swap_b32 v21, v23\nv_permlane16_swap_b32 v24, v26\nv_permlane16_swap_b32 v25, v27")
        fl = ("", " sc1", " nt", " sc0 sc1")[p["OUTF"]]
        e(f"buffer_store_dwordx4 v[20:23], v244, {SOUT}, 0 offen{fl}")
        e(f"buffer_store_dwordx4 v[24:27], v244, {SOUT}, 0 offen offset:64{fl}")
        e(f"buffer_store_dwordx2 v[28:29], v245, {SOUT}, 0 offen offset:128{fl}")
        self.stamp(11)
        e("s_branch L_FIN")
        e.lines += getattr(self, "stubs", [])

    def att_proj(self):
        e, p = self.e, self.p
        c = f"{f2u(1.0 / (math.log2(math.e) * math.sqrt(18.0))):#x}"
        early = p["KVEARLY"]
        e("s_waitcnt vmcnt(0) lgkmcnt(0)\ns_barrier" if early else "s_waitcnt lgkmcnt(0)\ns_barrier")
        e.vmq, e.lgq = [], []
        self.stamp(2)
        e(f"s_setprio {p['PRIO_P']}")
        e(f"v_mov_b32 v246, 0\nbuffer_load_dwordx2 v[248:249], v246, {SDBG}, 0 offen sc1")
        if early or p["EXTU"] < 0:
            self.pro_att()
        e(f"v_and_b32 v200, 15, {vL}\nv_lshrrev_b32 v201, 4, {vL}\nv_bfe_u32 v202, {vL}, 2, 2\nv_and_b32 v203, 3, {vL}")
        e(f"v_lshl_add_u32 v204, v201, 3, v202\nv_lshlrev_b32 v204, 4, v204\nv_and_b32 v205, 1, v203\nv_lshl_add_u32 v204, v205, 3, v204")
        e(f"v_add_u32 v216, {QE}, v204\nv_add_u32 v204, {KVW}, v204")
        if not early:
            e(f"v_cmp_gt_u32 vcc, 2, v203\ns_nop 1\nv_cndmask_b32 v204, v204, v216, vcc")
        e(f"v_mul_u32_u24 v205, {CH}, v201\nv_lshl_add_u32 v205, v200, 4, v205\nv_add_u32 v206, {9*4*CH}, v205")
        e(f"s_lshl_b32 {T0}, {sA}, 8\nv_add_u32 v207, {T0}, v205\nv_add_u32 v208, {T0}, v206")
        if not early:
            e.wait_all(vm=True, lg=True)
            self.arrive(C_E, "v246", "v247")
            self.lds_wait(C_E, 4, "v246", "v247")
        self.stamp(10)

        def ext_reads(kk):
            r = 8 * kk
            e.lg(f"ds_read_b64_tr_b16 {vr(r,2)}, v204 offset:{512*kk}", ("e", kk))
            e.lg(f"ds_read_b64_tr_b16 {vr(r+2,2)}, v204 offset:{512*kk+64}", ("e", kk))
            e.lg(f"ds_read_b128 {vr(r+4,4)}, {'v207' if kk < 9 else 'v208'} offset:{4*CH*(kk % 9)}", ("e", kk))
        for kk in range(5):
            ext_reads(kk)
        for kk in range(18):
            e.wait(lg=("e", kk))
            r = 8 * kk
            e(f"v_mfma_f32_16x16x32_bf16 v[144:147], {vr(r,4)}, {vr(r+4,4)}, {'0' if kk == 0 else 'v[144:147]'}")
            e(f"v_mfma_f32_16x16x32_bf16 v[148:151], {vr(r+4,4)}, {vr(r,4)}, {'0' if kk == 0 else 'v[148:151]'}")
            if kk + 5 < 18:
                ext_reads(kk + 5)
        if not early:
            self.arrive(C_A, "v246", "v247")
        e(f"s_lshr_b32 {T2}, {sA}, 1\ns_lshl_b32 {T3}, {sRB}, 1\ns_add_u32 {T2}, {T2}, {T3}\ns_and_b32 {T3}, {sA}, 1")
        e(f"s_lshl_b32 {T4}, {T3}, 4\nv_add_u32 v209, {T4}, v200\nv_mov_b32 v210, {OOB}")
        e("v_cvt_pk_bf16_f32 v152, v144, v145\nv_cvt_pk_bf16_f32 v153, v146, v147\nv_cvt_pk_bf16_f32 v154, v148, v149\nv_cvt_pk_bf16_f32 v155, v150, v151")
        e(f"s_cmp_ge_u32 {sJ}, 6\ns_cbranch_scc1 L_KV_D\ns_cmp_ge_u32 {sJ}, 3\ns_cbranch_scc1 L_KV_V\ns_cmp_eq_u32 {sJ}, 2\ns_cbranch_scc1 L_KV_X")
        e(f"s_mul_i32 {T0}, {T2}, {KREC}\ns_lshl_b32 {T1}, {sJ}, 9\ns_add_u32 {T0}, {T0}, {T1}")
        e("v_lshlrev_b32 v211, 4, v209\nv_and_b32 v212, 1, v201\nv_lshl_add_u32 v211, v212, 3, v211\nv_cmp_le_u32 vcc, 2, v201\ns_nop 1\nv_cndmask_b32 v211, v210, v211, vcc")
        e(f"buffer_store_dwordx2 v[152:153], v211, {SWS}, {T0} offen sc1\ns_branch L_KV_D")
        e.label("L_KV_X")
        e(f"s_mul_i32 {T0}, {T2}, {KREC}\ns_add_u32 {T0}, {T0}, {KX}")
        e("v_lshlrev_b32 v211, 2, v209\nv_cmp_eq_u32 vcc, 3, v201\ns_nop 1\nv_cndmask_b32 v211, v210, v211, vcc")
        e(f"buffer_store_dword v153, v211, {SWS}, {T0} offen sc1\ns_branch L_KV_D")
        e.label("L_KV_V")
        e(f"s_sub_u32 {T0}, {sJ}, 3\ns_lshl_b32 {T0}, {T0}, 3\ns_min_u32 {T0}, {T0}, 10\ns_cmp_eq_u32 {sJ}, 5\ns_cselect_b32 {T1}, 14, 8")
        e(f"v_add_u32 v211, {T0}, v200\nv_lshrrev_b32 v212, 1, v201\nv_mul_u32_u24 v212, 18, v212\nv_add_u32 v211, v211, v212\nv_lshlrev_b32 v211, 4, v211")
        e(f"v_and_b32 v212, 1, v201\nv_lshl_add_u32 v211, v212, 3, v211\nv_cmp_le_u32 vcc, {T1}, v200\ns_nop 1\nv_cndmask_b32 v211, v210, v211, vcc")
        e(f"s_mul_i32 {T0}, {T2}, {KREC}\ns_mul_i32 {T1}, {T3}, 576\ns_add_u32 {T0}, {T0}, {T1}\ns_add_u32 {T0}, {T0}, {VT-128}")
        e(f"buffer_store_dwordx2 v[154:155], v211, {SWS}, {T0} offen sc1")
        e.label("L_KV_D")
        e(f"s_mov_b32 {sSPIN}, 0")
        e.label("L_TAG_P")
        e(f"s_waitcnt vmcnt(0)\nv_readfirstlane_b32 {sN0}, v248\nv_readfirstlane_b32 {sN1}, v249\ns_add_u32 {sSPIN}, {sSPIN}, 1")
        e(f"s_sub_u32 {T0}, {sT0}, {sN0}\ns_add_u32 {T0}, {T0}, 100000\ns_cmp_gt_u32 {T0}, 103000\ns_cselect_b32 {T0}, 0, {sN0}\ns_cmp_ge_u32 {sSPIN}, 256\ns_cselect_b32 {T0}, {sN0}, {T0}\ns_cmp_lg_u32 {T0}, 0\ns_cbranch_scc1 L_TAG_Q")
        e(f"v_mov_b32 v246, 0\nbuffer_load_dwordx2 v[248:249], v246, {SDBG}, 0 offen sc1\ns_cmp_lt_u32 {sSPIN}, {p['SPIN']}\ns_cbranch_scc1 L_TAG_P")
        e.label("L_TAG_Q")
        e.vmq = []
        e(f"v_mov_b32 v246, {NONCE}\nds_write_b64 v246, v[248:249]\ns_waitcnt lgkmcnt(0)")
        self.kv_flag()
        if early:
            self.arrive(C_E, "v246", "v247")
        self.arrive(C_XN, "v246", "v247")
        if early:
            self.lds_wait(C_E, 4, "v246", "v247")
            for kk in range(18):
                e.lg(f"ds_read_b64_tr_b16 {vr(8*kk,2)}, v216 offset:{512*kk}", ("e2", kk))
                e.lg(f"ds_read_b64_tr_b16 {vr(8*kk+2,2)}, v216 offset:{512*kk+64}", ("e2", kk))
                if kk >= 6:
                    e.wait(lg=("e2", kk - 6))
                    r = 8 * (kk - 6)
                    e(f"v_mfma_f32_16x16x32_bf16 v[144:147], {vr(r,4)}, {vr(r+4,4)}, {'0' if kk == 6 else 'v[144:147]'}")
            for kk in range(12, 18):
                e.wait(lg=("e2", kk))
                e(f"v_mfma_f32_16x16x32_bf16 v[144:147], {vr(8*kk,4)}, {vr(8*kk+4,4)}, v[144:147]")
            self.arrive(C_A, "v246", "v247")
            e.nop(3)
        e(f"v_mul_f32 v144, {c}, v144\nv_mul_f32 v145, {c}, v145\nv_mul_f32 v146, {c}, v146\nv_mul_f32 v147, {c}, v147")
        e("v_cvt_pk_bf16_f32 v144, v144, v145\nv_cvt_pk_bf16_f32 v145, v146, v147")
        e(f"s_lshr_b32 {T3}, {sA}, 1\ns_mul_i32 {T3}, {T3}, 1536\ns_and_b32 {T4}, {sA}, 1\ns_lshl_b32 {T4}, {T4}, 8\ns_add_u32 {T3}, {T3}, {T4}\ns_add_u32 {T3}, {T3}, {ATT}")
        e(f"v_lshl_add_u32 v214, v200, 4, {T3}\nv_lshlrev_b32 v215, 2, v201")
        self.qaddr("v82", "v215", 64, "v214", "v212", "v213")
        self.qaddr("v83", "v215", 66, "v214", "v212", "v213")
        self.lds_wait(C_A, 4, "v246", "v247")
        e("s_mov_b32 exec_hi, 0")
        e.lg("ds_write_b32 v82, v144")
        e.lg("ds_write_b32 v83, v145")
        e("s_mov_b64 exec, -1")
        self.stamp(3)
        e.wait_all(lg=True)
        self.arrive(C_B, "v246", "v247")
        self.stamp(4)
        for r in range(192, 210):
            e(f"v_mov_b32 v{r}, 0")
        for b in (218, 222):
            e(f"v_mov_b32 v{b+1}, 0x3f803f80\nv_mov_b32 v{b+2}, 0\nv_mov_b32 v{b+3}, 0")
        e(f"v_and_b32 v246, 31, {vL}\nv_mov_b32 v247, 0x3f803f80\nv_cmp_eq_u32 vcc, 18, v246\ns_mov_b32 s82, 0x3ffff\ns_mov_b32 s83, 0x3ffff")
        for r in range(226, 242):
            e(f"v_cndmask_b32 v{r}, 0, v247, vcc")
        e("v_mov_b32 v242, 0xdddddddd")
        d = p["KSPLIT"]
        e(f"s_mul_i32 {T2}, {sA}, {16+d}\ns_cmp_eq_u32 {sA}, 3\ns_cselect_b32 {T2}, {48+d}, {T2}\ns_cmp_ge_u32 {sA}, 2\ns_cselect_b32 {sNT}, {16-d}, {16+d}\ns_lshr_b32 {sNL}, {sNT}, 1")
        e(f"s_mul_i32 {T0}, {T2}, {KREC}\ns_mul_i32 {sKT[1]}, {sNT}, {KREC}\nv_lshl_add_u32 v243, {vL}, 4, {T0}\nv_lshl_add_u32 v244, v246, 2, {T0}")
        e(f"s_nop 0\nv_lshrrev_b32 v245, 5, {vL}\nv_mul_u32_u24 v245, 18, v245\nv_add_u32 v245, v245, v246\nv_lshl_add_u32 v245, v245, 4, {T0}")
        e(f"s_setprio {p['PRIO_A']}")
        self.zero_acc()
        if not p["EARLYKV"]:
            self.q_reads()
            e(f"v_lshrrev_b32 v247, 3, {vL}\nv_mul_u32_u24 v247, {ASZ}, v247\nv_and_b32 v248, 7, {vL}\nv_lshl_add_u32 v247, v248, 3, v247")
            e(f"s_mul_i32 {T2}, {sA}, {8*ASZ}\ns_add_u32 {T2}, {T2}, {ARENA + FLAGS + F_KV}")
            self.flag_poll("v247", T2, 248, sleep=p["G1SLEEP"])
            self.arrive(C_G1, "v247", "v248")
            self.lds_wait(C_G1, 4, "v247", "v248")
            if p["X_SEQ"]:
                self.lds_wait((C_G2, C_H, C_XN)[p["X_SEQ"] - 1], (4, 4, 8)[p["X_SEQ"] - 1], "v247", "v248", sleep=8)
        else:
            e(f"v_min_u32 v247, 53, {vL}\nv_mul_u32_u24 v248, 43, v247\nv_lshrrev_b32 v248, 8, v248\nv_mul_u32_u24 v249, 6, v248\nv_sub_u32 v247, v247, v249")
            e(f"s_lshr_b32 {T2}, {T2}, 1\nv_add_u32 v248, {T2}, v248\nv_min_u32 v248, 31, v248\nv_mul_u32_u24 v248, {ASZ}, v248\nv_lshl_add_u32 v247, v247, 3, v248\ns_mov_b32 {T2}, {ARENA + FLAGS + F_KV}")
            self.flag_poll("v247", T2, 248, sleep=p["G1SLEEP"])
        e(f"s_setprio {p['PRIO_A']}")
        self.stamp(5)

    def q_reads(self):
        e = self.e
        self.lds_wait(C_B, 6, "v252", "v253", sleep=4)
        for i2 in range(4):
            e(f"s_add_u32 {T0}, {sA}, {1+i2}\ns_and_b32 {T0}, {T0}, 3\ns_mul_i32 {T0}, {T0}, 3072\ns_add_u32 {T0}, {T0}, {ATT}")
            e(f"v_lshl_add_u32 v{128+i2}, {vL}, 4, {T0}")
            for rt in range(2):
                e.lg(f"ds_read_b128 {vr(160+4*(2*i2+rt),4)}, v{128+i2} offset:{1536*rt}")
        e("s_mov_b32 exec_hi, 0")
        for i2 in range(4):
            for rt in range(2):
                e.lg(f"ds_read_b32 v{192+2*(2*i2+rt)}, v{128+i2} offset:{1536*rt+1024}")
        e("s_mov_b64 exec, -1")
        e.wait_all(lg=True)

    def kv_flag(self):
        e = self.e
        self.arrive(C_KV, "v246", "v247", rtn=T2)
        e(f"s_cmp_lg_u32 {T2}, 3\ns_cbranch_scc1 L_NOG1")
        self.flag_set(F_KV, sJ, "v246", 248)
        e.label("L_NOG1")

    def send_addr(self):
        e = self.e
        for i2 in range(3):
            e(f"s_add_u32 {T0}, {sA}, {1+i2}\ns_and_b32 {T0}, {T0}, 3\ns_mul_i32 {T0}, {T0}, {6*OSL}\ns_add_u32 {T0}, {T0}, {OXA + 2*i2*OSL}")
            e(f"v_lshl_add_u32 v{246+i2}, {vL}, 4, {T0}")

    def zero_acc(self):
        for r in list(range(128)) + list(range(152, 160)):
            self.e(f"v_mov_b32 v{r}, 0")

    def o_addr(self, vm_, vx, vt):
        e = self.e
        e(f"v_and_b32 {vx}, 31, {vL}\nv_lshrrev_b32 {vt}, 5, {vL}\ns_lshl_b32 {T0}, {sJ}, 2\ns_add_u32 {T0}, {T0}, {sA}\ns_lshl_b32 {T0}, {T0}, 11")
        e(f"s_add_u32 {T0}, {T0}, {sAR}\ns_add_u32 {T0}, {T0}, {OM}\nv_lshl_add_u32 {vm_}, {vx}, 4, {T0}\nv_lshl_add_u32 {vm_}, {vt}, 10, {vm_}")
        e(f"s_lshl_b32 {T1}, {sJ}, 10\ns_add_u32 {T0}, {sAR}, {T1}\ns_lshl_b32 {T1}, {sA}, 2\ns_add_u32 {T0}, {T0}, {T1}\ns_add_u32 {T0}, {T0}, {OX}")
        e(f"v_lshl_add_u32 {vx}, {vx}, 4, {T0}")

    def kvload(self, buf, what, step=True):
        e = self.e
        if what == "k":
            e.vm(f"buffer_load_dwordx4 {vr(210+4*buf,4)}, v243, {SWS}, {sKT[0]} offen sc1", ("k", buf))
            e.vm(f"buffer_load_dword v{218+4*buf}, v244, {SWS}, {sKT[0]} offen offset:{KX} sc1", ("k", buf))
        else:
            e(f"s_mov_b64 exec, {sVM}")
            e.vm(f"buffer_load_dwordx4 {vr(226+8*buf,4)}, v245, {SWS}, {sKT[0]} offen offset:{VT} sc1", ("v", buf))
            e.vm(f"buffer_load_dwordx4 {vr(230+8*buf,4)}, v245, {SWS}, {sKT[0]} offen offset:{VT+576} sc1", ("v", buf))
            e("s_mov_b64 exec, -1")
            if self.p["KROT"]:
                self.wrap_inc(sKT[0], KREC, sKT[1])
            else:
                e(f"s_add_u32 {sKT[0]}, {sKT[0]}, {KREC}")

    def qk(self, i, buf, which, S=None):
        S = vr(128 + 16 * (i & 1), 16) if S is None else S
        if which == 0:
            self.e(f"v_mfma_f32_32x32x16_bf16 {S}, {vr(210+4*buf,4)}, {vr(160+4*i,4)}, 0")
        else:
            self.e(f"v_mfma_f32_32x32x16_bf16 {S}, {vr(218+4*buf,4)}, {vr(192+2*i,4)}, {S}")

    def pv(self, i, buf, s):
        self.e(f"v_smfmac_f32_32x32x32_bf16 {vr(16*i,16)}, {vr(226+8*buf+4*s,4)}, {vr(128+16*(i & 1)+8*s,8)}, v242")

    def att_tile(self, buf, first=False, last=False, sig=False):
        e = self.e

        def send(i):
            for hf in range(2):
                e.lg(f"ds_write_b128 v{246+(i >> 1)}, {vr(16*i+4*hf,4)} offset:{(i & 1)*OSL + 1024*hf}")
        for i in range(8):
            S = 128 + 16 * (i & 1)

            pat = self.p["EXPAT"]
            c1, c2 = ((5, 8), (5, 8), (6, 10), (5, 9))[pat]

            def ex(a, b):
                for k in range(a, b):
                    wide = pat in (1, 3) and (b - a) % 2 == 1 and k == a
                    e(f"v_exp_f32{'_e64' if wide else ''} v{S+k}, v{S+k}")
            ex(0, 2)
            if i > 0:
                self.pv(i - 1, buf, 1)
            else:
                self.pv(7, buf ^ 1, 1)
            if i == 0 and not last:
                self.kvload(buf ^ 1, "v")
                if sig and not self.p["TRIM"]:
                    e(f"s_cmp_lg_u32 {sCNT}, 1\ns_cbranch_scc1 L_NOSIG")
                    self.arrive(C_L, "v246", "v247")
                    e.label("L_NOSIG")
            ex(2, c1)
            nxt = (i + 1, buf) if i < 7 else (0, buf ^ 1)
            do_qk = not (last and i == 7)
            if i == 7 and do_qk:
                e.wait(vm=("k", buf ^ 1))
            if do_qk:
                self.qk(nxt[0], nxt[1], 0)
            ex(c1, c2)
            if do_qk:
                self.qk(nxt[0], nxt[1], 1)
            if i == 7 and not last:
                self.kvload(buf, "k")
            c3 = max(12, c2 + 3) if pat != 2 else 14
            ex(c2, c3)
            if i == 0:
                e.wait(vm=("v", buf))
            self.pv(i, buf, 0)
            ex(c3, 14)
            if last and 1 <= i <= 6:
                send(i - 1)
            ex(14, 16)

    def attention(self):
        e, p = self.e, self.p
        e.label("L_ATT")
        self.att_proj()
        e.label("L_PASS")
        b0 = p["KSPLIT"] & 1
        e(f"s_and_b32 {sTI}, {sRB}, {15*p['KROT']}\ns_cmp_ge_u32 {sTI}, {sNT}\ns_cselect_b32 {sTI}, 0, {sTI}\ns_mul_i32 {sKT[0]}, {sTI}, {KREC}")
        e.vmq = []
        self.kvload(b0, "k")
        self.kvload(b0, "v")
        self.kvload(b0 ^ 1, "k")
        if p["TRIM"]:
            self.o_addr("v249", "v251", "v246")
            self.send_addr()
        if p["EARLYKV"]:
            e(f"s_cmp_lg_u32 {sPASS}, 0\ns_cbranch_scc1 L_NOQR")
            self.q_reads()
            e.label("L_NOQR")
            self.stamp(11)
        e.wait(vm=("k", b0))
        self.qk(0, b0, 0)
        self.qk(0, b0, 1)
        e(f"s_mov_b32 {sCNT}, {sNL}")
        e.nop(11)
        if not b0:
            e("s_branch L_AT_MID")
            e.vmq = [("v", 1), ("v", 1), ("k", 0), ("k", 0)]
        e(".p2align 3")
        e.label("L_AT_LOOP")
        if p["STAMP"]:
            e(f"s_sub_u32 m0, 25, {sCNT}")
            self.stamp("m0")
        if p["AHI"]:
            e(f"s_cmp_lg_u32 {sCNT}, {p['AHI']}\ns_cbranch_scc1 L_NOHI\ns_setprio 2")
            e.label("L_NOHI")
            e(f"s_cmp_lg_u32 {sCNT}, {p['ALO']}\ns_cbranch_scc1 L_NOLO\ns_setprio 0")
            e.label("L_NOLO")
        if p["GATE"]:
            e(f"s_cmp_lg_u32 {sCNT}, {p['GATE']}\ns_cbranch_scc1 L_NOGATE")
            self.lds_wait(C_G2, 4, "v246", "v247", sleep=4)
            e.label("L_NOGATE")
        q0 = list(e.vmq)
        self.att_tile(1)
        e.label("L_AT_MID")
        self.att_tile(0, sig=True)
        assert q0 == e.vmq, (q0, e.vmq)
        e(f"s_sub_u32 {sCNT}, {sCNT}, 1\ns_cmp_lg_u32 {sCNT}, 0\ns_cbranch_scc1 L_AT_LOOP")
        self.stamp(6)
        self.lds_wait(C_G2 if p.get("NEWTAIL") else C_P, 4, *(("v128", "v129")[:0] or (("v252", "v253") if p["TRIM"] else ("v246", "v247"))))
        if not p["TRIM"]:
            self.send_addr()
        if p["OORD"] == 2 and p["OEARLY"] == 1:
            self.arrive(C_L, "v252", "v253")
        self.att_tile(1, last=True)
        if p["OORD"] == 2 and p["OEARLY"] == 2:
            self.arrive(C_L, "v252", "v253")
        e.nop(2)
        self.pv(7, 1, 1)
        e("s_mov_b32 exec_hi, 0")
        for i in range(6):
            e.lg(f"ds_write_b128 v{246+(i >> 1)}, {vr(16*i+8,4)} offset:{(i & 1)*OSL + 2048}")
        e("s_mov_b64 exec, -1")
        e("v_add_f32 v128, v10, v26\nv_add_f32 v129, v42, v58\nv_add_f32 v130, v74, v90\nv_min3_f32 v131, v10, v26, v42\nv_min3_f32 v132, v58, v74, v90")
        e("v_add_f32 v128, v128, v129\nv_add_f32 v130, v130, v106\nv_min3_f32 v131, v131, v132, v106\nv_add_f32 v128, v128, v130")
        e("v_add_f32 v128, v128, v122\nv_min_f32 v131, v131, v122")
        e(f"v_cmp_nge_f32 vcc, {f2u(2.0**40):#x}, v128\nv_mov_b32 v129, {f2u(2.0**-64):#x}\ns_mov_b32 {T2}, vcc_lo\nv_cmp_nge_f32 vcc, v131, v129\ns_nop 1\ns_or_b32 {T2}, {T2}, vcc_lo")
        if p["FORCE_FB"]:
            e(f"s_mov_b32 {T2}, 1")
        e(f"s_cmp_lg_u32 {T2}, 0\ns_cselect_b32 {T2}, 0x10001, 1")
        e.wait_all(lg=True)
        self.arrive(C_R, "v128", "v129", val=T2)
        e(f"s_mul_i32 {T0}, {sA}, {6*OSL}\ns_add_u32 {T0}, {T0}, {OXA}\nv_lshl_add_u32 v246, {vL}, 4, {T0}")
        if not p["TRIM"]:
            self.o_addr("v249", "v251", "v248")
        e(f"s_lshl_b32 {T3}, {sPASS}, 2\ns_add_u32 {T3}, {T3}, 4")
        self.lds_wait(C_R, T3, "v128", "v129", mask="0xffff", out=T2)
        self.stamp(7)
        e(f"s_cmp_lg_u32 {sPASS}, 0\ns_cbranch_scc1 L_SAFE\ns_cmp_ge_u32 {T2}, 0x10000\ns_cbranch_scc1 L_FALLBACK")
        e.label("L_SAFE")
        for tt in range(2):
            for i in range(3):
                for q in range(3):
                    e.lg(f"ds_read_b128 {vr(12*(3*tt+i)+4*q,4)}, v246 offset:{(2*i+tt)*OSL + 1024*q}", ("r", tt, i))
        for tt in range(2):
            O = 96 + 16 * tt
            for i in range(3):
                e.wait(lg=("r", tt, i))
                r0 = 12 * (3 * tt + i)
                if p["TRIM"]:
                    e(f"v_add_f32 v{O+10}, v{O+10}, v{r0+10}")
                    for k in range(0, 10, 2):
                        e(f"v_pk_add_f32 v[{O+k}:{O+k+1}], v[{O+k}:{O+k+1}], v[{r0+k}:{r0+k+1}]")
                else:
                    for k in (10, 0, 1, 2, 3, 4, 5, 6, 7, 8, 9):
                        e(f"v_add_f32 v{O+k}, v{O+k}, v{r0+k}")
            e(f"v_mov_b32 v128, v{O+10}\nv_mov_b32 v129, v{O+10}\ns_nop 1\nv_permlane32_swap_b32 v128, v129\ns_nop 1\nv_mul_f32 v128, {sNL2E}, v128\nv_rcp_f32 v128, v128\ns_nop 0")
            for k in range(0, 10, 2 if p["TRIM"] else 1):
                e(f"v_pk_mul_f32 v[{O+k}:{O+k+1}], v[{O+k}:{O+k+1}], v[128:129] op_sel_hi:[1,0]" if p["TRIM"] else f"v_mul_f32 v{O+k}, v{O+k}, v128")
            for k in range(5):
                e(f"v_cvt_pk_bf16_f32 v{132+8*tt+k}, v{O+2*k}, v{O+2*k+1}")
            if p["SENT"]:
                for k in range(5):
                    e(f"v_min_u32 v{132+8*tt+k}, -2, v{132+8*tt+k}")
            e.vm(f"buffer_store_dwordx4 {vr(132+8*tt,4)}, v249, {SWS}, 0 offen offset:{512*tt} sc1")
            e("s_mov_b32 exec_hi, 0")
            e.vm(f"buffer_store_dword v{136+8*tt}, v251, {SWS}, 0 offen offset:{512*tt} sc1")
            e("s_mov_b64 exec, -1")
        self.stamp(8)
        if p["OMODE"] == 0:
            e.wait_all(vm=True)
        if p["OMODE"] in (0, 4):
            e(f"s_lshl_b32 {T2}, {sJ}, 2\ns_add_u32 {T2}, {T2}, {sA}")
            self.flag_set(F_O, T2, "v128", 130)
        self.arrive(C_O, "v128", "v129")
        self.stamp(9)
        e("s_branch L_FIN")
        self.fallback()

    def fallback(self):
        e = self.e
        e.label("L_FALLBACK")
        e(f"s_mov_b32 {sPASS}, 1\ns_mov_b32 {sKT[0]}, 0\ns_mov_b32 {sCNT}, 0")
        for i in range(8):
            e(f"v_mov_b32 v{i}, 0xff800000")
        e.label("L_FB_LOOP")
        self.kvload(0, "k")
        e(f"s_add_u32 {sKT[0]}, {sKT[0]}, {KREC}")
        e.wait_all(vm=True)
        for i in range(8):
            self.qk(i, 0, 0, S="v[128:143]")
            self.qk(i, 0, 1, S="v[128:143]")
            e.nop(12)
            for k in range(8):
                e(f"v_max3_f32 v{i}, v{i}, v{128+2*k}, v{129+2*k}")
        e(f"s_add_u32 {sCNT}, {sCNT}, 1\ns_cmp_lt_u32 {sCNT}, {sNT}\ns_cbranch_scc1 L_FB_LOOP")
        e(f"v_and_b32 v247, 31, {vL}")
        for i in range(8):
            e(f"v_mov_b32 v8, v{i}\ns_nop 1\nv_permlane32_swap_b32 v{i}, v8\ns_nop 1\nv_max_f32 v{i}, v{i}, v8")
            e(f"s_lshl_b32 {T0}, {sA}, 1\ns_add_u32 {T0}, {T0}, {2+i}\ns_and_b32 {T0}, {T0}, 7\ns_lshl_b32 {T0}, {T0}, 7\ns_add_u32 {T0}, {T0}, {MX}")
            e(f"v_lshl_add_u32 v{16+i}, v247, 2, {T0}\ns_lshl_b32 {T1}, {sA}, 10\nv_add_u32 v9, {T1}, v{16+i}")
            e(f"ds_write_b32 v9, v{i}")
        e.wait_all(lg=True)
        self.arrive(C_M, "v128", "v129")
        self.lds_wait(C_M, 4, "v128", "v129")
        e("s_mov_b32 exec_hi, 0")
        for i in range(8):
            for a in range(4):
                e(f"ds_read_b32 v{8+a}, v{16+i} offset:{1024*a}")
            e.wait_all(lg=True)
            e("v_max3_f32 v8, v8, v9, v10\nv_max_f32 v8, v8, v11\nv_cvt_pk_bf16_f32 v9, v8, v8\nv_and_b32 v9, 0xffff0000, v9\nv_sub_f32 v10, v8, v9")
            e(f"v_cvt_pk_bf16_f32 v{193+2*i}, -v9, -v10")
        e("s_mov_b64 exec, -1")
        self.zero_acc()
        e("s_branch L_PASS")

    def build(self):
        e, p = self.e, self.p
        self.prologue()
        self.ffn()
        self.attention()
        e.label("L_FIN")
        if p["STAMP"]:
            e("s_waitcnt vmcnt(0)")
            self.stamp(12)
            e(f"s_lshl_b32 {T0}, s2, 3\ns_add_u32 {T0}, {T0}, {sW}\ns_lshl_b32 {T0}, {T0}, 8\ns_add_u32 {T0}, {T0}, {STAMPS}\nv_lshlrev_b32 v0, 2, {vL}")
            e(f"buffer_store_dword v255, v0, {SWS}, {T0} offen\ns_add_u32 {T0}, {T0}, 0x80000\nbuffer_store_dword v254, v0, {SWS}, {T0} offen")
            e(f"s_cmp_lg_u32 s2, 100\ns_cbranch_scc1 L_END\ns_cmp_lg_u32 {sW}, 0\ns_cbranch_scc1 L_END")
            e(f"v_readlane_b32 {T0}, v255, 0\ns_nop 1\nv_subrev_u32 v1, {T0}, v255\ns_mov_b64 exec, 0x1ffe\nbuffer_store_dword v1, v0, {SDBG}, 0 offen")
        e.label("L_END")
        e("s_endpgm")
        probs = check_hazards(e.lines)
        head = open("cdna_kernels/" + NAME + ".s.ref").read().split("\n")
        hdr = [l for l in head if l.startswith(";") and "@launch" not in l and "Override" not in l and "grid=ceil" not in l]
        txt = "\n".join(hdr) + f"""
; One persistent workgroup per CU owns 64 rows x (576 FFN columns, 4 heads, 72 output columns); 8 workgroups share a row block.
;   all waves : LayerNorm of the 64 rows -> LDS (bf16, scaled by -log2(e); the scale is undone in q, 1/l and the FFN sum)
;   waves 0-3 : (2,3: Q projection) GEMM1 -> SiLU -> GEMM2 -> bf16 partial sums to d_ws -> sum of the 8 partials + x
;               -> output projection of the row block's attention output -> d_out
;   waves 4-7 : K/V projection (published to d_ws), then softmax(QK^T)V over a quarter of the keys each for all 8 query tiles;
;               P stays fp32 in registers, the sparse MFMA picks its high halves; a ones row of V^T gives the row sums.
; Softmax shift: the first pass uses shift 0 and checks every row sum against [2^-64, 2^40]; if any sum is outside (or NaN)
; the workgroup computes the true row maxima (L_FALLBACK) and runs the pass again with them subtracted.
; Hand-offs between workgroups: write-through stores, then a flag holding this launch's tag (published through d_debug);
; the attention output is checked word by word against an "empty" pattern written earlier in the same launch.
; @launch grid=(256,1,1) block=(512,1,1) lds={LDS_BYTES}
.amdgcn_target "amdgcn-amd-amdhsa--gfx950"
.text
.globl {NAME}_kernel
.p2align 8
.type {NAME}_kernel,@function
{NAME}_kernel:
{e.text()}
.section .rodata,"a"
.p2align 6
.amdhsa_kernel {NAME}_kernel
  .amdhsa_next_free_vgpr 256
  .amdhsa_next_free_sgpr 102
  .amdhsa_accum_offset 256
  .amdhsa_group_segment_fixed_size 0
  .amdhsa_kernarg_size 88
  .amdhsa_user_sgpr_count 2
  .amdhsa_user_sgpr_kernarg_segment_ptr 1
  .amdhsa_system_sgpr_workgroup_id_x 1
.end_amdhsa_kernel
"""
        return txt, probs


if __name__ == "__main__":
    out = sys.argv[1]
    kw = {}
    for a in sys.argv[2:]:
        k, v = a.split("=")
        kw[k] = int(v, 0)
    txt, probs = G(**kw).build()
    for x in probs[:40]:
        print("HAZARD", x)
    open(out, "w").write(txt)
    print("wrote", out, len(txt), "bytes;", len(probs), "hazards")
```

```python
import sys, math, struct
from emit import E, check_hazards

NAME = "parallel_sum__grouped_kv_mqa__dense_activation_silu__prompt"

DEF = dict(NSL=2, STAMP=0, PRIO_F=1, PRIO_A=0, ROT=1, KROT=0, CODEPF=3, PRIO_P=2, WARMQ=0, TLBW=2, OUTF=2, KSPLIT=1, W1LATE=4, PRE=5, PREU=0, ROTG=0, EXPAT=0, SENT=1, OMODE=2, OROT=1, OSLEEP=0, TADDR=2, PRIO_T=1, TRIM=1, XPRIO=0, OORD=0, OEARLY=0, WOS=7, PREA=1, EARLYKV=0, RESTB=0, TLBU=0, TLB0=0, GATE=0, AHI=0, ALO=0, X_SEQ=0, X_BIAS=0, EXTU=8, PREL=5, QROT=1, KVEARLY=0, KVU=0, PKLN=0, XBAR=1, PACE2=2, PACE3=2, DYNP=2, WARMO=1, PKSILU=1, PACE=4, DEFER=0, G1SLEEP=16, SPIN=1 << 16, FORCE_FB=0)

KREC = 2304
KM, KX, VT = 0, 1024, 1152
ARENA, ASZ = 0x40000, 0xb0000
PART, OM, OX, FLAGS = 0, 589824, 655360, 663552
STAMPS = 0x1710000
WS_BYTES = 0x1820000
CH = 1040
RING, RSZ = 72 * CH, 15360
ATT = RING + 4 * RSZ
QE, KVW = ATT, ATT + 9216 + 64
QRSZ = 6144
OXA, OSL = 92160, 2560
MX = 153600
QX, SYNC = 162560, 163584
LDS_BYTES = 163840
C_A, C_KV, C_B, C_XN, C_H, C_G2, C_P, C_WO, C_R, C_O, C_G1, C_M, C_E, C_Q, C_L = range(15)
SX, SW1, SW2, SWQ, SKV, SWO, SWS, SDBG, SOUT = (f"s[{b}:{b+3}]" for b in range(28, 64, 4))
sRB, sJ, sW, sA = "s64", "s65", "s66", "s67"
sRING, sK, sCNT, sNL2E, sSPIN, sPASS = "s68", "s69", "s70", "s71", "s72", "s73"
sKT = ("s74", "s75", "s76")
T0, T1, T2, T3, T4 = "s77", "s78", "s79", "s80", "s81"
sVM = "s[82:83]"
sIDX = "s84"
sROT, sBO, sTI, sAR = "s92", "s93", "s94", "s95"
sKQ, sN0, sN1, sNT, sNL = "s96", "s98", "s99", "s100", "s101"
sREC, sEARLY = "s4", "s5"
sT0 = "s26"
F_P, F_KV, F_O = 0, 128, 256
NONCE = SYNC + 128
vL = "v250"
OOB = 0x40000000


def f2u(x):
    return struct.unpack("<I", struct.pack("<f", x))[0]


def vr(b, n=1):
    return f"v{b}" if n == 1 else f"v[{b}:{b+n-1}]"


class G:
    def __init__(self, **kw):
        self.p = dict(DEF)
        self.p.update(kw)
        self.e = E()
        self.nstamp = 0

    def stamp(self, i):
        if not self.p["STAMP"]:
            return
        e = self.e
        e("s_waitcnt lgkmcnt(0)")
        e.lgq = []
        e("s_memrealtime s[88:89]\ns_memtime s[90:91]")
        e("s_waitcnt lgkmcnt(0)")
        e(f"v_writelane_b32 v255, s88, {i}\nv_writelane_b32 v254, s90, {i}")

    def srd(self, srd, lo, nbytes):
        b = int(srd[2:srd.index(":")])
        self.e(f"s_mov_b32 s{b}, s{lo}\ns_mov_b32 s{b+1}, s{lo+1}\ns_mov_b32 s{b+2}, {nbytes}\ns_mov_b32 s{b+3}, 0x20000")

    def arrive(self, word, va, vb, rtn=None, val="1"):
        e = self.e
        e(f"v_mov_b32 {va}, {SYNC}\nv_mov_b32 {vb}, {val}\ns_mov_b64 exec, 1")
        if rtn is None:
            e.lg(f"ds_add_u32 {va}, {vb} offset:{4*word}")
            e("s_mov_b64 exec, -1")
        else:
            e(f"ds_add_rtn_u32 {vb}, {va}, {vb} offset:{4*word}")
            e.wait_all(lg=True)
            e(f"v_readfirstlane_b32 {rtn}, {vb}\ns_mov_b64 exec, -1\ns_nop 0")

    def lds_wait(self, word, target, va, vb, mask=None, out=None, sleep=1):
        e = self.e
        L, D = e.new("LW"), e.new("LWD")
        out = out or T0
        e(f"v_mov_b32 {va}, {SYNC}\ns_mov_b32 {sSPIN}, 0")
        e.label(L)
        e(f"ds_read_b32 {vb}, {va} offset:{4*word}")
        e.wait_all(lg=True)
        e(f"v_readfirstlane_b32 {out}, {vb}\ns_add_u32 {sSPIN}, {sSPIN}, 1")
        if mask is not None:
            e(f"s_and_b32 {T1}, {out}, {mask}\ns_cmp_ge_u32 {T1}, {target}")
        else:
            e(f"s_cmp_ge_u32 {out}, {target}")
        e(f"s_cbranch_scc1 {D}\ns_sleep {sleep}\ns_cmp_lt_u32 {sSPIN}, {self.p['SPIN']}\ns_cbranch_scc1 {L}")
        e.label(D)

    def flag_poll(self, va, soff, vb, sleep=2):
        e = self.e
        L, D = e.new("FW"), e.new("FWD")
        e(f"s_mov_b32 {sSPIN}, 0")
        e.label(L)
        e(f"buffer_load_dwordx2 v[{vb}:{vb+1}], {va}, {SWS}, {soff} offen sc1")
        e.wait_all(vm=True)
        e(f"v_xor_b32 v{vb}, {sN0}, v{vb}\nv_xor_b32 v{vb+1}, {sN1}, v{vb+1}\nv_or_b32 v{vb}, v{vb}, v{vb+1}")
        e(f"v_cmp_ne_u32 vcc, 0, v{vb}\ns_add_u32 {sSPIN}, {sSPIN}, 1\ns_nop 3")
        e(f"s_cbranch_vccz {D}\ns_sleep {sleep}\ns_cmp_lt_u32 {sSPIN}, {self.p['SPIN']}\ns_cbranch_scc1 {L}")
        e.label(D)

    def flag_wait(self, group, n, va, vb):
        e = self.e
        e(f"v_and_b32 {va}, {n-1}, {vL}\nv_lshlrev_b32 {va}, 3, {va}\ns_add_u32 {T0}, {sAR}, {FLAGS + group}")
        self.flag_poll(va, T0, vb)

    def flag_set(self, group, sidx, va, vb):
        e = self.e
        e(f"s_lshl_b32 {T1}, {sidx}, 3\ns_add_u32 {T0}, {sAR}, {T1}\ns_add_u32 {T0}, {T0}, {FLAGS + group}")
        e(f"v_mov_b32 {va}, 0\nv_mov_b32 v{vb}, {sN0}\nv_mov_b32 v{vb+1}, {sN1}\ns_mov_b64 exec, 1")
        e.vm(f"buffer_store_dwordx2 v[{vb}:{vb+1}], {va}, {SWS}, {T0} offen sc1")
        e("s_mov_b64 exec, -1")

    def get_nonce(self, va, vb):
        e = self.e
        e(f"v_mov_b32 {va}, {NONCE}\nds_read_b64 v[{vb}:{vb+1}], {va}")
        e.wait_all(lg=True)
        e(f"v_readfirstlane_b32 {sN0}, v{vb}\nv_readfirstlane_b32 {sN1}, v{vb+1}\ns_nop 1")

    def prologue(self):
        e, p = self.e, self.p
        nsl = p["NSL"]
        e("s_cmp_ge_u32 s2, 256\ns_cbranch_scc1 L_END")
        e("s_load_dwordx16 s[4:19], s[0:1], 0\ns_load_dwordx4 s[20:23], s[0:1], 64\ns_load_dwordx2 s[24:25], s[0:1], 80\ns_memrealtime s[26:27]")
        if p["CODEPF"] >= 2:
            e(f"s_getpc_b64 s[86:87]")
            e.label("L_PC")
            if p["CODEPF"] == 2:
                e(f"s_bfe_u32 {T0}, s2, {(1 << 16) | 3}\ns_lshl_b32 {T0}, {T0}, 15\nv_lshl_add_u32 v126, v0, 6, {T0}")
            else:
                e(f"s_bfe_u32 {T0}, s2, {(2 << 16) | 3}\ns_lshl_b32 {T0}, {T0}, 14\nv_lshrrev_b32 v126, 1, v0\nv_lshl_add_u32 v126, v126, 6, {T0}")
            e(f"v_min_u32 v126, L_END-L_PC, v126\nv_mov_b32 v127, s87")
            e("v_add_co_u32 v126, vcc, s86, v126\ns_nop 1\nv_addc_co_u32 v127, vcc, 0, v127, vcc")
            e.vm("global_load_dword v251, v[126:127], off")
        if p["STAMP"]:
            e("s_memrealtime s[88:89]\ns_memtime s[90:91]\nv_mov_b32 v255, 0\nv_mov_b32 v254, 0")
        lg = nsl.bit_length() - 1
        e(f"s_bfe_u32 {sRB}, s2, {(lg << 16) | (3 - lg)}\ns_lshl_b32 {sRB}, {sRB}, {5-lg}\ns_lshr_b32 {T1}, s2, {3+lg}\ns_add_u32 {sRB}, {sRB}, {T1}")
        e(f"v_lshrrev_b32 v120, 3, v0\nv_and_b32 v121, 7, v0\nv_lshl_add_u32 v122, {sRB}, 6, v120\nv_mul_u32_u24 v122, 1152, v122\nv_lshl_add_u32 v122, v121, 4, v122")
        if p["XPRIO"]:
            e(f"v_readfirstlane_b32 {T0}, v0\ns_nop 0\ns_cmp_lt_u32 {T0}, 256\ns_cbranch_scc1 L_XP\ns_setprio 1")
            e.label("L_XP")
        e("s_mov_b32 s30, 2359296\ns_mov_b32 s31, 0x20000\nv_lshrrev_b32 v119, 6, v0\nv_and_b32 " + vL + ", 63, v0\ns_waitcnt lgkmcnt(0)\ns_mov_b32 s28, s4\ns_mov_b32 s29, s5")
        for u in range(9):
            e.vm(f"buffer_load_dwordx4 v[{4*u}:{4*u+3}], v122, {SX}, 0 offen offset:{128*u}", ("x", u))
        if p["STAMP"]:
            e("v_writelane_b32 v255, s88, 0\nv_writelane_b32 v254, s90, 0")
        e(f"v_readfirstlane_b32 {sW}, v119\ns_lshr_b32 {sIDX}, s2, 3")
        e(f"s_and_b32 {sJ}, s2, {8//nsl - 1}\ns_lshl_b32 {sJ}, {sJ}, {lg}\ns_and_b32 {T1}, {sIDX}, {nsl-1}\ns_add_u32 {sJ}, {sJ}, {T1}")
        e(f"s_mul_i32 {sAR}, {sRB}, {ASZ}\ns_add_u32 {sAR}, {sAR}, {ARENA}\ns_and_b32 {sA}, {sW}, 3")
        e(f"v_mul_u32_u24 v123, {CH}, v121\nv_lshl_add_u32 v123, v120, 4, v123\nv_add_u32 v124, {8*CH}, v123")
        e("v_mov_b32 v216, 0\nv_mov_b32 v217, 0\nv_mov_b32 v222, 0\nv_mov_b32 v224, 0")
        if p["TADDR"] < 2 or p.get("F16"):
            for r in list(range(212, 216)) + list(range(225, 230)) + list(range(240, 248)):
                e(f"v_mov_b32 v{r}, 0")
        if p["XBAR"]:
            e("s_barrier")
        self.srd(SW1, 16, 5308416)
        self.srd(SW2, 18, 5308416)
        self.srd(SWQ, 6, 663552)
        self.srd(SWO, 12, 663552)
        self.srd(SWS, 24, WS_BYTES)
        self.srd(SDBG, 22, 256)
        self.srd(SOUT, 20, 2359296)
        e(f"s_cmp_ge_u32 {sJ}, 3\ns_cselect_b32 s44, s10, s8\ns_cselect_b32 s45, s11, s9\ns_mov_b32 s46, 20736\ns_mov_b32 s47, 0x20000")
        e(f"s_mov_b32 {sNL2E}, {f2u(-math.log2(math.e)):#x}\ns_mov_b32 {sPASS}, 0")
        e(f"s_cmp_ge_u32 {sW}, 4\ns_cbranch_scc1 L_PRO_A")
        q0 = list(e.vmq)
        self.pro_ffn()
        if p["TLB0"]:
            e(f"s_mov_b64 exec, 1\ns_cmp_ge_u32 {sW}, 2\ns_cbranch_scc1 L_T0Q\nbuffer_load_dword v253, v216, {SW1}, {sK} offen\ns_branch L_T0J")
            e.label("L_T0Q")
            e.vm(f"buffer_load_dword v253, v224, {SWQ}, 0 offen")
            e.label("L_T0J")
            e("s_mov_b64 exec, -1")
        if p["TADDR"] == 0:
            self.q_addresses()
            self.tail_addresses()
        self.ln_stats(ffn=True)
        e("s_branch L_PRO_J")
        e.vmq = list(q0)
        e.label("L_PRO_A")
        if p["CODEPF"] == 1:
            e(f"s_getpc_b64 s[86:87]")
            e.label("L_PC")
            e(f"s_and_b32 {T0}, {sIDX}, 3\ns_lshl_b32 {T0}, {T0}, 2\ns_add_u32 {T0}, {T0}, {sA}\ns_lshl_b32 {T0}, {T0}, 12")
            e(f"v_lshl_add_u32 v126, {vL}, 6, {T0}\nv_min_u32 v126, L_END-L_PC, v126\nv_mov_b32 v127, s87")
            e("v_add_co_u32 v126, vcc, s86, v126\ns_nop 1\nv_addc_co_u32 v127, vcc, 0, v127, vcc")
            e.vm("global_load_dword v251, v[126:127], off")
        if p["TLB0"]:
            e(f"s_mov_b64 exec, 1\nv_mov_b32 v126, 0")
            e.vm(f"buffer_load_dword v252, v126, {SKV}, 0 offen")
            e("s_mov_b64 exec, -1")
            if p["TLBU"] == -2:
                self.tlb_touch()
        self.ln_stats()
        e(f"s_or_b32 {T0}, s2, {sA}\ns_cmp_lg_u32 {T0}, 0\ns_cbranch_scc1 L_NOTAG\ns_or_b32 {T0}, s26, 1")
        e(f"v_mov_b32 v126, {T0}\nv_mov_b32 v127, s27\nv_mov_b32 v128, 0\ns_mov_b64 exec, 1\nbuffer_store_dwordx2 v[126:127], v128, {SDBG}, 0 offen sc1\ns_mov_b64 exec, -1")
        e.label("L_NOTAG")
        e(f"v_lshlrev_b32 v127, 2, {vL}\nv_add_u32 v127, {SYNC}, v127\nv_mov_b32 v128, 0\nds_write_b32 v127, v128")
        e.label("L_PRO_J")
        self.layernorm()

    def wrap_inc(self, reg, inc, mod):
        self.e(f"s_add_u32 {reg}, {reg}, {inc}\ns_cmp_eq_u32 {reg}, {mod}\ns_cselect_b32 {reg}, 0, {reg}")

    def pro_ffn(self):
        e = self.e
        e(f"s_mul_i32 {T2}, {sW}, 5\ns_lshl_b32 {T3}, {sW}, 2\ns_cmp_eq_u32 {sW}, 3\ns_cselect_b32 {T2}, 14, {T2}\ns_cselect_b32 {T3}, 13, {T3}")
        e(f"s_mul_i32 {sRING}, {sW}, {RSZ}\ns_add_u32 {sRING}, {sRING}, {RING}")
        e(f"v_lshrrev_b32 v125, 2, {vL}\nv_and_b32 v126, 3, {vL}")
        e(f"s_mul_i32 {T0}, {sJ}, 1152\ns_lshl_b32 {T1}, {T2}, 6\ns_add_u32 {T0}, {T0}, {T1}")
        e(f"v_mul_u32_u24 v216, 9216, v125\nv_lshl_add_u32 v216, v126, 4, v216\nv_add_u32 v216, {T0}, v216")
        nsl = self.p["NSL"]
        e(f"s_and_b32 {sROT}, {sRB}, {32//nsl - 1}\ns_mul_i32 {sROT}, {sROT}, {36*nsl*self.p['ROT']}\ns_lshr_b32 {sROT}, {sROT}, 5")
        G_ = self.p["ROTG"]
        if G_:
            e(f"s_and_b32 {sROT}, {sRB}, {32//nsl - 1}\ns_mul_i32 {sROT}, {sROT}, {G_*nsl}\ns_lshr_b32 {sROT}, {sROT}, 5\ns_mul_i32 {sROT}, {sROT}, {36//G_}")
        e(f"s_mul_i32 {sK}, {sROT}, 147456")
        e(f"s_mul_i32 {T0}, {sJ}, 144\ns_lshl_b32 {T1}, {sW}, 6\ns_add_u32 {T0}, {T0}, {T1}\ns_sub_u32 {T0}, {T0}, 128")
        e(f"v_mul_u32_u24 v224, 1152, v125\nv_lshl_add_u32 v224, v126, 4, v224\nv_add_u32 v224, {T0}, v224\ns_mul_i32 {sKQ}, {sROT}, {18432*self.p['QROT']}")
        if not self.p["W1LATE"]:
            self.first_loads()
        e(f"s_mul_i32 {T0}, {sJ}, 663552\ns_lshl_b32 {T1}, {T3}, 6\ns_add_u32 {T0}, {T0}, {T1}")
        e(f"v_mul_u32_u24 v217, 1152, v125\nv_lshl_add_u32 v217, v126, 4, v217\nv_add_u32 v217, {T0}, v217")
        e(f"v_lshrrev_b32 v127, 5, {vL}\nv_bfe_u32 v128, {vL}, 2, 2\nv_bfe_u32 v129, {vL}, 4, 1")
        e(f"v_lshlrev_b32 v129, 5, v129\nv_lshl_add_u32 v129, v126, 3, v129\nv_lshl_add_u32 v129, v128, 6, v129\nv_add_u32 v129, {sRING}, v129")
        e("v_lshl_add_u32 v218, v127, 9, v129\nv_lshl_add_u32 v219, v127, 8, v129")
        e(f"v_and_b32 v128, 31, {vL}\nv_lshlrev_b32 v128, 4, v128\nv_mul_u32_u24 v223, {CH}, v127\nv_add_u32 v223, v223, v128")
        e(f"s_mul_i32 {T0}, {T2}, {4*CH}\nv_add_u32 v221, {T0}, v223")
        e(f"s_lshl_b32 {T0}, {T3}, 15\ns_lshl_b32 {T1}, {sJ}, 10\ns_add_u32 {T0}, {T0}, {T1}\ns_add_u32 {T0}, {T0}, {sAR}")
        e(f"v_lshl_add_u32 v222, v127, 13, v128\nv_add_u32 v222, {T0}, v222")

    def q_addresses(self):
        e = self.e
        e(f"s_lshl_b32 {T2}, {sW}, 5\ns_sub_u32 {T2}, {T2}, 64\nv_lshrrev_b32 v170, 5, {vL}\nv_lshl_add_u32 v170, v170, 2, {T2}")
        e(f"v_and_b32 v171, 31, {vL}\nv_lshlrev_b32 v171, 4, v171\nv_add_u32 v171, {ATT}, v171")
        for pp in range(8):
            self.qaddr(f"v{196+pp}", "v170", 8 * (pp >> 1) + 2 * (pp & 1), "v171", "v172", "v173")

    def wo_addresses(self, base):
        e = self.e
        for i in range(5):
            e(f"v_add_u32 v160, {64*i}, {vL}\nv_mul_u32_u24 v161, 6554, v160\nv_lshrrev_b32 v161, 16, v161")
            e(f"v_mul_u32_u24 v162, 10, v161\nv_sub_u32 v162, v160, v162\nv_mul_u32_u24 v161, 1152, v161\nv_lshl_add_u32 v{base+i}, v162, 4, v161")

    def tail_addresses(self, wo=True):
        e = self.e
        if wo:
            self.wo_addresses(225)
        e(f"v_and_b32 v160, 15, {vL}\nv_lshrrev_b32 v161, 4, {vL}\ns_lshl_b32 {T0}, {sW}, 4\nv_add_u32 v162, {T0}, v160")
        e(f"v_and_b32 v163, 1, v161\nv_lshrrev_b32 v164, 1, v161")
        e(f"s_mul_i32 {T1}, {sJ}, 73728\ns_add_u32 {T0}, {sAR}, {T1}")
        e(f"v_lshl_add_u32 v165, v162, 4, {T0}\nv_lshl_add_u32 v240, v163, 13, v165\nv_lshl_add_u32 v240, v164, 10, v240\nv_lshl_add_u32 v241, v161, 10, v165")
        e(f"s_lshl_b32 {T0}, {sRB}, 6\nv_add_u32 v165, {T0}, v162\nv_mul_u32_u24 v165, 1152, v165\ns_mul_i32 {T0}, {sJ}, 144\nv_add_u32 v165, {T0}, v165")
        e(f"v_lshl_add_u32 v242, v161, 4, v165\nv_mov_b32 v166, {OOB}\nv_cmp_gt_u32 vcc, 2, v161\ns_nop 1\nv_cndmask_b32 v242, v166, v242, vcc")
        e(f"v_cmp_eq_u32 vcc, 0, v161\ns_nop 1\nv_cndmask_b32 v243, v166, v165, vcc")
        e(f"v_lshl_add_u32 v244, v163, 5, v165\nv_lshl_add_u32 v244, v164, 4, v244")
        e(f"v_lshl_add_u32 v245, v161, 3, v165\nv_cmp_gt_u32 vcc, 2, v161\ns_nop 1\nv_cndmask_b32 v245, v166, v245, vcc")
        e("v_lshlrev_b32 v166, 3, v163\nv_sub_u32 v166, v160, v166\nv_mov_b32 v167, 0x3f80\nv_mov_b32 v168, 0x3f800000")
        for base, src in ((232, "v166"), (236, "v160")):
            for r in range(4):
                e(f"v_cmp_eq_u32 vcc, {2*r}, {src}\nv_cmp_eq_u32 s[86:87], {2*r+1}, {src}\ns_nop 0\nv_cndmask_b32 v{base+r}, 0, v167, vcc")
                e(f"v_cndmask_b32 v{base+r}, v{base+r}, v168, s[86:87]")
        e(f"s_add_u32 {T0}, {sAR}, {OM}\nv_lshl_add_u32 v246, v162, 4, {T0}\nv_lshl_add_u32 v246, v161, 10, v246")
        e(f"s_add_u32 {T0}, {sAR}, {OX}\nv_lshl_add_u32 v247, v162, 4, {T0}\nv_lshl_add_u32 v247, v161, 10, v247")
        e(f"v_bfe_u32 v166, {vL}, 2, 2\nv_and_b32 v167, 3, {vL}\nv_mul_u32_u24 v168, 18, v164\nv_lshl_add_u32 v168, v163, 2, v168\nv_add_u32 v168, v168, v166")
        e("v_mul_u32_u24 v168, 160, v168\nv_lshl_add_u32 v248, v167, 3, v168")
        e("v_mul_u32_u24 v168, 72, v161\nv_lshrrev_b32 v169, 1, v166\nv_mul_u32_u24 v169, 18, v169\nv_and_b32 v166, 1, v166\nv_add3_u32 v168, v168, v169, v166")
        e("v_add_u32 v168, 16, v168\nv_mul_u32_u24 v168, 160, v168\nv_lshl_add_u32 v251, v167, 3, v168")
        e(f"v_mov_b32 v166, {OOB}\nv_cmp_gt_u32 vcc, 32, {vL}\ns_nop 1\nv_cndmask_b32 v241, v166, v241, vcc")

    def first_loads(self, lo=0, hi=15, lo2=None, hi2=None):
        e = self.e
        lo2, hi2 = lo if lo2 is None else lo2, hi if hi2 is None else hi2
        L, J = e.new("PFL"), e.new("PFJ")
        e(f"s_cmp_ge_u32 {sW}, 2\ns_cbranch_scc1 {L}")
        q0 = list(e.vmq)
        for i in range(lo, hi):
            s, pc = divmod(i, 5)
            e(f"s_add_u32 m0, {sRING}, {s*5120 + 960*pc}\ns_nop 0")
            e.vm(f"buffer_load_dwordx4 v216, {SW1}, {sK} offen offset:{64*pc} lds")
            if pc == 4:
                self.wrap_inc(sK, 147456, 36 * 147456)
        e(f"s_branch {J}")
        e.label(L)
        qa = e.vmq
        e.vmq = list(q0)
        for i in range(lo2, hi2):
            e(f"s_add_u32 m0, {sRING}, {1024*((i + 9) % 15)}\ns_nop 0")
            e.vm(f"buffer_load_dwordx4 v224, {SWQ}, {sKQ} offen lds")
            self.q_inc()
        e.label(J)
        if len(qa) < len(e.vmq):
            e.vmq = qa

    def q_inc(self):
        if self.p["QROT"]:
            self.wrap_inc(sKQ, 18432, 36 * 18432)
        else:
            self.e(f"s_add_u32 {sKQ}, {sKQ}, 18432")

    def q_gemm(self):
        e = self.e
        e.vmq = [("q", i) for i in range(15)]
        e.lgq = []
        rot = self.p["QROT"]
        e(f"s_mul_i32 {sBO}, {sROT}, 2080" if rot else f"v_add_u32 v220, {18*2080}, v223")

        def reads(i):
            r = 160 + 12 * (i % 3)
            vb, ob = ("v220", 0) if rot else (("v223", 2080 * i) if i < 18 else ("v220", 2080 * (i - 18)))
            if rot:
                e(f"v_add_u32 v220, {sBO}, v223")
            e.wait(vm=("q", i))
            o = 1024 * ((i + 9) % 15)
            e.lg(f"ds_read_b64_tr_b16 {vr(r,2)}, v218 offset:{o}", ("r", i))
            e.lg(f"ds_read_b64_tr_b16 {vr(r+2,2)}, v218 offset:{o+256}", ("r", i))
            e.lg(f"ds_read_b128 {vr(r+4,4)}, {vb} offset:{ob}", ("r", i))
            e.lg(f"ds_read_b128 {vr(r+8,4)}, {vb} offset:{ob+512}", ("r", i))
            if rot:
                self.wrap_inc(sBO, 2080, 36 * 2080)
        reads(0)
        reads(1)
        for i in range(36):
            r = 160 + 12 * (i % 3)
            sl = (i + 9) % 15
            e.wait(lg=("r", i))
            w1 = i >= 21 and sl % 5 < 4
            if i < 21 or w1:
                e(f"s_add_u32 m0, {sRING}, {1024*sl - (64*(sl % 5) if w1 else 0)}")
            e(f"v_mfma_f32_32x32x16_bf16 v[128:143], {vr(r,4)}, {vr(r+4,4)}, {'0' if i == 0 else 'v[128:143]'}")
            if i < 21:
                e.vm(f"buffer_load_dwordx4 v224, {SWQ}, {sKQ} offen lds", ("q", i + 15))
                self.q_inc()
            elif w1:
                e.vm(f"buffer_load_dwordx4 v216, {SW1}, {sK} offen offset:{64*(sl % 5)} lds")
                if sl % 5 == 3:
                    self.wrap_inc(sK, 147456, 36 * 147456)
            e(f"v_mfma_f32_32x32x16_bf16 v[144:159], {vr(r,4)}, {vr(r+8,4)}, {'0' if i == 0 else 'v[144:159]'}")
            if i + 2 < 36:
                reads(i + 2)
            if self.p["STAMP"] > 1 and i in (0, 6, 12, 18, 24, 30, 35):
                self.stamp(32 + (i + 1) // 6)

    def kv_loads(self):
        e = self.e
        e(f"s_cmp_ge_u32 {sJ}, 3\ns_cselect_b32 {T0}, 3, 0\ns_sub_u32 {T0}, {sJ}, {T0}\ns_cmp_ge_u32 {T0}, 3\ns_cselect_b32 {T0}, 0, {T0}")
        e(f"s_lshl_b32 {T1}, {T0}, 4\ns_min_u32 {T1}, {T1}, 20\nv_mul_u32_u24 v126, 36, {vL}\nv_add_u32 v126, {T1}, v126")
        e(f"s_mul_i32 {T2}, {sA}, 2304\ns_lshl_b32 {T3}, {sA}, 10\ns_add_u32 {T3}, {T3}, {KVW}")
        for i in range(2):
            e(f"s_add_u32 m0, {T3}, {4096*i}\ns_add_u32 {T0}, {T2}, {9216*i}")
            e.vm(f"buffer_load_dwordx4 v126, {SKV}, {T0} offen lds", "kvw")
        e(f"s_mov_b32 m0, {KVW + 8192}\ns_mov_b32 {T0}, {8*2304}")
        e.vm(f"buffer_load_dwordx4 v126, {SKV}, {T0} offen lds", "kvw")

    def pro_att(self):
        e, p = self.e, self.p
        if not p["KVEARLY"]:
            self.kv_loads()
        e(f"v_mul_u32_u24 v125, 1152, {vL}\ns_mul_i32 {T0}, {sJ}, 144\ns_add_u32 {T0}, {T0}, 128\nv_add_u32 v125, {T0}, v125")
        e(f"s_mul_i32 {T2}, {sA}, 73728\ns_lshl_b32 {T3}, {sA}, 10\ns_add_u32 {T3}, {T3}, {QE}")
        for i in range(2):
            e(f"s_add_u32 m0, {T3}, {4096*i}\ns_add_u32 {T0}, {T2}, {4*73728*i}")
            e.vm(f"buffer_load_dwordx4 v125, {SWQ}, {T0} offen lds", "ext")
        e(f"s_cmp_lg_u32 {sA}, 1\ns_cbranch_scc1 L_PA_2\ns_mov_b32 m0, {QE + 8192}\ns_mov_b32 {T0}, {8*73728}")
        e(f"buffer_load_dwordx4 v125, {SWQ}, {T0} offen lds")
        e.label("L_PA_2")
        nsl = p['NSL']
        if p["TLBW"] and p["TLBU"] == -1:
            self.tlb_touch()
        if p["WARMQ"]:
            rows = 18 * nsl
            e(f"s_lshl_b32 {T0}, {sA}, 6\nv_add_u32 v126, {T0}, {vL}\nv_lshrrev_b32 v127, 2, v126\nv_and_b32 v128, 3, v126\nv_mul_u32_u24 v127, 1152, v127")
            e(f"v_cmp_gt_u32 vcc, {4*rows}, v126\nv_mul_u32_u24 v128, 52, v128\nv_add_u32 v127, v127, v128\nv_mov_b32 v128, {OOB}\nv_cndmask_b32 v127, v128, v127, vcc")
            e(f"s_and_b32 {T1}, {sRB}, {32//nsl - 1}\ns_mul_i32 {T1}, {T1}, {rows*1152}\ns_mul_i32 {T0}, {sJ}, 144\ns_add_u32 {T1}, {T1}, {T0}")
            e.vm(f"buffer_load_dword v252, v127, {SWQ}, {T1} offen")
            e.vm(f"buffer_load_dword v253, v127, {SWO}, {T1} offen")

    def tlb_touch(self):
        e, p = self.e, self.p
        e(f"s_mov_b64 exec, 7\ns_cmp_eq_u32 {sA}, 1\ns_cbranch_scc1 L_TLB1\ns_cmp_eq_u32 {sA}, 2\ns_cbranch_scc1 L_TLB2\ns_cmp_eq_u32 {sA}, 3\ns_cbranch_scc1 L_TLB3")
        if p["TLBW"] == 1:
            e(f"v_mul_u32_u24 v126, {ASZ - 64}, {vL}\nv_cmp_eq_u32 vcc, 2, {vL}\nv_add_u32 v126, {sAR}, v126\ns_nop 0\nv_cndmask_b32 v126, v126, 0, vcc")
        else:
            e(f"s_mov_b64 exec, 0xfff\nv_lshlrev_b32 v126, 21, {vL}\nv_add_u32 v126, 0x30000, v126")
        e(f"buffer_load_dword v253, v126, {SWS}, 0 offen\ns_branch L_TLBD")
        e.label("L_TLB1")
        e(f"s_mul_i32 {T1}, {sJ}, 663552\nv_mul_u32_u24 v126, 331000, {vL}\nbuffer_load_dword v253, v126, {SW2}, {T1} offen\ns_branch L_TLBD")
        e.label("L_TLB2")
        e(f"s_mul_i32 {T0}, {sRB}, 73728\nv_mul_u32_u24 v126, 36000, {vL}\nbuffer_load_dword v253, v126, {SOUT}, {T0} offen\ns_branch L_TLBD")
        e.label("L_TLB3")
        e(f"v_mov_b32 v126, 0")
        e.vm(f"buffer_load_dword v253, v126, {SDBG if p['TLBW'] == 1 else SWO}, 0 offen offset:128")
        e.label("L_TLBD")
        e("s_mov_b64 exec, -1")

    def ln_stats(self, ffn=False):
        e = self.e
        e("v_mov_b32 v112, 0\nv_mov_b32 v113, 0\nv_mov_b32 v114, 0\nv_mov_b32 v115, 0\ns_mov_b32 s85, 0x3f803f80\ns_mov_b32 s86, 0xffff0000")
        for u in range(9):
            e.wait(vm=("x", u))
            if u == 0:
                self.stamp(1)
                if ffn and self.p["W1LATE"] == 1:
                    self.first_loads()
            if ffn and self.p["W1LATE"] == 2 and u in (1, 3, 5, 7, 8):
                n = (1, 3, 5, 7, 8).index(u)
                self.first_loads(3 * n, 3 * n + 3)
            if not ffn and self.p["TLBW"] and u == self.p["TLBU"]:
                self.tlb_touch()
            if not ffn and self.p["KVEARLY"] and u == self.p["KVU"]:
                self.kv_loads()
            if not ffn and u == self.p["EXTU"] and not self.p["KVEARLY"]:
                self.pro_att()
            if u == 8:
                self.stamp(30)
            if ffn and self.p["W1LATE"] == 3 and u == 8:
                self.first_loads()
            if ffn and self.p["W1LATE"] == 4 and u == self.p.get("PREU", 8) and self.p["PRE"]:
                self.first_loads(0, self.p["PRE"], 0, self.p["PREL"])
            for k in range(4):
                r = 4 * u + k
                e(f"v_dot2_f32_bf16 v{112+(k&1)}, v{r}, s85, v{112+(k&1)}")
                e(f"v_lshlrev_b32 v{40+2*r}, 16, v{r}")
                e(f"v_dot2_f32_bf16 v{114+(k&1)}, v{r}, v{r}, v{114+(k&1)}")
                e(f"v_and_b32 v{41+2*r}, s86, v{r}")

    def layernorm(self):
        e = self.e
        self.stamp(14)
        e("s_nop 2\nv_add_f32 v112, v112, v113\nv_add_f32 v114, v114, v115\ns_nop 1")
        for m in ("quad_perm:[1,0,3,2]", "quad_perm:[2,3,0,1]", "row_half_mirror"):
            e(f"v_add_f32_dpp v112, v112, v112 {m} row_mask:0xf bank_mask:0xf")
            e(f"v_add_f32_dpp v114, v114, v114 {m} row_mask:0xf bank_mask:0xf\ns_nop 1")
        inv = f"{f2u(1.0/576):#x}"
        e(f"v_mul_f32 v112, {inv}, v112\nv_mul_f32 v114, {inv}, v114\nv_fma_f32 v114, -v112, v112, v114\nv_max_f32 v114, 0, v114")
        e(f"v_add_f32 v114, {f2u(1e-5):#x}, v114\nv_rsq_f32 v114, v114\ns_nop 0\nv_mul_f32 v114, {sNL2E}, v114\nv_mul_f32 v112, v112, v114")
        for u in range(9):
            for k in range(0, 8, 2 if self.p["PKLN"] else 1):
                r = 40 + 8 * u + k
                if self.p["PKLN"]:
                    e(f"v_pk_fma_f32 v[{r}:{r+1}], v[{r}:{r+1}], v[114:115], v[112:113] op_sel_hi:[1,0,0] neg_lo:[0,0,1] neg_hi:[0,0,1]")
                else:
                    e(f"v_fma_f32 v{r}, v{r}, v114, -v112")
            for k in range(4):
                e(f"v_cvt_pk_bf16_f32 v{4*u+k}, v{40+8*u+2*k}, v{41+8*u+2*k}")
            if u < 8:
                e(f"ds_write_b128 v123, v[{4*u}:{4*u+3}] offset:{8*CH*u}")
            else:
                e(f"ds_write_b128 v124, v[{4*u}:{4*u+3}] offset:{8*CH*7}")
        self.stamp(15)
        e(f"s_cmp_ge_u32 {sW}, 4\ns_cbranch_scc1 L_ATT")
        if self.p["RESTB"]:
            self.first_loads(self.p["PRE"], self.p["RESTB"], self.p["PREL"], self.p["RESTB"])
        if self.p["TADDR"] in (1, 3):
            self.q_addresses()
        if self.p["TADDR"] == 1:
            self.tail_addresses()
        e("s_waitcnt lgkmcnt(0)\ns_barrier")

    def gemm(self, T, which, Tn):
        e = self.e
        vT = "v218" if which == 1 else "v219"
        sec = 256 if which == 1 else 512
        vD, SW, kstride = ("v216", SW1, 147456) if which == 1 else ("v217", SW2, 18432)

        def areg(buf, pc):
            return 160 + 20 * buf + 4 * pc

        def breg(buf, rt):
            return 200 + 8 * buf + 4 * rt

        def reads(s, pc):
            if pc < 2:
                e.lg(f"ds_read_b128 {vr(breg(s&1,pc),4)}, v220 offset:{512*pc}", ("B", s, pc))
            o = (s % 3) * 5120 + 1024 * pc
            e.lg(f"ds_read_b64_tr_b16 {vr(areg(s&1,pc),2)}, {vT} offset:{o}", ("A", s, pc))
            e.lg(f"ds_read_b64_tr_b16 {vr(areg(s&1,pc)+2,2)}, {vT} offset:{o+sec}", ("A", s, pc))

        def dma_list(s):
            sn = s + 3
            if sn < 36:
                return [(vD, SW, pc, ("d", sn, pc)) for pc in range(T)]
            if which == 1:
                return [("v217", SW2, pc, ("d2", sn - 36, pc)) for pc in range(Tn)]
            return []

        def step(s, first=False):
            dl = dma_list(s)
            if which == 1 and s == 33:
                e(f"s_mul_i32 {sK}, {sROT}, 18432")
            for gi in range(2 * T):
                pc, rt = gi >> 1, gi & 1
                mine = []
                if rt == 0:
                    mine = [d for d in dl if d[2] == pc or (pc == T - 1 and d[2] > pc)]
                e.wait(lg=[("A", s, pc), ("B", s, 0)] if gi == 0 else ([("B", s, 1)] if gi == 1 else [("A", s, pc)]))
                if mine:
                    e(f"s_add_u32 m0, {sRING}, {(s % 3)*5120 + 960*mine[0][2]}")
                acc = vr(16 * gi, 16)
                e(f"v_mfma_f32_32x32x16_bf16 {acc}, {vr(areg(s&1,pc),4)}, {vr(breg(s&1,rt),4)}, {'0' if first else acc}")
                for n, d in enumerate(mine):
                    if n:
                        e(f"s_add_u32 m0, {sRING}, {(s % 3)*5120 + 960*d[2]}\ns_nop 0")
                    e.vm(f"buffer_load_dwordx4 {d[0]}, {d[1]}, {sK} offen offset:{64*d[2]} lds", d[3])
                if rt == 1 and s + 1 < 36:
                    if pc == 0:
                        e(f"v_add_u32 v220, {sBO}, v223")
                    e.wait(vm=("d", s + 1, pc))
                    reads(s + 1, pc)
                if gi == 2 * T - 3 and s + 2 < 36:
                    self.wrap_inc(sBO, 2080, 36 * 2080)
            if s <= 32:
                self.wrap_inc(sK, kstride, 36 * kstride)
            elif which == 1:
                self.wrap_inc(sK, 18432, 36 * 18432)

        e.vmq = [("d", s, pc) for s in range(3) for pc in range(T)]
        e(f"s_mul_i32 {sBO}, {sROT}, 2080\nv_add_u32 v220, {sBO}, v223")
        self.wrap_inc(sBO, 2080, 36 * 2080)
        e.wait(vm=("d", 0, T - 1))
        e.lgq = []
        for pc in range(T):
            reads(0, pc)
        main = e.lines
        texts = []
        for s in range(36):
            e.lines = []
            step(s, first=(s == 0))
            texts.append(e.lines)
        e.lines = main
        for s in range(1, 27):
            assert texts[s] == texts[s + 6], (s, texts[s], texts[s + 6])
        tag = f"G{which}T{T}"
        e.lines += texts[0]
        e(f"s_mov_b32 {sCNT}, 0\ns_branch L_{tag}_1")
        e(".p2align 3")
        e.label(f"L_{tag}_3")
        if self.p["STAMP"] > 1:
            e(f"s_memrealtime s[88:89]\ns_memtime s[90:91]\ns_add_u32 m0, {sCNT}, {8*which+8}\ns_waitcnt lgkmcnt(0)\nv_writelane_b32 v255, s88, m0\nv_writelane_b32 v254, s90, m0")
        for s in (3, 4, 5, 6):
            e.lines += texts[s]
        e.label(f"L_{tag}_1")
        e.lines += texts[7] + texts[8]
        e(f"s_add_u32 {sCNT}, {sCNT}, 1\ns_cmp_lt_u32 {sCNT}, 6\ns_cbranch_scc1 L_{tag}_3")
        for s in (33, 34, 35):
            e.lines += texts[s]

    def silu(self, T):
        e = self.e
        for g in range(4 * T):
            b = 8 * g
            t = 160 + 8 * (g & 1)
            if self.p.get("X_NOSILU"):
                for k in range(4):
                    e(f"v_cvt_pk_bf16_f32 v{b+k}, v{b+2*k}, v{b+2*k+1}")
                continue
            for k in range(8):
                e(f"v_exp_f32 v{t+k}, v{b+k}")
            pk = self.p["PKSILU"]
            for k in range(0, 8, 2 if pk else 1):
                e(f"v_pk_add_f32 v[{t+k}:{t+k+1}], v[{t+k}:{t+k+1}], 1.0 op_sel_hi:[1,0]" if pk else f"v_add_f32 v{t+k}, 1.0, v{t+k}")
            for k in range(8):
                e(f"v_rcp_f32 v{t+k}, v{t+k}")
            for k in range(0, 8, 2 if pk else 1):
                e(f"v_pk_mul_f32 v[{t+k}:{t+k+1}], v[{b+k}:{b+k+1}], v[{t+k}:{t+k+1}]" if pk else f"v_mul_f32 v{t+k}, v{b+k}, v{t+k}")
            for k in range(4):
                e(f"v_cvt_pk_bf16_f32 v{b+k}, v{t+2*k}, v{t+2*k+1}")

    def q_out(self):
        e = self.e
        c = f"{f2u(1.0 / (math.log2(math.e) * math.sqrt(18.0))):#x}"
        if self.p["TADDR"] in (2, 4):
            self.q_addresses()
        e(f"s_mov_b32 {T3}, {c}")
        self.lds_wait(C_A, 4, "v252", "v253")
        e.nop(5)
        e(f"v_mov_b32 v174, {T3}")
        for r in range(128, 160, 2):
            e(f"v_pk_mul_f32 v[{r}:{r+1}], v[{r}:{r+1}], v[174:175] op_sel_hi:[1,0]")
        for k in range(16):
            e(f"v_cvt_pk_bf16_f32 v{128+k}, v{128+2*k}, v{129+2*k}")
        for rt in range(2):
            for pp in range(8):
                e.lg(f"ds_write_b32 v{196+pp}, v{128+8*rt+pp} offset:{1536*rt}")
        e.wait_all(lg=True)
        self.arrive(C_B, "v252", "v253")

    def qaddr(self, dst, vc, cadd, vbase, t0, t1):
        e = self.e
        e(f"v_add_u32 {t0}, {cadd}, {vc}\nv_mul_u32_u24 {t1}, 3641, {t0}\nv_lshrrev_b32 {t1}, 16, {t1}")
        e(f"v_mul_u32_u24 {dst}, 18, {t1}\nv_sub_u32 {t0}, {t0}, {dst}\nv_mul_u32_u24 {dst}, 3072, {t1}\nv_lshrrev_b32 {t1}, 3, {t0}\nv_lshl_add_u32 {dst}, {t1}, 9, {dst}")
        e(f"v_and_b32 {t0}, 7, {t0}\nv_lshl_add_u32 {dst}, {t0}, 1, {dst}\nv_add_u32 {dst}, {vbase}, {dst}")

    def ffn_path(self, T1_, T2_):
        e, p = self.e, self.p
        if T1_ == 4:
            self.q_gemm()
            self.q_out()
            self.stamp(13)
        self.gemm(T1_, 1, T2_)
        self.arrive(C_XN, "v252", "v253")
        self.stamp(3)
        if p["WARMO"]:
            nsl = p["NSL"]
            rows = 18 * nsl
            e(f"s_lshl_b32 {T0}, {sW}, 6\nv_add_u32 v176, {T0}, {vL}\nv_lshrrev_b32 v177, 2, v176\nv_and_b32 v178, 3, v176\nv_mul_u32_u24 v177, 1152, v177")
            e(f"v_cmp_gt_u32 vcc, {4*rows}, v176\nv_mul_u32_u24 v178, 52, v178\nv_add_u32 v177, v177, v178\nv_mov_b32 v178, {OOB}\nv_cndmask_b32 v177, v178, v177, vcc")
            e(f"s_and_b32 {T1}, {sRB}, {32//nsl - 1}\ns_mul_i32 {T1}, {T1}, {rows*1152}\ns_mul_i32 {T0}, {sJ}, 144\ns_add_u32 {T1}, {T1}, {T0}")
            e(f"buffer_load_dword v230, v177, {SWO}, {T1} offen")
        e.nop(2)
        self.silu(T1_)
        self.stamp(4)
        if p["TADDR"] == 4:
            self.tail_addresses()
        self.lds_wait(C_XN, 8, "v252", "v253")
        for u in range(2 * T1_):
            pc, rt = u >> 1, u & 1
            for hf in range(2):
                e.lg(f"ds_write_b128 v221, {vr(16*u+8*hf,4)} offset:{(4*pc+2*hf)*CH + 512*rt}")
        e.wait_all(lg=True)
        self.arrive(C_H, "v252", "v253")
        self.lds_wait(C_H, 4, "v252", "v253")
        self.stamp(5)
        self.gemm(T2_, 2, 0)
        self.arrive(C_G2, "v252", "v253")
        if p["PRIO_T"] != p["PRIO_F"]:
            e(f"s_setprio {p['PRIO_T']}")
        self.stamp(6)
        if p["SENT"] and T2_ == 4:
            e(f"s_lshl_b32 {T0}, {sJ}, 13\ns_lshl_b32 {T1}, {sW}, 12\ns_add_u32 {T0}, {T0}, {T1}\ns_add_u32 {T0}, {T0}, {sAR}\ns_add_u32 {T0}, {T0}, {OM}")
            e(f"s_lshl_b32 {T1}, {sJ}, 10\ns_add_u32 {T1}, {T1}, {sAR}\ns_add_u32 {T1}, {T1}, {OX}\nv_lshlrev_b32 v168, 4, {vL}")
            e("v_mov_b32 v172, -1\nv_mov_b32 v173, -1\nv_mov_b32 v174, -1\nv_mov_b32 v175, -1")
            for q in range(4):
                e(f"buffer_store_dwordx4 v[172:175], v168, {SWS}, {T0} offen offset:{1024*q} sc1")
            e(f"buffer_store_dwordx4 v[172:175], v168, {SWS}, {T1} offen sc1")
        e.nop(2)
        for u in range(2 * T2_):
            pc, rt = u >> 1, u & 1
            b = 16 * u
            for k in range(8):
                e(f"v_cvt_pk_bf16_f32 v{b+k}, v{b+2*k}, v{b+2*k+1}")
            e(f"s_mov_b32 {T0}, {(4*pc)*8192}\ns_mov_b32 {T1}, {(4*pc+2)*8192}")
            e(f"v_permlane32_swap_b32 v{b}, v{b+2}\nv_permlane32_swap_b32 v{b+1}, v{b+3}")
            e(f"v_permlane32_swap_b32 v{b+4}, v{b+6}\nv_permlane32_swap_b32 v{b+5}, v{b+7}")
            e.vm(f"buffer_store_dwordx4 {vr(b,4)}, v222, {SWS}, {T0} offen offset:{512*rt} sc1", "pst")
            e.vm(f"buffer_store_dwordx4 {vr(b+4,4)}, v222, {SWS}, {T1} offen offset:{512*rt} sc1", "pst")
            if p["PACE"]:
                e(f"s_waitcnt vmcnt({p['PACE']})")

    def ffn(self):
        e, p = self.e, self.p
        if p["W1LATE"] == 4 and p["RESTB"] < 15:
            self.first_loads(p["RESTB"] or p["PRE"], 15, p["RESTB"] or p["PREL"], 15)
        self.stamp(2)
        if p["PRIO_F"]:
            e(f"s_setprio {p['PRIO_F']}")
        e(f"s_cmp_ge_u32 {sW}, 2\ns_cbranch_scc1 L_FFN_L")
        self.ffn_path(5, 4)
        e("s_branch L_FFN_J")
        e.label("L_FFN_L")
        self.ffn_path(4, 5)
        e.label("L_FFN_J")
        e("s_setprio 0")
        self.stamp(7)
        self.ffn_tail()

    def partials_dyn(self):
        e, p = self.e, self.p
        for r in range(20):
            e(f"v_mov_b32 v{r}, 0")
        e(f"s_add_u32 {T3}, {sAR}, {FLAGS + F_P}\ns_mov_b32 {T4}, 0x55")
        oo = p["OORD"]
        if oo == 1:
            e(f"s_or_b32 {sNT}, {sJ}, 1\ns_add_u32 {sNT}, {sNT}, 1\ns_mov_b32 {sNL}, 0")
        e(f"v_and_b32 v231, 7, {vL}\nv_lshlrev_b32 v231, 3, v231\ns_mov_b32 {sSPIN}, 0")
        e.label("L_PD_POLL")
        e(f"buffer_load_dwordx2 v[252:253], v231, {SWS}, {T3} offen sc1\ns_waitcnt vmcnt(0)")
        e(f"v_xor_b32 v252, {sN0}, v252\nv_xor_b32 v253, {sN1}, v253\nv_or_b32 v252, v252, v253\nv_cmp_eq_u32 vcc, 0, v252\ns_add_u32 {sSPIN}, {sSPIN}, 1\ns_nop 1")
        e(f"s_lshr_b32 {T2}, vcc_lo, 1\ns_and_b32 {T2}, {T2}, vcc_lo")
        if oo:
            e(f"s_lshr_b32 {T2}, {T2}, {sNT}")
        e(f"s_cmp_ge_u32 {sSPIN}, {p['SPIN']}\ns_cselect_b32 {T2}, -1, {T2}\ns_and_b32 {T2}, {T2}, {T4}\ns_cbranch_scc1 L_PD_GO\ns_sleep 4\ns_branch L_PD_POLL")
        e.label("L_PD_GO")

        def ploads(b):
            e(f"s_ff1_i32_b32 {T1}, {T2}\ns_bitset0_b32 {T2}, {T1}\ns_bitset0_b32 {T4}, {T1}")
            if oo == 1:
                e(f"s_add_u32 {T1}, {T1}, {sNT}\ns_and_b32 {T1}, {T1}, 7\ns_lshl_b32 {sNL}, {sNL}, 3\ns_or_b32 {sNL}, {sNL}, {T1}")
            if oo == 2:
                e(f"s_add_u32 {T0}, {T1}, {sNT}\ns_and_b32 {T0}, {T0}, 7\ns_lshl_b32 {sCNT}, {sNL}, 3\ns_or_b32 {sCNT}, {sCNT}, {T0}")
                e(f"s_bitcmp1_b32 {sREC}, {T1}\ns_cselect_b32 {sNL}, {sNL}, {sCNT}\ns_mov_b32 {T1}, {T0}")
            e(f"s_lshl_b32 {T1}, {T1}, 10")
            for a in range(5):
                e(f"s_add_u32 {T0}, {T1}, {a*16384}")
                e.vm(f"buffer_load_dwordx4 {vr(20+20*b+4*a,4)}, {'v240' if a < 4 else 'v241'}, {SWS}, {T0} offen sc1", ("pl", b, a))

        def padd(b):
            for a in range(5):
                e.wait(vm=("pl", b, a))
                e(f"v_mfma_f32_16x16x32_bf16 {vr(4*a,4)}, {vr(232 if a < 4 else 236,4)}, {vr(20+20*b+4*a,4)}, {vr(4*a,4)}")
        e.vmq = []
        ploads(0)
        if p["DYNP"] == 2:
            e(f"s_cmp_eq_u32 {T2}, 0\ns_cbranch_scc1 L_PD_ONE")
            q0 = list(e.vmq)
            ploads(1)
            padd(0)
            padd(1)
            e("s_branch L_PD_J")
            e.label("L_PD_ONE")
            e.vmq = q0
        padd(0)
        e.label("L_PD_J")
        e(f"s_cmp_lg_u32 {T2}, 0\ns_cbranch_scc1 L_PD_GO\ns_cmp_lg_u32 {T4}, 0\ns_cbranch_scc1 L_PD_POLL")
        self.stamp(8)

    def ffn_tail(self):
        e, p = self.e, self.p
        e.vmq = ["pst"]
        if p["TADDR"] in (2, 3):
            self.tail_addresses()
        ws = p["WOS"]
        e(f"s_mul_i32 {T2}, {sW}, {ws}\ns_cmp_eq_u32 {sW}, 3\ns_cselect_b32 {T2}, {9 + ws}, {T2}")
        e(f"s_mul_i32 {T3}, {T2}, 5120\ns_mul_i32 {T2}, {T2}, 36864\ns_mul_i32 {T4}, {sJ}, 144\ns_add_u32 {T2}, {T2}, {T4}")
        e("s_waitcnt vmcnt(0)")
        self.arrive(C_P, "v252", "v253", rtn=T4)
        self.get_nonce("v231", 252)
        e(f"s_cmp_lg_u32 {T4}, 3\ns_cbranch_scc1 L_NOPF")
        self.flag_set(F_P, sJ, "v231", 252)
        e.label("L_NOPF")
        if p["OORD"] == 2:
            e(f"s_or_b32 {sNT}, {sJ}, 1\ns_add_u32 {sNT}, {sNT}, 1\ns_mov_b32 {sNL}, 0\ns_add_u32 {T0}, {sAR}, {FLAGS + F_P}")
            e(f"v_and_b32 v231, 7, {vL}\nv_lshlrev_b32 v231, 3, v231\nbuffer_load_dwordx2 v[252:253], v231, {SWS}, {T0} offen sc1\ns_waitcnt vmcnt(0)")
            e(f"v_xor_b32 v252, {sN0}, v252\nv_xor_b32 v253, {sN1}, v253\nv_or_b32 v252, v252, v253\nv_cmp_eq_u32 vcc, 0, v252\ns_nop 1")
            e(f"s_lshr_b32 {T4}, vcc_lo, 1\ns_and_b32 {T4}, {T4}, vcc_lo\ns_lshr_b32 {T4}, {T4}, {sNT}\ns_and_b32 {T4}, {T4}, 0x15\ns_or_b32 {T4}, {T4}, 0x40")
            e(f"s_mov_b32 {sREC}, {T4}\ns_cmp_eq_u32 {T4}, 0x55\ns_cselect_b32 {sEARLY}, {p['OEARLY']}, 0")
            e.label("L_ORD")
            e(f"s_ff1_i32_b32 {T1}, {T4}\ns_bitset0_b32 {T4}, {T1}\ns_add_u32 {T1}, {T1}, {sNT}\ns_and_b32 {T1}, {T1}, 7\ns_lshl_b32 {sNL}, {sNL}, 3\ns_or_b32 {sNL}, {sNL}, {T1}\ns_cmp_lg_u32 {T4}, 0\ns_cbranch_scc1 L_ORD")
        self.lds_wait(C_G2, 4, "v252", "v253")
        e(f"s_cmp_ge_u32 {sW}, 2\ns_cselect_b32 {sCNT}, {9 - ws}, {ws}")
        if ws == 9:
            e("s_cbranch_scc1 L_WO_D")
        e.label("L_WO_L")
        for i in range(5):
            e(f"s_add_u32 m0, {T3}, {i*1024}\ns_nop 0")
            e(f"buffer_load_dwordx4 v{225+i}, {SWO}, {T2} offen lds")
        e(f"s_add_u32 {T3}, {T3}, 5120\ns_add_u32 {T2}, {T2}, 36864\ns_waitcnt vmcnt({p['PACE3']})\ns_sub_u32 {sCNT}, {sCNT}, 1\ns_cmp_lg_u32 {sCNT}, 0\ns_cbranch_scc1 L_WO_L")
        e.label("L_WO_D")
        for a in range(5):
            e.vm(f"buffer_load_dwordx4 {vr(60+4*a,4)}, {'v242' if a < 4 else 'v243'}, {SX}, 0 offen offset:{32*a}", ("xr", a))
        e.wait_all(vm=True)
        self.arrive(C_WO, "v252", "v253")
        sG = ("s74", "s75", "s76", "s97")
        vG = ("v225", "v226", "v227", "v228")

        def group_addr():
            for b in range(4):
                if p["OORD"]:
                    e(f"s_bfe_u32 {T0}, {sNL}, {(2 << 16) | (3*(3-b) + 1)}")
                else:
                    e(f"s_lshr_b32 {T0}, {sJ}, 1\ns_add_u32 {T0}, {T0}, {b+p['OROT']}\ns_and_b32 {T0}, {T0}, 3")
                e(f"s_lshl_b32 {sG[b]}, {T0}, 14\ns_mul_i32 {T0}, {T0}, 23040\nv_add_u32 {vG[b]}, {T0}, v248")

        det = p["OORD"] == 2
        NA, AB, OB = (13, 172, 100) if det else (33, 92, 20)

        def aop(i):
            kk, t = divmod(i, 5)
            r = AB + 4 * (i % NA)
            if kk < 16:
                va, o, sec = vG[kk >> 2], (kk & 3) * 5760 + 32 * t, 1280
            else:
                va, o, sec = "v251", (kk - 16) * 46080 + 32 * t, 5760
            e.lg(f"ds_read_b64_tr_b16 {vr(r,2)}, {va} offset:{o}", ("a", i))
            e.lg(f"ds_read_b64_tr_b16 {vr(r+2,2)}, {va} offset:{o+sec}", ("a", i))

        def pre_reads():
            group_addr()
            self.lds_wait(C_WO, 4, "v252", "v253")
            for i in range(NA):
                aop(i)
        prea = p["PREA"] and not p["OORD"]
        if prea:
            pre_reads()
        self.partials_dyn()
        e(f"s_mov_b32 {T0}, {f2u(-math.log(2.0)):#x}")
        e.nop(6)
        for r in range(20):
            e(f"v_mul_f32 v{r}, {T0}, v{r}")
        for a in range(5):
            e(f"v_mfma_f32_16x16x32_bf16 {vr(4*a,4)}, {vr(232 if a < 4 else 236,4)}, {vr(60+4*a,4)}, {vr(4*a,4)}")
        if not prea:
            pre_reads()
        e.wait_all(lg=True)
        self.stamp(9)

        def oload(kk, track=True):
            if kk < 16:
                e(f"s_add_u32 {T0}, {sG[kk >> 2]}, {(kk & 3)*4096}")
            else:
                e(f"s_mov_b32 {T0}, {(kk - 16)*4096}")
            va = ("v246" if kk < 16 else "v247") if not det or kk < 12 else ("v229" if kk < 16 else "v230")
            ins = f"buffer_load_dwordx4 {vr(OB+4*kk,4)}, {va}, {SWS}, {T0} offen sc1"
            e.vm(ins, ("o", kk)) if track else e(ins)

        def ocheck(kk):
            b = OB + 4 * kk
            return [f"v_max3_u32 v252, v{b}, v{b+1}, v{b+2}", f"v_max_u32 v252, v252, v{b+3}", "v_cmp_eq_u32 vcc, -1, v252"]
        om = p["OMODE"]
        if det:
            e(f"s_cmp_lg_u32 {sEARLY}, 0\ns_cbranch_scc1 L_OE")
            self.lds_wait(C_O, 4, "v252", "v253", sleep=2)
            e("v_mov_b32 v229, v246\nv_mov_b32 v230, v247\ns_branch L_OE_J")
            e.label("L_OE")
            self.lds_wait(C_L, 4, "v252", "v253", sleep=2)
            e(f"v_mov_b32 v229, {OOB}\nv_mov_b32 v230, {OOB}")
            e.label("L_OE_J")
        elif om in (0, 4):
            self.lds_wait(C_O, 4, "v252", "v253", sleep=2)
            self.flag_wait(F_O, 32, "v241", 252)
        else:
            e(f"v_bfe_u32 v241, {vL}, 2, 3\nv_lshlrev_b32 v241, 10, v241\nv_and_b32 v252, 3, {vL}\nv_lshl_add_u32 v241, v252, 2, v241\ns_add_u32 {T2}, {sAR}, {OX + 1008}")
            self.lds_wait(C_O, 4, "v252", "v253", sleep=2)
            if om == 1:
                e(f"s_mov_b32 {sSPIN}, 0")
                e.label("L_HINT")
                e(f"buffer_load_dword v252, v241, {SWS}, {T2} offen sc1\ns_waitcnt vmcnt(0)\nv_cmp_eq_u32 vcc, -1, v252\ns_add_u32 {sSPIN}, {sSPIN}, 1\ns_nop 3")
                e(f"s_cbranch_vccz L_HINT_D\ns_cmp_lt_u32 {sSPIN}, {p['SPIN']}\ns_cbranch_scc1 L_HINT")
                e.label("L_HINT_D")
        e(f"s_mov_b32 {sSPIN}, 0")
        self.stamp(10)
        e.vmq = []
        for kk in range(18):
            oload(kk)
        e.wait(vm=("o", 0))
        e("\n".join(ocheck(0)) + "\ns_nop 4")
        for i in range(90):
            kk, t = divmod(i, 5)
            if t == 0:
                if det and kk == 12:
                    e(f"s_cmp_lg_u32 {sEARLY}, 0\ns_cbranch_scc1 L_OE12")
                e(f"s_cbranch_vccnz L_OS_{kk}")
                e.label(f"L_OR_{kk}")
                if p["STAMP"] > 1 and kk in (0, 4, 8, 12, 16):
                    e(f"s_memrealtime s[88:89]\ns_waitcnt lgkmcnt(0)\nv_writelane_b32 v255, s88, {40 + kk // 4}\nv_writelane_b32 v254, {sSPIN}, {40 + kk // 4}")
                    e.lgq = []
            e.wait(vm=("o", kk), lg=("a", i))
            acc = vr(20 + 20 * (kk >> 2) + 4 * t, 4) if det and kk < 16 else vr(4 * t, 4)
            e(f"v_mfma_f32_16x16x32_bf16 {acc}, {vr(AB+4*(i % NA),4)}, {vr(OB+4*kk,4)}, {'0' if det and kk < 16 and kk % 4 == 0 else acc}")
            if i >= 1 and i - 1 + NA < 90:
                aop(i - 1 + NA)
            if t < 3 and kk < 17:
                e.wait(vm=("o", kk + 1))
                e(ocheck(kk + 1)[t])
        main, e.lines = e.lines, []
        if det:
            e.label("L_OE12")
            lq = list(e.lgq)
            self.lds_wait(C_O, 4, "v252", "v253")
            e.lgq = lq
            e(f"s_mov_b32 {sSPIN}, 0\nv_mov_b32 v229, v246\nv_mov_b32 v230, v247\ns_branch L_OS_12")
        for kk in range(18):
            e.label(f"L_OS_{kk}")
            allk = om == 2
            for k2 in range(kk, (kk | 3) + 1 if kk < 16 and not allk else 18):
                oload(k2, track=False)
            e(f"s_add_u32 {sSPIN}, {sSPIN}, 1\ns_waitcnt vmcnt({17 - kk if allk else 0})")
            e("\n".join(ocheck(kk)) + f"\ns_cmp_ge_u32 {sSPIN}, {p['SPIN']}\ns_nop 3\ns_cbranch_scc1 L_OR_{kk}\ns_cbranch_vccnz L_OS_{kk}\ns_branch L_OR_{kk}")
        self.stubs = e.lines
        e.lines = main
        if det:
            def padd2(a, b):
                for r in range(0, 20, 2):
                    e(f"v_pk_add_f32 v[{a+r}:{a+r+1}], v[{a+r}:{a+r+1}], v[{b+r}:{b+r+1}]")
            e(f"s_bfe_u32 {T0}, {sNL}, {(2 << 16) | 10}\ns_xor_b32 {T0}, {T0}, 1\ns_bfe_u32 {T1}, {sNL}, {(2 << 16) | 7}\ns_cmp_eq_u32 {T0}, {T1}\ns_cbranch_scc1 L_CB1")
            e(f"s_bfe_u32 {T1}, {sNL}, {(2 << 16) | 4}\ns_cmp_eq_u32 {T0}, {T1}\ns_cbranch_scc1 L_CB2")
            padd2(20, 80)
            padd2(40, 60)
            e("s_branch L_CB3")
            e.label("L_CB1")
            padd2(20, 40)
            padd2(60, 80)
            padd2(20, 60)
            e("s_branch L_CB4")
            e.label("L_CB2")
            padd2(20, 60)
            padd2(40, 80)
            e.label("L_CB3")
            padd2(20, 40)
            e.label("L_CB4")
            padd2(0, 20)
        else:
            e.nop(8)
        for t in range(5):
            e(f"v_cvt_pk_bf16_f32 v{20+2*t}, v{4*t}, v{4*t+1}\nv_cvt_pk_bf16_f32 v{21+2*t}, v{4*t+2}, v{4*t+3}")
        e("v_permlane16_swap_b32 v20, v22\nv_permlane16_swap_b32 v21, v23\nv_permlane16_swap_b32 v24, v26\nv_permlane16_swap_b32 v25, v27")
        fl = ("", " sc1", " nt", " sc0 sc1")[p["OUTF"]]
        e(f"buffer_store_dwordx4 v[20:23], v244, {SOUT}, 0 offen{fl}")
        e(f"buffer_store_dwordx4 v[24:27], v244, {SOUT}, 0 offen offset:64{fl}")
        e(f"buffer_store_dwordx2 v[28:29], v245, {SOUT}, 0 offen offset:128{fl}")
        self.stamp(11)
        e("s_branch L_FIN")
        e.lines += getattr(self, "stubs", [])

    def att_proj(self):
        e, p = self.e, self.p
        c = f"{f2u(1.0 / (math.log2(math.e) * math.sqrt(18.0))):#x}"
        early = p["KVEARLY"]
        if p["EXTU"] == 9:
            self.pro_att()
        e("s_waitcnt vmcnt(0) lgkmcnt(0)\ns_barrier" if early else "s_waitcnt lgkmcnt(0)\ns_barrier")
        e.vmq, e.lgq = [], []
        self.stamp(2)
        e(f"s_setprio {p['PRIO_P']}")
        e(f"v_mov_b32 v246, 0\nbuffer_load_dwordx2 v[248:249], v246, {SDBG}, 0 offen sc1")
        if early or p["EXTU"] < 0:
            self.pro_att()
        e(f"v_and_b32 v200, 15, {vL}\nv_lshrrev_b32 v201, 4, {vL}\nv_bfe_u32 v202, {vL}, 2, 2\nv_and_b32 v203, 3, {vL}")
        e(f"v_lshl_add_u32 v204, v201, 3, v202\nv_lshlrev_b32 v204, 4, v204\nv_and_b32 v205, 1, v203\nv_lshl_add_u32 v204, v205, 3, v204")
        e(f"v_add_u32 v216, {QE}, v204\nv_add_u32 v204, {KVW}, v204")
        if not early:
            e(f"v_cmp_gt_u32 vcc, 2, v203\ns_nop 1\nv_cndmask_b32 v204, v204, v216, vcc")
        e(f"v_mul_u32_u24 v205, {CH}, v201\nv_lshl_add_u32 v205, v200, 4, v205\nv_add_u32 v206, {9*4*CH}, v205")
        e(f"s_lshl_b32 {T0}, {sA}, 8\nv_add_u32 v207, {T0}, v205\nv_add_u32 v208, {T0}, v206")
        if not early:
            e.wait_all(vm=True, lg=True)
            self.arrive(C_E, "v246", "v247")
            self.lds_wait(C_E, 4, "v246", "v247")
        self.stamp(10)

        def ext_reads(kk):
            r = 8 * kk
            e.lg(f"ds_read_b64_tr_b16 {vr(r,2)}, v204 offset:{512*kk}", ("e", kk))
            e.lg(f"ds_read_b64_tr_b16 {vr(r+2,2)}, v204 offset:{512*kk+64}", ("e", kk))
            e.lg(f"ds_read_b128 {vr(r+4,4)}, {'v207' if kk < 9 else 'v208'} offset:{4*CH*(kk % 9)}", ("e", kk))
        for kk in range(5):
            ext_reads(kk)
        for kk in range(18):
            e.wait(lg=("e", kk))
            r = 8 * kk
            e(f"v_mfma_f32_16x16x32_bf16 v[144:147], {vr(r,4)}, {vr(r+4,4)}, {'0' if kk == 0 else 'v[144:147]'}")
            e(f"v_mfma_f32_16x16x32_bf16 v[148:151], {vr(r+4,4)}, {vr(r,4)}, {'0' if kk == 0 else 'v[148:151]'}")
            if kk + 5 < 18:
                ext_reads(kk + 5)
        if not early:
            self.arrive(C_A, "v246", "v247")
        e(f"s_lshr_b32 {T2}, {sA}, 1\ns_lshl_b32 {T3}, {sRB}, 1\ns_add_u32 {T2}, {T2}, {T3}\ns_and_b32 {T3}, {sA}, 1")
        e(f"s_lshl_b32 {T4}, {T3}, 4\nv_add_u32 v209, {T4}, v200\nv_mov_b32 v210, {OOB}")
        e("v_cvt_pk_bf16_f32 v152, v144, v145\nv_cvt_pk_bf16_f32 v153, v146, v147\nv_cvt_pk_bf16_f32 v154, v148, v149\nv_cvt_pk_bf16_f32 v155, v150, v151")
        e(f"s_cmp_ge_u32 {sJ}, 6\ns_cbranch_scc1 L_KV_D\ns_cmp_ge_u32 {sJ}, 3\ns_cbranch_scc1 L_KV_V\ns_cmp_eq_u32 {sJ}, 2\ns_cbranch_scc1 L_KV_X")
        e(f"s_mul_i32 {T0}, {T2}, {KREC}\ns_lshl_b32 {T1}, {sJ}, 9\ns_add_u32 {T0}, {T0}, {T1}")
        e("v_lshlrev_b32 v211, 4, v209\nv_and_b32 v212, 1, v201\nv_lshl_add_u32 v211, v212, 3, v211\nv_cmp_le_u32 vcc, 2, v201\ns_nop 1\nv_cndmask_b32 v211, v210, v211, vcc")
        e(f"buffer_store_dwordx2 v[152:153], v211, {SWS}, {T0} offen sc1\ns_branch L_KV_D")
        e.label("L_KV_X")
        e(f"s_mul_i32 {T0}, {T2}, {KREC}\ns_add_u32 {T0}, {T0}, {KX}")
        e("v_lshlrev_b32 v211, 2, v209\nv_cmp_eq_u32 vcc, 3, v201\ns_nop 1\nv_cndmask_b32 v211, v210, v211, vcc")
        e(f"buffer_store_dword v153, v211, {SWS}, {T0} offen sc1\ns_branch L_KV_D")
        e.label("L_KV_V")
        e(f"s_sub_u32 {T0}, {sJ}, 3\ns_lshl_b32 {T0}, {T0}, 3\ns_min_u32 {T0}, {T0}, 10\ns_cmp_eq_u32 {sJ}, 5\ns_cselect_b32 {T1}, 14, 8")
        e(f"v_add_u32 v211, {T0}, v200\nv_lshrrev_b32 v212, 1, v201\nv_mul_u32_u24 v212, 18, v212\nv_add_u32 v211, v211, v212\nv_lshlrev_b32 v211, 4, v211")
        e(f"v_and_b32 v212, 1, v201\nv_lshl_add_u32 v211, v212, 3, v211\nv_cmp_le_u32 vcc, {T1}, v200\ns_nop 1\nv_cndmask_b32 v211, v210, v211, vcc")
        e(f"s_mul_i32 {T0}, {T2}, {KREC}\ns_mul_i32 {T1}, {T3}, 576\ns_add_u32 {T0}, {T0}, {T1}\ns_add_u32 {T0}, {T0}, {VT-128}")
        e(f"buffer_store_dwordx2 v[154:155], v211, {SWS}, {T0} offen sc1")
        e.label("L_KV_D")
        e(f"s_mov_b32 {sSPIN}, 0")
        e.label("L_TAG_P")
        e(f"s_waitcnt vmcnt(0)\nv_readfirstlane_b32 {sN0}, v248\nv_readfirstlane_b32 {sN1}, v249\ns_add_u32 {sSPIN}, {sSPIN}, 1")
        e(f"s_sub_u32 {T0}, {sT0}, {sN0}\ns_add_u32 {T0}, {T0}, 100000\ns_cmp_gt_u32 {T0}, 103000\ns_cselect_b32 {T0}, 0, {sN0}\ns_cmp_ge_u32 {sSPIN}, 256\ns_cselect_b32 {T0}, {sN0}, {T0}\ns_cmp_lg_u32 {T0}, 0\ns_cbranch_scc1 L_TAG_Q")
        e(f"v_mov_b32 v246, 0\nbuffer_load_dwordx2 v[248:249], v246, {SDBG}, 0 offen sc1\ns_cmp_lt_u32 {sSPIN}, {p['SPIN']}\ns_cbranch_scc1 L_TAG_P")
        e.label("L_TAG_Q")
        e.vmq = []
        e(f"v_mov_b32 v246, {NONCE}\nds_write_b64 v246, v[248:249]\ns_waitcnt lgkmcnt(0)")
        self.kv_flag()
        if early:
            self.arrive(C_E, "v246", "v247")
        self.arrive(C_XN, "v246", "v247")
        if early:
            self.lds_wait(C_E, 4, "v246", "v247")
            for kk in range(18):
                e.lg(f"ds_read_b64_tr_b16 {vr(8*kk,2)}, v216 offset:{512*kk}", ("e2", kk))
                e.lg(f"ds_read_b64_tr_b16 {vr(8*kk+2,2)}, v216 offset:{512*kk+64}", ("e2", kk))
                if kk >= 6:
                    e.wait(lg=("e2", kk - 6))
                    r = 8 * (kk - 6)
                    e(f"v_mfma_f32_16x16x32_bf16 v[144:147], {vr(r,4)}, {vr(r+4,4)}, {'0' if kk == 6 else 'v[144:147]'}")
            for kk in range(12, 18):
                e.wait(lg=("e2", kk))
                e(f"v_mfma_f32_16x16x32_bf16 v[144:147], {vr(8*kk,4)}, {vr(8*kk+4,4)}, v[144:147]")
            self.arrive(C_A, "v246", "v247")
            e.nop(3)
        e(f"v_mul_f32 v144, {c}, v144\nv_mul_f32 v145, {c}, v145\nv_mul_f32 v146, {c}, v146\nv_mul_f32 v147, {c}, v147")
        e("v_cvt_pk_bf16_f32 v144, v144, v145\nv_cvt_pk_bf16_f32 v145, v146, v147")
        e(f"s_lshr_b32 {T3}, {sA}, 1\ns_mul_i32 {T3}, {T3}, 1536\ns_and_b32 {T4}, {sA}, 1\ns_lshl_b32 {T4}, {T4}, 8\ns_add_u32 {T3}, {T3}, {T4}\ns_add_u32 {T3}, {T3}, {ATT}")
        e(f"v_lshl_add_u32 v214, v200, 4, {T3}\nv_lshlrev_b32 v215, 2, v201")
        self.qaddr("v82", "v215", 64, "v214", "v212", "v213")
        self.qaddr("v83", "v215", 66, "v214", "v212", "v213")
        self.lds_wait(C_A, 4, "v246", "v247")
        e("s_mov_b32 exec_hi, 0")
        e.lg("ds_write_b32 v82, v144")
        e.lg("ds_write_b32 v83, v145")
        e("s_mov_b64 exec, -1")
        self.stamp(3)
        e.wait_all(lg=True)
        self.arrive(C_B, "v246", "v247")
        self.stamp(4)
        for r in range(192, 210):
            e(f"v_mov_b32 v{r}, 0")
        for b in (218, 222):
            e(f"v_mov_b32 v{b+1}, 0x3f803f80\nv_mov_b32 v{b+2}, 0\nv_mov_b32 v{b+3}, 0")
        e(f"v_and_b32 v246, 31, {vL}\nv_mov_b32 v247, 0x3f803f80\nv_cmp_eq_u32 vcc, 18, v246\ns_mov_b32 s82, 0x3ffff\ns_mov_b32 s83, 0x3ffff")
        for r in range(226, 242):
            e(f"v_cndmask_b32 v{r}, 0, v247, vcc")
        e("v_mov_b32 v242, 0xdddddddd")
        d = p["KSPLIT"]
        e(f"s_mul_i32 {T2}, {sA}, {16+d}\ns_cmp_eq_u32 {sA}, 3\ns_cselect_b32 {T2}, {48+d}, {T2}\ns_cmp_ge_u32 {sA}, 2\ns_cselect_b32 {sNT}, {16-d}, {16+d}\ns_lshr_b32 {sNL}, {sNT}, 1")
        e(f"s_mul_i32 {T0}, {T2}, {KREC}\ns_mul_i32 {sKT[1]}, {sNT}, {KREC}\nv_lshl_add_u32 v243, {vL}, 4, {T0}\nv_lshl_add_u32 v244, v246, 2, {T0}")
        e(f"s_nop 0\nv_lshrrev_b32 v245, 5, {vL}\nv_mul_u32_u24 v245, 18, v245\nv_add_u32 v245, v245, v246\nv_lshl_add_u32 v245, v245, 4, {T0}")
        e(f"s_setprio {p['PRIO_A']}")
        self.zero_acc()
        if not p["EARLYKV"]:
            self.q_reads()
            e(f"v_lshrrev_b32 v247, 3, {vL}\nv_mul_u32_u24 v247, {ASZ}, v247\nv_and_b32 v248, 7, {vL}\nv_lshl_add_u32 v247, v248, 3, v247")
            e(f"s_mul_i32 {T2}, {sA}, {8*ASZ}\ns_add_u32 {T2}, {T2}, {ARENA + FLAGS + F_KV}")
            self.flag_poll("v247", T2, 248, sleep=p["G1SLEEP"])
            self.arrive(C_G1, "v247", "v248")
            self.lds_wait(C_G1, 4, "v247", "v248")
            if p["X_SEQ"]:
                self.lds_wait((C_G2, C_H, C_XN)[p["X_SEQ"] - 1], (4, 4, 8)[p["X_SEQ"] - 1], "v247", "v248", sleep=8)
        else:
            e(f"v_min_u32 v247, 53, {vL}\nv_mul_u32_u24 v248, 43, v247\nv_lshrrev_b32 v248, 8, v248\nv_mul_u32_u24 v249, 6, v248\nv_sub_u32 v247, v247, v249")
            e(f"s_lshr_b32 {T2}, {T2}, 1\nv_add_u32 v248, {T2}, v248\nv_min_u32 v248, 31, v248\nv_mul_u32_u24 v248, {ASZ}, v248\nv_lshl_add_u32 v247, v247, 3, v248\ns_mov_b32 {T2}, {ARENA + FLAGS + F_KV}")
            self.flag_poll("v247", T2, 248, sleep=p["G1SLEEP"])
        e(f"s_setprio {p['PRIO_A']}")
        self.stamp(5)

    def q_reads(self):
        e = self.e
        self.lds_wait(C_B, 6, "v252", "v253", sleep=4)
        for i2 in range(4):
            e(f"s_add_u32 {T0}, {sA}, {1+i2}\ns_and_b32 {T0}, {T0}, 3\ns_mul_i32 {T0}, {T0}, 3072\ns_add_u32 {T0}, {T0}, {ATT}")
            e(f"v_lshl_add_u32 v{128+i2}, {vL}, 4, {T0}")
            for rt in range(2):
                e.lg(f"ds_read_b128 {vr(160+4*(2*i2+rt),4)}, v{128+i2} offset:{1536*rt}")
        e("s_mov_b32 exec_hi, 0")
        for i2 in range(4):
            for rt in range(2):
                e.lg(f"ds_read_b32 v{192+2*(2*i2+rt)}, v{128+i2} offset:{1536*rt+1024}")
        e("s_mov_b64 exec, -1")
        e.wait_all(lg=True)

    def kv_flag(self):
        e = self.e
        self.arrive(C_KV, "v246", "v247", rtn=T2)
        e(f"s_cmp_lg_u32 {T2}, 3\ns_cbranch_scc1 L_NOG1")
        self.flag_set(F_KV, sJ, "v246", 248)
        e.label("L_NOG1")

    def send_addr(self):
        e = self.e
        for i2 in range(3):
            e(f"s_add_u32 {T0}, {sA}, {1+i2}\ns_and_b32 {T0}, {T0}, 3\ns_mul_i32 {T0}, {T0}, {6*OSL}\ns_add_u32 {T0}, {T0}, {OXA + 2*i2*OSL}")
            e(f"v_lshl_add_u32 v{246+i2}, {vL}, 4, {T0}")

    def zero_acc(self):
        for r in list(range(128)) + list(range(152, 160)):
            self.e(f"v_mov_b32 v{r}, 0")

    def o_addr(self, vm_, vx, vt):
        e = self.e
        e(f"v_and_b32 {vx}, 31, {vL}\nv_lshrrev_b32 {vt}, 5, {vL}\ns_lshl_b32 {T0}, {sJ}, 2\ns_add_u32 {T0}, {T0}, {sA}\ns_lshl_b32 {T0}, {T0}, 11")
        e(f"s_add_u32 {T0}, {T0}, {sAR}\ns_add_u32 {T0}, {T0}, {OM}\nv_lshl_add_u32 {vm_}, {vx}, 4, {T0}\nv_lshl_add_u32 {vm_}, {vt}, 10, {vm_}")
        e(f"s_lshl_b32 {T1}, {sJ}, 10\ns_add_u32 {T0}, {sAR}, {T1}\ns_lshl_b32 {T1}, {sA}, 2\ns_add_u32 {T0}, {T0}, {T1}\ns_add_u32 {T0}, {T0}, {OX}")
        e(f"v_lshl_add_u32 {vx}, {vx}, 4, {T0}")

    def kvload(self, buf, what, step=True):
        e = self.e
        if what == "k":
            e.vm(f"buffer_load_dwordx4 {vr(210+4*buf,4)}, v243, {SWS}, {sKT[0]} offen sc1", ("k", buf))
            e.vm(f"buffer_load_dword v{218+4*buf}, v244, {SWS}, {sKT[0]} offen offset:{KX} sc1", ("k", buf))
        else:
            e(f"s_mov_b64 exec, {sVM}")
            e.vm(f"buffer_load_dwordx4 {vr(226+8*buf,4)}, v245, {SWS}, {sKT[0]} offen offset:{VT} sc1", ("v", buf))
            e.vm(f"buffer_load_dwordx4 {vr(230+8*buf,4)}, v245, {SWS}, {sKT[0]} offen offset:{VT+576} sc1", ("v", buf))
            e("s_mov_b64 exec, -1")
            if self.p["KROT"]:
                self.wrap_inc(sKT[0], KREC, sKT[1])
            else:
                e(f"s_add_u32 {sKT[0]}, {sKT[0]}, {KREC}")

    def qk(self, i, buf, which, S=None):
        S = vr(128 + 16 * (i & 1), 16) if S is None else S
        if which == 0:
            self.e(f"v_mfma_f32_32x32x16_bf16 {S}, {vr(210+4*buf,4)}, {vr(160+4*i,4)}, 0")
        else:
            self.e(f"v_mfma_f32_32x32x16_bf16 {S}, {vr(218+4*buf,4)}, {vr(192+2*i,4)}, {S}")

    def pv(self, i, buf, s):
        self.e(f"v_smfmac_f32_32x32x32_bf16 {vr(16*i,16)}, {vr(226+8*buf+4*s,4)}, {vr(128+16*(i & 1)+8*s,8)}, v242")

    def att_tile(self, buf, first=False, last=False, sig=False):
        e = self.e

        def send(i):
            for hf in range(2):
                e.lg(f"ds_write_b128 v{246+(i >> 1)}, {vr(16*i+4*hf,4)} offset:{(i & 1)*OSL + 1024*hf}")
        for i in range(8):
            S = 128 + 16 * (i & 1)

            pat = self.p["EXPAT"]
            c1, c2 = ((5, 8), (5, 8), (6, 10), (5, 9))[pat]

            def ex(a, b):
                for k in range(a, b):
                    wide = pat in (1, 3) and (b - a) % 2 == 1 and k == a
                    e(f"v_exp_f32{'_e64' if wide else ''} v{S+k}, v{S+k}")
            ex(0, 2)
            if i > 0:
                self.pv(i - 1, buf, 1)
            else:
                self.pv(7, buf ^ 1, 1)
            if i == 0 and not last:
                self.kvload(buf ^ 1, "v")
                if sig and not self.p["TRIM"]:
                    e(f"s_cmp_lg_u32 {sCNT}, 1\ns_cbranch_scc1 L_NOSIG")
                    self.arrive(C_L, "v246", "v247")
                    e.label("L_NOSIG")
            ex(2, c1)
            nxt = (i + 1, buf) if i < 7 else (0, buf ^ 1)
            do_qk = not (last and i == 7)
            if i == 7 and do_qk:
                e.wait(vm=("k", buf ^ 1))
            if do_qk:
                self.qk(nxt[0], nxt[1], 0)
            ex(c1, c2)
            if do_qk:
                self.qk(nxt[0], nxt[1], 1)
            if i == 7 and not last:
                self.kvload(buf, "k")
            c3 = max(12, c2 + 3) if pat != 2 else 14
            ex(c2, c3)
            if i == 0:
                e.wait(vm=("v", buf))
            self.pv(i, buf, 0)
            ex(c3, 14)
            if last and 1 <= i <= 6:
                send(i - 1)
            ex(14, 16)

    def attention(self):
        e, p = self.e, self.p
        e.label("L_ATT")
        self.att_proj()
        e.label("L_PASS")
        b0 = p["KSPLIT"] & 1
        e(f"s_and_b32 {sTI}, {sRB}, {15*p['KROT']}\ns_cmp_ge_u32 {sTI}, {sNT}\ns_cselect_b32 {sTI}, 0, {sTI}\ns_mul_i32 {sKT[0]}, {sTI}, {KREC}")
        e.vmq = []
        self.kvload(b0, "k")
        self.kvload(b0, "v")
        self.kvload(b0 ^ 1, "k")
        if p["TRIM"]:
            self.o_addr("v249", "v251", "v246")
            self.send_addr()
        if p["EARLYKV"]:
            e(f"s_cmp_lg_u32 {sPASS}, 0\ns_cbranch_scc1 L_NOQR")
            self.q_reads()
            e.label("L_NOQR")
            self.stamp(11)
        e.wait(vm=("k", b0))
        self.qk(0, b0, 0)
        self.qk(0, b0, 1)
        e(f"s_mov_b32 {sCNT}, {sNL}")
        e.nop(11)
        if not b0:
            e("s_branch L_AT_MID")
            e.vmq = [("v", 1), ("v", 1), ("k", 0), ("k", 0)]
        e(".p2align 3")
        e.label("L_AT_LOOP")
        if p["STAMP"]:
            e(f"s_sub_u32 m0, 25, {sCNT}")
            self.stamp("m0")
        if p["AHI"]:
            e(f"s_cmp_lg_u32 {sCNT}, {p['AHI']}\ns_cbranch_scc1 L_NOHI\ns_setprio 2")
            e.label("L_NOHI")
            e(f"s_cmp_lg_u32 {sCNT}, {p['ALO']}\ns_cbranch_scc1 L_NOLO\ns_setprio 0")
            e.label("L_NOLO")
        if p["GATE"]:
            e(f"s_cmp_lg_u32 {sCNT}, {p['GATE']}\ns_cbranch_scc1 L_NOGATE")
            self.lds_wait(C_G2, 4, "v246", "v247", sleep=4)
            e.label("L_NOGATE")
        q0 = list(e.vmq)
        self.att_tile(1)
        e.label("L_AT_MID")
        self.att_tile(0, sig=True)
        assert q0 == e.vmq, (q0, e.vmq)
        e(f"s_sub_u32 {sCNT}, {sCNT}, 1\ns_cmp_lg_u32 {sCNT}, 0\ns_cbranch_scc1 L_AT_LOOP")
        self.stamp(6)
        self.lds_wait(C_G2 if p.get("NEWTAIL") else C_P, 4, *(("v128", "v129")[:0] or (("v252", "v253") if p["TRIM"] else ("v246", "v247"))))
        if not p["TRIM"]:
            self.send_addr()
        if p["OORD"] == 2 and p["OEARLY"] == 1:
            self.arrive(C_L, "v252", "v253")
        self.att_tile(1, last=True)
        if p["OORD"] == 2 and p["OEARLY"] == 2:
            self.arrive(C_L, "v252", "v253")
        e.nop(2)
        self.pv(7, 1, 1)
        e("s_mov_b32 exec_hi, 0")
        for i in range(6):
            e.lg(f"ds_write_b128 v{246+(i >> 1)}, {vr(16*i+8,4)} offset:{(i & 1)*OSL + 2048}")
        e("s_mov_b64 exec, -1")
        e("v_add_f32 v128, v10, v26\nv_add_f32 v129, v42, v58\nv_add_f32 v130, v74, v90\nv_min3_f32 v131, v10, v26, v42\nv_min3_f32 v132, v58, v74, v90")
        e("v_add_f32 v128, v128, v129\nv_add_f32 v130, v130, v106\nv_min3_f32 v131, v131, v132, v106\nv_add_f32 v128, v128, v130")
        e("v_add_f32 v128, v128, v122\nv_min_f32 v131, v131, v122")
        e(f"v_cmp_nge_f32 vcc, {f2u(2.0**40):#x}, v128\nv_mov_b32 v129, {f2u(2.0**-64):#x}\ns_mov_b32 {T2}, vcc_lo\nv_cmp_nge_f32 vcc, v131, v129\ns_nop 1\ns_or_b32 {T2}, {T2}, vcc_lo")
        if p["FORCE_FB"]:
            e(f"s_mov_b32 {T2}, 1")
        e(f"s_cmp_lg_u32 {T2}, 0\ns_cselect_b32 {T2}, 0x10001, 1")
        e.wait_all(lg=True)
        self.arrive(C_R, "v128", "v129", val=T2)
        e(f"s_mul_i32 {T0}, {sA}, {6*OSL}\ns_add_u32 {T0}, {T0}, {OXA}\nv_lshl_add_u32 v246, {vL}, 4, {T0}")
        if not p["TRIM"]:
            self.o_addr("v249", "v251", "v248")
        e(f"s_lshl_b32 {T3}, {sPASS}, 2\ns_add_u32 {T3}, {T3}, 4")
        self.lds_wait(C_R, T3, "v128", "v129", mask="0xffff", out=T2)
        self.stamp(7)
        e(f"s_cmp_lg_u32 {sPASS}, 0\ns_cbranch_scc1 L_SAFE\ns_cmp_ge_u32 {T2}, 0x10000\ns_cbranch_scc1 L_FALLBACK")
        e.label("L_SAFE")
        for tt in range(2):
            for i in range(3):
                for q in range(3):
                    e.lg(f"ds_read_b128 {vr(12*(3*tt+i)+4*q,4)}, v246 offset:{(2*i+tt)*OSL + 1024*q}", ("r", tt, i))
        for tt in range(2):
            O = 96 + 16 * tt
            for i in range(3):
                e.wait(lg=("r", tt, i))
                r0 = 12 * (3 * tt + i)
                if p["TRIM"]:
                    e(f"v_add_f32 v{O+10}, v{O+10}, v{r0+10}")
                    for k in range(0, 10, 2):
                        e(f"v_pk_add_f32 v[{O+k}:{O+k+1}], v[{O+k}:{O+k+1}], v[{r0+k}:{r0+k+1}]")
                else:
                    for k in (10, 0, 1, 2, 3, 4, 5, 6, 7, 8, 9):
                        e(f"v_add_f32 v{O+k}, v{O+k}, v{r0+k}")
            e(f"v_mov_b32 v128, v{O+10}\nv_mov_b32 v129, v{O+10}\ns_nop 1\nv_permlane32_swap_b32 v128, v129\ns_nop 1\nv_mul_f32 v128, {sNL2E}, v128\nv_rcp_f32 v128, v128\ns_nop 0")
            for k in range(0, 10, 2 if p["TRIM"] else 1):
                e(f"v_pk_mul_f32 v[{O+k}:{O+k+1}], v[{O+k}:{O+k+1}], v[128:129] op_sel_hi:[1,0]" if p["TRIM"] else f"v_mul_f32 v{O+k}, v{O+k}, v128")
            for k in range(5):
                e(f"v_cvt_pk_bf16_f32 v{132+8*tt+k}, v{O+2*k}, v{O+2*k+1}")
            if p["SENT"]:
                for k in range(5):
                    e(f"v_min_u32 v{132+8*tt+k}, -2, v{132+8*tt+k}")
            e.vm(f"buffer_store_dwordx4 {vr(132+8*tt,4)}, v249, {SWS}, 0 offen offset:{512*tt} sc1")
            e("s_mov_b32 exec_hi, 0")
            e.vm(f"buffer_store_dword v{136+8*tt}, v251, {SWS}, 0 offen offset:{512*tt} sc1")
            e("s_mov_b64 exec, -1")
        self.stamp(8)
        if p["OMODE"] == 0:
            e.wait_all(vm=True)
        if p["OMODE"] in (0, 4):
            e(f"s_lshl_b32 {T2}, {sJ}, 2\ns_add_u32 {T2}, {T2}, {sA}")
            self.flag_set(F_O, T2, "v128", 130)
        self.arrive(C_O, "v128", "v129")
        self.stamp(9)
        e("s_branch L_FIN")
        self.fallback()

    def fallback(self):
        e = self.e
        e.label("L_FALLBACK")
        e(f"s_mov_b32 {sPASS}, 1\ns_mov_b32 {sKT[0]}, 0\ns_mov_b32 {sCNT}, 0")
        for i in range(8):
            e(f"v_mov_b32 v{i}, 0xff800000")
        e.label("L_FB_LOOP")
        self.kvload(0, "k")
        e(f"s_add_u32 {sKT[0]}, {sKT[0]}, {KREC}")
        e.wait_all(vm=True)
        for i in range(8):
            self.qk(i, 0, 0, S="v[128:143]")
            self.qk(i, 0, 1, S="v[128:143]")
            e.nop(12)
            for k in range(8):
                e(f"v_max3_f32 v{i}, v{i}, v{128+2*k}, v{129+2*k}")
        e(f"s_add_u32 {sCNT}, {sCNT}, 1\ns_cmp_lt_u32 {sCNT}, {sNT}\ns_cbranch_scc1 L_FB_LOOP")
        e(f"v_and_b32 v247, 31, {vL}")
        for i in range(8):
            e(f"v_mov_b32 v8, v{i}\ns_nop 1\nv_permlane32_swap_b32 v{i}, v8\ns_nop 1\nv_max_f32 v{i}, v{i}, v8")
            e(f"s_lshl_b32 {T0}, {sA}, 1\ns_add_u32 {T0}, {T0}, {2+i}\ns_and_b32 {T0}, {T0}, 7\ns_lshl_b32 {T0}, {T0}, 7\ns_add_u32 {T0}, {T0}, {MX}")
            e(f"v_lshl_add_u32 v{16+i}, v247, 2, {T0}\ns_lshl_b32 {T1}, {sA}, 10\nv_add_u32 v9, {T1}, v{16+i}")
            e(f"ds_write_b32 v9, v{i}")
        e.wait_all(lg=True)
        self.arrive(C_M, "v128", "v129")
        self.lds_wait(C_M, 4, "v128", "v129")
        e("s_mov_b32 exec_hi, 0")
        for i in range(8):
            for a in range(4):
                e(f"ds_read_b32 v{8+a}, v{16+i} offset:{1024*a}")
            e.wait_all(lg=True)
            e("v_max3_f32 v8, v8, v9, v10\nv_max_f32 v8, v8, v11\nv_cvt_pk_bf16_f32 v9, v8, v8\nv_and_b32 v9, 0xffff0000, v9\nv_sub_f32 v10, v8, v9")
            e(f"v_cvt_pk_bf16_f32 v{193+2*i}, -v9, -v10")
        e("s_mov_b64 exec, -1")
        self.zero_acc()
        e("s_branch L_PASS")

    def build(self):
        e, p = self.e, self.p
        self.prologue()
        self.ffn()
        self.attention()
        e.label("L_FIN")
        if p["STAMP"]:
            e("s_waitcnt vmcnt(0)")
            self.stamp(12)
            e(f"s_lshl_b32 {T0}, s2, 3\ns_add_u32 {T0}, {T0}, {sW}\ns_lshl_b32 {T0}, {T0}, 8\ns_add_u32 {T0}, {T0}, {STAMPS}\nv_lshlrev_b32 v0, 2, {vL}")
            e(f"buffer_store_dword v255, v0, {SWS}, {T0} offen\ns_add_u32 {T0}, {T0}, 0x80000\nbuffer_store_dword v254, v0, {SWS}, {T0} offen")
            e(f"s_cmp_lg_u32 s2, 100\ns_cbranch_scc1 L_END\ns_cmp_lg_u32 {sW}, 0\ns_cbranch_scc1 L_END")
            e(f"v_readlane_b32 {T0}, v255, 0\ns_nop 1\nv_subrev_u32 v1, {T0}, v255\ns_mov_b64 exec, 0x1ffe\nbuffer_store_dword v1, v0, {SDBG}, 0 offen")
        e.label("L_END")
        e("s_endpgm")
        probs = check_hazards(e.lines)
        head = open("cdna_kernels/" + NAME + ".s.ref").read().split("\n")
        hdr = [l for l in head if l.startswith(";") and "@launch" not in l and "Override" not in l and "grid=ceil" not in l]
        txt = "\n".join(hdr) + f"""
; One persistent workgroup per CU owns 64 rows x (576 FFN columns, 4 heads, 72 output columns); 8 workgroups share a row block.
;   all waves : LayerNorm of the 64 rows -> LDS (bf16, scaled by -log2(e); the scale is undone in q, 1/l and the FFN sum)
;   waves 0-3 : (2,3: Q projection) GEMM1 -> SiLU -> GEMM2 -> bf16 partial sums to d_ws -> sum of the 8 partials + x
;               -> output projection of the row block's attention output -> d_out
;   waves 4-7 : K/V projection (published to d_ws), then softmax(QK^T)V over a quarter of the keys each for all 8 query tiles;
;               P stays fp32 in registers, the sparse MFMA picks its high halves; a ones row of V^T gives the row sums.
; Softmax shift: the first pass uses shift 0 and checks every row sum against [2^-64, 2^40]; if any sum is outside (or NaN)
; the workgroup computes the true row maxima (L_FALLBACK) and runs the pass again with them subtracted.
; Hand-offs between workgroups: write-through stores, then a flag holding this launch's tag (published through d_debug);
; the attention output is checked word by word against an "empty" pattern written earlier in the same launch.
; @launch grid=(256,1,1) block=(512,1,1) lds={LDS_BYTES}
.amdgcn_target "amdgcn-amd-amdhsa--gfx950"
.text
.globl {NAME}_kernel
.p2align 8
.type {NAME}_kernel,@function
{NAME}_kernel:
{e.text()}
.section .rodata,"a"
.p2align 6
.amdhsa_kernel {NAME}_kernel
  .amdhsa_next_free_vgpr 256
  .amdhsa_next_free_sgpr 102
  .amdhsa_accum_offset 256
  .amdhsa_group_segment_fixed_size 0
  .amdhsa_kernarg_size 88
  .amdhsa_user_sgpr_count 2
  .amdhsa_user_sgpr_kernarg_segment_ptr 1
  .amdhsa_system_sgpr_workgroup_id_x 1
.end_amdhsa_kernel
"""
        return txt, probs


if __name__ == "__main__":
    out = sys.argv[1]
    kw = {}
    for a in sys.argv[2:]:
        k, v = a.split("=")
        kw[k] = int(v, 0)
    txt, probs = G(**kw).build()
    for x in probs[:40]:
        print("HAZARD", x)
    open(out, "w").write(txt)
    print("wrote", out, len(txt), "bytes;", len(probs), "hazards")
```

```python
import sys, math, struct
from emit import E, check_hazards

NAME = "parallel_sum__grouped_kv_mqa__dense_activation_silu__prompt"

DEF = dict(NSL=2, STAMP=0, PRIO_F=1, PRIO_A=0, ROT=1, KROT=0, CODEPF=3, PRIO_P=2, WARMQ=0, TLBW=2, OUTF=2, KSPLIT=1, W1LATE=4, PRE=5, PREU=0, ROTG=0, EXPAT=0, SENT=1, OMODE=2, OROT=1, OSLEEP=0, TADDR=2, PRIO_T=1, TRIM=1, XPRIO=0, OORD=0, OEARLY=0, WOS=7, PREA=1, EARLYKV=0, RESTB=0, TLBU=0, TLB0=0, GATE=0, AHI=0, ALO=0, X_SEQ=0, X_BIAS=0, EXTU=8, PREL=5, QROT=1, KVEARLY=0, KVU=0, PKLN=0, XBAR=1, PACE2=2, PACE3=2, DYNP=2, WARMO=1, PKSILU=1, PACE=4, DEFER=0, G1SLEEP=16, SPIN=1 << 16, FORCE_FB=0)

KREC = 2304
KM, KX, VT = 0, 1024, 1152
ARENA, ASZ = 0x40000, 0xb0000
PART, OM, OX, FLAGS = 0, 589824, 655360, 663552
STAMPS = 0x1710000
WS_BYTES = 0x1820000
CH = 1040
RING, RSZ = 72 * CH, 15360
ATT = RING + 4 * RSZ
QE, KVW = ATT, ATT + 9216 + 64
QRSZ = 6144
OXA, OSL = 92160, 2560
MX = 153600
QX, SYNC = 162560, 163584
LDS_BYTES = 163840
C_A, C_KV, C_B, C_XN, C_H, C_G2, C_P, C_WO, C_R, C_O, C_G1, C_M, C_E, C_Q, C_L = range(15)
SX, SW1, SW2, SWQ, SKV, SWO, SWS, SDBG, SOUT = (f"s[{b}:{b+3}]" for b in range(28, 64, 4))
sRB, sJ, sW, sA = "s64", "s65", "s66", "s67"
sRING, sK, sCNT, sNL2E, sSPIN, sPASS = "s68", "s69", "s70", "s71", "s72", "s73"
sKT = ("s74", "s75", "s76")
T0, T1, T2, T3, T4 = "s77", "s78", "s79", "s80", "s81"
sVM = "s[82:83]"
sIDX = "s84"
sROT, sBO, sTI, sAR = "s92", "s93", "s94", "s95"
sKQ, sN0, sN1, sNT, sNL = "s96", "s98", "s99", "s100", "s101"
sREC, sEARLY = "s4", "s5"
sT0 = "s26"
F_P, F_KV, F_O = 0, 128, 256
NONCE = SYNC + 128
vL = "v250"
OOB = 0x40000000


def f2u(x):
    return struct.unpack("<I", struct.pack("<f", x))[0]


def vr(b, n=1):
    return f"v{b}" if n == 1 else f"v[{b}:{b+n-1}]"


class G:
    def __init__(self, **kw):
        self.p = dict(DEF)
        self.p.update(kw)
        self.e = E()
        self.nstamp = 0

    def stamp(self, i):
        if not self.p["STAMP"]:
            return
        e = self.e
        e("s_waitcnt lgkmcnt(0)")
        e.lgq = []
        e("s_memrealtime s[88:89]\ns_memtime s[90:91]")
        e("s_waitcnt lgkmcnt(0)")
        e(f"v_writelane_b32 v255, s88, {i}\nv_writelane_b32 v254, s90, {i}")

    def srd(self, srd, lo, nbytes):
        b = int(srd[2:srd.index(":")])
        self.e(f"s_mov_b32 s{b}, s{lo}\ns_mov_b32 s{b+1}, s{lo+1}\ns_mov_b32 s{b+2}, {nbytes}\ns_mov_b32 s{b+3}, 0x20000")

    def arrive(self, word, va, vb, rtn=None, val="1"):
        e = self.e
        e(f"v_mov_b32 {va}, {SYNC}\nv_mov_b32 {vb}, {val}\ns_mov_b64 exec, 1")
        if rtn is None:
            e.lg(f"ds_add_u32 {va}, {vb} offset:{4*word}")
            e("s_mov_b64 exec, -1")
        else:
            e(f"ds_add_rtn_u32 {vb}, {va}, {vb} offset:{4*word}")
            e.wait_all(lg=True)
            e(f"v_readfirstlane_b32 {rtn}, {vb}\ns_mov_b64 exec, -1\ns_nop 0")

    def lds_wait(self, word, target, va, vb, mask=None, out=None, sleep=1):
        e = self.e
        L, D = e.new("LW"), e.new("LWD")
        out = out or T0
        e(f"v_mov_b32 {va}, {SYNC}\ns_mov_b32 {sSPIN}, 0")
        e.label(L)
        e(f"ds_read_b32 {vb}, {va} offset:{4*word}")
        e.wait_all(lg=True)
        e(f"v_readfirstlane_b32 {out}, {vb}\ns_add_u32 {sSPIN}, {sSPIN}, 1")
        if mask is not None:
            e(f"s_and_b32 {T1}, {out}, {mask}\ns_cmp_ge_u32 {T1}, {target}")
        else:
            e(f"s_cmp_ge_u32 {out}, {target}")
        e(f"s_cbranch_scc1 {D}\ns_sleep {sleep}\ns_cmp_lt_u32 {sSPIN}, {self.p['SPIN']}\ns_cbranch_scc1 {L}")
        e.label(D)

    def flag_poll(self, va, soff, vb, sleep=2):
        e = self.e
        L, D = e.new("FW"), e.new("FWD")
        e(f"s_mov_b32 {sSPIN}, 0")
        e.label(L)
        e(f"buffer_load_dwordx2 v[{vb}:{vb+1}], {va}, {SWS}, {soff} offen sc1")
        e.wait_all(vm=True)
        e(f"v_xor_b32 v{vb}, {sN0}, v{vb}\nv_xor_b32 v{vb+1}, {sN1}, v{vb+1}\nv_or_b32 v{vb}, v{vb}, v{vb+1}")
        e(f"v_cmp_ne_u32 vcc, 0, v{vb}\ns_add_u32 {sSPIN}, {sSPIN}, 1\ns_nop 3")
        e(f"s_cbranch_vccz {D}\ns_sleep {sleep}\ns_cmp_lt_u32 {sSPIN}, {self.p['SPIN']}\ns_cbranch_scc1 {L}")
        e.label(D)

    def flag_wait(self, group, n, va, vb):
        e = self.e
        e(f"v_and_b32 {va}, {n-1}, {vL}\nv_lshlrev_b32 {va}, 3, {va}\ns_add_u32 {T0}, {sAR}, {FLAGS + group}")
        self.flag_poll(va, T0, vb)

    def flag_set(self, group, sidx, va, vb):
        e = self.e
        e(f"s_lshl_b32 {T1}, {sidx}, 3\ns_add_u32 {T0}, {sAR}, {T1}\ns_add_u32 {T0}, {T0}, {FLAGS + group}")
        e(f"v_mov_b32 {va}, 0\nv_mov_b32 v{vb}, {sN0}\nv_mov_b32 v{vb+1}, {sN1}\ns_mov_b64 exec, 1")
        e.vm(f"buffer_store_dwordx2 v[{vb}:{vb+1}], {va}, {SWS}, {T0} offen sc1")
        e("s_mov_b64 exec, -1")

    def get_nonce(self, va, vb):
        e = self.e
        e(f"v_mov_b32 {va}, {NONCE}\nds_read_b64 v[{vb}:{vb+1}], {va}")
        e.wait_all(lg=True)
        e(f"v_readfirstlane_b32 {sN0}, v{vb}\nv_readfirstlane_b32 {sN1}, v{vb+1}\ns_nop 1")

    def prologue(self):
        e, p = self.e, self.p
        nsl = p["NSL"]
        e("s_cmp_ge_u32 s2, 256\ns_cbranch_scc1 L_END")
        e("s_load_dwordx16 s[4:19], s[0:1], 0\ns_load_dwordx4 s[20:23], s[0:1], 64\ns_load_dwordx2 s[24:25], s[0:1], 80\ns_memrealtime s[26:27]")
        if p["CODEPF"] >= 2:
            e(f"s_getpc_b64 s[86:87]")
            e.label("L_PC")
            if p["CODEPF"] == 2:
                e(f"s_bfe_u32 {T0}, s2, {(1 << 16) | 3}\ns_lshl_b32 {T0}, {T0}, 15\nv_lshl_add_u32 v126, v0, 6, {T0}")
            else:
                e(f"s_bfe_u32 {T0}, s2, {(2 << 16) | 3}\ns_lshl_b32 {T0}, {T0}, 14\nv_lshrrev_b32 v126, 1, v0\nv_lshl_add_u32 v126, v126, 6, {T0}")
            e(f"v_min_u32 v126, L_END-L_PC, v126\nv_mov_b32 v127, s87")
            e("v_add_co_u32 v126, vcc, s86, v126\ns_nop 1\nv_addc_co_u32 v127, vcc, 0, v127, vcc")
            e.vm("global_load_dword v251, v[126:127], off")
        if p["STAMP"]:
            e("s_memrealtime s[88:89]\ns_memtime s[90:91]\nv_mov_b32 v255, 0\nv_mov_b32 v254, 0")
        if p.get("X_DELAY"):
            e("s_waitcnt lgkmcnt(0)")
            e.label("L_XD")
            e(f"s_memrealtime s[88:89]\ns_waitcnt lgkmcnt(0)\ns_sub_u32 s88, s88, s26\ns_cmp_lt_u32 s88, {p['X_DELAY']}\ns_cbranch_scc1 L_XD")
        lg = nsl.bit_length() - 1
        e(f"s_bfe_u32 {sRB}, s2, {(lg << 16) | (3 - lg)}\ns_lshl_b32 {sRB}, {sRB}, {5-lg}\ns_lshr_b32 {T1}, s2, {3+lg}\ns_add_u32 {sRB}, {sRB}, {T1}")
        e(f"v_lshrrev_b32 v120, 3, v0\nv_and_b32 v121, 7, v0\nv_lshl_add_u32 v122, {sRB}, 6, v120\nv_mul_u32_u24 v122, 1152, v122\nv_lshl_add_u32 v122, v121, 4, v122")
        if p["XPRIO"]:
            e(f"v_readfirstlane_b32 {T0}, v0\ns_nop 0\ns_cmp_lt_u32 {T0}, 256\ns_cbranch_scc1 L_XP\ns_setprio 1")
            e.label("L_XP")
        e("s_mov_b32 s30, 2359296\ns_mov_b32 s31, 0x20000\nv_lshrrev_b32 v119, 6, v0\nv_and_b32 " + vL + ", 63, v0\ns_waitcnt lgkmcnt(0)\ns_mov_b32 s28, s4\ns_mov_b32 s29, s5")
        for u in range(9):
            e.vm(f"buffer_load_dwordx4 v[{4*u}:{4*u+3}], v122, {SX}, 0 offen offset:{128*u}", ("x", u))
        if p["STAMP"]:
            e("v_writelane_b32 v255, s88, 0\nv_writelane_b32 v254, s90, 0")
        e(f"v_readfirstlane_b32 {sW}, v119\ns_lshr_b32 {sIDX}, s2, 3")
        e(f"s_and_b32 {sJ}, s2, {8//nsl - 1}\ns_lshl_b32 {sJ}, {sJ}, {lg}\ns_and_b32 {T1}, {sIDX}, {nsl-1}\ns_add_u32 {sJ}, {sJ}, {T1}")
        e(f"s_mul_i32 {sAR}, {sRB}, {ASZ}\ns_add_u32 {sAR}, {sAR}, {ARENA}\ns_and_b32 {sA}, {sW}, 3")
        e(f"v_mul_u32_u24 v123, {CH}, v121\nv_lshl_add_u32 v123, v120, 4, v123\nv_add_u32 v124, {8*CH}, v123")
        e("v_mov_b32 v216, 0\nv_mov_b32 v217, 0\nv_mov_b32 v222, 0\nv_mov_b32 v224, 0")
        if p["TADDR"] < 2 or p.get("F16"):
            for r in list(range(212, 216)) + list(range(225, 230)) + list(range(240, 248)):
                e(f"v_mov_b32 v{r}, 0")
        if p["XBAR"]:
            e("s_barrier")
        self.srd(SW1, 16, 5308416)
        self.srd(SW2, 18, 5308416)
        self.srd(SWQ, 6, 663552)
        self.srd(SWO, 12, 663552)
        self.srd(SWS, 24, WS_BYTES)
        self.srd(SDBG, 22, 256)
        self.srd(SOUT, 20, 2359296)
        e(f"s_cmp_ge_u32 {sJ}, 3\ns_cselect_b32 s44, s10, s8\ns_cselect_b32 s45, s11, s9\ns_mov_b32 s46, 20736\ns_mov_b32 s47, 0x20000")
        e(f"s_mov_b32 {sNL2E}, {f2u(-math.log2(math.e)):#x}\ns_mov_b32 {sPASS}, 0")
        e(f"s_cmp_ge_u32 {sW}, 4\ns_cbranch_scc1 L_PRO_A")
        q0 = list(e.vmq)
        self.pro_ffn()
        if p["TLB0"]:
            e(f"s_mov_b64 exec, 1\ns_cmp_ge_u32 {sW}, 2\ns_cbranch_scc1 L_T0Q\nbuffer_load_dword v253, v216, {SW1}, {sK} offen\ns_branch L_T0J")
            e.label("L_T0Q")
            e.vm(f"buffer_load_dword v253, v224, {SWQ}, 0 offen")
            e.label("L_T0J")
            e("s_mov_b64 exec, -1")
        if p["TADDR"] == 0:
            self.q_addresses()
            self.tail_addresses()
        self.ln_stats(ffn=True)
        e("s_branch L_PRO_J")
        e.vmq = list(q0)
        e.label("L_PRO_A")
        if p["CODEPF"] == 1:
            e(f"s_getpc_b64 s[86:87]")
            e.label("L_PC")
            e(f"s_and_b32 {T0}, {sIDX}, 3\ns_lshl_b32 {T0}, {T0}, 2\ns_add_u32 {T0}, {T0}, {sA}\ns_lshl_b32 {T0}, {T0}, 12")
            e(f"v_lshl_add_u32 v126, {vL}, 6, {T0}\nv_min_u32 v126, L_END-L_PC, v126\nv_mov_b32 v127, s87")
            e("v_add_co_u32 v126, vcc, s86, v126\ns_nop 1\nv_addc_co_u32 v127, vcc, 0, v127, vcc")
            e.vm("global_load_dword v251, v[126:127], off")
        if p["TLB0"]:
            e(f"s_mov_b64 exec, 1\nv_mov_b32 v126, 0")
            e.vm(f"buffer_load_dword v252, v126, {SKV}, 0 offen")
            e("s_mov_b64 exec, -1")
            if p["TLBU"] == -2:
                self.tlb_touch()
        self.ln_stats()
        e(f"s_or_b32 {T0}, s2, {sA}\ns_cmp_lg_u32 {T0}, 0\ns_cbranch_scc1 L_NOTAG\ns_or_b32 {T0}, s26, 1")
        e(f"v_mov_b32 v126, {T0}\nv_mov_b32 v127, s27\nv_mov_b32 v128, 0\ns_mov_b64 exec, 1\nbuffer_store_dwordx2 v[126:127], v128, {SDBG}, 0 offen sc1\ns_mov_b64 exec, -1")
        e.label("L_NOTAG")
        e(f"v_lshlrev_b32 v127, 2, {vL}\nv_add_u32 v127, {SYNC}, v127\nv_mov_b32 v128, 0\nds_write_b32 v127, v128")
        e.label("L_PRO_J")
        self.layernorm()

    def wrap_inc(self, reg, inc, mod):
        self.e(f"s_add_u32 {reg}, {reg}, {inc}\ns_cmp_eq_u32 {reg}, {mod}\ns_cselect_b32 {reg}, 0, {reg}")

    def pro_ffn(self):
        e = self.e
        e(f"s_mul_i32 {T2}, {sW}, 5\ns_lshl_b32 {T3}, {sW}, 2\ns_cmp_eq_u32 {sW}, 3\ns_cselect_b32 {T2}, 14, {T2}\ns_cselect_b32 {T3}, 13, {T3}")
        e(f"s_mul_i32 {sRING}, {sW}, {RSZ}\ns_add_u32 {sRING}, {sRING}, {RING}")
        e(f"v_lshrrev_b32 v125, 2, {vL}\nv_and_b32 v126, 3, {vL}")
        e(f"s_mul_i32 {T0}, {sJ}, 1152\ns_lshl_b32 {T1}, {T2}, 6\ns_add_u32 {T0}, {T0}, {T1}")
        e(f"v_mul_u32_u24 v216, 9216, v125\nv_lshl_add_u32 v216, v126, 4, v216\nv_add_u32 v216, {T0}, v216")
        nsl = self.p["NSL"]
        e(f"s_and_b32 {sROT}, {sRB}, {32//nsl - 1}\ns_mul_i32 {sROT}, {sROT}, {36*nsl*self.p['ROT']}\ns_lshr_b32 {sROT}, {sROT}, 5")
        G_ = self.p["ROTG"]
        if G_:
            e(f"s_and_b32 {sROT}, {sRB}, {32//nsl - 1}\ns_mul_i32 {sROT}, {sROT}, {G_*nsl}\ns_lshr_b32 {sROT}, {sROT}, 5\ns_mul_i32 {sROT}, {sROT}, {36//G_}")
        e(f"s_mul_i32 {sK}, {sROT}, 147456")
        e(f"s_mul_i32 {T0}, {sJ}, 144\ns_lshl_b32 {T1}, {sW}, 6\ns_add_u32 {T0}, {T0}, {T1}\ns_sub_u32 {T0}, {T0}, 128")
        e(f"v_mul_u32_u24 v224, 1152, v125\nv_lshl_add_u32 v224, v126, 4, v224\nv_add_u32 v224, {T0}, v224\ns_mul_i32 {sKQ}, {sROT}, {18432*self.p['QROT']}")
        if not self.p["W1LATE"]:
            self.first_loads()
        e(f"s_mul_i32 {T0}, {sJ}, 663552\ns_lshl_b32 {T1}, {T3}, 6\ns_add_u32 {T0}, {T0}, {T1}")
        e(f"v_mul_u32_u24 v217, 1152, v125\nv_lshl_add_u32 v217, v126, 4, v217\nv_add_u32 v217, {T0}, v217")
        e(f"v_lshrrev_b32 v127, 5, {vL}\nv_bfe_u32 v128, {vL}, 2, 2\nv_bfe_u32 v129, {vL}, 4, 1")
        e(f"v_lshlrev_b32 v129, 5, v129\nv_lshl_add_u32 v129, v126, 3, v129\nv_lshl_add_u32 v129, v128, 6, v129\nv_add_u32 v129, {sRING}, v129")
        e("v_lshl_add_u32 v218, v127, 9, v129\nv_lshl_add_u32 v219, v127, 8, v129")
        e(f"v_and_b32 v128, 31, {vL}\nv_lshlrev_b32 v128, 4, v128\nv_mul_u32_u24 v223, {CH}, v127\nv_add_u32 v223, v223, v128")
        e(f"s_mul_i32 {T0}, {T2}, {4*CH}\nv_add_u32 v221, {T0}, v223")
        e(f"s_lshl_b32 {T0}, {T3}, 15\ns_lshl_b32 {T1}, {sJ}, 10\ns_add_u32 {T0}, {T0}, {T1}\ns_add_u32 {T0}, {T0}, {sAR}")
        e(f"v_lshl_add_u32 v222, v127, 13, v128\nv_add_u32 v222, {T0}, v222")

    def q_addresses(self):
        e = self.e
        e(f"s_lshl_b32 {T2}, {sW}, 5\ns_sub_u32 {T2}, {T2}, 64\nv_lshrrev_b32 v170, 5, {vL}\nv_lshl_add_u32 v170, v170, 2, {T2}")
        e(f"v_and_b32 v171, 31, {vL}\nv_lshlrev_b32 v171, 4, v171\nv_add_u32 v171, {ATT}, v171")
        for pp in range(8):
            self.qaddr(f"v{196+pp}", "v170", 8 * (pp >> 1) + 2 * (pp & 1), "v171", "v172", "v173")

    def wo_addresses(self, base):
        e = self.e
        for i in range(5):
            e(f"v_add_u32 v160, {64*i}, {vL}\nv_mul_u32_u24 v161, 6554, v160\nv_lshrrev_b32 v161, 16, v161")
            e(f"v_mul_u32_u24 v162, 10, v161\nv_sub_u32 v162, v160, v162\nv_mul_u32_u24 v161, 1152, v161\nv_lshl_add_u32 v{base+i}, v162, 4, v161")

    def tail_addresses(self, wo=True):
        e = self.e
        if wo:
            self.wo_addresses(225)
        e(f"v_and_b32 v160, 15, {vL}\nv_lshrrev_b32 v161, 4, {vL}\ns_lshl_b32 {T0}, {sW}, 4\nv_add_u32 v162, {T0}, v160")
        e(f"v_and_b32 v163, 1, v161\nv_lshrrev_b32 v164, 1, v161")
        e(f"s_mul_i32 {T1}, {sJ}, 73728\ns_add_u32 {T0}, {sAR}, {T1}")
        e(f"v_lshl_add_u32 v165, v162, 4, {T0}\nv_lshl_add_u32 v240, v163, 13, v165\nv_lshl_add_u32 v240, v164, 10, v240\nv_lshl_add_u32 v241, v161, 10, v165")
        e(f"s_lshl_b32 {T0}, {sRB}, 6\nv_add_u32 v165, {T0}, v162\nv_mul_u32_u24 v165, 1152, v165\ns_mul_i32 {T0}, {sJ}, 144\nv_add_u32 v165, {T0}, v165")
        e(f"v_lshl_add_u32 v242, v161, 4, v165\nv_mov_b32 v166, {OOB}\nv_cmp_gt_u32 vcc, 2, v161\ns_nop 1\nv_cndmask_b32 v242, v166, v242, vcc")
        e(f"v_cmp_eq_u32 vcc, 0, v161\ns_nop 1\nv_cndmask_b32 v243, v166, v165, vcc")
        e(f"v_lshl_add_u32 v244, v163, 5, v165\nv_lshl_add_u32 v244, v164, 4, v244")
        e(f"v_lshl_add_u32 v245, v161, 3, v165\nv_cmp_gt_u32 vcc, 2, v161\ns_nop 1\nv_cndmask_b32 v245, v166, v245, vcc")
        e("v_lshlrev_b32 v166, 3, v163\nv_sub_u32 v166, v160, v166\nv_mov_b32 v167, 0x3f80\nv_mov_b32 v168, 0x3f800000")
        for base, src in ((232, "v166"), (236, "v160")):
            for r in range(4):
                e(f"v_cmp_eq_u32 vcc, {2*r}, {src}\nv_cmp_eq_u32 s[86:87], {2*r+1}, {src}\ns_nop 0\nv_cndmask_b32 v{base+r}, 0, v167, vcc")
                e(f"v_cndmask_b32 v{base+r}, v{base+r}, v168, s[86:87]")
        e(f"s_add_u32 {T0}, {sAR}, {OM}\nv_lshl_add_u32 v246, v162, 4, {T0}\nv_lshl_add_u32 v246, v161, 10, v246")
        e(f"s_add_u32 {T0}, {sAR}, {OX}\nv_lshl_add_u32 v247, v162, 4, {T0}\nv_lshl_add_u32 v247, v161, 10, v247")
        e(f"v_bfe_u32 v166, {vL}, 2, 2\nv_and_b32 v167, 3, {vL}\nv_mul_u32_u24 v168, 18, v164\nv_lshl_add_u32 v168, v163, 2, v168\nv_add_u32 v168, v168, v166")
        e("v_mul_u32_u24 v168, 160, v168\nv_lshl_add_u32 v248, v167, 3, v168")
        e("v_mul_u32_u24 v168, 72, v161\nv_lshrrev_b32 v169, 1, v166\nv_mul_u32_u24 v169, 18, v169\nv_and_b32 v166, 1, v166\nv_add3_u32 v168, v168, v169, v166")
        e("v_add_u32 v168, 16, v168\nv_mul_u32_u24 v168, 160, v168\nv_lshl_add_u32 v251, v167, 3, v168")
        e(f"v_mov_b32 v166, {OOB}\nv_cmp_gt_u32 vcc, 32, {vL}\ns_nop 1\nv_cndmask_b32 v241, v166, v241, vcc")

    def first_loads(self, lo=0, hi=15, lo2=None, hi2=None):
        e = self.e
        lo2, hi2 = lo if lo2 is None else lo2, hi if hi2 is None else hi2
        L, J = e.new("PFL"), e.new("PFJ")
        e(f"s_cmp_ge_u32 {sW}, 2\ns_cbranch_scc1 {L}")
        q0 = list(e.vmq)
        for i in range(lo, hi):
            s, pc = divmod(i, 5)
            e(f"s_add_u32 m0, {sRING}, {s*5120 + 960*pc}\ns_nop 0")
            e.vm(f"buffer_load_dwordx4 v216, {SW1}, {sK} offen offset:{64*pc} lds")
            if pc == 4:
                self.wrap_inc(sK, 147456, 36 * 147456)
        e(f"s_branch {J}")
        e.label(L)
        qa = e.vmq
        e.vmq = list(q0)
        for i in range(lo2, hi2):
            e(f"s_add_u32 m0, {sRING}, {1024*((i + 9) % 15)}\ns_nop 0")
            e.vm(f"buffer_load_dwordx4 v224, {SWQ}, {sKQ} offen lds")
            self.q_inc()
        e.label(J)
        if len(qa) < len(e.vmq):
            e.vmq = qa

    def q_inc(self):
        if self.p["QROT"]:
            self.wrap_inc(sKQ, 18432, 36 * 18432)
        else:
            self.e(f"s_add_u32 {sKQ}, {sKQ}, 18432")

    def q_gemm(self):
        e = self.e
        e.vmq = [("q", i) for i in range(15)]
        e.lgq = []
        rot = self.p["QROT"]
        e(f"s_mul_i32 {sBO}, {sROT}, 2080" if rot else f"v_add_u32 v220, {18*2080}, v223")

        def reads(i):
            r = 160 + 12 * (i % 3)
            vb, ob = ("v220", 0) if rot else (("v223", 2080 * i) if i < 18 else ("v220", 2080 * (i - 18)))
            if rot:
                e(f"v_add_u32 v220, {sBO}, v223")
            e.wait(vm=("q", i))
            o = 1024 * ((i + 9) % 15)
            e.lg(f"ds_read_b64_tr_b16 {vr(r,2)}, v218 offset:{o}", ("r", i))
            e.lg(f"ds_read_b64_tr_b16 {vr(r+2,2)}, v218 offset:{o+256}", ("r", i))
            e.lg(f"ds_read_b128 {vr(r+4,4)}, {vb} offset:{ob}", ("r", i))
            e.lg(f"ds_read_b128 {vr(r+8,4)}, {vb} offset:{ob+512}", ("r", i))
            if rot:
                self.wrap_inc(sBO, 2080, 36 * 2080)
        reads(0)
        reads(1)
        for i in range(36):
            r = 160 + 12 * (i % 3)
            sl = (i + 9) % 15
            e.wait(lg=("r", i))
            w1 = i >= 21 and sl % 5 < 4
            if i < 21 or w1:
                e(f"s_add_u32 m0, {sRING}, {1024*sl - (64*(sl % 5) if w1 else 0)}")
            e(f"v_mfma_f32_32x32x16_bf16 v[128:143], {vr(r,4)}, {vr(r+4,4)}, {'0' if i == 0 else 'v[128:143]'}")
            if i < 21:
                e.vm(f"buffer_load_dwordx4 v224, {SWQ}, {sKQ} offen lds", ("q", i + 15))
                self.q_inc()
            elif w1:
                e.vm(f"buffer_load_dwordx4 v216, {SW1}, {sK} offen offset:{64*(sl % 5)} lds")
                if sl % 5 == 3:
                    self.wrap_inc(sK, 147456, 36 * 147456)
            e(f"v_mfma_f32_32x32x16_bf16 v[144:159], {vr(r,4)}, {vr(r+8,4)}, {'0' if i == 0 else 'v[144:159]'}")
            if i + 2 < 36:
                reads(i + 2)
            if self.p["STAMP"] > 1 and i in (0, 6, 12, 18, 24, 30, 35):
                self.stamp(32 + (i + 1) // 6)

    def kv_loads(self):
        e = self.e
        e(f"s_cmp_ge_u32 {sJ}, 3\ns_cselect_b32 {T0}, 3, 0\ns_sub_u32 {T0}, {sJ}, {T0}\ns_cmp_ge_u32 {T0}, 3\ns_cselect_b32 {T0}, 0, {T0}")
        e(f"s_lshl_b32 {T1}, {T0}, 4\ns_min_u32 {T1}, {T1}, 20\nv_mul_u32_u24 v126, 36, {vL}\nv_add_u32 v126, {T1}, v126")
        e(f"s_mul_i32 {T2}, {sA}, 2304\ns_lshl_b32 {T3}, {sA}, 10\ns_add_u32 {T3}, {T3}, {KVW}")
        for i in range(2):
            e(f"s_add_u32 m0, {T3}, {4096*i}\ns_add_u32 {T0}, {T2}, {9216*i}")
            e.vm(f"buffer_load_dwordx4 v126, {SKV}, {T0} offen lds", "kvw")
        e(f"s_mov_b32 m0, {KVW + 8192}\ns_mov_b32 {T0}, {8*2304}")
        e.vm(f"buffer_load_dwordx4 v126, {SKV}, {T0} offen lds", "kvw")

    def pro_att(self):
        e, p = self.e, self.p
        if not p["KVEARLY"]:
            self.kv_loads()
        e(f"v_mul_u32_u24 v125, 1152, {vL}\ns_mul_i32 {T0}, {sJ}, 144\ns_add_u32 {T0}, {T0}, 128\nv_add_u32 v125, {T0}, v125")
        e(f"s_mul_i32 {T2}, {sA}, 73728\ns_lshl_b32 {T3}, {sA}, 10\ns_add_u32 {T3}, {T3}, {QE}")
        for i in range(2):
            e(f"s_add_u32 m0, {T3}, {4096*i}\ns_add_u32 {T0}, {T2}, {4*73728*i}")
            e.vm(f"buffer_load_dwordx4 v125, {SWQ}, {T0} offen lds", "ext")
        e(f"s_cmp_lg_u32 {sA}, 1\ns_cbranch_scc1 L_PA_2\ns_mov_b32 m0, {QE + 8192}\ns_mov_b32 {T0}, {8*73728}")
        e(f"buffer_load_dwordx4 v125, {SWQ}, {T0} offen lds")
        e.label("L_PA_2")
        nsl = p['NSL']
        if p["TLBW"] and p["TLBU"] == -1:
            self.tlb_touch()
        if p["WARMQ"]:
            rows = 18 * nsl
            e(f"s_lshl_b32 {T0}, {sA}, 6\nv_add_u32 v126, {T0}, {vL}\nv_lshrrev_b32 v127, 2, v126\nv_and_b32 v128, 3, v126\nv_mul_u32_u24 v127, 1152, v127")
            e(f"v_cmp_gt_u32 vcc, {4*rows}, v126\nv_mul_u32_u24 v128, 52, v128\nv_add_u32 v127, v127, v128\nv_mov_b32 v128, {OOB}\nv_cndmask_b32 v127, v128, v127, vcc")
            e(f"s_and_b32 {T1}, {sRB}, {32//nsl - 1}\ns_mul_i32 {T1}, {T1}, {rows*1152}\ns_mul_i32 {T0}, {sJ}, 144\ns_add_u32 {T1}, {T1}, {T0}")
            e.vm(f"buffer_load_dword v252, v127, {SWQ}, {T1} offen")
            e.vm(f"buffer_load_dword v253, v127, {SWO}, {T1} offen")

    def tlb_touch(self):
        e, p = self.e, self.p
        e(f"s_mov_b64 exec, 7\ns_cmp_eq_u32 {sA}, 1\ns_cbranch_scc1 L_TLB1\ns_cmp_eq_u32 {sA}, 2\ns_cbranch_scc1 L_TLB2\ns_cmp_eq_u32 {sA}, 3\ns_cbranch_scc1 L_TLB3")
        if p["TLBW"] == 1:
            e(f"v_mul_u32_u24 v126, {ASZ - 64}, {vL}\nv_cmp_eq_u32 vcc, 2, {vL}\nv_add_u32 v126, {sAR}, v126\ns_nop 0\nv_cndmask_b32 v126, v126, 0, vcc")
        else:
            e(f"s_mov_b64 exec, 0xfff\nv_lshlrev_b32 v126, 21, {vL}\nv_add_u32 v126, 0x30000, v126")
        e(f"buffer_load_dword v253, v126, {SWS}, 0 offen\ns_branch L_TLBD")
        e.label("L_TLB1")
        e(f"s_mul_i32 {T1}, {sJ}, 663552\nv_mul_u32_u24 v126, 331000, {vL}\nbuffer_load_dword v253, v126, {SW2}, {T1} offen\ns_branch L_TLBD")
        e.label("L_TLB2")
        e(f"s_mul_i32 {T0}, {sRB}, 73728\nv_mul_u32_u24 v126, 36000, {vL}\nbuffer_load_dword v253, v126, {SOUT}, {T0} offen\ns_branch L_TLBD")
        e.label("L_TLB3")
        e(f"v_mov_b32 v126, 0")
        e.vm(f"buffer_load_dword v253, v126, {SDBG if p['TLBW'] == 1 else SWO}, 0 offen offset:128")
        e.label("L_TLBD")
        e("s_mov_b64 exec, -1")

    def ln_stats(self, ffn=False):
        e = self.e
        e("v_mov_b32 v112, 0\nv_mov_b32 v113, 0\nv_mov_b32 v114, 0\nv_mov_b32 v115, 0\ns_mov_b32 s85, 0x3f803f80\ns_mov_b32 s86, 0xffff0000")
        for u in range(9):
            e.wait(vm=("x", u))
            if u == 0:
                self.stamp(1)
                if ffn and self.p["W1LATE"] == 1:
                    self.first_loads()
            if ffn and self.p["W1LATE"] == 2 and u in (1, 3, 5, 7, 8):
                n = (1, 3, 5, 7, 8).index(u)
                self.first_loads(3 * n, 3 * n + 3)
            if not ffn and self.p["TLBW"] and u == self.p["TLBU"]:
                self.tlb_touch()
            if not ffn and self.p["KVEARLY"] and u == self.p["KVU"]:
                self.kv_loads()
            if not ffn and u == self.p["EXTU"] and not self.p["KVEARLY"]:
                self.pro_att()
            if u == 8:
                self.stamp(30)
            if ffn and self.p["W1LATE"] == 3 and u == 8:
                self.first_loads()
            if ffn and self.p["W1LATE"] == 4 and u == self.p.get("PREU", 8) and self.p["PRE"]:
                self.first_loads(0, self.p["PRE"], 0, self.p["PREL"])
            for k in range(4):
                r = 4 * u + k
                e(f"v_dot2_f32_bf16 v{112+(k&1)}, v{r}, s85, v{112+(k&1)}")
                e(f"v_lshlrev_b32 v{40+2*r}, 16, v{r}")
                e(f"v_dot2_f32_bf16 v{114+(k&1)}, v{r}, v{r}, v{114+(k&1)}")
                e(f"v_and_b32 v{41+2*r}, s86, v{r}")

    def layernorm(self):
        e = self.e
        self.stamp(14)
        e("s_nop 2\nv_add_f32 v112, v112, v113\nv_add_f32 v114, v114, v115\ns_nop 1")
        for m in ("quad_perm:[1,0,3,2]", "quad_perm:[2,3,0,1]", "row_half_mirror"):
            e(f"v_add_f32_dpp v112, v112, v112 {m} row_mask:0xf bank_mask:0xf")
            e(f"v_add_f32_dpp v114, v114, v114 {m} row_mask:0xf bank_mask:0xf\ns_nop 1")
        inv = f"{f2u(1.0/576):#x}"
        e(f"v_mul_f32 v112, {inv}, v112\nv_mul_f32 v114, {inv}, v114\nv_fma_f32 v114, -v112, v112, v114\nv_max_f32 v114, 0, v114")
        e(f"v_add_f32 v114, {f2u(1e-5):#x}, v114\nv_rsq_f32 v114, v114\ns_nop 0\nv_mul_f32 v114, {sNL2E}, v114\nv_mul_f32 v112, v112, v114")
        for u in range(9):
            for k in range(0, 8, 2 if self.p["PKLN"] else 1):
                r = 40 + 8 * u + k
                if self.p["PKLN"]:
                    e(f"v_pk_fma_f32 v[{r}:{r+1}], v[{r}:{r+1}], v[114:115], v[112:113] op_sel_hi:[1,0,0] neg_lo:[0,0,1] neg_hi:[0,0,1]")
                else:
                    e(f"v_fma_f32 v{r}, v{r}, v114, -v112")
            for k in range(4):
                e(f"v_cvt_pk_bf16_f32 v{4*u+k}, v{40+8*u+2*k}, v{41+8*u+2*k}")
            if u < 8:
                e(f"ds_write_b128 v123, v[{4*u}:{4*u+3}] offset:{8*CH*u}")
            else:
                e(f"ds_write_b128 v124, v[{4*u}:{4*u+3}] offset:{8*CH*7}")
        self.stamp(15)
        e(f"s_cmp_ge_u32 {sW}, 4\ns_cbranch_scc1 L_ATT")
        if self.p["RESTB"]:
            self.first_loads(self.p["PRE"], self.p["RESTB"], self.p["PREL"], self.p["RESTB"])
        if self.p["TADDR"] in (1, 3):
            self.q_addresses()
        if self.p["TADDR"] == 1:
            self.tail_addresses()
        e("s_waitcnt lgkmcnt(0)\ns_barrier")

    def gemm(self, T, which, Tn):
        e = self.e
        vT = "v218" if which == 1 else "v219"
        sec = 256 if which == 1 else 512
        vD, SW, kstride = ("v216", SW1, 147456) if which == 1 else ("v217", SW2, 18432)

        def areg(buf, pc):
            return 160 + 20 * buf + 4 * pc

        def breg(buf, rt):
            return 200 + 8 * buf + 4 * rt

        def reads(s, pc):
            if pc < 2:
                e.lg(f"ds_read_b128 {vr(breg(s&1,pc),4)}, v220 offset:{512*pc}", ("B", s, pc))
            o = (s % 3) * 5120 + 1024 * pc
            e.lg(f"ds_read_b64_tr_b16 {vr(areg(s&1,pc),2)}, {vT} offset:{o}", ("A", s, pc))
            e.lg(f"ds_read_b64_tr_b16 {vr(areg(s&1,pc)+2,2)}, {vT} offset:{o+sec}", ("A", s, pc))

        def dma_list(s):
            sn = s + 3
            if sn < 36:
                return [(vD, SW, pc, ("d", sn, pc)) for pc in range(T)]
            if which == 1:
                return [("v217", SW2, pc, ("d2", sn - 36, pc)) for pc in range(Tn)]
            return []

        def step(s, first=False):
            dl = dma_list(s)
            if which == 1 and s == 33:
                e(f"s_mul_i32 {sK}, {sROT}, 18432")
            for gi in range(2 * T):
                pc, rt = gi >> 1, gi & 1
                mine = []
                if rt == 0:
                    mine = [d for d in dl if d[2] == pc or (pc == T - 1 and d[2] > pc)]
                e.wait(lg=[("A", s, pc), ("B", s, 0)] if gi == 0 else ([("B", s, 1)] if gi == 1 else [("A", s, pc)]))
                if mine:
                    e(f"s_add_u32 m0, {sRING}, {(s % 3)*5120 + 960*mine[0][2]}")
                acc = vr(16 * gi, 16)
                e(f"v_mfma_f32_32x32x16_bf16 {acc}, {vr(areg(s&1,pc),4)}, {vr(breg(s&1,rt),4)}, {'0' if first else acc}")
                for n, d in enumerate(mine):
                    if n:
                        e(f"s_add_u32 m0, {sRING}, {(s % 3)*5120 + 960*d[2]}\ns_nop 0")
                    e.vm(f"buffer_load_dwordx4 {d[0]}, {d[1]}, {sK} offen offset:{64*d[2]} lds", d[3])
                if rt == 1 and s + 1 < 36:
                    if pc == 0:
                        e(f"v_add_u32 v220, {sBO}, v223")
                    e.wait(vm=("d", s + 1, pc))
                    reads(s + 1, pc)
                if gi == 2 * T - 3 and s + 2 < 36:
                    self.wrap_inc(sBO, 2080, 36 * 2080)
            if s <= 32:
                self.wrap_inc(sK, kstride, 36 * kstride)
            elif which == 1:
                self.wrap_inc(sK, 18432, 36 * 18432)

        e.vmq = [("d", s, pc) for s in range(3) for pc in range(T)]
        e(f"s_mul_i32 {sBO}, {sROT}, 2080\nv_add_u32 v220, {sBO}, v223")
        self.wrap_inc(sBO, 2080, 36 * 2080)
        e.wait(vm=("d", 0, T - 1))
        e.lgq = []
        for pc in range(T):
            reads(0, pc)
        main = e.lines
        texts = []
        for s in range(36):
            e.lines = []
            step(s, first=(s == 0))
            texts.append(e.lines)
        e.lines = main
        for s in range(1, 27):
            assert texts[s] == texts[s + 6], (s, texts[s], texts[s + 6])
        tag = f"G{which}T{T}"
        e.lines += texts[0]
        e(f"s_mov_b32 {sCNT}, 0\ns_branch L_{tag}_1")
        e(".p2align 3")
        e.label(f"L_{tag}_3")
        if self.p["STAMP"] > 1:
            e(f"s_memrealtime s[88:89]\ns_memtime s[90:91]\ns_add_u32 m0, {sCNT}, {8*which+8}\ns_waitcnt lgkmcnt(0)\nv_writelane_b32 v255, s88, m0\nv_writelane_b32 v254, s90, m0")
        for s in (3, 4, 5, 6):
            e.lines += texts[s]
        e.label(f"L_{tag}_1")
        e.lines += texts[7] + texts[8]
        e(f"s_add_u32 {sCNT}, {sCNT}, 1\ns_cmp_lt_u32 {sCNT}, 6\ns_cbranch_scc1 L_{tag}_3")
        for s in (33, 34, 35):
            e.lines += texts[s]

    def silu(self, T):
        e = self.e
        for g in range(4 * T):
            b = 8 * g
            t = 160 + 8 * (g & 1)
            if self.p.get("X_NOSILU"):
                for k in range(4):
                    e(f"v_cvt_pk_bf16_f32 v{b+k}, v{b+2*k}, v{b+2*k+1}")
                continue
            for k in range(8):
                e(f"v_exp_f32 v{t+k}, v{b+k}")
            pk = self.p["PKSILU"]
            for k in range(0, 8, 2 if pk else 1):
                e(f"v_pk_add_f32 v[{t+k}:{t+k+1}], v[{t+k}:{t+k+1}], 1.0 op_sel_hi:[1,0]" if pk else f"v_add_f32 v{t+k}, 1.0, v{t+k}")
            for k in range(8):
                e(f"v_rcp_f32 v{t+k}, v{t+k}")
            for k in range(0, 8, 2 if pk else 1):
                e(f"v_pk_mul_f32 v[{t+k}:{t+k+1}], v[{b+k}:{b+k+1}], v[{t+k}:{t+k+1}]" if pk else f"v_mul_f32 v{t+k}, v{b+k}, v{t+k}")
            for k in range(4):
                e(f"v_cvt_pk_bf16_f32 v{b+k}, v{t+2*k}, v{t+2*k+1}")

    def q_out(self):
        e = self.e
        c = f"{f2u(1.0 / (math.log2(math.e) * math.sqrt(18.0))):#x}"
        if self.p["TADDR"] in (2, 4):
            self.q_addresses()
        e(f"s_mov_b32 {T3}, {c}")
        self.lds_wait(C_A, 4, "v252", "v253")
        e.nop(5)
        e(f"v_mov_b32 v174, {T3}")
        for r in range(128, 160, 2):
            e(f"v_pk_mul_f32 v[{r}:{r+1}], v[{r}:{r+1}], v[174:175] op_sel_hi:[1,0]")
        for k in range(16):
            e(f"v_cvt_pk_bf16_f32 v{128+k}, v{128+2*k}, v{129+2*k}")
        for rt in range(2):
            for pp in range(8):
                e.lg(f"ds_write_b32 v{196+pp}, v{128+8*rt+pp} offset:{1536*rt}")
        e.wait_all(lg=True)
        self.arrive(C_B, "v252", "v253")

    def qaddr(self, dst, vc, cadd, vbase, t0, t1):
        e = self.e
        e(f"v_add_u32 {t0}, {cadd}, {vc}\nv_mul_u32_u24 {t1}, 3641, {t0}\nv_lshrrev_b32 {t1}, 16, {t1}")
        e(f"v_mul_u32_u24 {dst}, 18, {t1}\nv_sub_u32 {t0}, {t0}, {dst}\nv_mul_u32_u24 {dst}, 3072, {t1}\nv_lshrrev_b32 {t1}, 3, {t0}\nv_lshl_add_u32 {dst}, {t1}, 9, {dst}")
        e(f"v_and_b32 {t0}, 7, {t0}\nv_lshl_add_u32 {dst}, {t0}, 1, {dst}\nv_add_u32 {dst}, {vbase}, {dst}")

    def ffn_path(self, T1_, T2_):
        e, p = self.e, self.p
        if T1_ == 4:
            self.q_gemm()
            self.q_out()
            self.stamp(13)
        self.gemm(T1_, 1, T2_)
        self.arrive(C_XN, "v252", "v253")
        self.stamp(3)
        if p["WARMO"]:
            nsl = p["NSL"]
            rows = 18 * nsl
            e(f"s_lshl_b32 {T0}, {sW}, 6\nv_add_u32 v176, {T0}, {vL}\nv_lshrrev_b32 v177, 2, v176\nv_and_b32 v178, 3, v176\nv_mul_u32_u24 v177, 1152, v177")
            e(f"v_cmp_gt_u32 vcc, {4*rows}, v176\nv_mul_u32_u24 v178, 52, v178\nv_add_u32 v177, v177, v178\nv_mov_b32 v178, {OOB}\nv_cndmask_b32 v177, v178, v177, vcc")
            e(f"s_and_b32 {T1}, {sRB}, {32//nsl - 1}\ns_mul_i32 {T1}, {T1}, {rows*1152}\ns_mul_i32 {T0}, {sJ}, 144\ns_add_u32 {T1}, {T1}, {T0}")
            e(f"buffer_load_dword v230, v177, {SWO}, {T1} offen")
        e.nop(2)
        self.silu(T1_)
        self.stamp(4)
        if p["TADDR"] == 4:
            self.tail_addresses()
        self.lds_wait(C_XN, 8, "v252", "v253")
        for u in range(2 * T1_):
            pc, rt = u >> 1, u & 1
            for hf in range(2):
                e.lg(f"ds_write_b128 v221, {vr(16*u+8*hf,4)} offset:{(4*pc+2*hf)*CH + 512*rt}")
        e.wait_all(lg=True)
        self.arrive(C_H, "v252", "v253")
        self.lds_wait(C_H, 4, "v252", "v253")
        self.stamp(5)
        self.gemm(T2_, 2, 0)
        self.arrive(C_G2, "v252", "v253")
        if p["PRIO_T"] != p["PRIO_F"]:
            e(f"s_setprio {p['PRIO_T']}")
        self.stamp(6)
        if p["SENT"] and T2_ == 4:
            e(f"s_lshl_b32 {T0}, {sJ}, 13\ns_lshl_b32 {T1}, {sW}, 12\ns_add_u32 {T0}, {T0}, {T1}\ns_add_u32 {T0}, {T0}, {sAR}\ns_add_u32 {T0}, {T0}, {OM}")
            e(f"s_lshl_b32 {T1}, {sJ}, 10\ns_add_u32 {T1}, {T1}, {sAR}\ns_add_u32 {T1}, {T1}, {OX}\nv_lshlrev_b32 v168, 4, {vL}")
            e("v_mov_b32 v172, -1\nv_mov_b32 v173, -1\nv_mov_b32 v174, -1\nv_mov_b32 v175, -1")
            for q in range(4):
                e(f"buffer_store_dwordx4 v[172:175], v168, {SWS}, {T0} offen offset:{1024*q} sc1")
            e(f"buffer_store_dwordx4 v[172:175], v168, {SWS}, {T1} offen sc1")
        e.nop(2)
        for u in range(2 * T2_):
            pc, rt = u >> 1, u & 1
            b = 16 * u
            for k in range(8):
                e(f"v_cvt_pk_bf16_f32 v{b+k}, v{b+2*k}, v{b+2*k+1}")
            e(f"s_mov_b32 {T0}, {(4*pc)*8192}\ns_mov_b32 {T1}, {(4*pc+2)*8192}")
            e(f"v_permlane32_swap_b32 v{b}, v{b+2}\nv_permlane32_swap_b32 v{b+1}, v{b+3}")
            e(f"v_permlane32_swap_b32 v{b+4}, v{b+6}\nv_permlane32_swap_b32 v{b+5}, v{b+7}")
            e.vm(f"buffer_store_dwordx4 {vr(b,4)}, v222, {SWS}, {T0} offen offset:{512*rt} sc1", "pst")
            e.vm(f"buffer_store_dwordx4 {vr(b+4,4)}, v222, {SWS}, {T1} offen offset:{512*rt} sc1", "pst")
            if p["PACE"]:
                e(f"s_waitcnt vmcnt({p['PACE']})")

    def ffn(self):
        e, p = self.e, self.p
        if p["W1LATE"] == 4 and p["RESTB"] < 15:
            self.first_loads(p["RESTB"] or p["PRE"], 15, p["RESTB"] or p["PREL"], 15)
        self.stamp(2)
        if p["PRIO_F"]:
            e(f"s_setprio {p['PRIO_F']}")
        e(f"s_cmp_ge_u32 {sW}, 2\ns_cbranch_scc1 L_FFN_L")
        self.ffn_path(5, 4)
        e("s_branch L_FFN_J")
        e.label("L_FFN_L")
        self.ffn_path(4, 5)
        e.label("L_FFN_J")
        e("s_setprio 0")
        self.stamp(7)
        self.ffn_tail()

    def partials_dyn(self):
        e, p = self.e, self.p
        for r in range(20):
            e(f"v_mov_b32 v{r}, 0")
        e(f"s_add_u32 {T3}, {sAR}, {FLAGS + F_P}\ns_mov_b32 {T4}, 0x55")
        oo = p["OORD"]
        if oo == 1:
            e(f"s_or_b32 {sNT}, {sJ}, 1\ns_add_u32 {sNT}, {sNT}, 1\ns_mov_b32 {sNL}, 0")
        e(f"v_and_b32 v231, 7, {vL}\nv_lshlrev_b32 v231, 3, v231\ns_mov_b32 {sSPIN}, 0")
        e.label("L_PD_POLL")
        e(f"buffer_load_dwordx2 v[252:253], v231, {SWS}, {T3} offen sc1\ns_waitcnt vmcnt(0)")
        e(f"v_xor_b32 v252, {sN0}, v252\nv_xor_b32 v253, {sN1}, v253\nv_or_b32 v252, v252, v253\nv_cmp_eq_u32 vcc, 0, v252\ns_add_u32 {sSPIN}, {sSPIN}, 1\ns_nop 1")
        e(f"s_lshr_b32 {T2}, vcc_lo, 1\ns_and_b32 {T2}, {T2}, vcc_lo")
        if oo:
            e(f"s_lshr_b32 {T2}, {T2}, {sNT}")
        e(f"s_cmp_ge_u32 {sSPIN}, {p['SPIN']}\ns_cselect_b32 {T2}, -1, {T2}\ns_and_b32 {T2}, {T2}, {T4}\ns_cbranch_scc1 L_PD_GO\ns_sleep 4\ns_branch L_PD_POLL")
        e.label("L_PD_GO")

        def ploads(b):
            e(f"s_ff1_i32_b32 {T1}, {T2}\ns_bitset0_b32 {T2}, {T1}\ns_bitset0_b32 {T4}, {T1}")
            if oo == 1:
                e(f"s_add_u32 {T1}, {T1}, {sNT}\ns_and_b32 {T1}, {T1}, 7\ns_lshl_b32 {sNL}, {sNL}, 3\ns_or_b32 {sNL}, {sNL}, {T1}")
            if oo == 2:
                e(f"s_add_u32 {T0}, {T1}, {sNT}\ns_and_b32 {T0}, {T0}, 7\ns_lshl_b32 {sCNT}, {sNL}, 3\ns_or_b32 {sCNT}, {sCNT}, {T0}")
                e(f"s_bitcmp1_b32 {sREC}, {T1}\ns_cselect_b32 {sNL}, {sNL}, {sCNT}\ns_mov_b32 {T1}, {T0}")
            e(f"s_lshl_b32 {T1}, {T1}, 10")
            for a in range(5):
                e(f"s_add_u32 {T0}, {T1}, {a*16384}")
                e.vm(f"buffer_load_dwordx4 {vr(20+20*b+4*a,4)}, {'v240' if a < 4 else 'v241'}, {SWS}, {T0} offen sc1", ("pl", b, a))

        def padd(b):
            for a in range(5):
                e.wait(vm=("pl", b, a))
                e(f"v_mfma_f32_16x16x32_bf16 {vr(4*a,4)}, {vr(232 if a < 4 else 236,4)}, {vr(20+20*b+4*a,4)}, {vr(4*a,4)}")
        e.vmq = []
        ploads(0)
        if p["DYNP"] == 2:
            e(f"s_cmp_eq_u32 {T2}, 0\ns_cbranch_scc1 L_PD_ONE")
            q0 = list(e.vmq)
            ploads(1)
            padd(0)
            padd(1)
            e("s_branch L_PD_J")
            e.label("L_PD_ONE")
            e.vmq = q0
        padd(0)
        e.label("L_PD_J")
        e(f"s_cmp_lg_u32 {T2}, 0\ns_cbranch_scc1 L_PD_GO\ns_cmp_lg_u32 {T4}, 0\ns_cbranch_scc1 L_PD_POLL")
        self.stamp(8)

    def ffn_tail(self):
        e, p = self.e, self.p
        e.vmq = ["pst"]
        if p["TADDR"] in (2, 3):
            self.tail_addresses()
        ws = p["WOS"]
        e(f"s_mul_i32 {T2}, {sW}, {ws}\ns_cmp_eq_u32 {sW}, 3\ns_cselect_b32 {T2}, {9 + ws}, {T2}")
        e(f"s_mul_i32 {T3}, {T2}, 5120\ns_mul_i32 {T2}, {T2}, 36864\ns_mul_i32 {T4}, {sJ}, 144\ns_add_u32 {T2}, {T2}, {T4}")
        e("s_waitcnt vmcnt(0)")
        self.arrive(C_P, "v252", "v253", rtn=T4)
        self.get_nonce("v231", 252)
        e(f"s_cmp_lg_u32 {T4}, 3\ns_cbranch_scc1 L_NOPF")
        self.flag_set(F_P, sJ, "v231", 252)
        e.label("L_NOPF")
        if p["OORD"] == 2:
            e(f"s_or_b32 {sNT}, {sJ}, 1\ns_add_u32 {sNT}, {sNT}, 1\ns_mov_b32 {sNL}, 0\ns_add_u32 {T0}, {sAR}, {FLAGS + F_P}")
            e(f"v_and_b32 v231, 7, {vL}\nv_lshlrev_b32 v231, 3, v231\nbuffer_load_dwordx2 v[252:253], v231, {SWS}, {T0} offen sc1\ns_waitcnt vmcnt(0)")
            e(f"v_xor_b32 v252, {sN0}, v252\nv_xor_b32 v253, {sN1}, v253\nv_or_b32 v252, v252, v253\nv_cmp_eq_u32 vcc, 0, v252\ns_nop 1")
            e(f"s_lshr_b32 {T4}, vcc_lo, 1\ns_and_b32 {T4}, {T4}, vcc_lo\ns_lshr_b32 {T4}, {T4}, {sNT}\ns_and_b32 {T4}, {T4}, 0x15\ns_or_b32 {T4}, {T4}, 0x40")
            e(f"s_mov_b32 {sREC}, {T4}\ns_cmp_eq_u32 {T4}, 0x55\ns_cselect_b32 {sEARLY}, {p['OEARLY']}, 0")
            e.label("L_ORD")
            e(f"s_ff1_i32_b32 {T1}, {T4}\ns_bitset0_b32 {T4}, {T1}\ns_add_u32 {T1}, {T1}, {sNT}\ns_and_b32 {T1}, {T1}, 7\ns_lshl_b32 {sNL}, {sNL}, 3\ns_or_b32 {sNL}, {sNL}, {T1}\ns_cmp_lg_u32 {T4}, 0\ns_cbranch_scc1 L_ORD")
        self.lds_wait(C_G2, 4, "v252", "v253")
        e(f"s_cmp_ge_u32 {sW}, 2\ns_cselect_b32 {sCNT}, {9 - ws}, {ws}")
        if ws == 9:
            e("s_cbranch_scc1 L_WO_D")
        e.label("L_WO_L")
        for i in range(5):
            e(f"s_add_u32 m0, {T3}, {i*1024}\ns_nop 0")
            e(f"buffer_load_dwordx4 v{225+i}, {SWO}, {T2} offen lds")
        e(f"s_add_u32 {T3}, {T3}, 5120\ns_add_u32 {T2}, {T2}, 36864\ns_waitcnt vmcnt({p['PACE3']})\ns_sub_u32 {sCNT}, {sCNT}, 1\ns_cmp_lg_u32 {sCNT}, 0\ns_cbranch_scc1 L_WO_L")
        e.label("L_WO_D")
        for a in range(5):
            e.vm(f"buffer_load_dwordx4 {vr(60+4*a,4)}, {'v242' if a < 4 else 'v243'}, {SX}, 0 offen offset:{32*a}", ("xr", a))
        e.wait_all(vm=True)
        self.arrive(C_WO, "v252", "v253")
        sG = ("s74", "s75", "s76", "s97")
        vG = ("v225", "v226", "v227", "v228")

        def group_addr():
            for b in range(4):
                if p["OORD"]:
                    e(f"s_bfe_u32 {T0}, {sNL}, {(2 << 16) | (3*(3-b) + 1)}")
                else:
                    e(f"s_lshr_b32 {T0}, {sJ}, 1\ns_add_u32 {T0}, {T0}, {b+p['OROT']}\ns_and_b32 {T0}, {T0}, 3")
                e(f"s_lshl_b32 {sG[b]}, {T0}, 14\ns_mul_i32 {T0}, {T0}, 23040\nv_add_u32 {vG[b]}, {T0}, v248")

        det = p["OORD"] == 2
        NA, AB, OB = (13, 172, 100) if det else (33, 92, 20)

        def aop(i):
            kk, t = divmod(i, 5)
            r = AB + 4 * (i % NA)
            if kk < 16:
                va, o, sec = vG[kk >> 2], (kk & 3) * 5760 + 32 * t, 1280
            else:
                va, o, sec = "v251", (kk - 16) * 46080 + 32 * t, 5760
            e.lg(f"ds_read_b64_tr_b16 {vr(r,2)}, {va} offset:{o}", ("a", i))
            e.lg(f"ds_read_b64_tr_b16 {vr(r+2,2)}, {va} offset:{o+sec}", ("a", i))

        def pre_reads():
            group_addr()
            self.lds_wait(C_WO, 4, "v252", "v253")
            for i in range(NA):
                aop(i)
        prea = p["PREA"] and not p["OORD"]
        if prea:
            pre_reads()
        self.partials_dyn()
        e(f"s_mov_b32 {T0}, {f2u(-math.log(2.0)):#x}")
        e.nop(6)
        for r in range(20):
            e(f"v_mul_f32 v{r}, {T0}, v{r}")
        for a in range(5):
            e(f"v_mfma_f32_16x16x32_bf16 {vr(4*a,4)}, {vr(232 if a < 4 else 236,4)}, {vr(60+4*a,4)}, {vr(4*a,4)}")
        if not prea:
            pre_reads()
        e.wait_all(lg=True)
        self.stamp(9)

        def oload(kk, track=True):
            if kk < 16:
                e(f"s_add_u32 {T0}, {sG[kk >> 2]}, {(kk & 3)*4096}")
            else:
                e(f"s_mov_b32 {T0}, {(kk - 16)*4096}")
            va = ("v246" if kk < 16 else "v247") if not det or kk < 12 else ("v229" if kk < 16 else "v230")
            ins = f"buffer_load_dwordx4 {vr(OB+4*kk,4)}, {va}, {SWS}, {T0} offen sc1"
            e.vm(ins, ("o", kk)) if track else e(ins)

        def ocheck(kk):
            b = OB + 4 * kk
            return [f"v_max3_u32 v252, v{b}, v{b+1}, v{b+2}", f"v_max_u32 v252, v252, v{b+3}", "v_cmp_eq_u32 vcc, -1, v252"]
        om = p["OMODE"]
        if det:
            e(f"s_cmp_lg_u32 {sEARLY}, 0\ns_cbranch_scc1 L_OE")
            self.lds_wait(C_O, 4, "v252", "v253", sleep=2)
            e("v_mov_b32 v229, v246\nv_mov_b32 v230, v247\ns_branch L_OE_J")
            e.label("L_OE")
            self.lds_wait(C_L, 4, "v252", "v253", sleep=2)
            e(f"v_mov_b32 v229, {OOB}\nv_mov_b32 v230, {OOB}")
            e.label("L_OE_J")
        elif om in (0, 4):
            self.lds_wait(C_O, 4, "v252", "v253", sleep=2)
            self.flag_wait(F_O, 32, "v241", 252)
        else:
            e(f"v_bfe_u32 v241, {vL}, 2, 3\nv_lshlrev_b32 v241, 10, v241\nv_and_b32 v252, 3, {vL}\nv_lshl_add_u32 v241, v252, 2, v241\ns_add_u32 {T2}, {sAR}, {OX + 1008}")
            self.lds_wait(C_O, 4, "v252", "v253", sleep=2)
            if om == 1:
                e(f"s_mov_b32 {sSPIN}, 0")
                e.label("L_HINT")
                e(f"buffer_load_dword v252, v241, {SWS}, {T2} offen sc1\ns_waitcnt vmcnt(0)\nv_cmp_eq_u32 vcc, -1, v252\ns_add_u32 {sSPIN}, {sSPIN}, 1\ns_nop 3")
                e(f"s_cbranch_vccz L_HINT_D\ns_cmp_lt_u32 {sSPIN}, {p['SPIN']}\ns_cbranch_scc1 L_HINT")
                e.label("L_HINT_D")
        e(f"s_mov_b32 {sSPIN}, 0")
        self.stamp(10)
        e.vmq = []
        for kk in range(18):
            oload(kk)
        e.wait(vm=("o", 0))
        e("\n".join(ocheck(0)) + "\ns_nop 4")
        for i in range(90):
            kk, t = divmod(i, 5)
            if t == 0:
                if det and kk == 12:
                    e(f"s_cmp_lg_u32 {sEARLY}, 0\ns_cbranch_scc1 L_OE12")
                e(f"s_cbranch_vccnz L_OS_{kk}")
                e.label(f"L_OR_{kk}")
                if p["STAMP"] > 1 and kk in (0, 4, 8, 12, 16):
                    e(f"s_memrealtime s[88:89]\ns_waitcnt lgkmcnt(0)\nv_writelane_b32 v255, s88, {40 + kk // 4}\nv_writelane_b32 v254, {sSPIN}, {40 + kk // 4}")
                    e.lgq = []
            e.wait(vm=("o", kk), lg=("a", i))
            acc = vr(20 + 20 * (kk >> 2) + 4 * t, 4) if det and kk < 16 else vr(4 * t, 4)
            e(f"v_mfma_f32_16x16x32_bf16 {acc}, {vr(AB+4*(i % NA),4)}, {vr(OB+4*kk,4)}, {'0' if det and kk < 16 and kk % 4 == 0 else acc}")
            if i >= 1 and i - 1 + NA < 90:
                aop(i - 1 + NA)
            if t < 3 and kk < 17:
                e.wait(vm=("o", kk + 1))
                e(ocheck(kk + 1)[t])
        main, e.lines = e.lines, []
        if det:
            e.label("L_OE12")
            lq = list(e.lgq)
            self.lds_wait(C_O, 4, "v252", "v253")
            e.lgq = lq
            e(f"s_mov_b32 {sSPIN}, 0\nv_mov_b32 v229, v246\nv_mov_b32 v230, v247\ns_branch L_OS_12")
        for kk in range(18):
            e.label(f"L_OS_{kk}")
            allk = om == 2
            for k2 in range(kk, (kk | 3) + 1 if kk < 16 and not allk else 18):
                oload(k2, track=False)
            e(f"s_add_u32 {sSPIN}, {sSPIN}, 1\ns_waitcnt vmcnt({17 - kk if allk else 0})")
            e("\n".join(ocheck(kk)) + f"\ns_cmp_ge_u32 {sSPIN}, {p['SPIN']}\ns_nop 3\ns_cbranch_scc1 L_OR_{kk}\ns_cbranch_vccnz L_OS_{kk}\ns_branch L_OR_{kk}")
        self.stubs = e.lines
        e.lines = main
        if det:
            def padd2(a, b):
                for r in range(0, 20, 2):
                    e(f"v_pk_add_f32 v[{a+r}:{a+r+1}], v[{a+r}:{a+r+1}], v[{b+r}:{b+r+1}]")
            e(f"s_bfe_u32 {T0}, {sNL}, {(2 << 16) | 10}\ns_xor_b32 {T0}, {T0}, 1\ns_bfe_u32 {T1}, {sNL}, {(2 << 16) | 7}\ns_cmp_eq_u32 {T0}, {T1}\ns_cbranch_scc1 L_CB1")
            e(f"s_bfe_u32 {T1}, {sNL}, {(2 << 16) | 4}\ns_cmp_eq_u32 {T0}, {T1}\ns_cbranch_scc1 L_CB2")
            padd2(20, 80)
            padd2(40, 60)
            e("s_branch L_CB3")
            e.label("L_CB1")
            padd2(20, 40)
            padd2(60, 80)
            padd2(20, 60)
            e("s_branch L_CB4")
            e.label("L_CB2")
            padd2(20, 60)
            padd2(40, 80)
            e.label("L_CB3")
            padd2(20, 40)
            e.label("L_CB4")
            padd2(0, 20)
        else:
            e.nop(8)
        for t in range(5):
            e(f"v_cvt_pk_bf16_f32 v{20+2*t}, v{4*t}, v{4*t+1}\nv_cvt_pk_bf16_f32 v{21+2*t}, v{4*t+2}, v{4*t+3}")
        e("v_permlane16_swap_b32 v20, v22\nv_permlane16_swap_b32 v21, v23\nv_permlane16_swap_b32 v24, v26\nv_permlane16_swap_b32 v25, v27")
        fl = ("", " sc1", " nt", " sc0 sc1")[p["OUTF"]]
        e(f"buffer_store_dwordx4 v[20:23], v244, {SOUT}, 0 offen{fl}")
        e(f"buffer_store_dwordx4 v[24:27], v244, {SOUT}, 0 offen offset:64{fl}")
        e(f"buffer_store_dwordx2 v[28:29], v245, {SOUT}, 0 offen offset:128{fl}")
        self.stamp(11)
        e("s_branch L_FIN")
        e.lines += getattr(self, "stubs", [])

    def att_proj(self):
        e, p = self.e, self.p
        c = f"{f2u(1.0 / (math.log2(math.e) * math.sqrt(18.0))):#x}"
        early = p["KVEARLY"]
        if p["EXTU"] == 9:
            self.pro_att()
        e("s_waitcnt vmcnt(0) lgkmcnt(0)\ns_barrier" if early else "s_waitcnt lgkmcnt(0)\ns_barrier")
        e.vmq, e.lgq = [], []
        self.stamp(2)
        e(f"s_setprio {p['PRIO_P']}")
        e(f"v_mov_b32 v246, 0\nbuffer_load_dwordx2 v[248:249], v246, {SDBG}, 0 offen sc1")
        if early or p["EXTU"] < 0:
            self.pro_att()
        e(f"v_and_b32 v200, 15, {vL}\nv_lshrrev_b32 v201, 4, {vL}\nv_bfe_u32 v202, {vL}, 2, 2\nv_and_b32 v203, 3, {vL}")
        e(f"v_lshl_add_u32 v204, v201, 3, v202\nv_lshlrev_b32 v204, 4, v204\nv_and_b32 v205, 1, v203\nv_lshl_add_u32 v204, v205, 3, v204")
        e(f"v_add_u32 v216, {QE}, v204\nv_add_u32 v204, {KVW}, v204")
        if not early:
            e(f"v_cmp_gt_u32 vcc, 2, v203\ns_nop 1\nv_cndmask_b32 v204, v204, v216, vcc")
        e(f"v_mul_u32_u24 v205, {CH}, v201\nv_lshl_add_u32 v205, v200, 4, v205\nv_add_u32 v206, {9*4*CH}, v205")
        e(f"s_lshl_b32 {T0}, {sA}, 8\nv_add_u32 v207, {T0}, v205\nv_add_u32 v208, {T0}, v206")
        if not early:
            e.wait_all(vm=True, lg=True)
            self.arrive(C_E, "v246", "v247")
            self.lds_wait(C_E, 4, "v246", "v247")
        self.stamp(10)

        def ext_reads(kk):
            r = 8 * kk
            e.lg(f"ds_read_b64_tr_b16 {vr(r,2)}, v204 offset:{512*kk}", ("e", kk))
            e.lg(f"ds_read_b64_tr_b16 {vr(r+2,2)}, v204 offset:{512*kk+64}", ("e", kk))
            e.lg(f"ds_read_b128 {vr(r+4,4)}, {'v207' if kk < 9 else 'v208'} offset:{4*CH*(kk % 9)}", ("e", kk))
        for kk in range(5):
            ext_reads(kk)
        for kk in range(18):
            e.wait(lg=("e", kk))
            r = 8 * kk
            e(f"v_mfma_f32_16x16x32_bf16 v[144:147], {vr(r,4)}, {vr(r+4,4)}, {'0' if kk == 0 else 'v[144:147]'}")
            e(f"v_mfma_f32_16x16x32_bf16 v[148:151], {vr(r+4,4)}, {vr(r,4)}, {'0' if kk == 0 else 'v[148:151]'}")
            if kk + 5 < 18:
                ext_reads(kk + 5)
        if not early:
            self.arrive(C_A, "v246", "v247")
        e(f"s_lshr_b32 {T2}, {sA}, 1\ns_lshl_b32 {T3}, {sRB}, 1\ns_add_u32 {T2}, {T2}, {T3}\ns_and_b32 {T3}, {sA}, 1")
        e(f"s_lshl_b32 {T4}, {T3}, 4\nv_add_u32 v209, {T4}, v200\nv_mov_b32 v210, {OOB}")
        e("v_cvt_pk_bf16_f32 v152, v144, v145\nv_cvt_pk_bf16_f32 v153, v146, v147\nv_cvt_pk_bf16_f32 v154, v148, v149\nv_cvt_pk_bf16_f32 v155, v150, v151")
        e(f"s_cmp_ge_u32 {sJ}, 6\ns_cbranch_scc1 L_KV_D\ns_cmp_ge_u32 {sJ}, 3\ns_cbranch_scc1 L_KV_V\ns_cmp_eq_u32 {sJ}, 2\ns_cbranch_scc1 L_KV_X")
        e(f"s_mul_i32 {T0}, {T2}, {KREC}\ns_lshl_b32 {T1}, {sJ}, 9\ns_add_u32 {T0}, {T0}, {T1}")
        e("v_lshlrev_b32 v211, 4, v209\nv_and_b32 v212, 1, v201\nv_lshl_add_u32 v211, v212, 3, v211\nv_cmp_le_u32 vcc, 2, v201\ns_nop 1\nv_cndmask_b32 v211, v210, v211, vcc")
        e(f"buffer_store_dwordx2 v[152:153], v211, {SWS}, {T0} offen sc1\ns_branch L_KV_D")
        e.label("L_KV_X")
        e(f"s_mul_i32 {T0}, {T2}, {KREC}\ns_add_u32 {T0}, {T0}, {KX}")
        e("v_lshlrev_b32 v211, 2, v209\nv_cmp_eq_u32 vcc, 3, v201\ns_nop 1\nv_cndmask_b32 v211, v210, v211, vcc")
        e(f"buffer_store_dword v153, v211, {SWS}, {T0} offen sc1\ns_branch L_KV_D")
        e.label("L_KV_V")
        e(f"s_sub_u32 {T0}, {sJ}, 3\ns_lshl_b32 {T0}, {T0}, 3\ns_min_u32 {T0}, {T0}, 10\ns_cmp_eq_u32 {sJ}, 5\ns_cselect_b32 {T1}, 14, 8")
        e(f"v_add_u32 v211, {T0}, v200\nv_lshrrev_b32 v212, 1, v201\nv_mul_u32_u24 v212, 18, v212\nv_add_u32 v211, v211, v212\nv_lshlrev_b32 v211, 4, v211")
        e(f"v_and_b32 v212, 1, v201\nv_lshl_add_u32 v211, v212, 3, v211\nv_cmp_le_u32 vcc, {T1}, v200\ns_nop 1\nv_cndmask_b32 v211, v210, v211, vcc")
        e(f"s_mul_i32 {T0}, {T2}, {KREC}\ns_mul_i32 {T1}, {T3}, 576\ns_add_u32 {T0}, {T0}, {T1}\ns_add_u32 {T0}, {T0}, {VT-128}")
        e(f"buffer_store_dwordx2 v[154:155], v211, {SWS}, {T0} offen sc1")
        e.label("L_KV_D")
        e(f"s_mov_b32 {sSPIN}, 0")
        e.label("L_TAG_P")
        e(f"s_waitcnt vmcnt(0)\nv_readfirstlane_b32 {sN0}, v248\nv_readfirstlane_b32 {sN1}, v249\ns_add_u32 {sSPIN}, {sSPIN}, 1")
        e(f"s_sub_u32 {T0}, {sT0}, {sN0}\ns_add_u32 {T0}, {T0}, 100000\ns_cmp_gt_u32 {T0}, 103000\ns_cselect_b32 {T0}, 0, {sN0}\ns_cmp_ge_u32 {sSPIN}, 256\ns_cselect_b32 {T0}, {sN0}, {T0}\ns_cmp_lg_u32 {T0}, 0\ns_cbranch_scc1 L_TAG_Q")
        e(f"v_mov_b32 v246, 0\nbuffer_load_dwordx2 v[248:249], v246, {SDBG}, 0 offen sc1\ns_cmp_lt_u32 {sSPIN}, {p['SPIN']}\ns_cbranch_scc1 L_TAG_P")
        e.label("L_TAG_Q")
        e.vmq = []
        e(f"v_mov_b32 v246, {NONCE}\nds_write_b64 v246, v[248:249]\ns_waitcnt lgkmcnt(0)")
        self.kv_flag()
        if early:
            self.arrive(C_E, "v246", "v247")
        self.arrive(C_XN, "v246", "v247")
        if early:
            self.lds_wait(C_E, 4, "v246", "v247")
            for kk in range(18):
                e.lg(f"ds_read_b64_tr_b16 {vr(8*kk,2)}, v216 offset:{512*kk}", ("e2", kk))
                e.lg(f"ds_read_b64_tr_b16 {vr(8*kk+2,2)}, v216 offset:{512*kk+64}", ("e2", kk))
                if kk >= 6:
                    e.wait(lg=("e2", kk - 6))
                    r = 8 * (kk - 6)
                    e(f"v_mfma_f32_16x16x32_bf16 v[144:147], {vr(r,4)}, {vr(r+4,4)}, {'0' if kk == 6 else 'v[144:147]'}")
            for kk in range(12, 18):
                e.wait(lg=("e2", kk))
                e(f"v_mfma_f32_16x16x32_bf16 v[144:147], {vr(8*kk,4)}, {vr(8*kk+4,4)}, v[144:147]")
            self.arrive(C_A, "v246", "v247")
            e.nop(3)
        e(f"v_mul_f32 v144, {c}, v144\nv_mul_f32 v145, {c}, v145\nv_mul_f32 v146, {c}, v146\nv_mul_f32 v147, {c}, v147")
        e("v_cvt_pk_bf16_f32 v144, v144, v145\nv_cvt_pk_bf16_f32 v145, v146, v147")
        e(f"s_lshr_b32 {T3}, {sA}, 1\ns_mul_i32 {T3}, {T3}, 1536\ns_and_b32 {T4}, {sA}, 1\ns_lshl_b32 {T4}, {T4}, 8\ns_add_u32 {T3}, {T3}, {T4}\ns_add_u32 {T3}, {T3}, {ATT}")
        e(f"v_lshl_add_u32 v214, v200, 4, {T3}\nv_lshlrev_b32 v215, 2, v201")
        self.qaddr("v82", "v215", 64, "v214", "v212", "v213")
        self.qaddr("v83", "v215", 66, "v214", "v212", "v213")
        self.lds_wait(C_A, 4, "v246", "v247")
        e("s_mov_b32 exec_hi, 0")
        e.lg("ds_write_b32 v82, v144")
        e.lg("ds_write_b32 v83, v145")
        e("s_mov_b64 exec, -1")
        self.stamp(3)
        e.wait_all(lg=True)
        self.arrive(C_B, "v246", "v247")
        self.stamp(4)
        for r in range(192, 210):
            e(f"v_mov_b32 v{r}, 0")
        for b in (218, 222):
            e(f"v_mov_b32 v{b+1}, 0x3f803f80\nv_mov_b32 v{b+2}, 0\nv_mov_b32 v{b+3}, 0")
        e(f"v_and_b32 v246, 31, {vL}\nv_mov_b32 v247, 0x3f803f80\nv_cmp_eq_u32 vcc, 18, v246\ns_mov_b32 s82, 0x3ffff\ns_mov_b32 s83, 0x3ffff")
        for r in range(226, 242):
            e(f"v_cndmask_b32 v{r}, 0, v247, vcc")
        e("v_mov_b32 v242, 0xdddddddd")
        d = p["KSPLIT"]
        e(f"s_mul_i32 {T2}, {sA}, {16+d}\ns_cmp_eq_u32 {sA}, 3\ns_cselect_b32 {T2}, {48+d}, {T2}\ns_cmp_ge_u32 {sA}, 2\ns_cselect_b32 {sNT}, {16-d}, {16+d}\ns_lshr_b32 {sNL}, {sNT}, 1")
        e(f"s_mul_i32 {T0}, {T2}, {KREC}\ns_mul_i32 {sKT[1]}, {sNT}, {KREC}\nv_lshl_add_u32 v243, {vL}, 4, {T0}\nv_lshl_add_u32 v244, v246, 2, {T0}")
        e(f"s_nop 0\nv_lshrrev_b32 v245, 5, {vL}\nv_mul_u32_u24 v245, 18, v245\nv_add_u32 v245, v245, v246\nv_lshl_add_u32 v245, v245, 4, {T0}")
        e(f"s_setprio {p['PRIO_A']}")
        self.zero_acc()
        if not p["EARLYKV"]:
            self.q_reads()
            e(f"v_lshrrev_b32 v247, 3, {vL}\nv_mul_u32_u24 v247, {ASZ}, v247\nv_and_b32 v248, 7, {vL}\nv_lshl_add_u32 v247, v248, 3, v247")
            e(f"s_mul_i32 {T2}, {sA}, {8*ASZ}\ns_add_u32 {T2}, {T2}, {ARENA + FLAGS + F_KV}")
            self.flag_poll("v247", T2, 248, sleep=p["G1SLEEP"])
            self.arrive(C_G1, "v247", "v248")
            self.lds_wait(C_G1, 4, "v247", "v248")
            if p["X_SEQ"]:
                self.lds_wait((C_G2, C_H, C_XN)[p["X_SEQ"] - 1], (4, 4, 8)[p["X_SEQ"] - 1], "v247", "v248", sleep=8)
        else:
            e(f"v_min_u32 v247, 53, {vL}\nv_mul_u32_u24 v248, 43, v247\nv_lshrrev_b32 v248, 8, v248\nv_mul_u32_u24 v249, 6, v248\nv_sub_u32 v247, v247, v249")
            e(f"s_lshr_b32 {T2}, {T2}, 1\nv_add_u32 v248, {T2}, v248\nv_min_u32 v248, 31, v248\nv_mul_u32_u24 v248, {ASZ}, v248\nv_lshl_add_u32 v247, v247, 3, v248\ns_mov_b32 {T2}, {ARENA + FLAGS + F_KV}")
            self.flag_poll("v247", T2, 248, sleep=p["G1SLEEP"])
        e(f"s_setprio {p['PRIO_A']}")
        self.stamp(5)

    def q_reads(self):
        e = self.e
        self.lds_wait(C_B, 6, "v252", "v253", sleep=4)
        for i2 in range(4):
            e(f"s_add_u32 {T0}, {sA}, {1+i2}\ns_and_b32 {T0}, {T0}, 3\ns_mul_i32 {T0}, {T0}, 3072\ns_add_u32 {T0}, {T0}, {ATT}")
            e(f"v_lshl_add_u32 v{128+i2}, {vL}, 4, {T0}")
            for rt in range(2):
                e.lg(f"ds_read_b128 {vr(160+4*(2*i2+rt),4)}, v{128+i2} offset:{1536*rt}")
        e("s_mov_b32 exec_hi, 0")
        for i2 in range(4):
            for rt in range(2):
                e.lg(f"ds_read_b32 v{192+2*(2*i2+rt)}, v{128+i2} offset:{1536*rt+1024}")
        e("s_mov_b64 exec, -1")
        e.wait_all(lg=True)

    def kv_flag(self):
        e = self.e
        self.arrive(C_KV, "v246", "v247", rtn=T2)
        e(f"s_cmp_lg_u32 {T2}, 3\ns_cbranch_scc1 L_NOG1")
        self.flag_set(F_KV, sJ, "v246", 248)
        e.label("L_NOG1")

    def send_addr(self):
        e = self.e
        for i2 in range(3):
            e(f"s_add_u32 {T0}, {sA}, {1+i2}\ns_and_b32 {T0}, {T0}, 3\ns_mul_i32 {T0}, {T0}, {6*OSL}\ns_add_u32 {T0}, {T0}, {OXA + 2*i2*OSL}")
            e(f"v_lshl_add_u32 v{246+i2}, {vL}, 4, {T0}")

    def zero_acc(self):
        for r in list(range(128)) + list(range(152, 160)):
            self.e(f"v_mov_b32 v{r}, 0")

    def o_addr(self, vm_, vx, vt):
        e = self.e
        e(f"v_and_b32 {vx}, 31, {vL}\nv_lshrrev_b32 {vt}, 5, {vL}\ns_lshl_b32 {T0}, {sJ}, 2\ns_add_u32 {T0}, {T0}, {sA}\ns_lshl_b32 {T0}, {T0}, 11")
        e(f"s_add_u32 {T0}, {T0}, {sAR}\ns_add_u32 {T0}, {T0}, {OM}\nv_lshl_add_u32 {vm_}, {vx}, 4, {T0}\nv_lshl_add_u32 {vm_}, {vt}, 10, {vm_}")
        e(f"s_lshl_b32 {T1}, {sJ}, 10\ns_add_u32 {T0}, {sAR}, {T1}\ns_lshl_b32 {T1}, {sA}, 2\ns_add_u32 {T0}, {T0}, {T1}\ns_add_u32 {T0}, {T0}, {OX}")
        e(f"v_lshl_add_u32 {vx}, {vx}, 4, {T0}")

    def kvload(self, buf, what, step=True):
        e = self.e
        if what == "k":
            e.vm(f"buffer_load_dwordx4 {vr(210+4*buf,4)}, v243, {SWS}, {sKT[0]} offen sc1", ("k", buf))
            e.vm(f"buffer_load_dword v{218+4*buf}, v244, {SWS}, {sKT[0]} offen offset:{KX} sc1", ("k", buf))
        else:
            e(f"s_mov_b64 exec, {sVM}")
            e.vm(f"buffer_load_dwordx4 {vr(226+8*buf,4)}, v245, {SWS}, {sKT[0]} offen offset:{VT} sc1", ("v", buf))
            e.vm(f"buffer_load_dwordx4 {vr(230+8*buf,4)}, v245, {SWS}, {sKT[0]} offen offset:{VT+576} sc1", ("v", buf))
            e("s_mov_b64 exec, -1")
            if self.p["KROT"]:
                self.wrap_inc(sKT[0], KREC, sKT[1])
            else:
                e(f"s_add_u32 {sKT[0]}, {sKT[0]}, {KREC}")

    def qk(self, i, buf, which, S=None):
        S = vr(128 + 16 * (i & 1), 16) if S is None else S
        if which == 0:
            self.e(f"v_mfma_f32_32x32x16_bf16 {S}, {vr(210+4*buf,4)}, {vr(160+4*i,4)}, 0")
        else:
            self.e(f"v_mfma_f32_32x32x16_bf16 {S}, {vr(218+4*buf,4)}, {vr(192+2*i,4)}, {S}")

    def pv(self, i, buf, s):
        self.e(f"v_smfmac_f32_32x32x32_bf16 {vr(16*i,16)}, {vr(226+8*buf+4*s,4)}, {vr(128+16*(i & 1)+8*s,8)}, v242")

    def att_tile(self, buf, first=False, last=False, sig=False):
        e = self.e

        def send(i):
            for hf in range(2):
                e.lg(f"ds_write_b128 v{246+(i >> 1)}, {vr(16*i+4*hf,4)} offset:{(i & 1)*OSL + 1024*hf}")
        for i in range(8):
            S = 128 + 16 * (i & 1)

            pat = self.p["EXPAT"]
            c1, c2 = ((5, 8), (5, 8), (6, 10), (5, 9))[pat]

            def ex(a, b):
                for k in range(a, b):
                    wide = pat in (1, 3) and (b - a) % 2 == 1 and k == a
                    e(f"v_exp_f32{'_e64' if wide else ''} v{S+k}, v{S+k}")
            ex(0, 2)
            if i > 0:
                self.pv(i - 1, buf, 1)
            else:
                self.pv(7, buf ^ 1, 1)
            if i == 0 and not last:
                self.kvload(buf ^ 1, "v")
                if sig and not self.p["TRIM"]:
                    e(f"s_cmp_lg_u32 {sCNT}, 1\ns_cbranch_scc1 L_NOSIG")
                    self.arrive(C_L, "v246", "v247")
                    e.label("L_NOSIG")
            ex(2, c1)
            nxt = (i + 1, buf) if i < 7 else (0, buf ^ 1)
            do_qk = not (last and i == 7)
            if i == 7 and do_qk:
                e.wait(vm=("k", buf ^ 1))
            if do_qk:
                self.qk(nxt[0], nxt[1], 0)
            ex(c1, c2)
            if do_qk:
                self.qk(nxt[0], nxt[1], 1)
            if i == 7 and not last:
                self.kvload(buf, "k")
            c3 = max(12, c2 + 3) if pat != 2 else 14
            ex(c2, c3)
            if i == 0:
                e.wait(vm=("v", buf))
            self.pv(i, buf, 0)
            ex(c3, 14)
            if last and 1 <= i <= 6:
                send(i - 1)
            ex(14, 16)

    def attention(self):
        e, p = self.e, self.p
        e.label("L_ATT")
        self.att_proj()
        e.label("L_PASS")
        b0 = p["KSPLIT"] & 1
        e(f"s_and_b32 {sTI}, {sRB}, {15*p['KROT']}\ns_cmp_ge_u32 {sTI}, {sNT}\ns_cselect_b32 {sTI}, 0, {sTI}\ns_mul_i32 {sKT[0]}, {sTI}, {KREC}")
        e.vmq = []
        self.kvload(b0, "k")
        self.kvload(b0, "v")
        self.kvload(b0 ^ 1, "k")
        if p["TRIM"]:
            self.o_addr("v249", "v251", "v246")
            self.send_addr()
        if p["EARLYKV"]:
            e(f"s_cmp_lg_u32 {sPASS}, 0\ns_cbranch_scc1 L_NOQR")
            self.q_reads()
            e.label("L_NOQR")
            self.stamp(11)
        e.wait(vm=("k", b0))
        self.qk(0, b0, 0)
        self.qk(0, b0, 1)
        e(f"s_mov_b32 {sCNT}, {sNL}")
        e.nop(11)
        if not b0:
            e("s_branch L_AT_MID")
            e.vmq = [("v", 1), ("v", 1), ("k", 0), ("k", 0)]
        e(".p2align 3")
        e.label("L_AT_LOOP")
        if p["STAMP"]:
            e(f"s_sub_u32 m0, 25, {sCNT}")
            self.stamp("m0")
        if p["AHI"]:
            e(f"s_cmp_lg_u32 {sCNT}, {p['AHI']}\ns_cbranch_scc1 L_NOHI\ns_setprio 2")
            e.label("L_NOHI")
            e(f"s_cmp_lg_u32 {sCNT}, {p['ALO']}\ns_cbranch_scc1 L_NOLO\ns_setprio 0")
            e.label("L_NOLO")
        if p["GATE"]:
            e(f"s_cmp_lg_u32 {sCNT}, {p['GATE']}\ns_cbranch_scc1 L_NOGATE")
            self.lds_wait(C_G2, 4, "v246", "v247", sleep=4)
            e.label("L_NOGATE")
        q0 = list(e.vmq)
        self.att_tile(1)
        e.label("L_AT_MID")
        self.att_tile(0, sig=True)
        assert q0 == e.vmq, (q0, e.vmq)
        e(f"s_sub_u32 {sCNT}, {sCNT}, 1\ns_cmp_lg_u32 {sCNT}, 0\ns_cbranch_scc1 L_AT_LOOP")
        self.stamp(6)
        self.lds_wait(C_G2 if p.get("NEWTAIL") else C_P, 4, *(("v128", "v129")[:0] or (("v252", "v253") if p["TRIM"] else ("v246", "v247"))))
        if not p["TRIM"]:
            self.send_addr()
        if p["OORD"] == 2 and p["OEARLY"] == 1:
            self.arrive(C_L, "v252", "v253")
        self.att_tile(1, last=True)
        if p["OORD"] == 2 and p["OEARLY"] == 2:
            self.arrive(C_L, "v252", "v253")
        e.nop(2)
        self.pv(7, 1, 1)
        e("s_mov_b32 exec_hi, 0")
        for i in range(6):
            e.lg(f"ds_write_b128 v{246+(i >> 1)}, {vr(16*i+8,4)} offset:{(i & 1)*OSL + 2048}")
        e("s_mov_b64 exec, -1")
        e("v_add_f32 v128, v10, v26\nv_add_f32 v129, v42, v58\nv_add_f32 v130, v74, v90\nv_min3_f32 v131, v10, v26, v42\nv_min3_f32 v132, v58, v74, v90")
        e("v_add_f32 v128, v128, v129\nv_add_f32 v130, v130, v106\nv_min3_f32 v131, v131, v132, v106\nv_add_f32 v128, v128, v130")
        e("v_add_f32 v128, v128, v122\nv_min_f32 v131, v131, v122")
        e(f"v_cmp_nge_f32 vcc, {f2u(2.0**40):#x}, v128\nv_mov_b32 v129, {f2u(2.0**-64):#x}\ns_mov_b32 {T2}, vcc_lo\nv_cmp_nge_f32 vcc, v131, v129\ns_nop 1\ns_or_b32 {T2}, {T2}, vcc_lo")
        if p["FORCE_FB"]:
            e(f"s_mov_b32 {T2}, 1")
        e(f"s_cmp_lg_u32 {T2}, 0\ns_cselect_b32 {T2}, 0x10001, 1")
        e.wait_all(lg=True)
        self.arrive(C_R, "v128", "v129", val=T2)
        e(f"s_mul_i32 {T0}, {sA}, {6*OSL}\ns_add_u32 {T0}, {T0}, {OXA}\nv_lshl_add_u32 v246, {vL}, 4, {T0}")
        if not p["TRIM"]:
            self.o_addr("v249", "v251", "v248")
        e(f"s_lshl_b32 {T3}, {sPASS}, 2\ns_add_u32 {T3}, {T3}, 4")
        self.lds_wait(C_R, T3, "v128", "v129", mask="0xffff", out=T2)
        self.stamp(7)
        e(f"s_cmp_lg_u32 {sPASS}, 0\ns_cbranch_scc1 L_SAFE\ns_cmp_ge_u32 {T2}, 0x10000\ns_cbranch_scc1 L_FALLBACK")
        e.label("L_SAFE")
        for tt in range(2):
            for i in range(3):
                for q in range(3):
                    e.lg(f"ds_read_b128 {vr(12*(3*tt+i)+4*q,4)}, v246 offset:{(2*i+tt)*OSL + 1024*q}", ("r", tt, i))
        for tt in range(2):
            O = 96 + 16 * tt
            for i in range(3):
                e.wait(lg=("r", tt, i))
                r0 = 12 * (3 * tt + i)
                if p["TRIM"]:
                    e(f"v_add_f32 v{O+10}, v{O+10}, v{r0+10}")
                    for k in range(0, 10, 2):
                        e(f"v_pk_add_f32 v[{O+k}:{O+k+1}], v[{O+k}:{O+k+1}], v[{r0+k}:{r0+k+1}]")
                else:
                    for k in (10, 0, 1, 2, 3, 4, 5, 6, 7, 8, 9):
                        e(f"v_add_f32 v{O+k}, v{O+k}, v{r0+k}")
            e(f"v_mov_b32 v128, v{O+10}\nv_mov_b32 v129, v{O+10}\ns_nop 1\nv_permlane32_swap_b32 v128, v129\ns_nop 1\nv_mul_f32 v128, {sNL2E}, v128\nv_rcp_f32 v128, v128\ns_nop 0")
            for k in range(0, 10, 2 if p["TRIM"] else 1):
                e(f"v_pk_mul_f32 v[{O+k}:{O+k+1}], v[{O+k}:{O+k+1}], v[128:129] op_sel_hi:[1,0]" if p["TRIM"] else f"v_mul_f32 v{O+k}, v{O+k}, v128")
            for k in range(5):
                e(f"v_cvt_pk_bf16_f32 v{132+8*tt+k}, v{O+2*k}, v{O+2*k+1}")
            if p["SENT"]:
                for k in range(5):
                    e(f"v_min_u32 v{132+8*tt+k}, -2, v{132+8*tt+k}")
            e.vm(f"buffer_store_dwordx4 {vr(132+8*tt,4)}, v249, {SWS}, 0 offen offset:{512*tt} sc1")
            e("s_mov_b32 exec_hi, 0")
            e.vm(f"buffer_store_dword v{136+8*tt}, v251, {SWS}, 0 offen offset:{512*tt} sc1")
            e("s_mov_b64 exec, -1")
        self.stamp(8)
        if p["OMODE"] == 0:
            e.wait_all(vm=True)
        if p["OMODE"] in (0, 4):
            e(f"s_lshl_b32 {T2}, {sJ}, 2\ns_add_u32 {T2}, {T2}, {sA}")
            self.flag_set(F_O, T2, "v128", 130)
        self.arrive(C_O, "v128", "v129")
        self.stamp(9)
        e("s_branch L_FIN")
        self.fallback()

    def fallback(self):
        e = self.e
        e.label("L_FALLBACK")
        e(f"s_mov_b32 {sPASS}, 1\ns_mov_b32 {sKT[0]}, 0\ns_mov_b32 {sCNT}, 0")
        for i in range(8):
            e(f"v_mov_b32 v{i}, 0xff800000")
        e.label("L_FB_LOOP")
        self.kvload(0, "k")
        e(f"s_add_u32 {sKT[0]}, {sKT[0]}, {KREC}")
        e.wait_all(vm=True)
        for i in range(8):
            self.qk(i, 0, 0, S="v[128:143]")
            self.qk(i, 0, 1, S="v[128:143]")
            e.nop(12)
            for k in range(8):
                e(f"v_max3_f32 v{i}, v{i}, v{128+2*k}, v{129+2*k}")
        e(f"s_add_u32 {sCNT}, {sCNT}, 1\ns_cmp_lt_u32 {sCNT}, {sNT}\ns_cbranch_scc1 L_FB_LOOP")
        e(f"v_and_b32 v247, 31, {vL}")
        for i in range(8):
            e(f"v_mov_b32 v8, v{i}\ns_nop 1\nv_permlane32_swap_b32 v{i}, v8\ns_nop 1\nv_max_f32 v{i}, v{i}, v8")
            e(f"s_lshl_b32 {T0}, {sA}, 1\ns_add_u32 {T0}, {T0}, {2+i}\ns_and_b32 {T0}, {T0}, 7\ns_lshl_b32 {T0}, {T0}, 7\ns_add_u32 {T0}, {T0}, {MX}")
            e(f"v_lshl_add_u32 v{16+i}, v247, 2, {T0}\ns_lshl_b32 {T1}, {sA}, 10\nv_add_u32 v9, {T1}, v{16+i}")
            e(f"ds_write_b32 v9, v{i}")
        e.wait_all(lg=True)
        self.arrive(C_M, "v128", "v129")
        self.lds_wait(C_M, 4, "v128", "v129")
        e("s_mov_b32 exec_hi, 0")
        for i in range(8):
            for a in range(4):
                e(f"ds_read_b32 v{8+a}, v{16+i} offset:{1024*a}")
            e.wait_all(lg=True)
            e("v_max3_f32 v8, v8, v9, v10\nv_max_f32 v8, v8, v11\nv_cvt_pk_bf16_f32 v9, v8, v8\nv_and_b32 v9, 0xffff0000, v9\nv_sub_f32 v10, v8, v9")
            e(f"v_cvt_pk_bf16_f32 v{193+2*i}, -v9, -v10")
        e("s_mov_b64 exec, -1")
        self.zero_acc()
        e("s_branch L_PASS")

    def build(self):
        e, p = self.e, self.p
        self.prologue()
        self.ffn()
        self.attention()
        e.label("L_FIN")
        if p["STAMP"]:
            e("s_waitcnt vmcnt(0)")
            self.stamp(12)
            e(f"s_lshl_b32 {T0}, s2, 3\ns_add_u32 {T0}, {T0}, {sW}\ns_lshl_b32 {T0}, {T0}, 8\ns_add_u32 {T0}, {T0}, {STAMPS}\nv_lshlrev_b32 v0, 2, {vL}")
            e(f"buffer_store_dword v255, v0, {SWS}, {T0} offen\ns_add_u32 {T0}, {T0}, 0x80000\nbuffer_store_dword v254, v0, {SWS}, {T0} offen")
            e(f"s_cmp_lg_u32 s2, 100\ns_cbranch_scc1 L_END\ns_cmp_lg_u32 {sW}, 0\ns_cbranch_scc1 L_END")
            e(f"v_readlane_b32 {T0}, v255, 0\ns_nop 1\nv_subrev_u32 v1, {T0}, v255\ns_mov_b64 exec, 0x1ffe\nbuffer_store_dword v1, v0, {SDBG}, 0 offen")
        e.label("L_END")
        e("s_endpgm")
        probs = check_hazards(e.lines)
        head = open("cdna_kernels/" + NAME + ".s.ref").read().split("\n")
        hdr = [l for l in head if l.startswith(";") and "@launch" not in l and "Override" not in l and "grid=ceil" not in l]
        txt = "\n".join(hdr) + f"""
; One persistent workgroup per CU owns 64 rows x (576 FFN columns, 4 heads, 72 output columns); 8 workgroups share a row block.
;   all waves : LayerNorm of the 64 rows -> LDS (bf16, scaled by -log2(e); the scale is undone in q, 1/l and the FFN sum)
;   waves 0-3 : (2,3: Q projection) GEMM1 -> SiLU -> GEMM2 -> bf16 partial sums to d_ws -> sum of the 8 partials + x
;               -> output projection of the row block's attention output -> d_out
;   waves 4-7 : K/V projection (published to d_ws), then softmax(QK^T)V over a quarter of the keys each for all 8 query tiles;
;               P stays fp32 in registers, the sparse MFMA picks its high halves; a ones row of V^T gives the row sums.
; Softmax shift: the first pass uses shift 0 and checks every row sum against [2^-64, 2^40]; if any sum is outside (or NaN)
; the workgroup computes the true row maxima (L_FALLBACK) and runs the pass again with them subtracted.
; Hand-offs between workgroups: write-through stores, then a flag holding this launch's tag (published through d_debug);
; the attention output is checked word by word against an "empty" pattern written earlier in the same launch.
; @launch grid=(256,1,1) block=(512,1,1) lds={LDS_BYTES}
.amdgcn_target "amdgcn-amd-amdhsa--gfx950"
.text
.globl {NAME}_kernel
.p2align 8
.type {NAME}_kernel,@function
{NAME}_kernel:
{e.text()}
.section .rodata,"a"
.p2align 6
.amdhsa_kernel {NAME}_kernel
  .amdhsa_next_free_vgpr 256
  .amdhsa_next_free_sgpr 102
  .amdhsa_accum_offset 256
  .amdhsa_group_segment_fixed_size 0
  .amdhsa_kernarg_size 88
  .amdhsa_user_sgpr_count 2
  .amdhsa_user_sgpr_kernarg_segment_ptr 1
  .amdhsa_system_sgpr_workgroup_id_x 1
.end_amdhsa_kernel
"""
        return txt, probs


if __name__ == "__main__":
    out = sys.argv[1]
    kw = {}
    for a in sys.argv[2:]:
        k, v = a.split("=")
        kw[k] = int(v, 0)
    txt, probs = G(**kw).build()
    for x in probs[:40]:
        print("HAZARD", x)
    open(out, "w").write(txt)
    print("wrote", out, len(txt), "bytes;", len(probs), "hazards")
```

```python
import sys, math, struct
from emit import E, check_hazards

NAME = "parallel_sum__grouped_kv_mqa__dense_activation_silu__prompt"

DEF = dict(NSL=2, STAMP=0, PRIO_F=1, PRIO_A=0, ROT=1, KROT=0, CODEPF=3, PRIO_P=2, WARMQ=0, TLBW=2, OUTF=2, KSPLIT=1, W1LATE=4, PRE=5, PREU=0, ROTG=0, EXPAT=0, SENT=1, OMODE=2, OROT=1, OSLEEP=0, TADDR=2, PRIO_T=1, TRIM=1, T2=0, XPRIO=0, OORD=0, OEARLY=0, WOS=6, PREA=0, EARLYKV=0, RESTB=0, TLBU=0, TLB0=0, GATE=0, AHI=0, ALO=0, X_SEQ=0, X_BIAS=0, EXTU=8, PREL=5, QROT=1, KVEARLY=0, KVU=0, PKLN=0, XBAR=1, PACE2=2, PACE3=3, DYNP=2, WARMO=1, PKSILU=1, PACE=4, DEFER=0, G1SLEEP=16, SPIN=1 << 16, FORCE_FB=0)

KREC = 2304
KM, KX, VT = 0, 1024, 1152
ARENA, ASZ = 0x40000, 0xb0000
PART, OM, OX, FLAGS = 0, 589824, 655360, 663552
STAMPS = 0x1710000
WS_BYTES = 0x1820000
CH = 1040
RING, RSZ = 72 * CH, 15360
ATT = RING + 4 * RSZ
QE, KVW = ATT, ATT + 9216 + 64
QRSZ = 6144
OXA, OSL = 92160, 2560
MX = 153600
QX, SYNC = 162560, 163584
LDS_BYTES = 163840
C_A, C_KV, C_B, C_XN, C_H, C_G2, C_P, C_WO, C_R, C_O, C_G1, C_M, C_E, C_Q, C_L = range(15)
SX, SW1, SW2, SWQ, SKV, SWO, SWS, SDBG, SOUT = (f"s[{b}:{b+3}]" for b in range(28, 64, 4))
sRB, sJ, sW, sA = "s64", "s65", "s66", "s67"
sRING, sK, sCNT, sNL2E, sSPIN, sPASS = "s68", "s69", "s70", "s71", "s72", "s73"
sKT = ("s74", "s75", "s76")
T0, T1, T2, T3, T4 = "s77", "s78", "s79", "s80", "s81"
sVM = "s[82:83]"
sIDX = "s84"
sROT, sBO, sTI, sAR = "s92", "s93", "s94", "s95"
sKQ, sN0, sN1, sNT, sNL = "s96", "s98", "s99", "s100", "s101"
sREC, sEARLY = "s4", "s5"
sT0 = "s26"
F_P, F_KV, F_O = 0, 128, 256
NONCE = SYNC + 128
vL = "v250"
OOB = 0x40000000


def f2u(x):
    return struct.unpack("<I", struct.pack("<f", x))[0]


def vr(b, n=1):
    return f"v{b}" if n == 1 else f"v[{b}:{b+n-1}]"


class G:
    def __init__(self, **kw):
        self.p = dict(DEF)
        self.p.update(kw)
        self.e = E()
        self.nstamp = 0

    def stamp(self, i):
        if not self.p["STAMP"]:
            return
        e = self.e
        e("s_waitcnt lgkmcnt(0)")
        e.lgq = []
        e("s_memrealtime s[88:89]\ns_memtime s[90:91]")
        e("s_waitcnt lgkmcnt(0)")
        e(f"v_writelane_b32 v255, s88, {i}\nv_writelane_b32 v254, s90, {i}")

    def srd(self, srd, lo, nbytes):
        b = int(srd[2:srd.index(":")])
        self.e(f"s_mov_b32 s{b}, s{lo}\ns_mov_b32 s{b+1}, s{lo+1}\ns_mov_b32 s{b+2}, {nbytes}\ns_mov_b32 s{b+3}, 0x20000")

    def arrive(self, word, va, vb, rtn=None, val="1"):
        e = self.e
        e(f"v_mov_b32 {va}, {SYNC}\nv_mov_b32 {vb}, {val}\ns_mov_b64 exec, 1")
        if rtn is None:
            e.lg(f"ds_add_u32 {va}, {vb} offset:{4*word}")
            e("s_mov_b64 exec, -1")
        else:
            e(f"ds_add_rtn_u32 {vb}, {va}, {vb} offset:{4*word}")
            e.wait_all(lg=True)
            e(f"v_readfirstlane_b32 {rtn}, {vb}\ns_mov_b64 exec, -1\ns_nop 0")

    def lds_wait(self, word, target, va, vb, mask=None, out=None, sleep=1):
        e = self.e
        L, D = e.new("LW"), e.new("LWD")
        out = out or T0
        e(f"v_mov_b32 {va}, {SYNC}\ns_mov_b32 {sSPIN}, 0")
        e.label(L)
        e(f"ds_read_b32 {vb}, {va} offset:{4*word}")
        e.wait_all(lg=True)
        e(f"v_readfirstlane_b32 {out}, {vb}\ns_add_u32 {sSPIN}, {sSPIN}, 1")
        if mask is not None:
            e(f"s_and_b32 {T1}, {out}, {mask}\ns_cmp_ge_u32 {T1}, {target}")
        else:
            e(f"s_cmp_ge_u32 {out}, {target}")
        e(f"s_cbranch_scc1 {D}\n{f's_sleep {sleep}' if sleep else ''}\ns_cmp_lt_u32 {sSPIN}, {self.p['SPIN']}\ns_cbranch_scc1 {L}")
        e.label(D)

    def flag_poll(self, va, soff, vb, sleep=2):
        e = self.e
        L, D = e.new("FW"), e.new("FWD")
        e(f"s_mov_b32 {sSPIN}, 0")
        e.label(L)
        e(f"buffer_load_dwordx2 v[{vb}:{vb+1}], {va}, {SWS}, {soff} offen sc1")
        e.wait_all(vm=True)
        e(f"v_xor_b32 v{vb}, {sN0}, v{vb}\nv_xor_b32 v{vb+1}, {sN1}, v{vb+1}\nv_or_b32 v{vb}, v{vb}, v{vb+1}")
        e(f"v_cmp_ne_u32 vcc, 0, v{vb}\ns_add_u32 {sSPIN}, {sSPIN}, 1\ns_nop 3")
        e(f"s_cbranch_vccz {D}\ns_sleep {sleep}\ns_cmp_lt_u32 {sSPIN}, {self.p['SPIN']}\ns_cbranch_scc1 {L}")
        e.label(D)

    def flag_wait(self, group, n, va, vb):
        e = self.e
        e(f"v_and_b32 {va}, {n-1}, {vL}\nv_lshlrev_b32 {va}, 3, {va}\ns_add_u32 {T0}, {sAR}, {FLAGS + group}")
        self.flag_poll(va, T0, vb)

    def flag_set(self, group, sidx, va, vb):
        e = self.e
        e(f"s_lshl_b32 {T1}, {sidx}, 3\ns_add_u32 {T0}, {sAR}, {T1}\ns_add_u32 {T0}, {T0}, {FLAGS + group}")
        e(f"v_mov_b32 {va}, 0\nv_mov_b32 v{vb}, {sN0}\nv_mov_b32 v{vb+1}, {sN1}\ns_mov_b64 exec, 1")
        e.vm(f"buffer_store_dwordx2 v[{vb}:{vb+1}], {va}, {SWS}, {T0} offen sc1")
        e("s_mov_b64 exec, -1")

    def get_nonce(self, va, vb):
        e = self.e
        e(f"v_mov_b32 {va}, {NONCE}\nds_read_b64 v[{vb}:{vb+1}], {va}")
        e.wait_all(lg=True)
        e(f"v_readfirstlane_b32 {sN0}, v{vb}\nv_readfirstlane_b32 {sN1}, v{vb+1}\ns_nop 1")

    def prologue(self):
        e, p = self.e, self.p
        nsl = p["NSL"]
        e("s_cmp_ge_u32 s2, 256\ns_cbranch_scc1 L_END")
        e("s_load_dwordx16 s[4:19], s[0:1], 0\ns_load_dwordx4 s[20:23], s[0:1], 64\ns_load_dwordx2 s[24:25], s[0:1], 80\ns_memrealtime s[26:27]")
        if p["CODEPF"] >= 2:
            e(f"s_getpc_b64 s[86:87]")
            e.label("L_PC")
            if p["CODEPF"] == 2:
                e(f"s_bfe_u32 {T0}, s2, {(1 << 16) | 3}\ns_lshl_b32 {T0}, {T0}, 15\nv_lshl_add_u32 v126, v0, 6, {T0}")
            else:
                e(f"s_bfe_u32 {T0}, s2, {(2 << 16) | 3}\ns_lshl_b32 {T0}, {T0}, 14\nv_lshrrev_b32 v126, 1, v0\nv_lshl_add_u32 v126, v126, 6, {T0}")
            e(f"v_min_u32 v126, L_END-L_PC, v126\nv_mov_b32 v127, s87")
            e("v_add_co_u32 v126, vcc, s86, v126\ns_nop 1\nv_addc_co_u32 v127, vcc, 0, v127, vcc")
            e.vm("global_load_dword v251, v[126:127], off")
        if p["STAMP"]:
            e("s_memrealtime s[88:89]\ns_memtime s[90:91]\nv_mov_b32 v255, 0\nv_mov_b32 v254, 0")
        if p.get("X_DELAY"):
            e("s_waitcnt lgkmcnt(0)")
            e.label("L_XD")
            e(f"s_memrealtime s[88:89]\ns_waitcnt lgkmcnt(0)\ns_sub_u32 s88, s88, s26\ns_cmp_lt_u32 s88, {p['X_DELAY']}\ns_cbranch_scc1 L_XD")
        lg = nsl.bit_length() - 1
        e(f"s_bfe_u32 {sRB}, s2, {(lg << 16) | (3 - lg)}\ns_lshl_b32 {sRB}, {sRB}, {5-lg}\ns_lshr_b32 {T1}, s2, {3+lg}\ns_add_u32 {sRB}, {sRB}, {T1}")
        e(f"v_lshrrev_b32 v120, 3, v0\nv_and_b32 v121, 7, v0\nv_lshl_add_u32 v122, {sRB}, 6, v120\nv_mul_u32_u24 v122, 1152, v122\nv_lshl_add_u32 v122, v121, 4, v122")
        if p["XPRIO"]:
            e(f"v_readfirstlane_b32 {T0}, v0\ns_nop 0\ns_cmp_lt_u32 {T0}, 256\ns_cbranch_scc1 L_XP\ns_setprio 1")
            e.label("L_XP")
        e("s_mov_b32 s30, 2359296\ns_mov_b32 s31, 0x20000\nv_lshrrev_b32 v119, 6, v0\nv_and_b32 " + vL + ", 63, v0\ns_waitcnt lgkmcnt(0)\ns_mov_b32 s28, s4\ns_mov_b32 s29, s5")
        for u in range(9):
            e.vm(f"buffer_load_dwordx4 v[{4*u}:{4*u+3}], v122, {SX}, 0 offen offset:{128*u}", ("x", u))
        if p["STAMP"]:
            e("v_writelane_b32 v255, s88, 0\nv_writelane_b32 v254, s90, 0")
        e(f"v_readfirstlane_b32 {sW}, v119\ns_lshr_b32 {sIDX}, s2, 3")
        e(f"s_and_b32 {sJ}, s2, {8//nsl - 1}\ns_lshl_b32 {sJ}, {sJ}, {lg}\ns_and_b32 {T1}, {sIDX}, {nsl-1}\ns_add_u32 {sJ}, {sJ}, {T1}")
        e(f"s_mul_i32 {sAR}, {sRB}, {ASZ}\ns_add_u32 {sAR}, {sAR}, {ARENA}\ns_and_b32 {sA}, {sW}, 3")
        e(f"v_mul_u32_u24 v123, {CH}, v121\nv_lshl_add_u32 v123, v120, 4, v123\nv_add_u32 v124, {8*CH}, v123")
        e("v_mov_b32 v216, 0\nv_mov_b32 v217, 0\nv_mov_b32 v222, 0\nv_mov_b32 v224, 0")
        if p["TADDR"] < 2 or p.get("F16"):
            for r in list(range(212, 216)) + list(range(225, 230)) + list(range(240, 248)):
                e(f"v_mov_b32 v{r}, 0")
        if p["XBAR"]:
            e("s_barrier")
        self.srd(SW1, 16, 5308416)
        self.srd(SW2, 18, 5308416)
        self.srd(SWQ, 6, 663552)
        self.srd(SWO, 12, 663552)
        self.srd(SWS, 24, WS_BYTES)
        self.srd(SDBG, 22, 256)
        self.srd(SOUT, 20, 2359296)
        e(f"s_cmp_ge_u32 {sJ}, 3\ns_cselect_b32 s44, s10, s8\ns_cselect_b32 s45, s11, s9\ns_mov_b32 s46, 20736\ns_mov_b32 s47, 0x20000")
        e(f"s_mov_b32 {sNL2E}, {f2u(-math.log2(math.e)):#x}\ns_mov_b32 {sPASS}, 0")
        e(f"s_cmp_ge_u32 {sW}, 4\ns_cbranch_scc1 L_PRO_A")
        q0 = list(e.vmq)
        self.pro_ffn()
        if p["TLB0"]:
            e(f"s_mov_b64 exec, 1\ns_cmp_ge_u32 {sW}, 2\ns_cbranch_scc1 L_T0Q\nbuffer_load_dword v253, v216, {SW1}, {sK} offen\ns_branch L_T0J")
            e.label("L_T0Q")
            e.vm(f"buffer_load_dword v253, v224, {SWQ}, 0 offen")
            e.label("L_T0J")
            e("s_mov_b64 exec, -1")
        if p["TADDR"] == 0:
            self.q_addresses()
            self.tail_addresses()
        self.ln_stats(ffn=True)
        e("s_branch L_PRO_J")
        e.vmq = list(q0)
        e.label("L_PRO_A")
        if p["CODEPF"] == 1:
            e(f"s_getpc_b64 s[86:87]")
            e.label("L_PC")
            e(f"s_and_b32 {T0}, {sIDX}, 3\ns_lshl_b32 {T0}, {T0}, 2\ns_add_u32 {T0}, {T0}, {sA}\ns_lshl_b32 {T0}, {T0}, 12")
            e(f"v_lshl_add_u32 v126, {vL}, 6, {T0}\nv_min_u32 v126, L_END-L_PC, v126\nv_mov_b32 v127, s87")
            e("v_add_co_u32 v126, vcc, s86, v126\ns_nop 1\nv_addc_co_u32 v127, vcc, 0, v127, vcc")
            e.vm("global_load_dword v251, v[126:127], off")
        if p["TLB0"]:
            e(f"s_mov_b64 exec, 1\nv_mov_b32 v126, 0")
            e.vm(f"buffer_load_dword v252, v126, {SKV}, 0 offen")
            e("s_mov_b64 exec, -1")
            if p["TLBU"] == -2:
                self.tlb_touch()
        self.ln_stats()
        e(f"s_or_b32 {T0}, s2, {sA}\ns_cmp_lg_u32 {T0}, 0\ns_cbranch_scc1 L_NOTAG\ns_or_b32 {T0}, s26, 1")
        e(f"v_mov_b32 v126, {T0}\nv_mov_b32 v127, s27\nv_mov_b32 v128, 0\ns_mov_b64 exec, 1\nbuffer_store_dwordx2 v[126:127], v128, {SDBG}, 0 offen sc1\ns_mov_b64 exec, -1")
        e.label("L_NOTAG")
        e(f"v_lshlrev_b32 v127, 2, {vL}\nv_add_u32 v127, {SYNC}, v127\nv_mov_b32 v128, 0\nds_write_b32 v127, v128")
        e.label("L_PRO_J")
        self.layernorm()

    def wrap_inc(self, reg, inc, mod):
        self.e(f"s_add_u32 {reg}, {reg}, {inc}\ns_cmp_eq_u32 {reg}, {mod}\ns_cselect_b32 {reg}, 0, {reg}")

    def pro_ffn(self):
        e = self.e
        e(f"s_mul_i32 {T2}, {sW}, 5\ns_lshl_b32 {T3}, {sW}, 2\ns_cmp_eq_u32 {sW}, 3\ns_cselect_b32 {T2}, 14, {T2}\ns_cselect_b32 {T3}, 13, {T3}")
        e(f"s_mul_i32 {sRING}, {sW}, {RSZ}\ns_add_u32 {sRING}, {sRING}, {RING}")
        e(f"v_lshrrev_b32 v125, 2, {vL}\nv_and_b32 v126, 3, {vL}")
        e(f"s_mul_i32 {T0}, {sJ}, 1152\ns_lshl_b32 {T1}, {T2}, 6\ns_add_u32 {T0}, {T0}, {T1}")
        e(f"v_mul_u32_u24 v216, 9216, v125\nv_lshl_add_u32 v216, v126, 4, v216\nv_add_u32 v216, {T0}, v216")
        nsl = self.p["NSL"]
        e(f"s_and_b32 {sROT}, {sRB}, {32//nsl - 1}\ns_mul_i32 {sROT}, {sROT}, {36*nsl*self.p['ROT']}\ns_lshr_b32 {sROT}, {sROT}, 5")
        G_ = self.p["ROTG"]
        if G_:
            e(f"s_and_b32 {sROT}, {sRB}, {32//nsl - 1}\ns_mul_i32 {sROT}, {sROT}, {G_*nsl}\ns_lshr_b32 {sROT}, {sROT}, 5\ns_mul_i32 {sROT}, {sROT}, {36//G_}")
        e(f"s_mul_i32 {sK}, {sROT}, 147456")
        e(f"s_mul_i32 {T0}, {sJ}, 144\ns_lshl_b32 {T1}, {sW}, 6\ns_add_u32 {T0}, {T0}, {T1}\ns_sub_u32 {T0}, {T0}, 128")
        e(f"v_mul_u32_u24 v224, 1152, v125\nv_lshl_add_u32 v224, v126, 4, v224\nv_add_u32 v224, {T0}, v224\ns_mul_i32 {sKQ}, {sROT}, {18432*self.p['QROT']}")
        if not self.p["W1LATE"]:
            self.first_loads()
        e(f"s_mul_i32 {T0}, {sJ}, 663552\ns_lshl_b32 {T1}, {T3}, 6\ns_add_u32 {T0}, {T0}, {T1}")
        e(f"v_mul_u32_u24 v217, 1152, v125\nv_lshl_add_u32 v217, v126, 4, v217\nv_add_u32 v217, {T0}, v217")
        e(f"v_lshrrev_b32 v127, 5, {vL}\nv_bfe_u32 v128, {vL}, 2, 2\nv_bfe_u32 v129, {vL}, 4, 1")
        e(f"v_lshlrev_b32 v129, 5, v129\nv_lshl_add_u32 v129, v126, 3, v129\nv_lshl_add_u32 v129, v128, 6, v129\nv_add_u32 v129, {sRING}, v129")
        e("v_lshl_add_u32 v218, v127, 9, v129\nv_lshl_add_u32 v219, v127, 8, v129")
        e(f"v_and_b32 v128, 31, {vL}\nv_lshlrev_b32 v128, 4, v128\nv_mul_u32_u24 v223, {CH}, v127\nv_add_u32 v223, v223, v128")
        e(f"s_mul_i32 {T0}, {T2}, {4*CH}\nv_add_u32 v221, {T0}, v223")
        e(f"s_lshl_b32 {T0}, {T3}, 15\ns_lshl_b32 {T1}, {sJ}, 10\ns_add_u32 {T0}, {T0}, {T1}\ns_add_u32 {T0}, {T0}, {sAR}")
        e(f"v_lshl_add_u32 v222, v127, 13, v128\nv_add_u32 v222, {T0}, v222")

    def q_addresses(self):
        e = self.e
        e(f"s_lshl_b32 {T2}, {sW}, 5\ns_sub_u32 {T2}, {T2}, 64\nv_lshrrev_b32 v170, 5, {vL}\nv_lshl_add_u32 v170, v170, 2, {T2}")
        e(f"v_and_b32 v171, 31, {vL}\nv_lshlrev_b32 v171, 4, v171\nv_add_u32 v171, {ATT}, v171")
        for pp in range(8):
            self.qaddr(f"v{196+pp}", "v170", 8 * (pp >> 1) + 2 * (pp & 1), "v171", "v172", "v173")

    def wo_addresses(self, base):
        e = self.e
        for i in range(5):
            e(f"v_add_u32 v160, {64*i}, {vL}\nv_mul_u32_u24 v161, 6554, v160\nv_lshrrev_b32 v161, 16, v161")
            e(f"v_mul_u32_u24 v162, 10, v161\nv_sub_u32 v162, v160, v162\nv_mul_u32_u24 v161, 1152, v161\nv_lshl_add_u32 v{base+i}, v162, 4, v161")

    def tail_addresses(self, wo=True):
        e = self.e
        if wo:
            self.wo_addresses(225)
        e(f"v_and_b32 v160, 15, {vL}\nv_lshrrev_b32 v161, 4, {vL}\ns_lshl_b32 {T0}, {sW}, 4\nv_add_u32 v162, {T0}, v160")
        e(f"v_and_b32 v163, 1, v161\nv_lshrrev_b32 v164, 1, v161")
        e(f"s_mul_i32 {T1}, {sJ}, 73728\ns_add_u32 {T0}, {sAR}, {T1}")
        e(f"v_lshl_add_u32 v165, v162, 4, {T0}\nv_lshl_add_u32 v240, v163, 13, v165\nv_lshl_add_u32 v240, v164, 10, v240\nv_lshl_add_u32 v241, v161, 10, v165")
        e(f"s_lshl_b32 {T0}, {sRB}, 6\nv_add_u32 v165, {T0}, v162\nv_mul_u32_u24 v165, 1152, v165\ns_mul_i32 {T0}, {sJ}, 144\nv_add_u32 v165, {T0}, v165")
        e(f"v_lshl_add_u32 v242, v161, 4, v165\nv_mov_b32 v166, {OOB}\nv_cmp_gt_u32 vcc, 2, v161\ns_nop 1\nv_cndmask_b32 v242, v166, v242, vcc")
        e(f"v_cmp_eq_u32 vcc, 0, v161\ns_nop 1\nv_cndmask_b32 v243, v166, v165, vcc")
        e(f"v_lshl_add_u32 v244, v163, 5, v165\nv_lshl_add_u32 v244, v164, 4, v244")
        e(f"v_lshl_add_u32 v245, v161, 3, v165\nv_cmp_gt_u32 vcc, 2, v161\ns_nop 1\nv_cndmask_b32 v245, v166, v245, vcc")
        e("v_lshlrev_b32 v166, 3, v163\nv_sub_u32 v166, v160, v166\nv_mov_b32 v167, 0x3f80\nv_mov_b32 v168, 0x3f800000")
        for base, src in ((232, "v166"), (236, "v160")):
            for r in range(4):
                e(f"v_cmp_eq_u32 vcc, {2*r}, {src}\nv_cmp_eq_u32 s[86:87], {2*r+1}, {src}\ns_nop 0\nv_cndmask_b32 v{base+r}, 0, v167, vcc")
                e(f"v_cndmask_b32 v{base+r}, v{base+r}, v168, s[86:87]")
        e(f"s_add_u32 {T0}, {sAR}, {OM}\nv_lshl_add_u32 v246, v162, 4, {T0}\nv_lshl_add_u32 v246, v161, 10, v246")
        e(f"s_add_u32 {T0}, {sAR}, {OX}\nv_lshl_add_u32 v247, v162, 4, {T0}\nv_lshl_add_u32 v247, v161, 10, v247")
        e(f"v_bfe_u32 v166, {vL}, 2, 2\nv_and_b32 v167, 3, {vL}\nv_mul_u32_u24 v168, 18, v164\nv_lshl_add_u32 v168, v163, 2, v168\nv_add_u32 v168, v168, v166")
        e("v_mul_u32_u24 v168, 160, v168\nv_lshl_add_u32 v248, v167, 3, v168")
        e("v_mul_u32_u24 v168, 72, v161\nv_lshrrev_b32 v169, 1, v166\nv_mul_u32_u24 v169, 18, v169\nv_and_b32 v166, 1, v166\nv_add3_u32 v168, v168, v169, v166")
        e("v_add_u32 v168, 16, v168\nv_mul_u32_u24 v168, 160, v168\nv_lshl_add_u32 v251, v167, 3, v168")
        e(f"v_mov_b32 v166, {OOB}\nv_cmp_gt_u32 vcc, 32, {vL}\ns_nop 1\nv_cndmask_b32 v241, v166, v241, vcc")

    def first_loads(self, lo=0, hi=15, lo2=None, hi2=None):
        e = self.e
        lo2, hi2 = lo if lo2 is None else lo2, hi if hi2 is None else hi2
        L, J = e.new("PFL"), e.new("PFJ")
        e(f"s_cmp_ge_u32 {sW}, 2\ns_cbranch_scc1 {L}")
        q0 = list(e.vmq)
        for i in range(lo, hi):
            s, pc = divmod(i, 5)
            e(f"s_add_u32 m0, {sRING}, {s*5120 + 960*pc}\ns_nop 0")
            e.vm(f"buffer_load_dwordx4 v216, {SW1}, {sK} offen offset:{64*pc} lds")
            if pc == 4:
                self.wrap_inc(sK, 147456, 36 * 147456)
        e(f"s_branch {J}")
        e.label(L)
        qa = e.vmq
        e.vmq = list(q0)
        for i in range(lo2, hi2):
            e(f"s_add_u32 m0, {sRING}, {1024*((i + 9) % 15)}\ns_nop 0")
            e.vm(f"buffer_load_dwordx4 v224, {SWQ}, {sKQ} offen lds")
            self.q_inc()
        e.label(J)
        if len(qa) < len(e.vmq):
            e.vmq = qa

    def q_inc(self):
        if self.p["QROT"]:
            self.wrap_inc(sKQ, 18432, 36 * 18432)
        else:
            self.e(f"s_add_u32 {sKQ}, {sKQ}, 18432")

    def q_gemm(self):
        e = self.e
        e.vmq = [("q", i) for i in range(15)]
        e.lgq = []
        rot = self.p["QROT"]
        e(f"s_mul_i32 {sBO}, {sROT}, 2080" if rot else f"v_add_u32 v220, {18*2080}, v223")

        def reads(i):
            r = 160 + 12 * (i % 3)
            vb, ob = ("v220", 0) if rot else (("v223", 2080 * i) if i < 18 else ("v220", 2080 * (i - 18)))
            if rot:
                e(f"v_add_u32 v220, {sBO}, v223")
            e.wait(vm=("q", i))
            o = 1024 * ((i + 9) % 15)
            e.lg(f"ds_read_b64_tr_b16 {vr(r,2)}, v218 offset:{o}", ("r", i))
            e.lg(f"ds_read_b64_tr_b16 {vr(r+2,2)}, v218 offset:{o+256}", ("r", i))
            e.lg(f"ds_read_b128 {vr(r+4,4)}, {vb} offset:{ob}", ("r", i))
            e.lg(f"ds_read_b128 {vr(r+8,4)}, {vb} offset:{ob+512}", ("r", i))
            if rot:
                self.wrap_inc(sBO, 2080, 36 * 2080)
        reads(0)
        reads(1)
        for i in range(36):
            r = 160 + 12 * (i % 3)
            sl = (i + 9) % 15
            e.wait(lg=("r", i))
            w1 = i >= 21 and sl % 5 < 4
            if i < 21 or w1:
                e(f"s_add_u32 m0, {sRING}, {1024*sl - (64*(sl % 5) if w1 else 0)}")
            e(f"v_mfma_f32_32x32x16_bf16 v[128:143], {vr(r,4)}, {vr(r+4,4)}, {'0' if i == 0 else 'v[128:143]'}")
            if i < 21:
                e.vm(f"buffer_load_dwordx4 v224, {SWQ}, {sKQ} offen lds", ("q", i + 15))
                self.q_inc()
            elif w1:
                e.vm(f"buffer_load_dwordx4 v216, {SW1}, {sK} offen offset:{64*(sl % 5)} lds")
                if sl % 5 == 3:
                    self.wrap_inc(sK, 147456, 36 * 147456)
            e(f"v_mfma_f32_32x32x16_bf16 v[144:159], {vr(r,4)}, {vr(r+8,4)}, {'0' if i == 0 else 'v[144:159]'}")
            if i + 2 < 36:
                reads(i + 2)
            if self.p["STAMP"] > 1 and i in (0, 6, 12, 18, 24, 30, 35):
                self.stamp(32 + (i + 1) // 6)

    def kv_loads(self):
        e = self.e
        e(f"s_cmp_ge_u32 {sJ}, 3\ns_cselect_b32 {T0}, 3, 0\ns_sub_u32 {T0}, {sJ}, {T0}\ns_cmp_ge_u32 {T0}, 3\ns_cselect_b32 {T0}, 0, {T0}")
        e(f"s_lshl_b32 {T1}, {T0}, 4\ns_min_u32 {T1}, {T1}, 20\nv_mul_u32_u24 v126, 36, {vL}\nv_add_u32 v126, {T1}, v126")
        e(f"s_mul_i32 {T2}, {sA}, 2304\ns_lshl_b32 {T3}, {sA}, 10\ns_add_u32 {T3}, {T3}, {KVW}")
        for i in range(2):
            e(f"s_add_u32 m0, {T3}, {4096*i}\ns_add_u32 {T0}, {T2}, {9216*i}")
            e.vm(f"buffer_load_dwordx4 v126, {SKV}, {T0} offen lds", "kvw")
        e(f"s_mov_b32 m0, {KVW + 8192}\ns_mov_b32 {T0}, {8*2304}")
        e.vm(f"buffer_load_dwordx4 v126, {SKV}, {T0} offen lds", "kvw")

    def pro_att(self):
        e, p = self.e, self.p
        if not p["KVEARLY"]:
            self.kv_loads()
        e(f"v_mul_u32_u24 v125, 1152, {vL}\ns_mul_i32 {T0}, {sJ}, 144\ns_add_u32 {T0}, {T0}, 128\nv_add_u32 v125, {T0}, v125")
        e(f"s_mul_i32 {T2}, {sA}, 73728\ns_lshl_b32 {T3}, {sA}, 10\ns_add_u32 {T3}, {T3}, {QE}")
        for i in range(2):
            e(f"s_add_u32 m0, {T3}, {4096*i}\ns_add_u32 {T0}, {T2}, {4*73728*i}")
            e.vm(f"buffer_load_dwordx4 v125, {SWQ}, {T0} offen lds", "ext")
        e(f"s_cmp_lg_u32 {sA}, 1\ns_cbranch_scc1 L_PA_2\ns_mov_b32 m0, {QE + 8192}\ns_mov_b32 {T0}, {8*73728}")
        e(f"buffer_load_dwordx4 v125, {SWQ}, {T0} offen lds")
        e.label("L_PA_2")
        nsl = p['NSL']
        if p["TLBW"] and p["TLBU"] == -1:
            self.tlb_touch()
        if p["WARMQ"]:
            rows = 18 * nsl
            e(f"s_lshl_b32 {T0}, {sA}, 6\nv_add_u32 v126, {T0}, {vL}\nv_lshrrev_b32 v127, 2, v126\nv_and_b32 v128, 3, v126\nv_mul_u32_u24 v127, 1152, v127")
            e(f"v_cmp_gt_u32 vcc, {4*rows}, v126\nv_mul_u32_u24 v128, 52, v128\nv_add_u32 v127, v127, v128\nv_mov_b32 v128, {OOB}\nv_cndmask_b32 v127, v128, v127, vcc")
            e(f"s_and_b32 {T1}, {sRB}, {32//nsl - 1}\ns_mul_i32 {T1}, {T1}, {rows*1152}\ns_mul_i32 {T0}, {sJ}, 144\ns_add_u32 {T1}, {T1}, {T0}")
            e.vm(f"buffer_load_dword v252, v127, {SWQ}, {T1} offen")
            e.vm(f"buffer_load_dword v253, v127, {SWO}, {T1} offen")

    def tlb_touch(self):
        e, p = self.e, self.p
        e(f"s_mov_b64 exec, 7\ns_cmp_eq_u32 {sA}, 1\ns_cbranch_scc1 L_TLB1\ns_cmp_eq_u32 {sA}, 2\ns_cbranch_scc1 L_TLB2\ns_cmp_eq_u32 {sA}, 3\ns_cbranch_scc1 L_TLB3")
        if p["TLBW"] == 1:
            e(f"v_mul_u32_u24 v126, {ASZ - 64}, {vL}\nv_cmp_eq_u32 vcc, 2, {vL}\nv_add_u32 v126, {sAR}, v126\ns_nop 0\nv_cndmask_b32 v126, v126, 0, vcc")
        else:
            e(f"s_mov_b64 exec, 0xfff\nv_lshlrev_b32 v126, 21, {vL}\nv_add_u32 v126, 0x30000, v126")
        e(f"buffer_load_dword v253, v126, {SWS}, 0 offen\ns_branch L_TLBD")
        e.label("L_TLB1")
        e(f"s_mul_i32 {T1}, {sJ}, 663552\nv_mul_u32_u24 v126, 331000, {vL}\nbuffer_load_dword v253, v126, {SW2}, {T1} offen\ns_branch L_TLBD")
        e.label("L_TLB2")
        e(f"s_mul_i32 {T0}, {sRB}, 73728\nv_mul_u32_u24 v126, 36000, {vL}\nbuffer_load_dword v253, v126, {SOUT}, {T0} offen\ns_branch L_TLBD")
        e.label("L_TLB3")
        e(f"v_mov_b32 v126, 0")
        e.vm(f"buffer_load_dword v253, v126, {SDBG if p['TLBW'] == 1 else SWO}, 0 offen offset:128")
        e.label("L_TLBD")
        e("s_mov_b64 exec, -1")

    def ln_stats(self, ffn=False):
        e = self.e
        e("v_mov_b32 v112, 0\nv_mov_b32 v113, 0\nv_mov_b32 v114, 0\nv_mov_b32 v115, 0\ns_mov_b32 s85, 0x3f803f80\ns_mov_b32 s86, 0xffff0000")
        for u in range(9):
            e.wait(vm=("x", u))
            if u == 0:
                self.stamp(1)
                if ffn and self.p["W1LATE"] == 1:
                    self.first_loads()
            if ffn and self.p["W1LATE"] == 2 and u in (1, 3, 5, 7, 8):
                n = (1, 3, 5, 7, 8).index(u)
                self.first_loads(3 * n, 3 * n + 3)
            if not ffn and self.p["TLBW"] and u == self.p["TLBU"]:
                self.tlb_touch()
            if not ffn and self.p["KVEARLY"] and u == self.p["KVU"]:
                self.kv_loads()
            if not ffn and u == self.p["EXTU"] and not self.p["KVEARLY"]:
                self.pro_att()
            if u == 8:
                self.stamp(30)
            if ffn and self.p["W1LATE"] == 3 and u == 8:
                self.first_loads()
            if ffn and self.p["W1LATE"] == 4 and u == self.p.get("PREU", 8) and self.p["PRE"]:
                self.first_loads(0, self.p["PRE"], 0, self.p["PREL"])
            for k in range(4):
                r = 4 * u + k
                e(f"v_dot2_f32_bf16 v{112+(k&1)}, v{r}, s85, v{112+(k&1)}")
                e(f"v_lshlrev_b32 v{40+2*r}, 16, v{r}")
                e(f"v_dot2_f32_bf16 v{114+(k&1)}, v{r}, v{r}, v{114+(k&1)}")
                e(f"v_and_b32 v{41+2*r}, s86, v{r}")

    def layernorm(self):
        e = self.e
        self.stamp(14)
        e("s_nop 2\nv_add_f32 v112, v112, v113\nv_add_f32 v114, v114, v115\ns_nop 1")
        for m in ("quad_perm:[1,0,3,2]", "quad_perm:[2,3,0,1]", "row_half_mirror"):
            e(f"v_add_f32_dpp v112, v112, v112 {m} row_mask:0xf bank_mask:0xf")
            e(f"v_add_f32_dpp v114, v114, v114 {m} row_mask:0xf bank_mask:0xf\ns_nop 1")
        inv = f"{f2u(1.0/576):#x}"
        e(f"v_mul_f32 v112, {inv}, v112\nv_mul_f32 v114, {inv}, v114\nv_fma_f32 v114, -v112, v112, v114\nv_max_f32 v114, 0, v114")
        e(f"v_add_f32 v114, {f2u(1e-5):#x}, v114\nv_rsq_f32 v114, v114\ns_nop 0\nv_mul_f32 v114, {sNL2E}, v114\nv_mul_f32 v112, v112, v114")
        for u in range(9):
            for k in range(0, 8, 2 if self.p["PKLN"] else 1):
                r = 40 + 8 * u + k
                if self.p["PKLN"]:
                    e(f"v_pk_fma_f32 v[{r}:{r+1}], v[{r}:{r+1}], v[114:115], v[112:113] op_sel_hi:[1,0,0] neg_lo:[0,0,1] neg_hi:[0,0,1]")
                else:
                    e(f"v_fma_f32 v{r}, v{r}, v114, -v112")
            for k in range(4):
                e(f"v_cvt_pk_bf16_f32 v{4*u+k}, v{40+8*u+2*k}, v{41+8*u+2*k}")
            if u < 8:
                e(f"ds_write_b128 v123, v[{4*u}:{4*u+3}] offset:{8*CH*u}")
            else:
                e(f"ds_write_b128 v124, v[{4*u}:{4*u+3}] offset:{8*CH*7}")
        self.stamp(15)
        e(f"s_cmp_ge_u32 {sW}, 4\ns_cbranch_scc1 L_ATT")
        if self.p["RESTB"]:
            self.first_loads(self.p["PRE"], self.p["RESTB"], self.p["PREL"], self.p["RESTB"])
        if self.p["TADDR"] in (1, 3):
            self.q_addresses()
        if self.p["TADDR"] == 1:
            self.tail_addresses()
        e("s_waitcnt lgkmcnt(0)\ns_barrier")

    def gemm(self, T, which, Tn):
        e = self.e
        vT = "v218" if which == 1 else "v219"
        sec = 256 if which == 1 else 512
        vD, SW, kstride = ("v216", SW1, 147456) if which == 1 else ("v217", SW2, 18432)

        def areg(buf, pc):
            return 160 + 20 * buf + 4 * pc

        def breg(buf, rt):
            return 200 + 8 * buf + 4 * rt

        def reads(s, pc):
            if pc < 2:
                e.lg(f"ds_read_b128 {vr(breg(s&1,pc),4)}, v220 offset:{512*pc}", ("B", s, pc))
            o = (s % 3) * 5120 + 1024 * pc
            e.lg(f"ds_read_b64_tr_b16 {vr(areg(s&1,pc),2)}, {vT} offset:{o}", ("A", s, pc))
            e.lg(f"ds_read_b64_tr_b16 {vr(areg(s&1,pc)+2,2)}, {vT} offset:{o+sec}", ("A", s, pc))

        def dma_list(s):
            sn = s + 3
            if sn < 36:
                return [(vD, SW, pc, ("d", sn, pc)) for pc in range(T)]
            if which == 1:
                return [("v217", SW2, pc, ("d2", sn - 36, pc)) for pc in range(Tn)]
            return []

        def step(s, first=False):
            dl = dma_list(s)
            if which == 1 and s == 33:
                e(f"s_mul_i32 {sK}, {sROT}, 18432")
            for gi in range(2 * T):
                pc, rt = gi >> 1, gi & 1
                mine = []
                if rt == 0:
                    mine = [d for d in dl if d[2] == pc or (pc == T - 1 and d[2] > pc)]
                e.wait(lg=[("A", s, pc), ("B", s, 0)] if gi == 0 else ([("B", s, 1)] if gi == 1 else [("A", s, pc)]))
                if mine:
                    e(f"s_add_u32 m0, {sRING}, {(s % 3)*5120 + 960*mine[0][2]}")
                acc = vr(16 * gi, 16)
                e(f"v_mfma_f32_32x32x16_bf16 {acc}, {vr(areg(s&1,pc),4)}, {vr(breg(s&1,rt),4)}, {'0' if first else acc}")
                for n, d in enumerate(mine):
                    if n:
                        e(f"s_add_u32 m0, {sRING}, {(s % 3)*5120 + 960*d[2]}\ns_nop 0")
                    e.vm(f"buffer_load_dwordx4 {d[0]}, {d[1]}, {sK} offen offset:{64*d[2]} lds", d[3])
                if rt == 1 and s + 1 < 36:
                    if pc == 0:
                        e(f"v_add_u32 v220, {sBO}, v223")
                    e.wait(vm=("d", s + 1, pc))
                    reads(s + 1, pc)
                if gi == 2 * T - 3 and s + 2 < 36:
                    self.wrap_inc(sBO, 2080, 36 * 2080)
            if s <= 32:
                self.wrap_inc(sK, kstride, 36 * kstride)
            elif which == 1:
                self.wrap_inc(sK, 18432, 36 * 18432)

        e.vmq = [("d", s, pc) for s in range(3) for pc in range(T)]
        e(f"s_mul_i32 {sBO}, {sROT}, 2080\nv_add_u32 v220, {sBO}, v223")
        self.wrap_inc(sBO, 2080, 36 * 2080)
        e.wait(vm=("d", 0, T - 1))
        e.lgq = []
        for pc in range(T):
            reads(0, pc)
        main = e.lines
        texts = []
        for s in range(36):
            e.lines = []
            step(s, first=(s == 0))
            texts.append(e.lines)
        e.lines = main
        for s in range(1, 27):
            assert texts[s] == texts[s + 6], (s, texts[s], texts[s + 6])
        tag = f"G{which}T{T}"
        e.lines += texts[0]
        e(f"s_mov_b32 {sCNT}, 0\ns_branch L_{tag}_1")
        e(".p2align 3")
        e.label(f"L_{tag}_3")
        if self.p["STAMP"] > 1:
            e(f"s_memrealtime s[88:89]\ns_memtime s[90:91]\ns_add_u32 m0, {sCNT}, {8*which+8}\ns_waitcnt lgkmcnt(0)\nv_writelane_b32 v255, s88, m0\nv_writelane_b32 v254, s90, m0")
        for s in (3, 4, 5, 6):
            e.lines += texts[s]
        e.label(f"L_{tag}_1")
        e.lines += texts[7] + texts[8]
        e(f"s_add_u32 {sCNT}, {sCNT}, 1\ns_cmp_lt_u32 {sCNT}, 6\ns_cbranch_scc1 L_{tag}_3")
        for s in (33, 34, 35):
            e.lines += texts[s]

    def silu(self, T):
        e = self.e
        for g in range(4 * T):
            b = 8 * g
            t = 160 + 8 * (g & 1)
            if self.p.get("X_NOSILU"):
                for k in range(4):
                    e(f"v_cvt_pk_bf16_f32 v{b+k}, v{b+2*k}, v{b+2*k+1}")
                continue
            for k in range(8):
                e(f"v_exp_f32 v{t+k}, v{b+k}")
            pk = self.p["PKSILU"]
            for k in range(0, 8, 2 if pk else 1):
                e(f"v_pk_add_f32 v[{t+k}:{t+k+1}], v[{t+k}:{t+k+1}], 1.0 op_sel_hi:[1,0]" if pk else f"v_add_f32 v{t+k}, 1.0, v{t+k}")
            for k in range(8):
                e(f"v_rcp_f32 v{t+k}, v{t+k}")
            for k in range(0, 8, 2 if pk else 1):
                e(f"v_pk_mul_f32 v[{t+k}:{t+k+1}], v[{b+k}:{b+k+1}], v[{t+k}:{t+k+1}]" if pk else f"v_mul_f32 v{t+k}, v{b+k}, v{t+k}")
            for k in range(4):
                e(f"v_cvt_pk_bf16_f32 v{b+k}, v{t+2*k}, v{t+2*k+1}")

    def q_out(self):
        e = self.e
        c = f"{f2u(1.0 / (math.log2(math.e) * math.sqrt(18.0))):#x}"
        if self.p["TADDR"] in (2, 4):
            self.q_addresses()
        e(f"s_mov_b32 {T3}, {c}")
        self.lds_wait(C_A, 4, "v252", "v253")
        e.nop(5)
        e(f"v_mov_b32 v174, {T3}")
        for r in range(128, 160, 2):
            e(f"v_pk_mul_f32 v[{r}:{r+1}], v[{r}:{r+1}], v[174:175] op_sel_hi:[1,0]")
        for k in range(16):
            e(f"v_cvt_pk_bf16_f32 v{128+k}, v{128+2*k}, v{129+2*k}")
        for rt in range(2):
            for pp in range(8):
                e.lg(f"ds_write_b32 v{196+pp}, v{128+8*rt+pp} offset:{1536*rt}")
        e.wait_all(lg=True)
        self.arrive(C_B, "v252", "v253")

    def qaddr(self, dst, vc, cadd, vbase, t0, t1):
        e = self.e
        e(f"v_add_u32 {t0}, {cadd}, {vc}\nv_mul_u32_u24 {t1}, 3641, {t0}\nv_lshrrev_b32 {t1}, 16, {t1}")
        e(f"v_mul_u32_u24 {dst}, 18, {t1}\nv_sub_u32 {t0}, {t0}, {dst}\nv_mul_u32_u24 {dst}, 3072, {t1}\nv_lshrrev_b32 {t1}, 3, {t0}\nv_lshl_add_u32 {dst}, {t1}, 9, {dst}")
        e(f"v_and_b32 {t0}, 7, {t0}\nv_lshl_add_u32 {dst}, {t0}, 1, {dst}\nv_add_u32 {dst}, {vbase}, {dst}")

    def ffn_path(self, T1_, T2_):
        e, p = self.e, self.p
        if T1_ == 4:
            self.q_gemm()
            self.q_out()
            self.stamp(13)
        self.gemm(T1_, 1, T2_)
        self.arrive(C_XN, "v252", "v253")
        self.stamp(3)
        if p["WARMO"]:
            nsl = p["NSL"]
            rows = 18 * nsl
            e(f"s_lshl_b32 {T0}, {sW}, 6\nv_add_u32 v176, {T0}, {vL}\nv_lshrrev_b32 v177, 2, v176\nv_and_b32 v178, 3, v176\nv_mul_u32_u24 v177, 1152, v177")
            e(f"v_cmp_gt_u32 vcc, {4*rows}, v176\nv_mul_u32_u24 v178, 52, v178\nv_add_u32 v177, v177, v178\nv_mov_b32 v178, {OOB}\nv_cndmask_b32 v177, v178, v177, vcc")
            e(f"s_and_b32 {T1}, {sRB}, {32//nsl - 1}\ns_mul_i32 {T1}, {T1}, {rows*1152}\ns_mul_i32 {T0}, {sJ}, 144\ns_add_u32 {T1}, {T1}, {T0}")
            e(f"buffer_load_dword v230, v177, {SWO}, {T1} offen")
        e.nop(2)
        self.silu(T1_)
        self.stamp(4)
        if p["TADDR"] == 4:
            self.tail_addresses()
        self.lds_wait(C_XN, 8, "v252", "v253")
        for u in range(2 * T1_):
            pc, rt = u >> 1, u & 1
            for hf in range(2):
                e.lg(f"ds_write_b128 v221, {vr(16*u+8*hf,4)} offset:{(4*pc+2*hf)*CH + 512*rt}")
        e.wait_all(lg=True)
        self.arrive(C_H, "v252", "v253")
        self.lds_wait(C_H, 4, "v252", "v253")
        self.stamp(5)
        self.gemm(T2_, 2, 0)
        self.arrive(C_G2, "v252", "v253")
        if p["PRIO_T"] != p["PRIO_F"]:
            e(f"s_setprio {p['PRIO_T']}")
        self.stamp(6)
        if p["SENT"] and T2_ == 4:
            e(f"s_lshl_b32 {T0}, {sJ}, 13\ns_lshl_b32 {T1}, {sW}, 12\ns_add_u32 {T0}, {T0}, {T1}\ns_add_u32 {T0}, {T0}, {sAR}\ns_add_u32 {T0}, {T0}, {OM}")
            e(f"s_lshl_b32 {T1}, {sJ}, 10\ns_add_u32 {T1}, {T1}, {sAR}\ns_add_u32 {T1}, {T1}, {OX}\nv_lshlrev_b32 v168, 4, {vL}")
            e("v_mov_b32 v172, -1\nv_mov_b32 v173, -1\nv_mov_b32 v174, -1\nv_mov_b32 v175, -1")
            for q in range(4):
                e(f"buffer_store_dwordx4 v[172:175], v168, {SWS}, {T0} offen offset:{1024*q} sc1")
            e(f"buffer_store_dwordx4 v[172:175], v168, {SWS}, {T1} offen sc1")
        e.nop(2)
        for u in range(2 * T2_):
            pc, rt = u >> 1, u & 1
            b = 16 * u
            for k in range(8):
                e(f"v_cvt_pk_bf16_f32 v{b+k}, v{b+2*k}, v{b+2*k+1}")
            e(f"s_mov_b32 {T0}, {(4*pc)*8192}\ns_mov_b32 {T1}, {(4*pc+2)*8192}")
            e(f"v_permlane32_swap_b32 v{b}, v{b+2}\nv_permlane32_swap_b32 v{b+1}, v{b+3}")
            e(f"v_permlane32_swap_b32 v{b+4}, v{b+6}\nv_permlane32_swap_b32 v{b+5}, v{b+7}")
            e.vm(f"buffer_store_dwordx4 {vr(b,4)}, v222, {SWS}, {T0} offen offset:{512*rt} sc1", "pst")
            e.vm(f"buffer_store_dwordx4 {vr(b+4,4)}, v222, {SWS}, {T1} offen offset:{512*rt} sc1", "pst")
            if p["PACE"]:
                e(f"s_waitcnt vmcnt({p['PACE']})")

    def ffn(self):
        e, p = self.e, self.p
        if p["W1LATE"] == 4 and p["RESTB"] < 15:
            self.first_loads(p["RESTB"] or p["PRE"], 15, p["RESTB"] or p["PREL"], 15)
        self.stamp(2)
        if p["PRIO_F"]:
            e(f"s_setprio {p['PRIO_F']}")
        e(f"s_cmp_ge_u32 {sW}, 2\ns_cbranch_scc1 L_FFN_L")
        self.ffn_path(5, 4)
        e("s_branch L_FFN_J")
        e.label("L_FFN_L")
        self.ffn_path(4, 5)
        e.label("L_FFN_J")
        e("s_setprio 0")
        self.stamp(7)
        self.ffn_tail()

    def partials_dyn(self):
        e, p = self.e, self.p
        for r in range(20):
            e(f"v_mov_b32 v{r}, 0")
        e(f"s_add_u32 {T3}, {sAR}, {FLAGS + F_P}\ns_mov_b32 {T4}, 0x55")
        oo = p["OORD"]
        if oo == 1:
            e(f"s_or_b32 {sNT}, {sJ}, 1\ns_add_u32 {sNT}, {sNT}, 1\ns_mov_b32 {sNL}, 0")
        e(f"v_and_b32 v231, 7, {vL}\nv_lshlrev_b32 v231, 3, v231\ns_mov_b32 {sSPIN}, 0")
        e.label("L_PD_POLL")
        e(f"buffer_load_dwordx2 v[252:253], v231, {SWS}, {T3} offen sc1\ns_waitcnt vmcnt(0)")
        e(f"v_xor_b32 v252, {sN0}, v252\nv_xor_b32 v253, {sN1}, v253\nv_or_b32 v252, v252, v253\nv_cmp_eq_u32 vcc, 0, v252\ns_add_u32 {sSPIN}, {sSPIN}, 1\ns_nop 1")
        e(f"s_lshr_b32 {T2}, vcc_lo, 1\ns_and_b32 {T2}, {T2}, vcc_lo")
        if oo:
            e(f"s_lshr_b32 {T2}, {T2}, {sNT}")
        e(f"s_cmp_ge_u32 {sSPIN}, {p['SPIN']}\ns_cselect_b32 {T2}, -1, {T2}\ns_and_b32 {T2}, {T2}, {T4}\ns_cbranch_scc1 L_PD_GO\ns_sleep 4\ns_branch L_PD_POLL")
        e.label("L_PD_GO")

        def ploads(b):
            e(f"s_ff1_i32_b32 {T1}, {T2}\ns_bitset0_b32 {T2}, {T1}\ns_bitset0_b32 {T4}, {T1}")
            if oo == 1:
                e(f"s_add_u32 {T1}, {T1}, {sNT}\ns_and_b32 {T1}, {T1}, 7\ns_lshl_b32 {sNL}, {sNL}, 3\ns_or_b32 {sNL}, {sNL}, {T1}")
            if oo == 2:
                e(f"s_add_u32 {T0}, {T1}, {sNT}\ns_and_b32 {T0}, {T0}, 7\ns_lshl_b32 {sCNT}, {sNL}, 3\ns_or_b32 {sCNT}, {sCNT}, {T0}")
                e(f"s_bitcmp1_b32 {sREC}, {T1}\ns_cselect_b32 {sNL}, {sNL}, {sCNT}\ns_mov_b32 {T1}, {T0}")
            e(f"s_lshl_b32 {T1}, {T1}, 10")
            for a in range(5):
                e(f"s_add_u32 {T0}, {T1}, {a*16384}")
                e.vm(f"buffer_load_dwordx4 {vr(20+20*b+4*a,4)}, {'v240' if a < 4 else 'v241'}, {SWS}, {T0} offen sc1", ("pl", b, a))

        def padd(b):
            for a in range(5):
                e.wait(vm=("pl", b, a))
                e(f"v_mfma_f32_16x16x32_bf16 {vr(4*a,4)}, {vr(232 if a < 4 else 236,4)}, {vr(20+20*b+4*a,4)}, {vr(4*a,4)}")
        e.vmq = []
        ploads(0)
        if p["DYNP"] == 2:
            e(f"s_cmp_eq_u32 {T2}, 0\ns_cbranch_scc1 L_PD_ONE")
            q0 = list(e.vmq)
            ploads(1)
            padd(0)
            padd(1)
            e("s_branch L_PD_J")
            e.label("L_PD_ONE")
            e.vmq = q0
        padd(0)
        e.label("L_PD_J")
        e(f"s_cmp_lg_u32 {T2}, 0\ns_cbranch_scc1 L_PD_GO\ns_cmp_lg_u32 {T4}, 0\ns_cbranch_scc1 L_PD_POLL")
        self.stamp(8)

    def ffn_tail(self):
        e, p = self.e, self.p
        e.vmq = ["pst"]
        if p["TADDR"] in (2, 3):
            self.tail_addresses()
        ws = p["WOS"]
        e(f"s_mul_i32 {T2}, {sW}, {ws}\ns_cmp_eq_u32 {sW}, 3\ns_cselect_b32 {T2}, {9 + ws}, {T2}")
        e(f"s_mul_i32 {T3}, {T2}, 5120\ns_mul_i32 {T2}, {T2}, 36864\ns_mul_i32 {T4}, {sJ}, 144\ns_add_u32 {T2}, {T2}, {T4}")
        e("s_waitcnt vmcnt(0)")
        self.arrive(C_P, "v252", "v253", rtn=T4)
        self.get_nonce("v231", 252)
        e(f"s_cmp_lg_u32 {T4}, 3\ns_cbranch_scc1 L_NOPF")
        self.flag_set(F_P, sJ, "v231", 252)
        e.label("L_NOPF")
        if p["OORD"] == 2:
            e(f"s_or_b32 {sNT}, {sJ}, 1\ns_add_u32 {sNT}, {sNT}, 1\ns_mov_b32 {sNL}, 0\ns_add_u32 {T0}, {sAR}, {FLAGS + F_P}")
            e(f"v_and_b32 v231, 7, {vL}\nv_lshlrev_b32 v231, 3, v231\nbuffer_load_dwordx2 v[252:253], v231, {SWS}, {T0} offen sc1\ns_waitcnt vmcnt(0)")
            e(f"v_xor_b32 v252, {sN0}, v252\nv_xor_b32 v253, {sN1}, v253\nv_or_b32 v252, v252, v253\nv_cmp_eq_u32 vcc, 0, v252\ns_nop 1")
            e(f"s_lshr_b32 {T4}, vcc_lo, 1\ns_and_b32 {T4}, {T4}, vcc_lo\ns_lshr_b32 {T4}, {T4}, {sNT}\ns_and_b32 {T4}, {T4}, 0x15\ns_or_b32 {T4}, {T4}, 0x40")
            e(f"s_mov_b32 {sREC}, {T4}\ns_cmp_eq_u32 {T4}, 0x55\ns_cselect_b32 {sEARLY}, {p['OEARLY']}, 0")
            e.label("L_ORD")
            e(f"s_ff1_i32_b32 {T1}, {T4}\ns_bitset0_b32 {T4}, {T1}\ns_add_u32 {T1}, {T1}, {sNT}\ns_and_b32 {T1}, {T1}, 7\ns_lshl_b32 {sNL}, {sNL}, 3\ns_or_b32 {sNL}, {sNL}, {T1}\ns_cmp_lg_u32 {T4}, 0\ns_cbranch_scc1 L_ORD")
        self.lds_wait(C_G2, 4, "v252", "v253")
        e(f"s_cmp_ge_u32 {sW}, 2\ns_cselect_b32 {sCNT}, {9 - ws}, {ws}")
        if ws == 9:
            e("s_cbranch_scc1 L_WO_D")
        e.label("L_WO_L")
        for i in range(5):
            e(f"s_add_u32 m0, {T3}, {i*1024}\ns_nop 0")
            e(f"buffer_load_dwordx4 v{225+i}, {SWO}, {T2} offen lds")
        e(f"s_add_u32 {T3}, {T3}, 5120\ns_add_u32 {T2}, {T2}, 36864\ns_waitcnt vmcnt({p['PACE3']})\ns_sub_u32 {sCNT}, {sCNT}, 1\ns_cmp_lg_u32 {sCNT}, 0\ns_cbranch_scc1 L_WO_L")
        e.label("L_WO_D")
        for a in range(5):
            e.vm(f"buffer_load_dwordx4 {vr(60+4*a,4)}, {'v242' if a < 4 else 'v243'}, {SX}, 0 offen offset:{32*a}", ("xr", a))
        e.wait_all(vm=True)
        self.arrive(C_WO, "v252", "v253")
        sG = ("s74", "s75", "s76", "s97")
        vG = ("v225", "v226", "v227", "v228")

        def group_addr():
            for b in range(4):
                if p["OORD"]:
                    e(f"s_bfe_u32 {T0}, {sNL}, {(2 << 16) | (3*(3-b) + 1)}")
                else:
                    e(f"s_lshr_b32 {T0}, {sJ}, 1\ns_add_u32 {T0}, {T0}, {b+p['OROT']}\ns_and_b32 {T0}, {T0}, 3")
                e(f"s_lshl_b32 {sG[b]}, {T0}, 14\ns_mul_i32 {T0}, {T0}, 23040\nv_add_u32 {vG[b]}, {T0}, v248")

        det = p["OORD"] == 2
        NA, AB, OB = (13, 172, 100) if det else (33, 92, 20)

        def aop(i):
            kk, t = divmod(i, 5)
            r = AB + 4 * (i % NA)
            if kk < 16:
                va, o, sec = vG[kk >> 2], (kk & 3) * 5760 + 32 * t, 1280
            else:
                va, o, sec = "v251", (kk - 16) * 46080 + 32 * t, 5760
            e.lg(f"ds_read_b64_tr_b16 {vr(r,2)}, {va} offset:{o}", ("a", i))
            e.lg(f"ds_read_b64_tr_b16 {vr(r+2,2)}, {va} offset:{o+sec}", ("a", i))

        def pre_reads():
            group_addr()
            self.lds_wait(C_WO, 4, "v252", "v253")
            for i in range(NA):
                aop(i)
        prea = p["PREA"] and not p["OORD"]
        if prea:
            pre_reads()
        self.partials_dyn()
        e(f"s_mov_b32 {T0}, {f2u(-math.log(2.0)):#x}")
        e.nop(6)
        for r in range(20):
            e(f"v_mul_f32 v{r}, {T0}, v{r}")
        for a in range(5):
            e(f"v_mfma_f32_16x16x32_bf16 {vr(4*a,4)}, {vr(232 if a < 4 else 236,4)}, {vr(60+4*a,4)}, {vr(4*a,4)}")
        if not prea:
            pre_reads()
        e.wait_all(lg=True)
        self.stamp(9)

        def oload(kk, track=True):
            if kk < 16:
                e(f"s_add_u32 {T0}, {sG[kk >> 2]}, {(kk & 3)*4096}")
            else:
                e(f"s_mov_b32 {T0}, {(kk - 16)*4096}")
            va = ("v246" if kk < 16 else "v247") if not det or kk < 12 else ("v229" if kk < 16 else "v230")
            ins = f"buffer_load_dwordx4 {vr(OB+4*kk,4)}, {va}, {SWS}, {T0} offen sc1"
            e.vm(ins, ("o", kk)) if track else e(ins)

        def ocheck(kk):
            b = OB + 4 * kk
            return [f"v_max3_u32 v252, v{b}, v{b+1}, v{b+2}", f"v_max_u32 v252, v252, v{b+3}", "v_cmp_eq_u32 vcc, -1, v252"]
        om = p["OMODE"]
        if det:
            e(f"s_cmp_lg_u32 {sEARLY}, 0\ns_cbranch_scc1 L_OE")
            self.lds_wait(C_O, 4, "v252", "v253", sleep=2)
            e("v_mov_b32 v229, v246\nv_mov_b32 v230, v247\ns_branch L_OE_J")
            e.label("L_OE")
            self.lds_wait(C_L, 4, "v252", "v253", sleep=2)
            e(f"v_mov_b32 v229, {OOB}\nv_mov_b32 v230, {OOB}")
            e.label("L_OE_J")
        elif om in (0, 4):
            self.lds_wait(C_O, 4, "v252", "v253", sleep=2)
            self.flag_wait(F_O, 32, "v241", 252)
        else:
            e(f"v_bfe_u32 v241, {vL}, 2, 3\nv_lshlrev_b32 v241, 10, v241\nv_and_b32 v252, 3, {vL}\nv_lshl_add_u32 v241, v252, 2, v241\ns_add_u32 {T2}, {sAR}, {OX + 1008}")
            self.lds_wait(C_O, 4, "v252", "v253", sleep=1 if p["T2"] else 2)
            if om == 1:
                e(f"s_mov_b32 {sSPIN}, 0")
                e.label("L_HINT")
                e(f"buffer_load_dword v252, v241, {SWS}, {T2} offen sc1\ns_waitcnt vmcnt(0)\nv_cmp_eq_u32 vcc, -1, v252\ns_add_u32 {sSPIN}, {sSPIN}, 1\ns_nop 3")
                e(f"s_cbranch_vccz L_HINT_D\ns_cmp_lt_u32 {sSPIN}, {p['SPIN']}\ns_cbranch_scc1 L_HINT")
                e.label("L_HINT_D")
        e(f"s_mov_b32 {sSPIN}, 0")
        self.stamp(10)
        e.vmq = []
        for kk in range(18):
            oload(kk)
        e.wait(vm=("o", 0))
        e("\n".join(ocheck(0)) + "\ns_nop 4")
        for i in range(90):
            kk, t = divmod(i, 5)
            if t == 0:
                if det and kk == 12:
                    e(f"s_cmp_lg_u32 {sEARLY}, 0\ns_cbranch_scc1 L_OE12")
                e(f"s_cbranch_vccnz L_OS_{kk}")
                e.label(f"L_OR_{kk}")
                if p["STAMP"] > 1 and kk in (0, 4, 8, 12, 16):
                    e(f"s_memrealtime s[88:89]\ns_waitcnt lgkmcnt(0)\nv_writelane_b32 v255, s88, {40 + kk // 4}\nv_writelane_b32 v254, {sSPIN}, {40 + kk // 4}")
                    e.lgq = []
            e.wait(vm=("o", kk), lg=("a", i))
            acc = vr(20 + 20 * (kk >> 2) + 4 * t, 4) if det and kk < 16 else vr(4 * t, 4)
            e(f"v_mfma_f32_16x16x32_bf16 {acc}, {vr(AB+4*(i % NA),4)}, {vr(OB+4*kk,4)}, {'0' if det and kk < 16 and kk % 4 == 0 else acc}")
            if i >= 1 and i - 1 + NA < 90:
                aop(i - 1 + NA)
            if t < 3 and kk < 17:
                e.wait(vm=("o", kk + 1))
                e(ocheck(kk + 1)[t])
        main, e.lines = e.lines, []
        if det:
            e.label("L_OE12")
            lq = list(e.lgq)
            self.lds_wait(C_O, 4, "v252", "v253")
            e.lgq = lq
            e(f"s_mov_b32 {sSPIN}, 0\nv_mov_b32 v229, v246\nv_mov_b32 v230, v247\ns_branch L_OS_12")
        for kk in range(18):
            e.label(f"L_OS_{kk}")
            allk = om == 2
            for k2 in range(kk, (kk | 3) + 1 if kk < 16 and not allk else 18):
                oload(k2, track=False)
            e(f"s_add_u32 {sSPIN}, {sSPIN}, 1\ns_waitcnt vmcnt({17 - kk if allk else 0})")
            e("\n".join(ocheck(kk)) + f"\ns_cmp_ge_u32 {sSPIN}, {p['SPIN']}\ns_nop 3\ns_cbranch_scc1 L_OR_{kk}\ns_cbranch_vccnz L_OS_{kk}\ns_branch L_OR_{kk}")
        self.stubs = e.lines
        e.lines = main
        if det:
            def padd2(a, b):
                for r in range(0, 20, 2):
                    e(f"v_pk_add_f32 v[{a+r}:{a+r+1}], v[{a+r}:{a+r+1}], v[{b+r}:{b+r+1}]")
            e(f"s_bfe_u32 {T0}, {sNL}, {(2 << 16) | 10}\ns_xor_b32 {T0}, {T0}, 1\ns_bfe_u32 {T1}, {sNL}, {(2 << 16) | 7}\ns_cmp_eq_u32 {T0}, {T1}\ns_cbranch_scc1 L_CB1")
            e(f"s_bfe_u32 {T1}, {sNL}, {(2 << 16) | 4}\ns_cmp_eq_u32 {T0}, {T1}\ns_cbranch_scc1 L_CB2")
            padd2(20, 80)
            padd2(40, 60)
            e("s_branch L_CB3")
            e.label("L_CB1")
            padd2(20, 40)
            padd2(60, 80)
            padd2(20, 60)
            e("s_branch L_CB4")
            e.label("L_CB2")
            padd2(20, 60)
            padd2(40, 80)
            e.label("L_CB3")
            padd2(20, 40)
            e.label("L_CB4")
            padd2(0, 20)
        else:
            e.nop(8)
        for t in range(5):
            e(f"v_cvt_pk_bf16_f32 v{20+2*t}, v{4*t}, v{4*t+1}\nv_cvt_pk_bf16_f32 v{21+2*t}, v{4*t+2}, v{4*t+3}")
        e("v_permlane16_swap_b32 v20, v22\nv_permlane16_swap_b32 v21, v23\nv_permlane16_swap_b32 v24, v26\nv_permlane16_swap_b32 v25, v27")
        fl = ("", " sc1", " nt", " sc0 sc1")[p["OUTF"]]
        e(f"buffer_store_dwordx4 v[20:23], v244, {SOUT}, 0 offen{fl}")
        e(f"buffer_store_dwordx4 v[24:27], v244, {SOUT}, 0 offen offset:64{fl}")
        e(f"buffer_store_dwordx2 v[28:29], v245, {SOUT}, 0 offen offset:128{fl}")
        self.stamp(11)
        e("s_branch L_FIN")
        e.lines += getattr(self, "stubs", [])

    def att_proj(self):
        e, p = self.e, self.p
        c = f"{f2u(1.0 / (math.log2(math.e) * math.sqrt(18.0))):#x}"
        early = p["KVEARLY"]
        if p["EXTU"] == 9:
            self.pro_att()
        e("s_waitcnt vmcnt(0) lgkmcnt(0)\ns_barrier" if early else "s_waitcnt lgkmcnt(0)\ns_barrier")
        e.vmq, e.lgq = [], []
        self.stamp(2)
        e(f"s_setprio {p['PRIO_P']}")
        e(f"v_mov_b32 v246, 0\nbuffer_load_dwordx2 v[248:249], v246, {SDBG}, 0 offen sc1")
        if early or p["EXTU"] < 0:
            self.pro_att()
        e(f"v_and_b32 v200, 15, {vL}\nv_lshrrev_b32 v201, 4, {vL}\nv_bfe_u32 v202, {vL}, 2, 2\nv_and_b32 v203, 3, {vL}")
        e(f"v_lshl_add_u32 v204, v201, 3, v202\nv_lshlrev_b32 v204, 4, v204\nv_and_b32 v205, 1, v203\nv_lshl_add_u32 v204, v205, 3, v204")
        e(f"v_add_u32 v216, {QE}, v204\nv_add_u32 v204, {KVW}, v204")
        if not early:
            e(f"v_cmp_gt_u32 vcc, 2, v203\ns_nop 1\nv_cndmask_b32 v204, v204, v216, vcc")
        e(f"v_mul_u32_u24 v205, {CH}, v201\nv_lshl_add_u32 v205, v200, 4, v205\nv_add_u32 v206, {9*4*CH}, v205")
        e(f"s_lshl_b32 {T0}, {sA}, 8\nv_add_u32 v207, {T0}, v205\nv_add_u32 v208, {T0}, v206")
        if not early:
            e.wait_all(vm=True, lg=True)
            self.arrive(C_E, "v246", "v247")
            self.lds_wait(C_E, 4, "v246", "v247")
        self.stamp(10)

        def ext_reads(kk):
            r = 8 * kk
            e.lg(f"ds_read_b64_tr_b16 {vr(r,2)}, v204 offset:{512*kk}", ("e", kk))
            e.lg(f"ds_read_b64_tr_b16 {vr(r+2,2)}, v204 offset:{512*kk+64}", ("e", kk))
            e.lg(f"ds_read_b128 {vr(r+4,4)}, {'v207' if kk < 9 else 'v208'} offset:{4*CH*(kk % 9)}", ("e", kk))
        for kk in range(5):
            ext_reads(kk)
        for kk in range(18):
            e.wait(lg=("e", kk))
            r = 8 * kk
            e(f"v_mfma_f32_16x16x32_bf16 v[144:147], {vr(r,4)}, {vr(r+4,4)}, {'0' if kk == 0 else 'v[144:147]'}")
            e(f"v_mfma_f32_16x16x32_bf16 v[148:151], {vr(r+4,4)}, {vr(r,4)}, {'0' if kk == 0 else 'v[148:151]'}")
            if kk + 5 < 18:
                ext_reads(kk + 5)
        if not early:
            self.arrive(C_A, "v246", "v247")
        e(f"s_lshr_b32 {T2}, {sA}, 1\ns_lshl_b32 {T3}, {sRB}, 1\ns_add_u32 {T2}, {T2}, {T3}\ns_and_b32 {T3}, {sA}, 1")
        e(f"s_lshl_b32 {T4}, {T3}, 4\nv_add_u32 v209, {T4}, v200\nv_mov_b32 v210, {OOB}")
        e("v_cvt_pk_bf16_f32 v152, v144, v145\nv_cvt_pk_bf16_f32 v153, v146, v147\nv_cvt_pk_bf16_f32 v154, v148, v149\nv_cvt_pk_bf16_f32 v155, v150, v151")
        e(f"s_cmp_ge_u32 {sJ}, 6\ns_cbranch_scc1 L_KV_D\ns_cmp_ge_u32 {sJ}, 3\ns_cbranch_scc1 L_KV_V\ns_cmp_eq_u32 {sJ}, 2\ns_cbranch_scc1 L_KV_X")
        e(f"s_mul_i32 {T0}, {T2}, {KREC}\ns_lshl_b32 {T1}, {sJ}, 9\ns_add_u32 {T0}, {T0}, {T1}")
        e("v_lshlrev_b32 v211, 4, v209\nv_and_b32 v212, 1, v201\nv_lshl_add_u32 v211, v212, 3, v211\nv_cmp_le_u32 vcc, 2, v201\ns_nop 1\nv_cndmask_b32 v211, v210, v211, vcc")
        e(f"buffer_store_dwordx2 v[152:153], v211, {SWS}, {T0} offen sc1\ns_branch L_KV_D")
        e.label("L_KV_X")
        e(f"s_mul_i32 {T0}, {T2}, {KREC}\ns_add_u32 {T0}, {T0}, {KX}")
        e("v_lshlrev_b32 v211, 2, v209\nv_cmp_eq_u32 vcc, 3, v201\ns_nop 1\nv_cndmask_b32 v211, v210, v211, vcc")
        e(f"buffer_store_dword v153, v211, {SWS}, {T0} offen sc1\ns_branch L_KV_D")
        e.label("L_KV_V")
        e(f"s_sub_u32 {T0}, {sJ}, 3\ns_lshl_b32 {T0}, {T0}, 3\ns_min_u32 {T0}, {T0}, 10\ns_cmp_eq_u32 {sJ}, 5\ns_cselect_b32 {T1}, 14, 8")
        e(f"v_add_u32 v211, {T0}, v200\nv_lshrrev_b32 v212, 1, v201\nv_mul_u32_u24 v212, 18, v212\nv_add_u32 v211, v211, v212\nv_lshlrev_b32 v211, 4, v211")
        e(f"v_and_b32 v212, 1, v201\nv_lshl_add_u32 v211, v212, 3, v211\nv_cmp_le_u32 vcc, {T1}, v200\ns_nop 1\nv_cndmask_b32 v211, v210, v211, vcc")
        e(f"s_mul_i32 {T0}, {T2}, {KREC}\ns_mul_i32 {T1}, {T3}, 576\ns_add_u32 {T0}, {T0}, {T1}\ns_add_u32 {T0}, {T0}, {VT-128}")
        e(f"buffer_store_dwordx2 v[154:155], v211, {SWS}, {T0} offen sc1")
        e.label("L_KV_D")
        e(f"s_mov_b32 {sSPIN}, 0")
        e.label("L_TAG_P")
        e(f"s_waitcnt vmcnt(0)\nv_readfirstlane_b32 {sN0}, v248\nv_readfirstlane_b32 {sN1}, v249\ns_add_u32 {sSPIN}, {sSPIN}, 1")
        e(f"s_sub_u32 {T0}, {sT0}, {sN0}\ns_add_u32 {T0}, {T0}, 100000\ns_cmp_gt_u32 {T0}, 103000\ns_cselect_b32 {T0}, 0, {sN0}\ns_cmp_ge_u32 {sSPIN}, 256\ns_cselect_b32 {T0}, {sN0}, {T0}\ns_cmp_lg_u32 {T0}, 0\ns_cbranch_scc1 L_TAG_Q")
        e(f"v_mov_b32 v246, 0\nbuffer_load_dwordx2 v[248:249], v246, {SDBG}, 0 offen sc1\ns_cmp_lt_u32 {sSPIN}, {p['SPIN']}\ns_cbranch_scc1 L_TAG_P")
        e.label("L_TAG_Q")
        e.vmq = []
        e(f"v_mov_b32 v246, {NONCE}\nds_write_b64 v246, v[248:249]\ns_waitcnt lgkmcnt(0)")
        self.kv_flag()
        if early:
            self.arrive(C_E, "v246", "v247")
        self.arrive(C_XN, "v246", "v247")
        if early:
            self.lds_wait(C_E, 4, "v246", "v247")
            for kk in range(18):
                e.lg(f"ds_read_b64_tr_b16 {vr(8*kk,2)}, v216 offset:{512*kk}", ("e2", kk))
                e.lg(f"ds_read_b64_tr_b16 {vr(8*kk+2,2)}, v216 offset:{512*kk+64}", ("e2", kk))
                if kk >= 6:
                    e.wait(lg=("e2", kk - 6))
                    r = 8 * (kk - 6)
                    e(f"v_mfma_f32_16x16x32_bf16 v[144:147], {vr(r,4)}, {vr(r+4,4)}, {'0' if kk == 6 else 'v[144:147]'}")
            for kk in range(12, 18):
                e.wait(lg=("e2", kk))
                e(f"v_mfma_f32_16x16x32_bf16 v[144:147], {vr(8*kk,4)}, {vr(8*kk+4,4)}, v[144:147]")
            self.arrive(C_A, "v246", "v247")
            e.nop(3)
        e(f"v_mul_f32 v144, {c}, v144\nv_mul_f32 v145, {c}, v145\nv_mul_f32 v146, {c}, v146\nv_mul_f32 v147, {c}, v147")
        e("v_cvt_pk_bf16_f32 v144, v144, v145\nv_cvt_pk_bf16_f32 v145, v146, v147")
        e(f"s_lshr_b32 {T3}, {sA}, 1\ns_mul_i32 {T3}, {T3}, 1536\ns_and_b32 {T4}, {sA}, 1\ns_lshl_b32 {T4}, {T4}, 8\ns_add_u32 {T3}, {T3}, {T4}\ns_add_u32 {T3}, {T3}, {ATT}")
        e(f"v_lshl_add_u32 v214, v200, 4, {T3}\nv_lshlrev_b32 v215, 2, v201")
        self.qaddr("v82", "v215", 64, "v214", "v212", "v213")
        self.qaddr("v83", "v215", 66, "v214", "v212", "v213")
        self.lds_wait(C_A, 4, "v246", "v247")
        e("s_mov_b32 exec_hi, 0")
        e.lg("ds_write_b32 v82, v144")
        e.lg("ds_write_b32 v83, v145")
        e("s_mov_b64 exec, -1")
        self.stamp(3)
        e.wait_all(lg=True)
        self.arrive(C_B, "v246", "v247")
        self.stamp(4)
        for r in range(192, 210):
            e(f"v_mov_b32 v{r}, 0")
        for b in (218, 222):
            e(f"v_mov_b32 v{b+1}, 0x3f803f80\nv_mov_b32 v{b+2}, 0\nv_mov_b32 v{b+3}, 0")
        e(f"v_and_b32 v246, 31, {vL}\nv_mov_b32 v247, 0x3f803f80\nv_cmp_eq_u32 vcc, 18, v246\ns_mov_b32 s82, 0x3ffff\ns_mov_b32 s83, 0x3ffff")
        for r in range(226, 242):
            e(f"v_cndmask_b32 v{r}, 0, v247, vcc")
        e("v_mov_b32 v242, 0xdddddddd")
        d = p["KSPLIT"]
        e(f"s_mul_i32 {T2}, {sA}, {16+d}\ns_cmp_eq_u32 {sA}, 3\ns_cselect_b32 {T2}, {48+d}, {T2}\ns_cmp_ge_u32 {sA}, 2\ns_cselect_b32 {sNT}, {16-d}, {16+d}\ns_lshr_b32 {sNL}, {sNT}, 1")
        e(f"s_mul_i32 {T0}, {T2}, {KREC}\ns_mul_i32 {sKT[1]}, {sNT}, {KREC}\nv_lshl_add_u32 v243, {vL}, 4, {T0}\nv_lshl_add_u32 v244, v246, 2, {T0}")
        e(f"s_nop 0\nv_lshrrev_b32 v245, 5, {vL}\nv_mul_u32_u24 v245, 18, v245\nv_add_u32 v245, v245, v246\nv_lshl_add_u32 v245, v245, 4, {T0}")
        e(f"s_setprio {p['PRIO_A']}")
        self.zero_acc()
        if not p["EARLYKV"]:
            self.q_reads()
            e(f"v_lshrrev_b32 v247, 3, {vL}\nv_mul_u32_u24 v247, {ASZ}, v247\nv_and_b32 v248, 7, {vL}\nv_lshl_add_u32 v247, v248, 3, v247")
            e(f"s_mul_i32 {T2}, {sA}, {8*ASZ}\ns_add_u32 {T2}, {T2}, {ARENA + FLAGS + F_KV}")
            self.flag_poll("v247", T2, 248, sleep=p["G1SLEEP"])
            self.arrive(C_G1, "v247", "v248")
            self.lds_wait(C_G1, 4, "v247", "v248")
            if p["X_SEQ"]:
                self.lds_wait((C_G2, C_H, C_XN)[p["X_SEQ"] - 1], (4, 4, 8)[p["X_SEQ"] - 1], "v247", "v248", sleep=8)
        else:
            e(f"v_min_u32 v247, 53, {vL}\nv_mul_u32_u24 v248, 43, v247\nv_lshrrev_b32 v248, 8, v248\nv_mul_u32_u24 v249, 6, v248\nv_sub_u32 v247, v247, v249")
            e(f"s_lshr_b32 {T2}, {T2}, 1\nv_add_u32 v248, {T2}, v248\nv_min_u32 v248, 31, v248\nv_mul_u32_u24 v248, {ASZ}, v248\nv_lshl_add_u32 v247, v247, 3, v248\ns_mov_b32 {T2}, {ARENA + FLAGS + F_KV}")
            self.flag_poll("v247", T2, 248, sleep=p["G1SLEEP"])
        e(f"s_setprio {p['PRIO_A']}")
        self.stamp(5)

    def q_reads(self):
        e = self.e
        self.lds_wait(C_B, 6, "v252", "v253", sleep=4)
        for i2 in range(4):
            e(f"s_add_u32 {T0}, {sA}, {1+i2}\ns_and_b32 {T0}, {T0}, 3\ns_mul_i32 {T0}, {T0}, 3072\ns_add_u32 {T0}, {T0}, {ATT}")
            e(f"v_lshl_add_u32 v{128+i2}, {vL}, 4, {T0}")
            for rt in range(2):
                e.lg(f"ds_read_b128 {vr(160+4*(2*i2+rt),4)}, v{128+i2} offset:{1536*rt}")
        e("s_mov_b32 exec_hi, 0")
        for i2 in range(4):
            for rt in range(2):
                e.lg(f"ds_read_b32 v{192+2*(2*i2+rt)}, v{128+i2} offset:{1536*rt+1024}")
        e("s_mov_b64 exec, -1")
        e.wait_all(lg=True)

    def kv_flag(self):
        e = self.e
        self.arrive(C_KV, "v246", "v247", rtn=T2)
        e(f"s_cmp_lg_u32 {T2}, 3\ns_cbranch_scc1 L_NOG1")
        self.flag_set(F_KV, sJ, "v246", 248)
        e.label("L_NOG1")

    def send_addr(self):
        e = self.e
        for i2 in range(3):
            e(f"s_add_u32 {T0}, {sA}, {1+i2}\ns_and_b32 {T0}, {T0}, 3\ns_mul_i32 {T0}, {T0}, {6*OSL}\ns_add_u32 {T0}, {T0}, {OXA + 2*i2*OSL}")
            e(f"v_lshl_add_u32 v{246+i2}, {vL}, 4, {T0}")

    def zero_acc(self):
        for r in list(range(128)) + list(range(152, 160)):
            self.e(f"v_mov_b32 v{r}, 0")

    def o_addr(self, vm_, vx, vt):
        e = self.e
        e(f"v_and_b32 {vx}, 31, {vL}\nv_lshrrev_b32 {vt}, 5, {vL}\ns_lshl_b32 {T0}, {sJ}, 2\ns_add_u32 {T0}, {T0}, {sA}\ns_lshl_b32 {T0}, {T0}, 11")
        e(f"s_add_u32 {T0}, {T0}, {sAR}\ns_add_u32 {T0}, {T0}, {OM}\nv_lshl_add_u32 {vm_}, {vx}, 4, {T0}\nv_lshl_add_u32 {vm_}, {vt}, 10, {vm_}")
        e(f"s_lshl_b32 {T1}, {sJ}, 10\ns_add_u32 {T0}, {sAR}, {T1}\ns_lshl_b32 {T1}, {sA}, 2\ns_add_u32 {T0}, {T0}, {T1}\ns_add_u32 {T0}, {T0}, {OX}")
        e(f"v_lshl_add_u32 {vx}, {vx}, 4, {T0}")

    def kvload(self, buf, what, step=True):
        e = self.e
        if what == "k":
            e.vm(f"buffer_load_dwordx4 {vr(210+4*buf,4)}, v243, {SWS}, {sKT[0]} offen sc1", ("k", buf))
            e.vm(f"buffer_load_dword v{218+4*buf}, v244, {SWS}, {sKT[0]} offen offset:{KX} sc1", ("k", buf))
        else:
            e(f"s_mov_b64 exec, {sVM}")
            e.vm(f"buffer_load_dwordx4 {vr(226+8*buf,4)}, v245, {SWS}, {sKT[0]} offen offset:{VT} sc1", ("v", buf))
            e.vm(f"buffer_load_dwordx4 {vr(230+8*buf,4)}, v245, {SWS}, {sKT[0]} offen offset:{VT+576} sc1", ("v", buf))
            e("s_mov_b64 exec, -1")
            if self.p["KROT"]:
                self.wrap_inc(sKT[0], KREC, sKT[1])
            else:
                e(f"s_add_u32 {sKT[0]}, {sKT[0]}, {KREC}")

    def qk(self, i, buf, which, S=None):
        S = vr(128 + 16 * (i & 1), 16) if S is None else S
        if which == 0:
            self.e(f"v_mfma_f32_32x32x16_bf16 {S}, {vr(210+4*buf,4)}, {vr(160+4*i,4)}, 0")
        else:
            self.e(f"v_mfma_f32_32x32x16_bf16 {S}, {vr(218+4*buf,4)}, {vr(192+2*i,4)}, {S}")

    def pv(self, i, buf, s):
        self.e(f"v_smfmac_f32_32x32x32_bf16 {vr(16*i,16)}, {vr(226+8*buf+4*s,4)}, {vr(128+16*(i & 1)+8*s,8)}, v242")

    def att_tile(self, buf, first=False, last=False, sig=False):
        e = self.e

        def send(i):
            for hf in range(2):
                e.lg(f"ds_write_b128 v{246+(i >> 1)}, {vr(16*i+4*hf,4)} offset:{(i & 1)*OSL + 1024*hf}")
        for i in range(8):
            S = 128 + 16 * (i & 1)

            pat = self.p["EXPAT"]
            c1, c2 = ((5, 8), (5, 8), (6, 10), (5, 9))[pat]

            def ex(a, b):
                for k in range(a, b):
                    wide = pat in (1, 3) and (b - a) % 2 == 1 and k == a
                    e(f"v_exp_f32{'_e64' if wide else ''} v{S+k}, v{S+k}")
            ex(0, 2)
            if i > 0:
                self.pv(i - 1, buf, 1)
            else:
                self.pv(7, buf ^ 1, 1)
            if i == 0 and not last:
                self.kvload(buf ^ 1, "v")
                if sig and not self.p["TRIM"]:
                    e(f"s_cmp_lg_u32 {sCNT}, 1\ns_cbranch_scc1 L_NOSIG")
                    self.arrive(C_L, "v246", "v247")
                    e.label("L_NOSIG")
            ex(2, c1)
            nxt = (i + 1, buf) if i < 7 else (0, buf ^ 1)
            do_qk = not (last and i == 7)
            if i == 7 and do_qk:
                e.wait(vm=("k", buf ^ 1))
            if do_qk:
                self.qk(nxt[0], nxt[1], 0)
            ex(c1, c2)
            if do_qk:
                self.qk(nxt[0], nxt[1], 1)
            if i == 7 and not last:
                self.kvload(buf, "k")
            c3 = max(12, c2 + 3) if pat != 2 else 14
            ex(c2, c3)
            if i == 0:
                e.wait(vm=("v", buf))
            self.pv(i, buf, 0)
            ex(c3, 14)
            if last and i == 1 and self.p["T2"]:
                e(f"s_waitcnt lgkmcnt(0)\nv_readfirstlane_b32 {T0}, v253\ns_nop 0\ns_cmp_ge_u32 {T0}, 4\ns_cbranch_scc1 L_FREE")
                self.lds_wait(C_P, 4, "v252", "v253")
                e.label("L_FREE")
            if last and 1 <= i <= 6:
                send(i - 1)
            ex(14, 16)

    def attention(self):
        e, p = self.e, self.p
        e.label("L_ATT")
        self.att_proj()
        e.label("L_PASS")
        b0 = p["KSPLIT"] & 1
        e(f"s_and_b32 {sTI}, {sRB}, {15*p['KROT']}\ns_cmp_ge_u32 {sTI}, {sNT}\ns_cselect_b32 {sTI}, 0, {sTI}\ns_mul_i32 {sKT[0]}, {sTI}, {KREC}")
        e.vmq = []
        self.kvload(b0, "k")
        self.kvload(b0, "v")
        self.kvload(b0 ^ 1, "k")
        if p["TRIM"]:
            self.o_addr("v249", "v251", "v246")
            self.send_addr()
        if p["EARLYKV"]:
            e(f"s_cmp_lg_u32 {sPASS}, 0\ns_cbranch_scc1 L_NOQR")
            self.q_reads()
            e.label("L_NOQR")
            self.stamp(11)
        e.wait(vm=("k", b0))
        self.qk(0, b0, 0)
        self.qk(0, b0, 1)
        e(f"s_mov_b32 {sCNT}, {sNL}")
        e.nop(11)
        if not b0:
            e("s_branch L_AT_MID")
            e.vmq = [("v", 1), ("v", 1), ("k", 0), ("k", 0)]
        e(".p2align 3")
        e.label("L_AT_LOOP")
        if p["STAMP"]:
            e(f"s_sub_u32 m0, 25, {sCNT}")
            self.stamp("m0")
        if p["AHI"]:
            e(f"s_cmp_lg_u32 {sCNT}, {p['AHI']}\ns_cbranch_scc1 L_NOHI\ns_setprio 2")
            e.label("L_NOHI")
            e(f"s_cmp_lg_u32 {sCNT}, {p['ALO']}\ns_cbranch_scc1 L_NOLO\ns_setprio 0")
            e.label("L_NOLO")
        if p["GATE"]:
            e(f"s_cmp_lg_u32 {sCNT}, {p['GATE']}\ns_cbranch_scc1 L_NOGATE")
            self.lds_wait(C_G2, 4, "v246", "v247", sleep=4)
            e.label("L_NOGATE")
        q0 = list(e.vmq)
        self.att_tile(1)
        e.label("L_AT_MID")
        self.att_tile(0, sig=True)
        assert q0 == e.vmq, (q0, e.vmq)
        e(f"s_sub_u32 {sCNT}, {sCNT}, 1\ns_cmp_lg_u32 {sCNT}, 0\ns_cbranch_scc1 L_AT_LOOP")
        self.stamp(6)
        if p["T2"]:
            e(f"v_mov_b32 v252, {SYNC}\nds_read_b32 v253, v252 offset:{4*C_P}")
        else:
            self.lds_wait(C_G2 if p.get("NEWTAIL") else C_P, 4, *(("v252", "v253") if p["TRIM"] else ("v246", "v247")))
        if not p["TRIM"]:
            self.send_addr()
        if p["OORD"] == 2 and p["OEARLY"] == 1:
            self.arrive(C_L, "v252", "v253")
        self.att_tile(1, last=True)
        if p["OORD"] == 2 and p["OEARLY"] == 2:
            self.arrive(C_L, "v252", "v253")
        e.nop(2)
        self.pv(7, 1, 1)
        e("s_mov_b32 exec_hi, 0")
        for i in range(6):
            e.lg(f"ds_write_b128 v{246+(i >> 1)}, {vr(16*i+8,4)} offset:{(i & 1)*OSL + 2048}")
        e("s_mov_b64 exec, -1")
        e("v_add_f32 v128, v10, v26\nv_add_f32 v129, v42, v58\nv_add_f32 v130, v74, v90\nv_min3_f32 v131, v10, v26, v42\nv_min3_f32 v132, v58, v74, v90")
        e("v_add_f32 v128, v128, v129\nv_add_f32 v130, v130, v106\nv_min3_f32 v131, v131, v132, v106\nv_add_f32 v128, v128, v130")
        e("v_add_f32 v128, v128, v122\nv_min_f32 v131, v131, v122")
        e(f"v_cmp_nge_f32 vcc, {f2u(2.0**40):#x}, v128\nv_mov_b32 v129, {f2u(2.0**-64):#x}\ns_mov_b32 {T2}, vcc_lo\nv_cmp_nge_f32 vcc, v131, v129\ns_nop 1\ns_or_b32 {T2}, {T2}, vcc_lo")
        if p["FORCE_FB"]:
            e(f"s_mov_b32 {T2}, 1")
        e(f"s_cmp_lg_u32 {T2}, 0\ns_cselect_b32 {T2}, 0x10001, 1")
        e.wait_all(lg=True)
        self.arrive(C_R, "v128", "v129", val=T2)
        e(f"s_mul_i32 {T0}, {sA}, {6*OSL}\ns_add_u32 {T0}, {T0}, {OXA}\nv_lshl_add_u32 v246, {vL}, 4, {T0}")
        if not p["TRIM"]:
            self.o_addr("v249", "v251", "v248")
        e(f"s_lshl_b32 {T3}, {sPASS}, 2\ns_add_u32 {T3}, {T3}, 4")
        self.lds_wait(C_R, T3, "v128", "v129", mask="0xffff", out=T2, sleep=0 if p["T2"] else 1)
        self.stamp(7)
        e(f"s_cmp_lg_u32 {sPASS}, 0\ns_cbranch_scc1 L_SAFE\ns_cmp_ge_u32 {T2}, 0x10000\ns_cbranch_scc1 L_FALLBACK")
        e.label("L_SAFE")
        for tt in range(2):
            for i in range(3):
                for q in range(3):
                    e.lg(f"ds_read_b128 {vr(12*(3*tt+i)+4*q,4)}, v246 offset:{(2*i+tt)*OSL + 1024*q}", ("r", tt, i))
        if p["T2"]:
            for tt in range(2):
                O = 96 + 16 * tt
                for i in range(3):
                    e.wait(lg=("r", tt, i))
                    r0 = 12 * (3 * tt + i)
                    e(f"v_add_f32 v{O+10}, v{O+10}, v{r0+10}")
                    if i == 2:
                        e(f"v_mul_f32 v{128+2*tt}, {sNL2E}, v{O+10}\nv_mul_f32 v{129+2*tt}, {sNL2E}, v{O+10}")
                    for k in range(0, 10, 2):
                        e(f"v_pk_add_f32 v[{O+k}:{O+k+1}], v[{O+k}:{O+k+1}], v[{r0+k}:{r0+k+1}]")
                e(f"v_permlane32_swap_b32 v{128+2*tt}, v{129+2*tt}")
                if tt == 0:
                    e("s_nop 0\nv_rcp_f32 v128, v128")
            e("s_nop 0\nv_rcp_f32 v130, v130")
            for tt in range(2):
                O = 96 + 16 * tt
                for k in range(0, 10, 2):
                    e(f"v_pk_mul_f32 v[{O+k}:{O+k+1}], v[{O+k}:{O+k+1}], v[{128+2*tt}:{129+2*tt}] op_sel_hi:[1,0]")
                for k in range(5):
                    e(f"v_cvt_pk_bf16_f32 v{132+8*tt+k}, v{O+2*k}, v{O+2*k+1}")
                for k in range(5):
                    e(f"v_min_u32 v{132+8*tt+k}, -2, v{132+8*tt+k}")
                e.vm(f"buffer_store_dwordx4 {vr(132+8*tt,4)}, v249, {SWS}, 0 offen offset:{512*tt} sc1")
            e("s_mov_b32 exec_hi, 0")
            for tt in range(2):
                e.vm(f"buffer_store_dword v{136+8*tt}, v251, {SWS}, 0 offen offset:{512*tt} sc1")
            e("s_mov_b64 exec, -1")
        else:
            for tt in range(2):
                O = 96 + 16 * tt
                for i in range(3):
                    e.wait(lg=("r", tt, i))
                    r0 = 12 * (3 * tt + i)
                    if p["TRIM"]:
                        e(f"v_add_f32 v{O+10}, v{O+10}, v{r0+10}")
                        for k in range(0, 10, 2):
                            e(f"v_pk_add_f32 v[{O+k}:{O+k+1}], v[{O+k}:{O+k+1}], v[{r0+k}:{r0+k+1}]")
                    else:
                        for k in (10, 0, 1, 2, 3, 4, 5, 6, 7, 8, 9):
                            e(f"v_add_f32 v{O+k}, v{O+k}, v{r0+k}")
                e(f"v_mov_b32 v128, v{O+10}\nv_mov_b32 v129, v{O+10}\ns_nop 1\nv_permlane32_swap_b32 v128, v129\ns_nop 1\nv_mul_f32 v128, {sNL2E}, v128\nv_rcp_f32 v128, v128\ns_nop 0")
                for k in range(0, 10, 2 if p["TRIM"] else 1):
                    e(f"v_pk_mul_f32 v[{O+k}:{O+k+1}], v[{O+k}:{O+k+1}], v[128:129] op_sel_hi:[1,0]" if p["TRIM"] else f"v_mul_f32 v{O+k}, v{O+k}, v128")
                for k in range(5):
                    e(f"v_cvt_pk_bf16_f32 v{132+8*tt+k}, v{O+2*k}, v{O+2*k+1}")
                if p["SENT"]:
                    for k in range(5):
                        e(f"v_min_u32 v{132+8*tt+k}, -2, v{132+8*tt+k}")
                e.vm(f"buffer_store_dwordx4 {vr(132+8*tt,4)}, v249, {SWS}, 0 offen offset:{512*tt} sc1")
                e("s_mov_b32 exec_hi, 0")
                e.vm(f"buffer_store_dword v{136+8*tt}, v251, {SWS}, 0 offen offset:{512*tt} sc1")
                e("s_mov_b64 exec, -1")
        self.stamp(8)
        if p["OMODE"] == 0:
            e.wait_all(vm=True)
        if p["OMODE"] in (0, 4):
            e(f"s_lshl_b32 {T2}, {sJ}, 2\ns_add_u32 {T2}, {T2}, {sA}")
            self.flag_set(F_O, T2, "v128", 130)
        self.arrive(C_O, "v128", "v129")
        self.stamp(9)
        e("s_branch L_FIN")
        self.fallback()

    def fallback(self):
        e = self.e
        e.label("L_FALLBACK")
        e(f"s_mov_b32 {sPASS}, 1\ns_mov_b32 {sKT[0]}, 0\ns_mov_b32 {sCNT}, 0")
        for i in range(8):
            e(f"v_mov_b32 v{i}, 0xff800000")
        e.label("L_FB_LOOP")
        self.kvload(0, "k")
        e(f"s_add_u32 {sKT[0]}, {sKT[0]}, {KREC}")
        e.wait_all(vm=True)
        for i in range(8):
            self.qk(i, 0, 0, S="v[128:143]")
            self.qk(i, 0, 1, S="v[128:143]")
            e.nop(12)
            for k in range(8):
                e(f"v_max3_f32 v{i}, v{i}, v{128+2*k}, v{129+2*k}")
        e(f"s_add_u32 {sCNT}, {sCNT}, 1\ns_cmp_lt_u32 {sCNT}, {sNT}\ns_cbranch_scc1 L_FB_LOOP")
        e(f"v_and_b32 v247, 31, {vL}")
        for i in range(8):
            e(f"v_mov_b32 v8, v{i}\ns_nop 1\nv_permlane32_swap_b32 v{i}, v8\ns_nop 1\nv_max_f32 v{i}, v{i}, v8")
            e(f"s_lshl_b32 {T0}, {sA}, 1\ns_add_u32 {T0}, {T0}, {2+i}\ns_and_b32 {T0}, {T0}, 7\ns_lshl_b32 {T0}, {T0}, 7\ns_add_u32 {T0}, {T0}, {MX}")
            e(f"v_lshl_add_u32 v{16+i}, v247, 2, {T0}\ns_lshl_b32 {T1}, {sA}, 10\nv_add_u32 v9, {T1}, v{16+i}")
            e(f"ds_write_b32 v9, v{i}")
        e.wait_all(lg=True)
        self.arrive(C_M, "v128", "v129")
        self.lds_wait(C_M, 4, "v128", "v129")
        e("s_mov_b32 exec_hi, 0")
        for i in range(8):
            for a in range(4):
                e(f"ds_read_b32 v{8+a}, v{16+i} offset:{1024*a}")
            e.wait_all(lg=True)
            e("v_max3_f32 v8, v8, v9, v10\nv_max_f32 v8, v8, v11\nv_cvt_pk_bf16_f32 v9, v8, v8\nv_and_b32 v9, 0xffff0000, v9\nv_sub_f32 v10, v8, v9")
            e(f"v_cvt_pk_bf16_f32 v{193+2*i}, -v9, -v10")
        e("s_mov_b64 exec, -1")
        self.zero_acc()
        e("s_branch L_PASS")

    def build(self):
        e, p = self.e, self.p
        self.prologue()
        self.ffn()
        self.attention()
        e.label("L_FIN")
        if p["STAMP"]:
            e("s_waitcnt vmcnt(0)")
            self.stamp(12)
            e(f"s_lshl_b32 {T0}, s2, 3\ns_add_u32 {T0}, {T0}, {sW}\ns_lshl_b32 {T0}, {T0}, 8\ns_add_u32 {T0}, {T0}, {STAMPS}\nv_lshlrev_b32 v0, 2, {vL}")
            e(f"buffer_store_dword v255, v0, {SWS}, {T0} offen\ns_add_u32 {T0}, {T0}, 0x80000\nbuffer_store_dword v254, v0, {SWS}, {T0} offen")
            e(f"s_cmp_lg_u32 s2, 100\ns_cbranch_scc1 L_END\ns_cmp_lg_u32 {sW}, 0\ns_cbranch_scc1 L_END")
            e(f"v_readlane_b32 {T0}, v255, 0\ns_nop 1\nv_subrev_u32 v1, {T0}, v255\ns_mov_b64 exec, 0x1ffe\nbuffer_store_dword v1, v0, {SDBG}, 0 offen")
        e.label("L_END")
        e("s_endpgm")
        probs = check_hazards(e.lines)
        head = open("cdna_kernels/" + NAME + ".s.ref").read().split("\n")
        hdr = [l for l in head if l.startswith(";") and "@launch" not in l and "Override" not in l and "grid=ceil" not in l]
        txt = "\n".join(hdr) + f"""
; One persistent workgroup per CU owns 64 rows x (576 FFN columns, 4 heads, 72 output columns); 8 workgroups share a row block.
;   all waves : LayerNorm of the 64 rows -> LDS (bf16, scaled by -log2(e); the scale is undone in q, 1/l and the FFN sum)
;   waves 0-3 : (2,3: Q projection) GEMM1 -> SiLU -> GEMM2 -> bf16 partial sums to d_ws -> sum of the 8 partials + x
;               -> output projection of the row block's attention output -> d_out
;   waves 4-7 : K/V projection (published to d_ws), then softmax(QK^T)V over a quarter of the keys each for all 8 query tiles;
;               P stays fp32 in registers, the sparse MFMA picks its high halves; a ones row of V^T gives the row sums.
; Softmax shift: the first pass uses shift 0 and checks every row sum against [2^-64, 2^40]; if any sum is outside (or NaN)
; the workgroup computes the true row maxima (L_FALLBACK) and runs the pass again with them subtracted.
; Hand-offs between workgroups: write-through stores, then a flag holding this launch's tag (published through d_debug);
; the attention output is checked word by word against an "empty" pattern written earlier in the same launch.
; @launch grid=(256,1,1) block=(512,1,1) lds={LDS_BYTES}
.amdgcn_target "amdgcn-amd-amdhsa--gfx950"
.text
.globl {NAME}_kernel
.p2align 8
.type {NAME}_kernel,@function
{NAME}_kernel:
{e.text()}
.section .rodata,"a"
.p2align 6
.amdhsa_kernel {NAME}_kernel
  .amdhsa_next_free_vgpr 256
  .amdhsa_next_free_sgpr 102
  .amdhsa_accum_offset 256
  .amdhsa_group_segment_fixed_size 0
  .amdhsa_kernarg_size 88
  .amdhsa_user_sgpr_count 2
  .amdhsa_user_sgpr_kernarg_segment_ptr 1
  .amdhsa_system_sgpr_workgroup_id_x 1
.end_amdhsa_kernel
"""
        return txt, probs


if __name__ == "__main__":
    out = sys.argv[1]
    kw = {}
    for a in sys.argv[2:]:
        k, v = a.split("=")
        kw[k] = int(v, 0)
    txt, probs = G(**kw).build()
    for x in probs[:40]:
        print("HAZARD", x)
    open(out, "w").write(txt)
    print("wrote", out, len(txt), "bytes;", len(probs), "hazards")
```
